```python
import torch

def _softmax(x, axis=-1):
    return torch.softmax(x, dim=axis)
def _gelu(x):
    return torch.nn.functional.gelu(x, approximate="tanh")
def _silu(x):
    return torch.nn.functional.silu(x)
def _sigmoid(x):
    return torch.sigmoid(x)
def _layernorm(x, axis=-1, eps=1e-5):
    m = x.mean(dim=axis, keepdim=True)
    v = x.var(dim=axis, keepdim=True, unbiased=False)
    return (x - m) / torch.sqrt(v + eps)
def _scatter_add(tgt, idx, src, axis=0):
    return tgt.clone().index_add_(axis, idx, src)
def _segment_sum(src, seg, n):
    out = torch.zeros((n,) + src.shape[1:], dtype=src.dtype)
    return out.index_add_(0, seg, src)
def _pad(x, pw):
    flat = tuple(v for pair in reversed(pw) for v in pair)
    return torch.nn.functional.pad(x, flat)

kernel_name = 'concat_heads__ssm_conv_h3__softmax_full_mha__prompt'

def setup_inputs():

    _w = (lambda a: (lambda t: t.to(torch.bfloat16) if t.is_floating_point() else t)(torch.as_tensor(a)))
    def _A_setup():
        B, S, D = 1, 2048, 448
        ks = 4
        return {
            "q": _w((lambda *s: torch.randn(*s, dtype=torch.bfloat16) * 0.05)(B, S, D)),
            "k": _w((lambda *s: torch.randn(*s, dtype=torch.bfloat16) * 0.4)(B, S, D)),
            "v": _w((lambda *s: torch.randn(*s, dtype=torch.bfloat16) * 0.4)(B, S, D)),
            "shift_k": _w((lambda *s: torch.randn(*s, dtype=torch.bfloat16) * 0.4)(D, ks) * 0.5),
            "ssm_k": _w((lambda *s: torch.randn(*s, dtype=torch.bfloat16) * 0.8)(D, S) * (1.0 / S ** 0.5)),
            "ssm_D": _w((lambda *s: torch.randn(*s, dtype=torch.bfloat16) * 0.4)(D)),
        }
    _A_in = _A_setup()

    def _B_setup():
        B, S, D = 1, 2048, 448
        return {
            "x": _w((lambda *s: torch.randn(*s, dtype=torch.bfloat16) * 0.2)(B, S, D)),
            "wqkv": _w((lambda *s: torch.randn(*s, dtype=torch.bfloat16) * 0.2)(D, 3 * D)),
            "wo": _w((lambda *s: torch.randn(*s, dtype=torch.bfloat16) * 0.05)(D, D)),
        }
    _B_in = _B_setup()

    return {
        "A_q": _A_in["q"],
        "A_k": _A_in["k"],
        "A_v": _A_in["v"],
        "A_shift_k": _A_in["shift_k"],
        "A_ssm_k": _A_in["ssm_k"],
        "A_ssm_D": _A_in["ssm_D"],
        "B_x": _B_in["x"],
        "B_wqkv": _B_in["wqkv"],
        "B_wo": _B_in["wo"],
    }

def reference(A_q, A_k, A_v, A_shift_k, A_ssm_k, A_ssm_D, B_x, B_wqkv, B_wo):
    def _A_ref(q, k, v, shift_k, ssm_k, ssm_D):
        B, S, D = q.shape
        ks = shift_k.shape[-1]
        k_pad = _pad(k, ((0, 0), (ks - 1, 0), (0, 0)))
        k_shift = torch.zeros_like(k)
        for t in range(ks):
            k_shift = k_shift + k_pad[:, t:t + S, :] * shift_k[:, ks - 1 - t][None, None, :]
        kv = k_shift * v
        L = 2 * S
        kv_pad = _pad(kv, ((0, 0), (0, S), (0, 0)))
        kf_pad = _pad(ssm_k, ((0, 0), (0, S)))
        kv_f = (lambda x, axes=(-2,-1): torch.fft.rfft2(x.float(), dim=axes))(kv_pad[:, None, :, :], axes=(1, 2))
        kf_f = (lambda x, axes=(-2,-1): torch.fft.rfft2(x.float(), dim=axes))(kf_pad[:, None, :], axes=(1, 2))
        kf_f = (lambda x, *d: x.permute(*d))(kf_f, 1, 2, 0)
        y_f = kv_f * kf_f[None, :, :, :]
        y = (lambda x, s, axes=(-2,-1): torch.fft.irfft2(x, s=s, dim=axes).to(torch.bfloat16))(y_f, (1, L), axes=(1, 2))[:, 0, :S, :]
        y = y + kv * ssm_D[None, None, :]
        return q * y

    def _B_ref(x, wqkv, wo):
        B, S, D = x.shape
        H = 16; Dh = D // H
        qkv = (lambda x, *d: x.permute(*d))((x @ wqkv).reshape(B, S, 3, H, Dh), 2, 0, 3, 1, 4)
        q, k, v = qkv[0], qkv[1], qkv[2]
        scale = Dh ** -0.5
        scores = torch.einsum("bhqd,bhkd->bhqk", q, k) * scale
        p = _softmax(scores, axis=-1)
        o = torch.einsum("bhqk,bhkd->bhqd", p, v)
        return (lambda x, *d: x.permute(*d))(o, 0, 2, 1, 3).reshape(B, S, D) @ wo

    a = _A_ref(A_q, A_k, A_v, A_shift_k, A_ssm_k, A_ssm_D)
    b = _B_ref(B_x, B_wqkv, B_wo)
    return torch.concatenate([a, b], axis=-1)
```

```python
import sys, math

NAME = "concat_heads__ssm_conv_h3__softmax_full_mha__prompt"
KNAME = NAME + "_kernel"

class E:
    def __init__(self):
        self.lines = []
    def __call__(self, s=""):
        for ln in s.split("\n"):
            self.lines.append(ln)
    def c(self, s):
        self.lines.append("    ; " + s)
    def i(self, s):
        self.lines.append("    " + s)
    def label(self, s):
        self.lines.append(s + ":")
    def text(self):
        return "\n".join(self.lines) + "\n"

def vr(a, n=1):
    return f"v{a}" if n == 1 else f"v[{a}:{a+n-1}]"
def ar(a, n=1):
    return f"a{a}" if n == 1 else f"a[{a}:{a+n-1}]"
def sr(a, n=1):
    return f"s{a}" if n == 1 else f"s[{a}:{a+n-1}]"

S, D, H, DH = 2048, 448, 16, 28
SZ_SD   = S * D * 2
SZ_SHK  = D * 4 * 2
SZ_WQKV = D * 3 * D * 2
SZ_WO   = D * D * 2
SZ_OUT  = S * 2 * D * 2
WS_KV = 0x000000
WS_XT = 0x400000
WS_YT = 0x600000
WS_OF = 0x800000
WS_FL = 0xA00000
FL_A1, FL_B1, FL_A2, FL_B2 = 0, 0x8000, 0x10000, 0x18000
WS_TS = 0xB00000
WS_SIZE = 0xC00000

L_W    = 0
L_A1   = 86016
L_Q    = 86016
L_H    = 95232
H_CH   = 4160
L_X    = 103552
X_CH   = 5248
L_CARRY= 114048
L_Y    = L_X
L_WO   = 0
L_RED  = 58368
L_A3   = 107520
L_MISC = 116736
LDS_SIZE = 116800

S_G = 2
S_W = 3
R_K, R_V, R_Q, R_SHK, R_SSMK, R_X, R_WQKV, R_WO, R_OUT, R_WS, R_DBG = 4, 8, 12, 16, 20, 24, 28, 32, 36, 40, 44
S_H, S_R, S_CB, S_RB = 48, 49, 50, 51
S_NONCE = 52
S_D2 = 54
S_T0 = 56
S_PTR = 64
S_T1 = 88
S_SLOW = 96
S_IT = 97
S_TS = 98
S_MHH = 64
S_MONE = 66
S63 = 68
S_KV = 70

QSCALE = (DH ** -0.5) * math.log2(math.e)
def f2u(x):
    import struct
    return struct.unpack("<I", struct.pack("<f", x))[0]

class Cfg:
    stop_after = 99
    stamps = False
    nosync = False

def srd(e, r, ptr, size):
    e.i(f"s_mov_b32 s{r}, s{ptr}")
    e.i(f"s_and_b32 s{r+1}, s{ptr+1}, 0xffff")
    e.i(f"s_mov_b32 s{r+2}, {size}")
    e.i(f"s_mov_b32 s{r+3}, 0x20000")

def stamp(e, cfg, idx):
    if not cfg.stamps:
        return
    e.c(f"stamp {idx}")
    e.i(f"s_memtime s[{S_TS}:{S_TS+1}]")
    e.i("s_waitcnt lgkmcnt(0)")
    e.i(f"v_writelane_b32 v250, s{S_TS}, {idx}")


V_TID, V_LANE, V_L16 = 0, 1, 2
V_TS = 250

def prologue(e, cfg):
    e.c("==== prologue ====")
    e.i(f"s_load_dwordx16 s[{S_PTR}:{S_PTR+15}], s[0:1], 0")
    e.i(f"s_load_dwordx8 s[{S_PTR+16}:{S_PTR+23}], s[0:1], 64")
    e.i("s_cmp_ge_u32 s2, 256")
    e.i("s_cbranch_scc1 L_end")
    if cfg.stamps:
        e.i(f"v_mov_b32 v{V_TS}, 0")
    e.i(f"v_lshrrev_b32 v3, 6, v0")
    e.i(f"v_and_b32 v{V_LANE}, 63, v0")
    e.i(f"v_readfirstlane_b32 s{S_W}, v3")
    e.i(f"v_lshlrev_b32 v{V_L16}, 4, v{V_LANE}")
    e.i(f"s_and_b32 s{S_T0}, s2, 7")
    e.i(f"s_lshr_b32 s{S_T0+1}, s2, 3")
    e.i(f"s_and_b32 s{S_H}, s{S_T0}, 3")
    e.i(f"s_lshl_b32 s{S_H}, s{S_H}, 2")
    e.i(f"s_and_b32 s{S_T0+2}, s{S_T0+1}, 3")
    e.i(f"s_add_u32 s{S_H}, s{S_H}, s{S_T0+2}")
    e.i(f"s_lshr_b32 s{S_R}, s{S_T0}, 2")
    e.i(f"s_lshl_b32 s{S_R}, s{S_R}, 3")
    e.i(f"s_lshr_b32 s{S_T0+2}, s{S_T0+1}, 2")
    e.i(f"s_add_u32 s{S_R}, s{S_R}, s{S_T0+2}")
    e.i(f"s_lshr_b32 s{S_CB}, s2, 5")
    e.i(f"s_min_u32 s{S_CB}, s{S_CB}, 6")
    e.i(f"s_and_b32 s{S_RB}, s2, 31")

def a1_addr(e, cfg):
    w = S_W
    e.c("A1 addresses")
    e.i(f"s_lshr_b32 s{S_T0}, s{w}, 1")
    e.i(f"s_lshl_b32 s{S_T0}, s{S_T0}, 5")
    e.i(f"s_lshl_b32 s{S_T0+1}, s{S_RB}, 6")
    e.i(f"s_add_u32 s{S_T0}, s{S_T0}, s{S_T0+1}")
    e.i(f"s_mul_i32 s{S_T0}, s{S_T0}, 896")
    e.i(f"s_lshl_b32 s{S_T0+1}, s{S_CB}, 7")
    e.i(f"s_add_u32 s{S_T0}, s{S_T0}, s{S_T0+1}")
    e.i(f"s_and_b32 s{S_T0+1}, s{w}, 1")
    e.i(f"s_lshl_b32 s{S_T0+2}, s{S_T0+1}, 6")
    e.i(f"s_add_u32 s{S_T0}, s{S_T0}, s{S_T0+2}")
    e.i(f"v_and_b32 v3, 15, v{V_LANE}")
    e.i(f"v_mul_u32_u24 v3, 896, v3")
    e.i(f"v_and_b32 v13, 0x30, v{V_LANE}")
    e.i(f"v_add3_u32 v4, v3, v13, s{S_T0}")
    for j in range(1, 4):
        e.i(f"v_subrev_u32 v{4+j}, {896*j}, v4")
    e.i(f"v_add_u32 v8, {16*896}, v4")
    for j in range(1, 4):
        e.i(f"v_subrev_u32 v{8+j}, {896*j}, v8")
    e.i(f"s_lshl_b32 s{S_T0}, s{S_CB}, 9")
    e.i(f"s_lshl_b32 s{S_T0+1}, s{S_T0+1}, 8")
    e.i(f"s_add_u32 s{S_T0}, s{S_T0}, s{S_T0+1}")
    e.i(f"v_lshlrev_b32 v12, 2, v13")
    e.i(f"v_add_u32 v12, s{S_T0}, v12")

KA, VA, WSH = 16, 48, 56
def a1_loads(e, cfg):
    e.c("A1 loads")
    for it in range(2):
        for j in range(4):
            e.i(f"buffer_load_dwordx4 {vr(KA+16*it+4*j,4)}, v{4+4*it+j}, s[{R_K}:{R_K+3}], 0 offen")
    for it in range(2):
        e.i(f"buffer_load_dwordx4 {vr(VA+4*it,4)}, v{4+4*it}, s[{R_V}:{R_V+3}], 0 offen")
    for m in range(4):
        e.i(f"buffer_load_dwordx4 {vr(WSH+4*m,4)}, v12, s[{R_SHK}:{R_SHK+3}], 0 offen offset:{16*m}")
N_A1_LOADS = 14

V_XOFF = 15
V_DMA = 72
def b1_addr(e, cfg):
    e.c("B1 addresses")
    e.i(f"s_lshl_b32 s{S_T0}, s{S_R}, 7")
    e.i(f"s_lshl_b32 s{S_T0+1}, s{S_W}, 5")
    e.i(f"s_add_u32 s{S_T0}, s{S_T0}, s{S_T0+1}")
    e.i(f"s_mul_i32 s{S_T0}, s{S_T0}, 896")
    e.i(f"v_and_b32 v3, 31, v{V_LANE}")
    e.i(f"v_mul_u32_u24 v3, 896, v3")
    e.i(f"v_lshrrev_b32 v13, 5, v{V_LANE}")
    e.i(f"v_lshlrev_b32 v13, 4, v13")
    e.i(f"v_add3_u32 v{V_XOFF}, v3, v13, s{S_T0}")
    e.i(f"s_mul_i32 s{S_T0}, s{S_H}, 56")
    for t in range(3):
        d = V_DMA + t
        e.i(f"v_add_u32 v3, {64*t}, v{V_LANE}")
        e.i(f"v_mul_u32_u24 v13, 43691, v3")
        e.i(f"v_lshrrev_b32 v13, 19, v13")
        e.i(f"v_mul_u32_u24 v14, 12, v13")
        e.i(f"v_sub_u32 v3, v3, v14")
        e.i(f"v_mul_u32_u24 v{d}, 2688, v13")
        e.i(f"v_lshrrev_b32 v13, 2, v3")
        e.i(f"v_and_b32 v3, 3, v3")
        e.i(f"v_mul_u32_u24 v14, 896, v13")
        e.i(f"v_add3_u32 v{d}, v{d}, v14, s{S_T0}")
        e.i(f"v_lshrrev_b32 v13, 1, v13")
        e.i(f"v_add_u32 v14, 1, v3")
        e.i(f"v_mul_u32_u24 v13, v13, v14")
        e.i(f"v_lshlrev_b32 v3, 3, v3")
        e.i(f"v_sub_u32 v3, v3, v13")
        e.i(f"v_lshl_add_u32 v{d}, v3, 1, v{d}")

def b1_loads(e, cfg, j):
    for n in range(4*j, 4*j+4):
        e.i(f"buffer_load_dwordx4 {ar(4*n,4)}, v{V_XOFF}, s[{R_X}:{R_X+3}], 0 offen offset:{32*n}")
    e.i(f"s_add_u32 s{S_T0}, s{S_W}, {4*j}")
    e.i(f"s_mul_i32 s{S_T0+1}, s{S_T0}, 43008")
    e.i(f"s_mul_i32 s{S_T0+2}, s{S_T0}, 3072")
    for t in range(3):
        if t == 0:
            e.i(f"s_add_u32 m0, s{S_T0+2}, {L_W}")
        else:
            e.i(f"s_add_u32 m0, s{S_T0+2}, {L_W + 1024*t}")
        e.i("s_nop 0")
        e.i(f"buffer_load_dwordx4 v{V_DMA+t}, s[{R_WQKV}:{R_WQKV+3}], s{S_T0+1} offen lds")

def a1_compute(e, cfg, nyounger):
    e.c("A1 compute")
    e.i(f"s_waitcnt vmcnt({nyounger})")
    e.i(f"s_mov_b32 s{S_T0}, 0x05040100")
    e.i(f"s_mov_b32 s{S_T0+1}, 0x07060302")
    e.i(f"s_mov_b32 s{S_T0+2}, 0xffff0000")
    T = 76
    OUTR = 108
    for it in range(2):
        for m in range(4):
            k = lambda j: KA + 16*it + 4*j + m
            b = T + 4*m
            e.i(f"v_perm_b32 v{b+0}, v{k(1)}, v{k(0)}, s{S_T0}")
            e.i(f"v_perm_b32 v{b+1}, v{k(1)}, v{k(0)}, s{S_T0+1}")
            e.i(f"v_perm_b32 v{b+2}, v{k(3)}, v{k(2)}, s{S_T0}")
            e.i(f"v_perm_b32 v{b+3}, v{k(3)}, v{k(2)}, s{S_T0+1}")
        A = T + 16
        for m in range(4):
            b = T + 4*m
            e.i(f"v_dot2_f32_bf16 v{A+2*m}, v{b+0}, v{WSH+4*m+0}, 0")
            e.i(f"v_dot2_f32_bf16 v{A+2*m+1}, v{b+1}, v{WSH+4*m+2}, 0")
        U = T + 24
        for m in range(4):
            e.i(f"v_lshlrev_b32 v{U+2*m}, 16, v{VA+4*it+m}")
            e.i(f"v_and_b32 v{U+2*m+1}, s{S_T0+2}, v{VA+4*it+m}")
        for m in range(4):
            b = T + 4*m
            e.i(f"v_dot2_f32_bf16 v{A+2*m}, v{b+2}, v{WSH+4*m+1}, v{A+2*m}")
            e.i(f"v_dot2_f32_bf16 v{A+2*m+1}, v{b+3}, v{WSH+4*m+3}, v{A+2*m+1}")
        e.i("s_nop 2")
        for c in range(8):
            e.i(f"v_mul_f32 v{A+c}, v{A+c}, v{U+c}")
        for m in range(4):
            e.i(f"v_cvt_pk_bf16_f32 v{OUTR+4*it+m}, v{A+2*m}, v{A+2*m+1}")
    e.i(f"s_lshr_b32 s{S_T0}, s{S_W}, 1")
    e.i(f"s_mul_i32 s{S_T0}, s{S_T0}, {32*144}")
    e.i(f"s_and_b32 s{S_T0+1}, s{S_W}, 1")
    e.i(f"s_lshl_b32 s{S_T0+1}, s{S_T0+1}, 6")
    e.i(f"s_add_u32 s{S_T0}, s{S_T0}, s{S_T0+1}")
    e.i(f"s_add_u32 s{S_T0}, s{S_T0}, {L_A1}")
    e.i(f"v_and_b32 v3, 15, v{V_LANE}")
    e.i(f"v_mul_u32_u24 v3, 144, v3")
    e.i(f"v_and_b32 v13, 0x30, v{V_LANE}")
    e.i(f"v_add3_u32 v3, v3, v13, s{S_T0}")
    e.i(f"ds_write_b128 v3, {vr(OUTR,4)}")
    e.i(f"ds_write_b128 v3, {vr(OUTR+4,4)} offset:{16*144}")
    e.i(f"v_lshrrev_b32 v3, 4, v{V_LANE}")
    e.i(f"v_lshlrev_b32 v3, 3, v3")
    e.i(f"v_bfe_u32 v13, v{V_LANE}, 2, 2")
    e.i(f"v_add_u32 v3, v3, v13")
    e.i(f"v_mul_u32_u24 v3, 144, v3")
    e.i(f"v_and_b32 v13, 3, v{V_LANE}")
    e.i(f"v_lshlrev_b32 v13, 3, v13")
    e.i(f"s_lshl_b32 s{S_T0}, s{S_W}, 5")
    e.i(f"s_add_u32 s{S_T0}, s{S_T0}, {L_A1}")
    e.i(f"v_add3_u32 v3, v3, v13, s{S_T0}")
    e.i(f"s_lshl_b32 s{S_T0}, s{S_CB}, 6")
    e.i(f"s_lshl_b32 s{S_T0+1}, s{S_W}, 4")
    e.i(f"s_add_u32 s{S_T0}, s{S_T0}, s{S_T0+1}")
    e.i(f"s_lshl_b32 s{S_T0}, s{S_T0}, 12")
    e.i(f"s_lshl_b32 s{S_T0+1}, s{S_RB}, 7")
    e.i(f"s_add_u32 s{S_T0}, s{S_T0}, s{S_T0+1}")
    e.i(f"s_add_u32 s{S_T0}, s{S_T0}, {WS_XT}")
    e.i(f"v_and_b32 v13, 15, v{V_LANE}")
    e.i(f"v_lshlrev_b32 v13, 12, v13")
    e.i(f"v_and_b32 v14, 0x30, v{V_LANE}")
    e.i(f"v_add3_u32 v13, v13, v14, s{S_T0}")
    e.i("s_waitcnt lgkmcnt(0)")
    e.i("s_barrier")
    for it2 in range(2):
        for jj in range(2):
            e.i(f"ds_read_b64_tr_b16 {vr(76+4*it2+2*jj,2)}, v3 offset:{(32*it2+4*jj)*144}")
    e.i("s_waitcnt lgkmcnt(2)")
    e.i(f"buffer_store_dwordx4 {vr(76,4)}, v13, s[{R_WS}:{R_WS+3}], 0 offen sc1")
    e.i("s_waitcnt lgkmcnt(0)")
    e.i(f"buffer_store_dwordx4 {vr(80,4)}, v13, s[{R_WS}:{R_WS+3}], 0 offen offset:64 sc1")
N_A1_STORES = 2

ACCQ, ACCK, ACCV = 100, 116, 132
WF = 176
V_WTR = 200
KVB = 160
def b1_traddr(e, cfg):
    e.c("B1 tr-read addresses")
    e.i(f"v_lshrrev_b32 v3, 5, v{V_LANE}")
    e.i(f"v_lshlrev_b32 v3, 3, v3")
    e.i(f"v_bfe_u32 v13, v{V_LANE}, 2, 2")
    e.i(f"v_add_u32 v3, v3, v13")
    e.i(f"v_mul_u32_u24 v3, 192, v3")
    e.i(f"v_bfe_u32 v13, v{V_LANE}, 4, 1")
    e.i(f"v_lshl_add_u32 v3, v13, 5, v3")
    e.i(f"v_and_b32 v13, 3, v{V_LANE}")
    e.i(f"v_lshl_add_u32 v{V_WTR}, v13, 3, v3")
    e.i(f"v_and_b32 v14, 1, v13")
    e.i(f"v_lshlrev_b32 v14, 4, v14")
    e.i(f"v_lshrrev_b32 v13, 1, v13")
    e.i(f"v_lshlrev_b32 v13, 3, v13")
    e.i(f"v_add3_u32 v{V_WTR+1}, v3, v14, v13")
    e.i(f"v_add_u32 v{V_WTR+1}, {128 + L_W}, v{V_WTR+1}")
    if L_W: e.i(f"v_add_u32 v{V_WTR}, {L_W}, v{V_WTR}")
    e.i(f"v_add_u32 v{V_WTR+2}, 43008, v{V_WTR}")
    e.i(f"v_add_u32 v{V_WTR+3}, 43008, v{V_WTR+1}")

def b1_wreads(e, n):
    s = WF + 12 * (n & 1)
    hi = n >= 14
    nn = n - 14 if hi else n
    aqk = V_WTR + (2 if hi else 0)
    av = V_WTR + (3 if hi else 1)
    for j in range(2):
        e.i(f"ds_read_b64_tr_b16 {vr(s+2*j,2)}, v{aqk} offset:{nn*3072 + j*768}")
    for j in range(2):
        e.i(f"ds_read_b64_tr_b16 {vr(s+4+2*j,2)}, v{aqk} offset:{nn*3072 + j*768 + 64}")
    for j in range(2):
        e.i(f"ds_read_b64_tr_b16 {vr(s+8+2*j,2)}, v{av} offset:{nn*3072 + j*768}")

def b1_mfma(e, n):
    s = WF + 12 * (n & 1)
    x = ar(4*n, 4)
    def c(acc): return "0" if n == 0 else vr(acc, 16)
    e.i(f"v_mfma_f32_32x32x16_bf16 {vr(ACCQ,16)}, {vr(s,4)}, {x}, {c(ACCQ)}")
    e.i(f"v_mfma_f32_32x32x16_bf16 {vr(ACCK,16)}, {vr(s+4,4)}, {x}, {c(ACCK)}")
    e.i(f"v_mfma_f32_32x32x16_bf16 {vr(ACCV,16)}, {x}, {vr(s+8,4)}, {c(ACCV)}")

def publish(e, cfg, arr, idx_sgpr_expr, tag):
    e.c(f"publish {tag}")
    e.i(f"s_cmp_lg_u32 s{S_W}, 0")
    e.i(f"s_cbranch_scc1 L_nopub_{tag}")
    for ln in idx_sgpr_expr: e.i(ln)
    e.i(f"s_lshl_b32 s{S_T0}, s{S_T0}, 7")
    e.i(f"s_add_u32 s{S_T0}, s{S_T0}, {WS_FL + arr}")
    e.i(f"v_mov_b32 v4, s{S_NONCE}")
    e.i(f"v_mov_b32 v5, s{S_NONCE+1}")
    e.i(f"v_mov_b32 v6, s{S_T0}")
    e.i(f"s_mov_b64 s[{S_T0+2}:{S_T0+3}], exec")
    e.i("s_mov_b64 exec, 1")
    e.i(f"buffer_store_dwordx2 v[4:5], v6, s[{R_WS}:{R_WS+3}], 0 offen sc1")
    e.i(f"s_mov_b64 exec, s[{S_T0+2}:{S_T0+3}]")
    e.label(f"L_nopub_{tag}")

V_NONCE = 10
def nonce_early(e, cfg):
    e.i("v_mov_b32 v6, 0")
    e.i(f"buffer_load_dwordx2 v[{V_NONCE}:{V_NONCE+1}], v6, s[{R_DBG}:{R_DBG+3}], 0 offen sc1")

def get_nonce(e, cfg):
    e.c("fetch nonce (early load, else poll d_debug)")
    e.i(f"v_readfirstlane_b32 s{S_NONCE}, v{V_NONCE}")
    e.i(f"v_readfirstlane_b32 s{S_NONCE+1}, v{V_NONCE+1}")
    e.i("s_nop 3")
    e.i(f"s_or_b32 s{S_T0}, s{S_NONCE}, s{S_NONCE+1}")
    e.i(f"s_cbranch_scc1 L_nonce_done")
    e.i(f"s_mov_b32 s{S_IT}, 0x40000")
    e.i("v_mov_b32 v6, 0")
    e.label("L_nonce")
    e.i(f"buffer_load_dwordx2 v[4:5], v6, s[{R_DBG}:{R_DBG+3}], 0 offen sc1")
    e.i("s_waitcnt vmcnt(0)")
    e.i(f"v_readfirstlane_b32 s{S_NONCE}, v4")
    e.i(f"v_readfirstlane_b32 s{S_NONCE+1}, v5")
    e.i("s_nop 3")
    e.i(f"s_or_b32 s{S_T0}, s{S_NONCE}, s{S_NONCE+1}")
    e.i(f"s_cbranch_scc1 L_nonce_done")
    e.i(f"s_sub_u32 s{S_IT}, s{S_IT}, 1")
    e.i(f"s_cbranch_scc1 L_nonce_done")
    e.i("s_sleep 2")
    e.i("s_branch L_nonce")
    e.label("L_nonce_done")

def poll(e, cfg, arr, vidx, tag):
    e.c(f"poll {tag}")
    e.i(f"v_lshlrev_b32 v{vidx}, 7, v{vidx}")
    e.i(f"v_add_u32 v{vidx}, {WS_FL + arr}, v{vidx}")
    e.i(f"s_mov_b32 s{S_IT}, 0x40000")
    e.label(f"L_poll_{tag}")
    e.i(f"buffer_load_dwordx2 v[4:5], v{vidx}, s[{R_WS}:{R_WS+3}], 0 offen sc1")
    e.i("s_waitcnt vmcnt(0)")
    e.i(f"v_cmp_ne_u64 vcc, s[{S_NONCE}:{S_NONCE+1}], v[4:5]")
    e.i(f"s_cbranch_vccz L_poll_done_{tag}")
    e.i(f"s_sub_u32 s{S_IT}, s{S_IT}, 1")
    e.i(f"s_cbranch_scc1 L_poll_done_{tag}")
    e.i("s_sleep 4")
    e.i(f"s_branch L_poll_{tag}")
    e.label(f"L_poll_done_{tag}")

V_MHH = 232
def b1_epilogue(e, cfg):
    e.c("B1 epilogue")
    e.i(f"s_mov_b32 s{S_MHH}, 0")
    e.i(f"s_mov_b32 s{S_MHH+1}, -1")
    m = (1 << 0) | (1 << 4) | (1 << 16) | (1 << 20)
    e.i(f"s_mov_b32 s{S_MONE}, {m}")
    e.i(f"s_mov_b32 s{S_MONE+1}, {m}")
    e.i(f"s_mov_b32 s{S_T0}, {f2u(QSCALE)}")
    e.i(f"v_mov_b32 v14, 0x3f803f80")
    e.i("s_nop 7")
    e.i("s_nop 3")
    QP = 16
    for i in range(16):
        e.i(f"v_mul_f32 v{ACCQ+i}, s{S_T0}, v{ACCQ+i}")
    for m_ in range(8):
        e.i(f"v_cvt_pk_bf16_f32 v{QP+m_}, v{ACCQ+2*m_}, v{ACCQ+2*m_+1}")
    for m_ in range(8):
        e.i(f"v_cvt_pk_bf16_f32 v{KVB+m_}, v{ACCK+2*m_}, v{ACCK+2*m_+1}")
    for m_ in range(8):
        e.i(f"v_cvt_pk_bf16_f32 v{KVB+8+m_}, v{ACCV+2*m_}, v{ACCV+2*m_+1}")
    for m_ in (6, 7):
        e.i(f"v_cndmask_b32 v{QP+m_}, v{QP+m_}, 0, s[{S_MHH}:{S_MHH+1}]")
        e.i(f"v_cndmask_b32 v{KVB+m_}, v{KVB+m_}, v14, s[{S_MHH}:{S_MHH+1}]")
    for m_ in range(8):
        e.i(f"v_cndmask_b32 v{KVB+8+m_}, v{KVB+8+m_}, v14, s[{S_MONE}:{S_MONE+1}]")
    e.i(f"s_lshl_b32 s{S_T0}, s{S_H}, 18")
    e.i(f"s_lshl_b32 s{S_T0+1}, s{S_R}, 2")
    e.i(f"s_add_u32 s{S_T0+1}, s{S_T0+1}, s{S_W}")
    e.i(f"s_lshl_b32 s{S_T0+1}, s{S_T0+1}, 12")
    e.i(f"s_add_u32 s{S_T0}, s{S_T0}, s{S_T0+1}")
    if WS_KV: e.i(f"s_add_u32 s{S_T0}, s{S_T0}, {WS_KV}")
    for f in range(4):
        e.i(f"buffer_store_dwordx4 {vr(KVB+4*f,4)}, v{V_L16}, s[{R_WS}:{R_WS+3}], s{S_T0} offen offset:{1024*f} sc1")
    e.i(f"s_lshl_b32 s{S_T0+1}, s{S_W}, 11")
    e.i(f"s_add_u32 s{S_T0+1}, s{S_T0+1}, {L_Q}")
    e.i(f"v_add_u32 v3, s{S_T0+1}, v{V_L16}")
    e.i(f"ds_write_b128 v3, {vr(QP,4)}")
    e.i(f"ds_write_b128 v3, {vr(QP+4,4)} offset:1024")

HREG = 120
def a2_hloads(e, cfg):
    e.c("A2: h loads (early)")
    e.i(f"s_lshr_b32 s{S_T0}, s{S_W}, 1")
    e.i(f"s_lshl_b32 s{S_T0+1}, s2, 1")
    e.i(f"s_add_u32 s{S_T0}, s{S_T0}, s{S_T0+1}")
    e.i(f"s_lshl_b32 s{S_T0}, s{S_T0}, 12")
    e.i(f"s_and_b32 s{S_T0+1}, s{S_W}, 1")
    e.i(f"s_lshl_b32 s{S_T0+1}, s{S_T0+1}, 11")
    e.i(f"s_add_u32 s{S_T0}, s{S_T0}, s{S_T0+1}")
    e.i(f"v_add_u32 v3, s{S_T0}, v{V_L16}")
    e.i(f"buffer_load_dwordx4 {vr(HREG,4)}, v3, s[{R_SSMK}:{R_SSMK+3}], 0 offen")
    e.i(f"buffer_load_dwordx4 {vr(HREG+4,4)}, v3, s[{R_SSMK}:{R_SSMK+3}], 0 offen offset:1024")
N_H_LOADS = 2

def a2_dload(e, cfg):
    e.i(f"s_min_u32 s{S_T0}, s2, 223")
    e.i(f"s_lshl_b32 s{S_T0}, s{S_T0}, 2")
    e.i(f"s_load_dword s{S_D2}, s[{S_PTR+10}:{S_PTR+11}], s{S_T0}")

def a2_hstage(e, cfg):
    e.c("A2: stage h into LDS (with h0 += D), zero pads")
    e.i("s_waitcnt lgkmcnt(0)")
    e.i(f"s_lshr_b32 s{S_T0}, s{S_W}, 1")
    e.i(f"s_lshl_b32 s{S_T0+1}, s{S_D2}, 16")
    e.i(f"s_and_b32 s{S_T0+2}, s{S_D2}, 0xffff0000")
    e.i(f"s_cmp_eq_u32 s{S_T0}, 0")
    e.i(f"s_cselect_b32 s{S_T0+1}, s{S_T0+1}, s{S_T0+2}")
    e.i(f"v_lshlrev_b32 v3, 16, v{HREG}")
    e.i(f"v_add_f32 v3, s{S_T0+1}, v3")
    e.i(f"v_cvt_pk_bf16_f32 v3, v3, v3")
    e.i(f"s_mov_b32 s{S_T0+2}, 0xffff")
    e.i(f"v_bfi_b32 v3, s{S_T0+2}, v3, v{HREG}")
    e.i(f"s_and_b32 s{S_T0+2}, s{S_W}, 1")
    e.i(f"s_xor_b32 s{S_T0+2}, s{S_T0+2}, 1")
    e.i(f"s_mov_b32 s{S_T0+4}, s{S_T0+2}")
    e.i(f"s_mov_b32 s{S_T0+5}, 0")
    e.i(f"v_cndmask_b32 v{HREG}, v{HREG}, v3, s[{S_T0+4}:{S_T0+5}]")
    e.i(f"s_mul_i32 s{S_T0+1}, s{S_T0}, {H_CH}")
    e.i(f"s_and_b32 s{S_T0+2}, s{S_W}, 1")
    e.i(f"s_lshl_b32 s{S_T0+2}, s{S_T0+2}, 11")
    e.i(f"s_add_u32 s{S_T0+1}, s{S_T0+1}, s{S_T0+2}")
    e.i(f"s_add_u32 s{S_T0+1}, s{S_T0+1}, {L_H + 64}")
    e.i(f"v_add_u32 v3, s{S_T0+1}, v{V_L16}")
    e.i(f"ds_write_b128 v3, {vr(HREG,4)}")
    e.i(f"ds_write_b128 v3, {vr(HREG+4,4)} offset:1024")
    for i in range(4): e.i(f"v_mov_b32 v{HREG+i}, 0")
    e.i(f"s_mul_i32 s{S_T0+1}, s{S_T0}, {H_CH}")
    e.i(f"s_add_u32 s{S_T0+1}, s{S_T0+1}, {L_H}")
    e.i(f"v_add_u32 v3, s{S_T0+1}, v{V_L16}")
    e.i(f"s_mul_i32 s{S_T0+1}, s{S_T0}, {X_CH}")
    e.i(f"s_add_u32 s{S_T0+1}, s{S_T0+1}, {L_X}")
    e.i(f"v_add_u32 v13, s{S_T0+1}, v{V_L16}")
    e.i(f"s_mov_b64 exec, 0xf")
    e.i(f"ds_write_b128 v3, {vr(HREG,4)}")
    e.i(f"s_mov_b32 exec_lo, -1")
    e.i(f"s_mov_b32 exec_hi, 0xf")
    e.i(f"ds_write_b128 v13, {vr(HREG,4)}")
    e.i(f"s_mov_b64 exec, -1")

CACC = 64
V_HA = 204
V_XA = 205
def a2_main(e, cfg):
    e.c("==== A2 conv ====")
    e.i(f"s_lshl_b32 s{S_T0}, s{S_CB}, 5")
    e.i(f"v_and_b32 v7, 31, v{V_LANE}")
    e.i(f"v_add_u32 v7, s{S_T0}, v7")
    if not cfg.nosync:
        poll(e, cfg, FL_A1, 7, "a1")
    stamp(e, cfg, 6)
    e.i(f"s_lshr_b32 s{S_T0}, s{S_W}, 1")
    e.i(f"s_lshl_b32 s{S_T0+1}, s2, 1")
    e.i(f"s_add_u32 s{S_T0+1}, s{S_T0}, s{S_T0+1}")
    e.i(f"s_lshl_b32 s{S_T0+1}, s{S_T0+1}, 12")
    e.i(f"s_and_b32 s{S_T0+2}, s{S_W}, 1")
    e.i(f"s_lshl_b32 s{S_T0+3}, s{S_T0+2}, 11")
    e.i(f"s_add_u32 s{S_T0+1}, s{S_T0+1}, s{S_T0+3}")
    e.i(f"s_add_u32 s{S_T0+1}, s{S_T0+1}, {WS_XT}")
    e.i(f"buffer_load_dwordx4 v[16:19], v{V_L16}, s[{R_WS}:{R_WS+3}], s{S_T0+1} offen sc1")
    e.i(f"buffer_load_dwordx4 v[20:23], v{V_L16}, s[{R_WS}:{R_WS+3}], s{S_T0+1} offen offset:1024 sc1")
    e.i(f"s_mul_i32 s{S_T0+1}, s{S_T0}, {X_CH}")
    e.i(f"s_mul_i32 s{S_T0+3}, s{S_T0+2}, {2048+256}")
    e.i(f"s_add_u32 s{S_T0+1}, s{S_T0+1}, s{S_T0+3}")
    e.i(f"s_add_u32 s{S_T0+1}, s{S_T0+1}, {L_X + 512 + 64}")
    e.i(f"v_lshrrev_b32 v3, 4, v{V_LANE}")
    e.i(f"v_lshlrev_b32 v3, 5, v3")
    e.i(f"v_add3_u32 v3, v3, v{V_L16}, s{S_T0+1}")
    e.i(f"v_bfe_u32 v8, v{V_LANE}, 4, 1")
    e.i(f"v_lshrrev_b32 v9, 5, v{V_LANE}")
    e.i(f"v_bfe_u32 v10, v{V_LANE}, 2, 2")
    e.i(f"v_and_b32 v11, 3, v{V_LANE}")
    e.i(f"v_lshlrev_b32 v12, 2, v8")
    e.i(f"v_add_u32 v12, v12, v11")
    e.i(f"v_lshl_add_u32 v13, v9, 3, v12")
    e.i(f"v_add_u32 v13, v13, v10")
    e.i(f"s_mul_i32 s{S_T0+1}, s{S_T0}, {H_CH}")
    e.i(f"s_add_u32 s{S_T0+1}, s{S_T0+1}, {L_H + 64 - 56}")
    e.i(f"v_lshlrev_b32 v13, 3, v13")
    e.i(f"v_add_u32 v{V_HA}, s{S_T0+1}, v13")
    e.i(f"v_sub_u32 v12, v12, v9")
    e.i(f"v_lshlrev_b32 v12, 5, v12")
    e.i(f"v_lshlrev_b32 v10, 2, v10")
    e.i(f"v_sub_u32 v12, v12, v10")
    e.i(f"v_add_u32 v12, 28, v12")
    e.i(f"s_mul_i32 s{S_T0+1}, s{S_T0}, {X_CH}")
    e.i(f"s_add_u32 s{S_T0+1}, s{S_T0+1}, {L_X}")
    for par in range(2):
        for j in range(2):
            d = V_XA + 2*par + j
            e.i(f"v_add_u32 v13, {64*par - 16*j}, v12")
            e.i(f"v_ashrrev_i32 v14, 7, v13")
            e.i(f"v_lshlrev_b32 v14, 5, v14")
            e.i(f"v_lshl_add_u32 v13, v13, 1, v14")
            e.i(f"v_add_u32 v{d}, s{S_T0+1}, v13")
    e.i("s_waitcnt vmcnt(0)")
    e.i(f"ds_write_b128 v3, v[16:19]")
    e.i(f"ds_write_b128 v3, v[20:23] offset:{1024+128}")
    e.i("s_waitcnt lgkmcnt(0)")
    e.i("s_barrier")
    stamp(e, cfg, 7)
    e.i(f"s_and_b32 s{S_T0}, s{S_W}, 1")
    e.i(f"s_cmp_eq_u32 s{S_T0}, 0")
    e.i("s_cbranch_scc0 L_conv_setB")
    conv_set(e, [0, 1, 6, 7])
    e.i("s_branch L_conv_post")
    e.label("L_conv_setB")
    conv_set(e, [2, 3, 4, 5])
    e.label("L_conv_post")
    stamp(e, cfg, 8)
    conv_post(e, cfg)

def conv_set(e, tiles):
    nmax = 4 * max(tiles) + 3
    steps = []
    for n in range(nmax + 1):
        steps.append([(t, T) for t, T in enumerate(tiles) if n <= 4*T + 3])
    loaded = set()
    issued = []
    def issue_for(n):
        for j in range(2):
            e.i(f"ds_read_b64_tr_b16 {ar(128+4*n+2*j,2)}, v{V_HA} offset:{128*n + 32*j}")
            issued.append(("H", n))
        for t, T in steps[n]:
            v = 4*T - n
            if v in loaded: continue
            loaded.add(v)
            vp = v + 4
            q, par = vp >> 1, vp & 1
            for j in range(2):
                e.i(f"ds_read_b64_tr_b16 {ar(4*(vp-1)+2*j,2)}, v{V_XA+2*par+j} offset:{288*q}")
                issued.append(("X", v))
    LA = 2
    for n in range(min(LA, nmax + 1)):
        issue_for(n)
    first = {t: True for t in range(4)}
    for n in range(nmax + 1):
        if n + LA <= nmax:
            issue_for(n + LA)
        need = [("H", n)] + [("X", 4*T - n) for t, T in steps[n]]
        last = max(i for i, tag in enumerate(issued) if tag in need)
        younger = len(issued) - 1 - last
        e.i(f"s_waitcnt lgkmcnt({min(younger, 15)})")
        for t, T in steps[n]:
            v = 4*T - n
            vp = v + 4
            acc = vr(CACC + 16*t, 16)
            c = "0" if first[t] else acc
            first[t] = False
            e.i(f"v_mfma_f32_32x32x16_bf16 {acc}, {ar(4*(vp-1),4)}, {ar(128+4*n,4)}, {c}")
    for t, T in enumerate(tiles):
        e.i(f"s_mov_b32 s{S_T1+t}, {T}")

def conv_post(e, cfg):
    e.i(f"s_mov_b32 s{S63}, 0")
    e.i(f"s_mov_b32 s{S63+1}, 0x80000000")
    e.i("s_nop 7")
    e.i("s_nop 7")
    R = lambda t, g, i: CACC + 16*t + 4*g + i
    EX = 16
    for t in range(4):
        e.i(f"v_add_f32_dpp v{EX+t}, v{R(t,3,3)}, v{R(t,3,2)} wave_ror:1 row_mask:0xf bank_mask:0xf")
    e.i("s_nop 0")
    for t in range(4):
        e.i(f"v_add_f32_dpp v{EX+4+t}, v{EX+t}, v{R(t,3,1)} wave_ror:1 row_mask:0xf bank_mask:0xf")
    e.i(f"s_lshr_b32 s{S_T0}, s{S_W}, 1")
    e.i(f"s_mul_i32 s{S_T0}, s{S_T0}, 144")
    e.i(f"s_add_u32 s{S_T0}, s{S_T0}, {L_CARRY}")
    for t in range(4):
        e.i(f"s_lshl_b32 s{S_T0+1}, s{S_T1+t}, 4")
        e.i(f"s_add_u32 s{S_T0+1}, s{S_T0+1}, s{S_T0}")
        e.i(f"v_mov_b32 v{24+t}, s{S_T0+1}")
    e.i(f"v_mov_b32 v28, s{S_T0}")
    e.i("v_mov_b32 v29, 0")
    e.i(f"s_mov_b64 exec, s[{S63}:{S63+1}]")
    for t in range(4):
        e.i(f"ds_write_b32 v{24+t}, v{R(t,3,3)} offset:16")
        e.i(f"ds_write_b32 v{24+t}, v{EX+t} offset:20")
        e.i(f"ds_write_b32 v{24+t}, v{EX+4+t} offset:24")
    e.i("ds_write_b32 v28, v29")
    e.i("ds_write_b32 v28, v29 offset:4")
    e.i("ds_write_b32 v28, v29 offset:8")
    e.i("s_mov_b64 exec, -1")
    e.i("s_waitcnt lgkmcnt(0)")
    e.i("s_barrier")
    PU, P1, P2 = 32, 36, 40
    for t in range(4):
        e.i(f"ds_read_b32 v{PU+t}, v{24+t}")
        e.i(f"ds_read_b32 v{P1+t}, v{24+t} offset:4")
        e.i(f"ds_read_b32 v{P2+t}, v{24+t} offset:8")
    e.i("s_waitcnt lgkmcnt(0)")
    SEL = 44
    T1r, T2r = 48, 56
    m63 = f"s[{S63}:{S63+1}]"
    prevU = [PU+t for t in range(4)]
    prev1 = [P1+t for t in range(4)]
    prev2 = [P2+t for t in range(4)]
    for g in range(4):
        cur1 = [48 + 4*(g & 1) + t for t in range(4)]
        cur2 = [56 + 4*(g & 1) + t for t in range(4)]
        for t in range(4):
            e.i(f"v_cndmask_b32 v{SEL+t}, v{R(t,g,3)}, v{prevU[t]}, {m63}")
        for t in range(4):
            e.i(f"v_add_f32_dpp v{cur1[t]}, v{SEL+t}, v{R(t,g,2)} wave_ror:1 row_mask:0xf bank_mask:0xf")
        for t in range(4):
            e.i(f"v_cndmask_b32 v{SEL+t}, v{cur1[t]}, v{prev1[t]}, {m63}")
        for t in range(4):
            e.i(f"v_add_f32_dpp v{cur2[t]}, v{SEL+t}, v{R(t,g,1)} wave_ror:1 row_mask:0xf bank_mask:0xf")
        for t in range(4):
            e.i(f"v_cndmask_b32 v{SEL+t}, v{cur2[t]}, v{prev2[t]}, {m63}")
        for t in range(4):
            e.i(f"v_add_f32_dpp v{R(t,g,0)}, v{SEL+t}, v{R(t,g,0)} wave_ror:1 row_mask:0xf bank_mask:0xf")
        prevU = [R(t,g,3) for t in range(4)]
        prev1 = cur1
        prev2 = cur2
    e.i(f"s_lshr_b32 s{S_T0}, s{S_W}, 1")
    e.i(f"s_mul_i32 s{S_T0}, s{S_T0}, {X_CH}")
    e.i(f"s_add_u32 s{S_T0}, s{S_T0}, {L_Y}")
    e.i(f"v_lshlrev_b32 v3, 1, v{V_LANE}")
    for t in range(4):
        e.i(f"s_lshl_b32 s{S_T0+1}, s{S_T1+t}, 9")
        e.i(f"s_add_u32 s{S_T0+1}, s{S_T0+1}, s{S_T0}")
        e.i(f"v_add_u32 v{24+t}, s{S_T0+1}, v3")
    for t in range(4):
        for gp in range(2):
            e.i(f"v_cvt_pk_bf16_f32 v{32+2*t+gp}, v{R(t,2*gp,0)}, v{R(t,2*gp+1,0)}")
    for t in range(4):
        for gp in range(2):
            e.i(f"ds_write_b16 v{24+t}, v{32+2*t+gp} offset:{256*gp}")
            e.i(f"ds_write_b16_d16_hi v{24+t}, v{32+2*t+gp} offset:{256*gp+128}")
    e.i("s_waitcnt lgkmcnt(0)")
    e.i(f"s_lshr_b32 s{S_T0+2}, s{S_W}, 1")
    e.i(f"s_lshl_b32 s{S_T0+3}, s2, 1")
    e.i(f"s_add_u32 s{S_T0+3}, s{S_T0+3}, s{S_T0+2}")
    e.i(f"s_lshl_b32 s{S_T0+3}, s{S_T0+3}, 12")
    e.i(f"s_add_u32 s{S_T0+3}, s{S_T0+3}, {WS_YT}")
    for pz in range(2):
        e.i(f"s_lshl_b32 s{S_T0+1}, s{S_T1+2*pz}, 9")
        e.i(f"s_add_u32 s{S_T0+4+pz}, s{S_T0+1}, s{S_T0+3}")
        e.i(f"s_add_u32 s{S_T0+1}, s{S_T0+1}, s{S_T0}")
        e.i(f"v_add_u32 v3, s{S_T0+1}, v{V_L16}")
        e.i(f"ds_read_b128 {vr(48+4*pz,4)}, v3")
    e.i("s_waitcnt lgkmcnt(0)")
    for pz in range(2):
        e.i(f"buffer_store_dwordx4 {vr(48+4*pz,4)}, v{V_L16}, s[{R_WS}:{R_WS+3}], s{S_T0+4+pz} offen sc1")

SB = [16, 32]
PB = [48, 56]
OB = 64
QB = 128
def kvbuf(b): return KVB + 16 * (b & 3)

def kv_load(e, b, advance=True):
    if advance:
        e.i(f"s_add_u32 s{S_KV+1}, s{S_KV+1}, 1")
        e.i(f"s_and_b32 s{S_KV+1}, s{S_KV+1}, 15")
    e.i(f"s_lshl_b32 s{S_KV+2}, s{S_KV+1}, 14")
    e.i(f"s_add_u32 s{S_KV+2}, s{S_KV+2}, s{S_KV}")
    for f in range(4):
        e.i(f"buffer_load_dwordx4 {vr(kvbuf(b)+4*f,4)}, v{V_L16}, s[{R_WS}:{R_WS+3}], s{S_KV+2} offen offset:{1024*f} sc1")

def slot(e, j, s_next, pv, pre=None, loads=None):
    mf = []
    if s_next is not None:
        kb, jn = s_next
        S = vr(SB[jn & 1], 16)
        mf.append(f"v_mfma_f32_32x32x16_bf16 {S}, {vr(kvbuf(kb),4)}, {vr(QB+8*jn,4)}, 0")
        mf.append(f"v_mfma_f32_32x32x16_bf16 {S}, {vr(kvbuf(kb)+4,4)}, {vr(QB+8*jn+4,4)}, {S}")
    if pv is not None:
        vb, jp, first = pv
        O = vr(OB + 16*jp, 16)
        P = PB[jp & 1]
        mf.append(f"v_mfma_f32_32x32x16_bf16 {O}, {vr(kvbuf(vb)+8,4)}, {vr(P,4)}, {'0' if first else O}")
        mf.append(f"v_mfma_f32_32x32x16_bf16 {O}, {vr(kvbuf(vb)+12,4)}, {vr(P+4,4)}, {O}")
    groups = []
    if j is not None:
        S = SB[j & 1]; P = PB[j & 1]
        for g in range(4):
            gl = [f"v_exp_f32 v{S+4*g+i}, v{S+4*g+i}" for i in range(4)]
            gl.append(f"v_cvt_pk_bf16_f32 v{P+2*g}, v{S+4*g}, v{S+4*g+1}")
            gl.append(f"v_cvt_pk_bf16_f32 v{P+2*g+1}, v{S+4*g+2}, v{S+4*g+3}")
            groups.append(gl)
    if pre:
        for ln in pre: e.i(ln)
    n = max(len(mf), len(groups))
    for k in range(n):
        if k < len(mf): e.i(mf[k])
        if loads is not None and k == 2:
            loads()
        if k < len(groups):
            for ln in groups[k]: e.i(ln)

def b2_main(e, cfg):
    e.c("==== B2 attention ====")
    e.i(f"s_lshl_b32 s{S_T0}, s{S_H}, 4")
    e.i(f"v_and_b32 v7, 15, v{V_LANE}")
    e.i(f"v_add_u32 v7, s{S_T0}, v7")
    if not cfg.nosync:
        poll(e, cfg, FL_B1, 7, "b1")
    stamp(e, cfg, 10)
    e.i(f"s_mov_b32 s{S_SLOW}, 0")
    e.i(f"v_add_u32 v3, {L_Q}, v{V_L16}")
    for j in range(4):
        for f in range(2):
            e.i(f"ds_read_b128 {vr(QB+8*j+4*f,4)}, v3 offset:{2048*j+1024*f}")
    e.i(f"s_lshl_b32 s{S_KV}, s{S_H}, 18")
    e.i(f"s_lshl_b32 s{S_T0}, s{S_W}, 12")
    e.i(f"s_add_u32 s{S_KV}, s{S_KV}, s{S_T0}")
    if WS_KV: e.i(f"s_add_u32 s{S_KV}, s{S_KV}, {WS_KV}")
    e.label("L_attn_start")
    e.i(f"s_mov_b32 s{S_KV+1}, s{S_R}")
    kv_load(e, 1); kv_load(e, 2); kv_load(e, 3)
    e.i("s_waitcnt lgkmcnt(0)")
    slot(e, None, (0, 0), None)
    e.i("s_nop 7")
    e.i("s_nop 3")
    slot(e, 0, (0, 1), None)
    slot(e, 1, (0, 2), (0, 0, True))
    slot(e, 2, (0, 3), (0, 1, True))
    slot(e, 3, (1, 0), (0, 2, True), pre=["s_waitcnt vmcnt(8)"])
    slot(e, 0, (1, 1), (0, 3, True))
    e.i(f"s_mov_b32 s{S_IT}, 0")
    e.i(".p2align 3")
    e.label("L_attn_loop")
    for k in range(4):
        i = k + 1
        b, bn = i & 3, (i + 1) & 3
        slot(e, 1, (b, 2), (b, 0, False), loads=lambda: kv_load(e, (i + 3) & 3))
        slot(e, 2, (b, 3), (b, 1, False))
        slot(e, 3, (bn, 0), (b, 2, False), pre=["s_waitcnt vmcnt(8)"])
        slot(e, 0, (bn, 1), (b, 3, False))
        if k == 1:
            e.i(f"s_cmp_eq_u32 s{S_IT}, 3")
            e.i("s_cbranch_scc1 L_attn_tail")
    e.i(f"s_add_u32 s{S_IT}, s{S_IT}, 1")
    e.i("s_branch L_attn_loop")
    e.label("L_attn_tail")
    slot(e, 1, (3, 2), (3, 0, False))
    slot(e, 2, (3, 3), (3, 1, False))
    slot(e, 3, None, (3, 2, False))
    e.i("s_nop 1")
    slot(e, None, None, (3, 3, False))
    e.i("s_waitcnt vmcnt(0)")
    e.i("s_nop 7")
    e.i("s_nop 7")
    stamp(e, cfg, 11)
    e.i(f"s_mov_b32 s{S_T0}, {f2u(2.0**-60)}")
    e.i(f"s_mov_b32 s{S_T0+1}, {f2u(2.0**60)}")
    e.i(f"s_mov_b64 s[{S_T0+2}:{S_T0+3}], -1")
    for j in range(4):
        e.i(f"v_cmp_le_f32 vcc, s{S_T0}, v{OB+16*j}")
        e.i(f"s_and_b64 s[{S_T0+2}:{S_T0+3}], s[{S_T0+2}:{S_T0+3}], vcc")
        e.i(f"v_cmp_ge_f32 vcc, s{S_T0+1}, v{OB+16*j}")
        e.i(f"s_and_b64 s[{S_T0+2}:{S_T0+3}], s[{S_T0+2}:{S_T0+3}], vcc")
    e.i(f"s_cmp_eq_u64 s[{S_T0+2}:{S_T0+3}], -1")
    e.i(f"s_cselect_b32 s{S_T0}, 0, 1")
    e.i(f"v_mov_b32 v3, s{S_T0}")
    e.i(f"s_lshl_b32 s{S_T0+1}, s{S_W}, 2")
    e.i(f"s_add_u32 s{S_T0+1}, s{S_T0+1}, {L_MISC}")
    e.i(f"v_mov_b32 v4, s{S_T0+1}")
    e.i(f"ds_write_b32 v4, v3")
    for w in range(4):
        if w > 0: e.label(f"L_red_w{w}")
        if w < 3:
            e.i(f"s_cmp_lg_u32 s{S_W}, {w}")
            e.i(f"s_cbranch_scc1 L_red_w{w+1}")
        for j in range(4):
            if j == w: continue
            sl = j * 3 + ((w - j - 1) & 3)
            e.i(f"v_add_u32 v3, {L_RED + sl*4096}, v{V_L16}")
            for q4 in range(4):
                e.i(f"ds_write_b128 v3, {vr(OB+16*j+4*q4,4)} offset:{1024*q4}")
        for k in range(16):
            e.i(f"v_mov_b32 v{16+k}, v{OB+16*w+k}")
        if w < 3: e.i("s_branch L_red_done")
    e.label("L_red_done")
    e.i("s_waitcnt lgkmcnt(0)")
    e.i("s_barrier")
    e.i(f"v_mov_b32 v4, {L_MISC}")
    e.i(f"ds_read_b128 v[8:11], v4")
    e.i(f"s_mul_i32 s{S_T0}, s{S_W}, {3*4096}")
    e.i(f"s_add_u32 s{S_T0}, s{S_T0}, {L_RED}")
    e.i(f"v_add_u32 v3, s{S_T0}, v{V_L16}")
    for s_ in range(3):
        for q4 in range(4):
            e.i(f"ds_read_b128 {vr(64+16*s_+4*q4,4)}, v3 offset:{4096*s_+1024*q4}")
    e.i("s_waitcnt lgkmcnt(12)")
    e.i("v_or_b32 v8, v8, v9")
    e.i("v_or3_b32 v8, v8, v10, v11")
    e.i("s_nop 0")
    e.i(f"v_readfirstlane_b32 s{S_T0}, v8")
    e.i("s_nop 3")
    e.i(f"s_andn2_b32 s{S_T0}, s{S_T0}, s{S_SLOW}")
    e.i(f"s_cmp_lg_u32 s{S_T0}, 0")
    e.i("s_cbranch_scc1 L_slow")
    for s_ in range(3):
        e.i(f"s_waitcnt lgkmcnt({8-4*s_})")
        for k in range(16):
            e.i(f"v_add_f32 v{16+k}, v{16+k}, v{64+16*s_+k}")
    e.i("v_rcp_f32 v3, v16")
    e.i("s_nop 0")
    for k in range(16):
        if k in (0, 8): continue
        e.i(f"v_mul_f32 v{16+k}, v{16+k}, v3")
    for m in range(8):
        if m in (0, 4):
            e.i(f"v_cvt_pk_bf16_f32 v{32+m}, 0, v{16+2*m+1}")
        else:
            e.i(f"v_cvt_pk_bf16_f32 v{32+m}, v{16+2*m}, v{16+2*m+1}")
    e.i(f"s_lshl_b32 s{S_T0}, s{S_R}, 2")
    e.i(f"s_add_u32 s{S_T0}, s{S_T0}, s{S_W}")
    e.i(f"s_lshl_b32 s{S_T0}, s{S_T0}, 4")
    e.i(f"s_add_u32 s{S_T0}, s{S_T0}, s{S_H}")
    e.i(f"s_lshl_b32 s{S_T0}, s{S_T0}, 11")
    e.i(f"s_add_u32 s{S_T0}, s{S_T0}, {WS_OF}")
    e.i(f"buffer_store_dwordx4 v[32:35], v{V_L16}, s[{R_WS}:{R_WS+3}], s{S_T0} offen sc1")
    e.i(f"buffer_store_dwordx4 v[36:39], v{V_L16}, s[{R_WS}:{R_WS+3}], s{S_T0} offen offset:1024 sc1")

def b2_slow(e, cfg):
    e.c("==== slow path: true row max ====")
    e.label("L_slow")
    e.i("s_waitcnt lgkmcnt(0)")
    M = 48
    for j in range(4): e.i(f"v_mov_b32 v{M+j}, 0xff800000")
    e.i(f"s_mov_b32 s{S_KV+1}, 0")
    e.label("L_slow_loop")
    e.i(f"s_lshl_b32 s{S_KV+2}, s{S_KV+1}, 14")
    e.i(f"s_add_u32 s{S_KV+2}, s{S_KV+2}, s{S_KV}")
    for f in range(2):
        e.i(f"buffer_load_dwordx4 {vr(KVB+4*f,4)}, v{V_L16}, s[{R_WS}:{R_WS+3}], s{S_KV+2} offen offset:{1024*f} sc1")
    e.i("s_waitcnt vmcnt(0)")
    for j in range(4):
        e.i(f"v_mfma_f32_32x32x16_bf16 v[16:31], {vr(KVB,4)}, {vr(QB+8*j,4)}, 0")
        e.i(f"v_mfma_f32_32x32x16_bf16 v[16:31], {vr(KVB+4,4)}, {vr(QB+8*j+4,4)}, v[16:31]")
        e.i("s_nop 7"); e.i("s_nop 7")
        for k in range(0, 16, 2):
            e.i(f"v_max3_f32 v{M+j}, v{16+k}, v{17+k}, v{M+j}")
        e.i("s_nop 7")
    e.i(f"s_add_u32 s{S_KV+1}, s{S_KV+1}, 1")
    e.i(f"s_cmp_lt_u32 s{S_KV+1}, 16")
    e.i("s_cbranch_scc1 L_slow_loop")
    for j in range(4):
        e.i(f"v_mov_b32 v{52+j}, v{M+j}")
    e.i("s_nop 1")
    for j in range(4):
        e.i(f"v_permlane32_swap_b32 v{52+j}, v{M+j}")
    e.i("s_nop 1")
    for j in range(4):
        e.i(f"v_max_f32 v{M+j}, v{52+j}, v{M+j}")
    e.i("s_barrier")
    e.i(f"s_lshl_b32 s{S_T0}, s{S_W}, 10")
    e.i(f"s_add_u32 s{S_T0}, s{S_T0}, {L_RED}")
    e.i(f"v_add_u32 v3, s{S_T0}, v{V_L16}")
    e.i(f"ds_write_b128 v3, {vr(M,4)}")
    e.i("s_waitcnt lgkmcnt(0)")
    e.i("s_barrier")
    e.i(f"v_add_u32 v3, {L_RED}, v{V_L16}")
    for w in range(4):
        e.i(f"ds_read_b128 {vr(16+4*w,4)}, v3 offset:{1024*w}")
    e.i("s_waitcnt lgkmcnt(0)")
    for j in range(4):
        e.i(f"v_max3_f32 v{M+j}, v{16+j}, v{20+j}, v{24+j}")
        e.i(f"v_max_f32 v{M+j}, v{M+j}, v{28+j}")
    e.i(f"s_mov_b32 s{S_T0}, 0xffff")
    for j in range(4):
        e.i(f"v_sub_f32 v16, 0, v{M+j}")
        e.i(f"v_cvt_pk_bf16_f32 v17, v16, v16")
        e.i(f"v_lshlrev_b32 v18, 16, v17")
        e.i(f"v_sub_f32 v16, v16, v18")
        e.i(f"v_cvt_pk_bf16_f32 v19, v16, v16")
        e.i(f"v_lshlrev_b32 v18, 16, v19")
        e.i(f"v_sub_f32 v16, v16, v18")
        e.i(f"v_bfi_b32 v17, s{S_T0}, v17, v19")
        e.i(f"v_cvt_pk_bf16_f32 v18, v16, 0")
        e.i(f"v_cndmask_b32 v{QB+8*j+6}, v{QB+8*j+6}, v17, s[{S_MHH}:{S_MHH+1}]")
        e.i(f"v_cndmask_b32 v{QB+8*j+7}, v{QB+8*j+7}, v18, s[{S_MHH}:{S_MHH+1}]")
    e.i(f"s_mov_b32 s{S_SLOW}, 1")
    e.i(f"s_mov_b32 s{S_KV+1}, s{S_R}")
    kv_load(e, 0, advance=False)
    e.i("s_waitcnt vmcnt(0)")
    e.i("s_barrier")
    e.i("s_branch L_attn_start")

def wo_dma(e, cfg):
    e.c("Wo tile DMA -> LDS")
    e.i(f"v_lshrrev_b32 v3, 3, v{V_LANE}")
    e.i(f"v_mul_u32_u24 v3, 896, v3")
    e.i(f"v_bfe_u32 v13, v{V_LANE}, 2, 1")
    e.i(f"v_bfe_u32 v14, v{V_LANE}, 4, 1")
    e.i(f"v_xor_b32 v13, v13, v14")
    e.i(f"v_lshlrev_b32 v13, 6, v13")
    e.i(f"v_and_b32 v14, 3, v{V_LANE}")
    e.i(f"v_lshlrev_b32 v14, 4, v14")
    e.i(f"v_add3_u32 v3, v3, v13, v14")
    e.i(f"s_lshl_b32 s{S_T0}, s{S_CB}, 7")
    e.i(f"v_add_u32 v3, s{S_T0}, v3")
    e.i(f"s_cmp_eq_u32 s{S_W}, 0")
    e.i(f"s_cselect_b32 s{S_T0+2}, 896, 0")
    e.i(f"v_subrev_u32 v4, s{S_T0+2}, v3")
    for t in range(15):
        if t < 14:
            e.i(f"s_add_u32 s{S_T0}, s{S_W}, {4*t}")
        else:
            e.i(f"s_mov_b32 s{S_T0}, 56")
        e.i(f"s_mul_i32 s{S_T0+1}, s{S_T0}, 7168")
        e.i(f"s_sub_u32 s{S_T0+1}, s{S_T0+1}, 896")
        if t == 0:
            e.i(f"s_max_i32 s{S_T0+1}, s{S_T0+1}, 0")
        e.i(f"s_lshl_b32 s{S_T0}, s{S_T0}, 10")
        if L_WO: e.i(f"s_add_u32 s{S_T0}, s{S_T0}, {L_WO}")
        e.i(f"s_mov_b32 m0, s{S_T0}")
        e.i("s_nop 0")
        e.i(f"buffer_load_dwordx4 v{4 if t == 0 else 3}, s[{R_WO}:{R_WO+3}], s{S_T0+1} offen lds")

QPF = 224
V_A3OFF = 232
def a3_qloads(e, cfg):
    e.c("A3: q prefetch")
    e.i(f"s_lshl_b32 s{S_T0}, s{S_RB}, 6")
    e.i(f"s_lshl_b32 s{S_T0+1}, s{S_W}, 4")
    e.i(f"s_add_u32 s{S_T0}, s{S_T0}, s{S_T0+1}")
    e.i(f"s_mul_i32 s{S_T0+1}, s{S_T0}, 896")
    e.i(f"s_mul_i32 s{S_T0+2}, s{S_T0}, 1792")
    e.i(f"s_lshl_b32 s{S_T0+3}, s{S_CB}, 7")
    e.i(f"s_add_u32 s{S_T0+1}, s{S_T0+1}, s{S_T0+3}")
    e.i(f"s_add_u32 s{S_T0+2}, s{S_T0+2}, s{S_T0+3}")
    e.i(f"v_and_b32 v3, 15, v{V_LANE}")
    e.i(f"v_and_b32 v13, 0x30, v{V_LANE}")
    e.i(f"v_mul_u32_u24 v14, 896, v3")
    e.i(f"v_add3_u32 v{V_A3OFF}, v14, v13, s{S_T0+1}")
    e.i(f"v_mul_u32_u24 v14, 1792, v3")
    e.i(f"v_add3_u32 v{V_A3OFF+1}, v14, v13, s{S_T0+2}")
    e.i(f"buffer_load_dwordx4 {vr(QPF,4)}, v{V_A3OFF}, s[{R_Q}:{R_Q+3}], 0 offen")
    e.i(f"buffer_load_dwordx4 {vr(QPF+4,4)}, v{V_A3OFF}, s[{R_Q}:{R_Q+3}], 0 offen offset:64")

def a3_main(e, cfg):
    e.c("==== A3: out_a = q * y ====")
    e.i(f"s_lshl_b32 s{S_T0}, s{S_CB}, 5")
    e.i(f"v_and_b32 v7, 31, v{V_LANE}")
    e.i(f"v_add_u32 v7, s{S_T0}, v7")
    if not cfg.nosync:
        poll(e, cfg, FL_A2, 7, "a2")
    e.i(f"s_lshl_b32 s{S_T0}, s{S_CB}, 6")
    e.i(f"s_lshl_b32 s{S_T0+1}, s{S_W}, 4")
    e.i(f"s_add_u32 s{S_T0}, s{S_T0}, s{S_T0+1}")
    e.i(f"s_lshl_b32 s{S_T0}, s{S_T0}, 12")
    e.i(f"s_lshl_b32 s{S_T0+1}, s{S_RB}, 7")
    e.i(f"s_add_u32 s{S_T0}, s{S_T0}, s{S_T0+1}")
    e.i(f"s_add_u32 s{S_T0}, s{S_T0}, {WS_YT}")
    e.i(f"s_add_u32 s{S_T0+1}, s{S_T0}, {8*4096}")
    e.i(f"v_lshrrev_b32 v3, 3, v{V_LANE}")
    e.i(f"v_lshlrev_b32 v13, 12, v3")
    e.i(f"v_and_b32 v14, 7, v{V_LANE}")
    e.i(f"v_lshlrev_b32 v14, 4, v14")
    e.i(f"v_add_u32 v13, v13, v14")
    e.i(f"buffer_load_dwordx4 v[16:19], v13, s[{R_WS}:{R_WS+3}], s{S_T0} offen sc1")
    e.i(f"buffer_load_dwordx4 v[20:23], v13, s[{R_WS}:{R_WS+3}], s{S_T0+1} offen sc1")
    e.i(f"v_mul_u32_u24 v3, 144, v3")
    e.i(f"s_mul_i32 s{S_T0}, s{S_W}, {16*144}")
    e.i(f"s_add_u32 s{S_T0}, s{S_T0}, {L_A3}")
    e.i(f"v_add3_u32 v3, v3, v14, s{S_T0}")
    e.i(f"v_lshrrev_b32 v13, 4, v{V_LANE}")
    e.i(f"v_lshlrev_b32 v13, 3, v13")
    e.i(f"v_bfe_u32 v14, v{V_LANE}, 2, 2")
    e.i(f"v_add_u32 v13, v13, v14")
    e.i(f"v_mul_u32_u24 v13, 144, v13")
    e.i(f"v_and_b32 v14, 3, v{V_LANE}")
    e.i(f"v_lshlrev_b32 v14, 3, v14")
    e.i(f"s_lshl_b32 s{S_T0}, s{S_W}, 5")
    e.i(f"s_add_u32 s{S_T0}, s{S_T0}, {L_A3}")
    e.i(f"v_add3_u32 v13, v13, v14, s{S_T0}")
    e.i("s_waitcnt vmcnt(0)")
    e.i(f"ds_write_b128 v3, v[16:19]")
    e.i(f"ds_write_b128 v3, v[20:23] offset:{8*144}")
    e.i("s_waitcnt lgkmcnt(0)")
    e.i("s_barrier")
    for it in range(2):
        for jj in range(2):
            e.i(f"ds_read_b64_tr_b16 {vr(16+4*it+2*jj,2)}, v13 offset:{(32*it+4*jj)*144}")
    e.i(f"s_mov_b32 s{S_T0}, 0xffff0000")
    e.i("s_waitcnt lgkmcnt(0)")
    for it in range(2):
        for m in range(4):
            y = 16 + 4*it + m; q = QPF + 4*it + m
            e.i(f"v_lshlrev_b32 v24, 16, v{y}")
            e.i(f"v_and_b32 v25, s{S_T0}, v{y}")
            e.i(f"v_lshlrev_b32 v26, 16, v{q}")
            e.i(f"v_and_b32 v27, s{S_T0}, v{q}")
            e.i(f"v_mul_f32 v24, v24, v26")
            e.i(f"v_mul_f32 v25, v25, v27")
            e.i(f"v_cvt_pk_bf16_f32 v{32+4*it+m}, v24, v25")
    e.i(f"buffer_store_dwordx4 v[32:35], v{V_A3OFF+1}, s[{R_OUT}:{R_OUT+3}], 0 offen")
    e.i(f"buffer_store_dwordx4 v[36:39], v{V_A3OFF+1}, s[{R_OUT}:{R_OUT+3}], 0 offen offset:64")

def b3_main(e, cfg):
    e.c("==== B3: out projection ====")
    e.i(f"s_lshr_b32 s{S_T0}, s{S_RB}, 1")
    e.i(f"v_and_b32 v7, 15, v{V_LANE}")
    e.i(f"v_lshlrev_b32 v7, 4, v7")
    e.i(f"v_add_u32 v7, s{S_T0}, v7")
    if not cfg.nosync:
        poll(e, cfg, FL_B2, 7, "b2")
    stamp(e, cfg, 14)
    e.i(f"s_lshr_b32 s{S_T0}, s{S_W}, 1")
    e.i(f"s_lshl_b32 s{S_T0+1}, s{S_RB}, 1")
    e.i(f"s_add_u32 s{S_T0}, s{S_T0}, s{S_T0+1}")
    e.i(f"s_lshl_b32 s{S_T0}, s{S_T0}, 15")
    e.i(f"s_add_u32 s{S_T0}, s{S_T0}, {WS_OF}")
    for blk in range(8):
        if blk: e.i(f"s_add_u32 s{S_T0}, s{S_T0}, 4096")
        for u in range(4):
            e.i(f"buffer_load_dwordx4 {ar(16*blk+4*u,4)}, v{V_L16}, s[{R_WS}:{R_WS+3}], s{S_T0} offen offset:{1024*u} sc1")
    e.i(f"v_lshrrev_b32 v8, 5, v{V_LANE}")
    e.i(f"v_mul_u32_u24 v8, 7, v8")
    e.i(f"v_bfe_u32 v9, v{V_LANE}, 2, 2")
    e.i(f"v_add_u32 v8, v8, v9")
    e.i(f"v_bfe_u32 v9, v{V_LANE}, 4, 1")
    e.i(f"v_lshlrev_b32 v9, 5, v9")
    e.i(f"v_and_b32 v10, 3, v{V_LANE}")
    e.i(f"v_lshl_add_u32 v9, v10, 3, v9")
    e.i(f"s_and_b32 s{S_T0+1}, s{S_W}, 1")
    for f in range(2):
        e.i(f"v_add_u32 v10, {14*f}, v8")
        e.i(f"v_bfe_u32 v11, v10, 1, 1")
        e.i(f"v_xor_b32 v11, s{S_T0+1}, v11")
        e.i(f"v_lshlrev_b32 v11, 6, v11")
        e.i(f"v_lshl_add_u32 v10, v10, 7, v11")
        e.i(f"v_add_u32 v{12+f}, v10, v9")
        if L_WO: e.i(f"v_add_u32 v{12+f}, {L_WO}, v{12+f}")
    e.i(f"s_lshl_b32 s{S_T0}, s{S_RB}, 6")
    e.i(f"s_lshr_b32 s{S_T0+2}, s{S_W}, 1")
    e.i(f"s_lshl_b32 s{S_T0+2}, s{S_T0+2}, 5")
    e.i(f"s_add_u32 s{S_T0}, s{S_T0}, s{S_T0+2}")
    e.i(f"s_mul_i32 s{S_T0}, s{S_T0}, 1792")
    e.i(f"s_lshl_b32 s{S_T0+2}, s{S_CB}, 7")
    e.i(f"s_lshl_b32 s{S_T0+1}, s{S_T0+1}, 6")
    e.i(f"s_add_u32 s{S_T0}, s{S_T0}, s{S_T0+2}")
    e.i(f"s_add_u32 s{S_T0}, s{S_T0}, s{S_T0+1}")
    e.i(f"s_add_u32 s{S_T0}, s{S_T0}, 896")
    e.i(f"v_and_b32 v8, 31, v{V_LANE}")
    e.i(f"v_mul_u32_u24 v8, 1792, v8")
    e.i(f"v_lshrrev_b32 v9, 5, v{V_LANE}")
    e.i(f"v_lshlrev_b32 v9, 3, v9")
    e.i(f"v_add3_u32 v14, v8, v9, s{S_T0}")
    steps = [(h, f) for h in range(16) for f in range(2)]
    def wread(k):
        h, f = steps[k]
        b = 32 + 4*(k % 4)
        for jj in range(2):
            e.i(f"ds_read_b64_tr_b16 {vr(b+2*jj,2)}, v{12+f} offset:{(28*h+4*jj)*128}")
    for k in range(3): wread(k)
    for k in range(32):
        if k + 3 < 32: wread(k + 3)
        nyl = 2 * min(3, 31 - k)
        e.i(f"s_waitcnt vmcnt({31-k}) lgkmcnt({nyl})")
        b = 32 + 4*(k % 4)
        e.i(f"v_mfma_f32_32x32x16_bf16 v[16:31], {vr(b,4)}, {ar(4*k,4)}, {'0' if k == 0 else 'v[16:31]'}")
    e.i("s_nop 7"); e.i("s_nop 7")
    for m in range(8):
        e.i(f"v_cvt_pk_bf16_f32 v{48+m}, v{16+2*m}, v{17+2*m}")
    for g in range(4):
        e.i(f"buffer_store_dwordx2 {vr(48+2*g,2)}, v14, s[{R_OUT}:{R_OUT+3}], 0 offen offset:{16*g}")

NPRE = 3
def build(cfg):
    e = E()
    prologue(e, cfg)
    a1_addr(e, cfg)
    b1_addr(e, cfg)
    e.i("s_waitcnt lgkmcnt(0)")
    P = S_PTR
    srd(e, R_K, P+2, SZ_SD); srd(e, R_V, P+4, SZ_SD); srd(e, R_SHK, P+6, SZ_SHK)
    a1_loads(e, cfg)
    srd(e, R_SSMK, P+8, SZ_SD)
    a2_hloads(e, cfg)
    srd(e, R_X, P+12, SZ_SD); srd(e, R_WQKV, P+14, SZ_WQKV)
    for j in range(NPRE): b1_loads(e, cfg, j)
    a2_dload(e, cfg)
    srd(e, R_Q, P+0, SZ_SD); srd(e, R_WO, P+16, SZ_WO); srd(e, R_OUT, P+18, SZ_OUT)
    srd(e, R_DBG, P+20, 256); srd(e, R_WS, P+22, WS_SIZE)
    e.i("s_or_b32 s56, s2, s3")
    e.i("s_cbranch_scc1 L_nononce")
    e.i(f"s_memrealtime s[{S_NONCE}:{S_NONCE+1}]")
    e.i("s_waitcnt lgkmcnt(0)")
    e.i(f"s_or_b32 s{S_NONCE}, s{S_NONCE}, 1")
    e.i(f"v_mov_b32 v76, s{S_NONCE}")
    e.i(f"v_mov_b32 v77, s{S_NONCE+1}")
    e.i("v_mov_b32 v78, 0")
    e.i("s_mov_b64 exec, 1")
    e.i(f"buffer_store_dwordx2 v[76:77], v78, s[{R_DBG}:{R_DBG+3}], 0 offen sc1")
    e.i("s_mov_b64 exec, -1")
    e.i("s_branch L_nononce2")
    e.label("L_nononce")
    e.label("L_nononce2")
    stamp(e, cfg, 0)
    a1_compute(e, cfg, NPRE*7)
    nonce_early(e, cfg)
    a2_hstage(e, cfg)
    stamp(e, cfg, 1)
    for j in range(NPRE, 7): b1_loads(e, cfg, j)
    b1_traddr(e, cfg)
    for j in range(7):
        if j < NPRE:
            younger = (NPRE - 1 - j)*7 + N_A1_STORES + 1 + (7 - NPRE)*7
        else:
            younger = (6 - j)*7
        e.i(f"s_waitcnt vmcnt({younger})")
        e.i("s_barrier")
        if j == NPRE:
            get_nonce_flagged = True
            publish_a1(e, cfg)
        b1_wreads(e, 4*j)
        for n in range(4*j, 4*j+4):
            if n + 1 < 4*j + 4:
                b1_wreads(e, n + 1)
                e.i("s_waitcnt lgkmcnt(6)")
            else:
                e.i("s_waitcnt lgkmcnt(0)")
            b1_mfma(e, n)
    stamp(e, cfg, 3)
    b1_epilogue(e, cfg)
    e.i("s_waitcnt vmcnt(0) lgkmcnt(0)")
    e.i("s_barrier")
    publish(e, cfg, FL_B1, [f"s_lshl_b32 s{S_T0}, s{S_H}, 4", f"s_add_u32 s{S_T0}, s{S_T0}, s{S_R}"], "b1")
    stamp(e, cfg, 4)
    if cfg.stop_after >= 2:
        a3_qloads(e, cfg)
        e.i("s_cmp_ge_u32 s2, 224")
        e.i("s_cbranch_scc1 L_skipA2")
        wo_dma(e, cfg)
        a2_main(e, cfg)
        e.i("s_waitcnt vmcnt(0)")
        e.i("s_barrier")
        publish(e, cfg, FL_A2, [f"s_mov_b32 s{S_T0}, s2"], "a2")
        e.label("L_skipA2")
        stamp(e, cfg, 9)
    if cfg.stop_after >= 3:
        b2_main(e, cfg)
        e.i("s_waitcnt vmcnt(0)")
        e.i("s_barrier")
        publish(e, cfg, FL_B2, [f"s_lshl_b32 s{S_T0}, s{S_H}, 4", f"s_add_u32 s{S_T0}, s{S_T0}, s{S_R}"], "b2")
        stamp(e, cfg, 12)
    if cfg.stop_after >= 4:
        e.i("s_cmp_ge_u32 s2, 224")
        e.i("s_cbranch_scc1 L_fin")
        a3_main(e, cfg)
        stamp(e, cfg, 13)
        b3_main(e, cfg)
        e.label("L_fin")
    stamp(e, cfg, 15)
    if cfg.stamps:
        e.i(f"s_lshl_b32 s{S_T0}, s2, 2")
        e.i(f"s_add_u32 s{S_T0}, s{S_T0}, s{S_W}")
        e.i(f"s_lshl_b32 s{S_T0}, s{S_T0}, 8")
        e.i(f"s_add_u32 s{S_T0}, s{S_T0}, {WS_TS}")
        e.i(f"v_lshlrev_b32 v3, 2, v{V_LANE}")
        e.i(f"buffer_store_dword v{V_TS}, v3, s[{R_WS}:{R_WS+3}], s{S_T0} offen")
    e.label("L_end")
    e.i("s_endpgm")
    if cfg.stop_after >= 3:
        b2_slow(e, cfg)
        e.i("s_endpgm")
    return e

def publish_a1(e, cfg):
    get_nonce(e, cfg)
    publish(e, cfg, FL_A1, [f"s_mov_b32 s{S_T0}, s2"], "a1")

HEADER = f"""; Kernarg layout (96 bytes): A_q A_k A_v A_shift_k A_ssm_k A_ssm_D B_x B_wqkv B_wo out debug ws
; @launch grid=(256,1,1) block=(256,1,1) lds={LDS_SIZE}
.amdgcn_target "amdgcn-amd-amdhsa--gfx950"
.text
.globl {KNAME}
.p2align 8
.type {KNAME},@function
{KNAME}:
"""
FOOTER = f"""
.section .rodata,"a"
.p2align 6
.amdhsa_kernel {KNAME}
  .amdhsa_next_free_vgpr 512
  .amdhsa_next_free_sgpr 102
  .amdhsa_accum_offset 256
  .amdhsa_group_segment_fixed_size 0
  .amdhsa_kernarg_size 96
  .amdhsa_user_sgpr_count 2
  .amdhsa_user_sgpr_kernarg_segment_ptr 1
  .amdhsa_system_sgpr_workgroup_id_x 1
  .amdhsa_float_denorm_mode_32 3
.end_amdhsa_kernel
"""

if __name__ == "__main__":
    import argparse
    ap = argparse.ArgumentParser()
    ap.add_argument("-o", default=f"cdna_kernels/{NAME}.s")
    ap.add_argument("--stop", type=int, default=99)
    ap.add_argument("--stamps", action="store_true")
    ap.add_argument("--nosync", action="store_true")
    a = ap.parse_args()
    cfg = Cfg(); cfg.stop_after = a.stop; cfg.stamps = a.stamps; cfg.nosync = a.nosync
    e = build(cfg)
    open(a.o, "w").write(HEADER + e.text() + FOOTER)
    print("wrote", a.o, len(e.lines), "lines")
```

```python
import sys, math, struct

NAME = "concat_heads__ssm_conv_h3__softmax_full_mha__prompt"
KNAME = NAME + "_kernel"

class E:
    def __init__(self):
        self.lines = []
    def c(self, s):
        self.lines.append("    ; " + s)
    def i(self, s):
        self.lines.append("    " + s)
    def label(self, s):
        self.lines.append(s + ":")
    def text(self):
        return "\n".join(self.lines) + "\n"

def vr(a, n=1):
    return f"v{a}" if n == 1 else f"v[{a}:{a+n-1}]"
def ar(a, n=1):
    return f"a{a}" if n == 1 else f"a[{a}:{a+n-1}]"
def rs(r): return f"s[{r}:{r+3}]"

S, D, H, DH = 2048, 448, 16, 28
SZ_SD   = S * D * 2
SZ_SHK  = D * 4 * 2
SZ_WQKV = D * 3 * D * 2
SZ_WO   = D * D * 2
SZ_OUT  = S * 2 * D * 2
WS_KV = 0x000000
WS_XT = 0x400000
WS_YT = 0x600000
WS_OF = 0x800000
WS_FL = 0xA00000
FL_A1, FL_B1, FL_A2, FL_B2 = 0, 0x10000, 0x20000, 0x30000
FL_SH = 6
WS_TS = 0xB00000
WS_SIZE = 0xC00000

L_RING = 0
SLOT   = 28672
L_KS   = 86016
L_Q    = 86016
L_SHK  = 98304
L_KVT  = 102400
L_H    = 111616
H_CH   = 4160
L_X    = 119936
X_CH   = 5248
L_CARRY= 130432
L_Y    = L_X
L_WO   = 0
L_RED  = 58368
L_OF   = 58368
L_A3   = 123904
L_A3R  = 133120
L_MISC = 143616
LDS_SIZE = 143680

S_W = 3
R_K, R_V, R_Q, R_SHK, R_SSMK, R_X, R_WQKV, R_WO, R_OUT, R_WS, R_DBG = 4, 8, 12, 16, 20, 24, 28, 32, 36, 40, 44
S_H, S_R, S_CB, S_RB = 48, 49, 50, 51
S_NONCE = 52
S_D2 = 54
S_DP = 62
S_T0 = 56
S_MHH = 64
S_MONE = 66
S63 = 68
S_KV = 70
S_J = 76
S_JJ = 77
S_SLI = 78
S_SLC = 79
S_XB = 80
S_WOI = 81
S_T1 = 88
S_SLOW = 96
S_IT = 97
S_TS = 98

QSCALE = (DH ** -0.5) * math.log2(math.e)
def f2u(x): return struct.unpack("<I", struct.pack("<f", x))[0]

class Cfg:
    stop_after = 99
    stamps = False
    nosync = False
    realtime = False
    prefetch = True

def stamp(e, cfg, idx):
    if not cfg.stamps: return
    e.c(f"stamp {idx}")
    e.i(f"{'s_memrealtime' if cfg.realtime else 's_memtime'} s[{S_TS}:{S_TS+1}]")
    e.i("s_waitcnt lgkmcnt(0)")
    e.i(f"v_writelane_b32 v250, s{S_TS}, {idx}")

V_LANE, V_L16 = 1, 2
V_TS = 250

def prologue(e, cfg):
    e.c("==== prologue ====")
    ptrs = [(R_K, 8), (R_V, 16), (R_SHK, 24), (R_SSMK, 32), (R_X, 48), (R_WQKV, 56), (R_Q, 0), (R_WO, 64), (R_OUT, 72), (R_DBG, 80), (R_WS, 88), (S_DP, 40)]
    for r, off in ptrs:
        e.i(f"s_load_dwordx2 s[{r}:{r+1}], s[0:1], {off}")
    e.i("s_cmp_ge_u32 s2, 256")
    e.i("s_cbranch_scc1 L_end")
    if cfg.stamps:
        e.i(f"v_mov_b32 v{V_TS}, 0")
        e.c("stamp 16 (no wait on kernarg)")
        e.i(f"s_memrealtime s[{S_TS}:{S_TS+1}]" if cfg.realtime else f"s_memtime s[{S_TS}:{S_TS+1}]")
    e.i(f"v_lshrrev_b32 v3, 6, v0")
    e.i(f"v_and_b32 v{V_LANE}, 63, v0")
    e.i(f"v_readfirstlane_b32 s{S_W}, v3")
    e.i(f"v_lshlrev_b32 v{V_L16}, 4, v{V_LANE}")
    sizes = {R_K: SZ_SD, R_V: SZ_SD, R_SHK: SZ_SHK, R_SSMK: SZ_SD, R_X: SZ_SD, R_WQKV: SZ_WQKV, R_Q: SZ_SD, R_WO: SZ_WO, R_OUT: SZ_OUT, R_DBG: 256, R_WS: WS_SIZE}
    for r, sz in sizes.items():
        e.i(f"s_mov_b32 s{r+2}, {sz}")
        e.i(f"s_mov_b32 s{r+3}, 0x20000")
    T = S_T0
    e.i(f"s_and_b32 s{T}, s2, 7")
    e.i(f"s_lshr_b32 s{T+1}, s2, 3")
    e.i(f"s_and_b32 s{S_H}, s{T}, 3")
    e.i(f"s_lshl_b32 s{S_H}, s{S_H}, 2")
    e.i(f"s_and_b32 s{T+2}, s{T+1}, 3")
    e.i(f"s_add_u32 s{S_H}, s{S_H}, s{T+2}")
    e.i(f"s_lshr_b32 s{S_R}, s{T}, 2")
    e.i(f"s_lshl_b32 s{S_R}, s{S_R}, 3")
    e.i(f"s_lshr_b32 s{T+2}, s{T+1}, 2")
    e.i(f"s_add_u32 s{S_R}, s{S_R}, s{T+2}")
    e.i(f"s_lshr_b32 s{S_CB}, s2, 5")
    e.i(f"s_min_u32 s{S_CB}, s{S_CB}, 6")
    e.i(f"s_and_b32 s{S_RB}, s2, 31")
    e.i(f"s_and_b32 s{S_J}, s{S_H}, 3")
    e.i(f"s_lshl_b32 s{S_J}, s{S_J}, 1")
    e.i(f"s_and_b32 s{T}, s{S_R}, 7")
    e.i(f"s_add_u32 s{S_J}, s{S_J}, s{T}")
    e.i(f"s_cmp_ge_u32 s{S_J}, 7")
    e.i(f"s_cselect_b32 s{T}, 7, 0")
    e.i(f"s_sub_u32 s{S_J}, s{S_J}, s{T}")
    e.i(f"s_cmp_ge_u32 s{S_J}, 7")
    e.i(f"s_cselect_b32 s{T}, 7, 0")
    e.i(f"s_sub_u32 s{S_J}, s{S_J}, s{T}")

V_KOFF = 4
VA = 48
V_XE, V_XO = 8, 9
V_DMA = 10
V_HOFF = 7
HREG = 236

def addr_early(e, cfg):
    T = S_T0
    e.c("A1 addresses")
    e.i(f"s_lshl_b32 s{T}, s{S_RB}, 6")
    e.i(f"s_lshl_b32 s{T+1}, s{S_W}, 4")
    e.i(f"s_add_u32 s{T}, s{T}, s{T+1}")
    e.i(f"s_mul_i32 s{T}, s{T}, 896")
    e.i(f"s_lshl_b32 s{T+1}, s{S_CB}, 7")
    e.i(f"s_add_u32 s{T}, s{T}, s{T+1}")
    e.i(f"v_lshrrev_b32 v3, 3, v{V_LANE}")
    e.i(f"v_mul_u32_u24 v13, 896, v3")
    e.i(f"v_and_b32 v14, 7, v{V_LANE}")
    e.i(f"v_lshl_add_u32 v15, v14, 4, v13")
    e.i(f"v_add_u32 v{V_KOFF+1}, s{T}, v15")
    e.i(f"v_add_u32 v{V_KOFF+2}, 7168, v{V_KOFF+1}")
    e.i(f"v_subrev_u32 v{V_KOFF}, 7168, v{V_KOFF+1}")
    e.c("h offset")
    e.i(f"s_lshr_b32 s{T}, s{S_W}, 1")
    e.i(f"s_lshl_b32 s{T+1}, s2, 1")
    e.i(f"s_add_u32 s{T}, s{T}, s{T+1}")
    e.i(f"s_lshl_b32 s{T}, s{T}, 12")
    e.i(f"s_and_b32 s{T+1}, s{S_W}, 1")
    e.i(f"s_lshl_b32 s{T+1}, s{T+1}, 11")
    e.i(f"s_add_u32 s{T}, s{T}, s{T+1}")
    e.i(f"v_add_u32 v{V_HOFF}, s{T}, v{V_L16}")
    e.c("B1 x dma offsets: (128r + 32w + (l>>3))*896 + ((l&7) ^ f)*16, f = (l>>4) ^ (4*(t&1))")
    e.i(f"s_lshl_b32 s{T}, s{S_R}, 7")
    e.i(f"s_lshl_b32 s{T+1}, s{S_W}, 5")
    e.i(f"s_add_u32 s{T}, s{T}, s{T+1}")
    e.i(f"s_mul_i32 s{T}, s{T}, 896")
    e.i(f"v_lshrrev_b32 v3, 4, v{V_LANE}")
    e.i(f"v_xor_b32 v3, v3, v14")
    e.i(f"v_lshl_add_u32 v15, v3, 4, v13")
    e.i(f"v_add_u32 v{V_XE}, s{T}, v15")
    e.i(f"v_xor_b32 v{V_XO}, 64, v{V_XE}")
    e.c("W dma offsets")
    e.i(f"s_mul_i32 s{T}, s{S_H}, 56")
    for t in range(3):
        d = V_DMA + t
        e.i(f"v_add_u32 v3, {64*t}, v{V_LANE}")
        e.i(f"v_mul_u32_u24 v13, 43691, v3")
        e.i(f"v_lshrrev_b32 v13, 19, v13")
        e.i(f"v_mul_u32_u24 v14, 12, v13")
        e.i(f"v_sub_u32 v3, v3, v14")
        e.i(f"v_mul_u32_u24 v{d}, 2688, v13")
        e.i(f"v_lshrrev_b32 v13, 2, v3")
        e.i(f"v_and_b32 v3, 3, v3")
        e.i(f"v_mul_u32_u24 v14, 896, v13")
        e.i(f"v_add3_u32 v{d}, v{d}, v14, s{T}")
        e.i(f"v_lshrrev_b32 v13, 1, v13")
        e.i(f"v_add_u32 v14, 1, v3")
        e.i(f"v_mul_u32_u24 v13, v13, v14")
        e.i(f"v_lshlrev_b32 v3, 3, v3")
        e.i(f"v_sub_u32 v3, v3, v13")
        e.i(f"v_lshl_add_u32 v{d}, v3, 1, v{d}")

def a1_loads(e, cfg):
    T = S_T0
    e.c("A1 loads: k dma x3, shk dma, v x2, h x2")
    e.i(f"s_mul_i32 s{T}, s{S_W}, 3072")
    for t in range(3):
        e.i(f"s_add_u32 m0, s{T}, {L_KS + 1024*t}")
        e.i("s_nop 0")
        e.i(f"buffer_load_dwordx4 v{V_KOFF+t}, {rs(R_K)}, 0 offen lds")
    e.i(f"s_lshl_b32 s{T}, s{S_W}, 10")
    e.i(f"s_add_u32 m0, s{T}, {L_SHK}")
    e.i(f"s_lshl_b32 s{T+1}, s{S_CB}, 9")
    e.i(f"buffer_load_dwordx4 v{V_L16}, {rs(R_SHK)}, s{T+1} offen lds")
    for it in range(2):
        e.i(f"buffer_load_dwordx4 {vr(VA+4*it,4)}, v{V_KOFF+1+it}, {rs(R_V)}, 0 offen")

def h_loads(e, cfg):
    e.i(f"buffer_load_dwordx4 {vr(HREG,4)}, v{V_HOFF}, {rs(R_SSMK)}, 0 offen")
    e.i(f"buffer_load_dwordx4 {vr(HREG+4,4)}, v{V_HOFF}, {rs(R_SSMK)}, 0 offen offset:1024")

V_PF = 24
def l2_prefetch_addr(e, cfg):
    T = S_T0
    e.i(f"s_and_b32 s{T}, s2, 7")
    e.i(f"s_lshr_b32 s{T}, s{T}, 2")
    e.i(f"s_mul_i32 s{T}, s{T}, {1024*896}")
    e.i(f"s_lshr_b32 s{T+1}, s2, 3")
    e.i(f"s_mul_i32 s{T+2}, s{T+1}, 28672")
    e.i(f"s_add_u32 s{T}, s{T}, s{T+2}")
    e.i(f"s_lshl_b32 s{T+2}, s{S_W}, 12")
    e.i(f"s_add_u32 s{T}, s{T}, s{T+2}")
    e.i(f"v_lshlrev_b32 v3, 6, v{V_LANE}")
    e.i(f"v_add_u32 v{V_PF}, s{T}, v3")
    e.i(f"s_lshl_b32 s{T}, s{S_W}, 6")
    e.i(f"v_add_u32 v3, s{T}, v{V_LANE}")
    e.i(f"v_mul_u32_u24 v13, 43691, v3")
    e.i(f"v_lshrrev_b32 v13, 19, v13")
    e.i(f"v_mul_u32_u24 v14, 12, v13")
    e.i(f"v_sub_u32 v3, v3, v14")
    e.i(f"v_lshrrev_b32 v14, 2, v3")
    e.i(f"v_mul_u32_u24 v14, 896, v14")
    e.i(f"v_and_b32 v3, 3, v3")
    e.i(f"v_lshl_add_u32 v14, v3, 6, v14")
    e.i(f"s_mul_i32 s{T}, s{T+1}, 14")
    e.i(f"v_add_u32 v13, s{T}, v13")
    e.i(f"v_mul_u32_u24 v13, 2688, v13")
    e.i(f"s_and_b32 s{T}, s2, 3")
    e.i(f"s_mul_i32 s{T}, s{T}, 224")
    e.i(f"s_and_b32 s{T}, s{T}, 0xffffffc0")
    e.i(f"v_add3_u32 v{V_PF+1}, v13, v14, s{T}")

def l2_prefetch(e, cfg):
    T = S_T0
    e.i(f"buffer_load_dword v244, v{V_PF}, {rs(R_X)}, 0 offen")
    e.i(f"s_mov_b32 s{T}, 16384")
    e.i(f"s_cmp_eq_u32 s{S_W}, 3")
    e.i(f"s_cselect_b32 s{T}, 0, s{T}")
    e.i(f"buffer_load_dword v245, v{V_PF}, {rs(R_X)}, s{T} offen")
    e.i(f"buffer_load_dword v246, v{V_PF+1}, {rs(R_WQKV)}, 0 offen")
N_PF = 3

def b1_issue(e):
    T = S_T0
    e.i(f"s_lshl_b32 s{T}, s{S_J}, 7")
    e.i(f"s_lshl_b32 s{T+1}, s{S_W}, 12")
    e.i(f"s_add_u32 s{T+1}, s{T+1}, s{S_SLI}")
    for t in range(4):
        if t: e.i(f"s_add_u32 s{T}, s{T}, 7168")
        e.i(f"s_add_u32 m0, s{T+1}, {1024*t}")
        if t == 0: e.i("s_nop 0")
        e.i(f"buffer_load_dwordx4 v{V_XE if t % 2 == 0 else V_XO}, {rs(R_X)}, s{T} offen lds")
    e.i(f"s_lshl_b32 s{T}, s{S_J}, 2")
    e.i(f"s_add_u32 s{T}, s{T}, s{S_W}")
    e.i(f"s_mul_i32 s{T}, s{T}, 43008")
    e.i(f"s_mul_i32 s{T+1}, s{S_W}, 3072")
    e.i(f"s_add_u32 s{T+1}, s{T+1}, s{S_SLI}")
    for t in range(3):
        e.i(f"s_add_u32 m0, s{T+1}, {16384 + 1024*t}")
        if t == 0: e.i("s_nop 0")
        e.i(f"buffer_load_dwordx4 v{V_DMA+t}, {rs(R_WQKV)}, s{T} offen lds")
    e.i(f"s_add_u32 s{S_J}, s{S_J}, 1")
    e.i(f"s_cmp_eq_u32 s{S_J}, 7")
    e.i(f"s_cselect_b32 s{S_J}, 0, s{S_J}")
    e.i(f"s_add_u32 s{S_SLI}, s{S_SLI}, {SLOT}")
    e.i(f"s_cmp_eq_u32 s{S_SLI}, {3*SLOT + L_RING}")
    e.i(f"s_cselect_b32 s{S_SLI}, {L_RING}, s{S_SLI}")

KA, WSH = 16, 56
def a1_compute(e, cfg, nyounger):
    T = S_T0
    e.c("A1 compute")
    e.i(f"s_mul_i32 s{T}, s{S_W}, 3072")
    e.i(f"s_add_u32 s{T}, s{T}, {L_KS}")
    e.i(f"v_add_u32 v3, s{T}, v{V_L16}")
    e.i(f"s_lshl_b32 s{T}, s{S_W}, 10")
    e.i(f"s_add_u32 s{T}, s{T}, {L_SHK}")
    e.i(f"v_and_b32 v14, 7, v{V_LANE}")
    e.i(f"v_lshlrev_b32 v13, 6, v14")
    e.i(f"v_add_u32 v13, s{T}, v13")
    e.i(f"s_waitcnt vmcnt({nyounger})")
    stamp(e, cfg, 20)
    for m in range(4):
        e.i(f"ds_read_b128 {vr(WSH+4*m,4)}, v13 offset:{16*m}")
    for it in range(2):
        for j in range(4):
            e.i(f"ds_read_b128 {vr(KA+16*it+4*j,4)}, v3 offset:{(8+8*it-j)*128}")
    e.i(f"s_mov_b32 s{T}, 0x05040100")
    e.i(f"s_mov_b32 s{T+1}, 0x07060302")
    e.i(f"s_mov_b32 s{T+2}, 0xffff0000")
    TT = 76; OUTR = 108
    for it in range(2):
        e.i(f"s_waitcnt lgkmcnt({4 if it == 0 else 0})")
        for m in range(4):
            k = lambda j: KA + 16*it + 4*j + m
            b = TT + 4*m
            e.i(f"v_perm_b32 v{b+0}, v{k(1)}, v{k(0)}, s{T}")
            e.i(f"v_perm_b32 v{b+1}, v{k(1)}, v{k(0)}, s{T+1}")
            e.i(f"v_perm_b32 v{b+2}, v{k(3)}, v{k(2)}, s{T}")
            e.i(f"v_perm_b32 v{b+3}, v{k(3)}, v{k(2)}, s{T+1}")
        A = TT + 16
        for m in range(4):
            b = TT + 4*m
            e.i(f"v_dot2_f32_bf16 v{A+2*m}, v{b+0}, v{WSH+4*m+0}, 0")
            e.i(f"v_dot2_f32_bf16 v{A+2*m+1}, v{b+1}, v{WSH+4*m+2}, 0")
        U = TT + 24
        for m in range(4):
            e.i(f"v_lshlrev_b32 v{U+2*m}, 16, v{VA+4*it+m}")
            e.i(f"v_and_b32 v{U+2*m+1}, s{T+2}, v{VA+4*it+m}")
        for m in range(4):
            b = TT + 4*m
            e.i(f"v_dot2_f32_bf16 v{A+2*m}, v{b+2}, v{WSH+4*m+1}, v{A+2*m}")
            e.i(f"v_dot2_f32_bf16 v{A+2*m+1}, v{b+3}, v{WSH+4*m+3}, v{A+2*m+1}")
        e.i("s_nop 2")
        for c in range(8):
            e.i(f"v_mul_f32 v{A+c}, v{A+c}, v{U+c}")
        for m in range(4):
            e.i(f"v_cvt_pk_bf16_f32 v{OUTR+4*it+m}, v{A+2*m}, v{A+2*m+1}")
    e.i(f"s_mul_i32 s{T}, s{S_W}, {16*144}")
    e.i(f"s_add_u32 s{T}, s{T}, {L_KVT}")
    e.i(f"v_lshrrev_b32 v13, 3, v{V_LANE}")
    e.i(f"v_mul_u32_u24 v15, 144, v13")
    e.i(f"v_lshl_add_u32 v15, v14, 4, v15")
    e.i(f"v_add_u32 v3, s{T}, v15")
    e.i(f"ds_write_b128 v3, {vr(OUTR,4)}")
    e.i(f"ds_write_b128 v3, {vr(OUTR+4,4)} offset:{8*144}")
    e.i(f"v_lshrrev_b32 v3, 4, v{V_LANE}")
    e.i(f"v_lshlrev_b32 v3, 3, v3")
    e.i(f"v_bfe_u32 v16, v{V_LANE}, 2, 2")
    e.i(f"v_add_u32 v3, v3, v16")
    e.i(f"v_mul_u32_u24 v3, 144, v3")
    e.i(f"v_and_b32 v16, 3, v{V_LANE}")
    e.i(f"v_lshlrev_b32 v16, 3, v16")
    e.i(f"s_lshl_b32 s{T}, s{S_W}, 5")
    e.i(f"s_add_u32 s{T}, s{T}, {L_KVT}")
    e.i(f"v_add3_u32 v3, v3, v16, s{T}")
    e.i(f"s_mul_i32 s{T}, s{S_W}, 3072")
    e.i(f"s_add_u32 s{T}, s{T}, {L_KS}")
    e.i(f"v_and_b32 v16, 15, v{V_LANE}")
    e.i(f"v_mul_u32_u24 v16, 144, v16")
    e.i(f"v_and_b32 v17, 0x30, v{V_LANE}")
    e.i(f"v_add3_u32 v16, v16, v17, s{T}")
    e.i(f"v_add_u32 v17, s{T}, v15")
    e.i(f"v_lshlrev_b32 v18, 12, v13")
    e.i(f"v_lshl_add_u32 v18, v14, 4, v18")
    e.i(f"s_lshl_b32 s{T}, s{S_CB}, 6")
    e.i(f"s_lshl_b32 s{T+1}, s{S_W}, 4")
    e.i(f"s_add_u32 s{T}, s{T}, s{T+1}")
    e.i(f"s_lshl_b32 s{T}, s{T}, 12")
    e.i(f"s_lshl_b32 s{T+1}, s{S_RB}, 7")
    e.i(f"s_add_u32 s{T}, s{T}, s{T+1}")
    e.i(f"s_add_u32 s{T}, s{T}, {WS_XT}")
    e.i(f"s_add_u32 s{T+1}, s{T}, {8*4096}")
    e.i("s_waitcnt lgkmcnt(0)")
    e.i("s_barrier")
    for it2 in range(2):
        for jj in range(2):
            e.i(f"ds_read_b64_tr_b16 {vr(76+4*it2+2*jj,2)}, v3 offset:{(32*it2+4*jj)*144}")
    e.i("s_waitcnt lgkmcnt(2)")
    e.i(f"ds_write_b128 v16, {vr(76,4)}")
    e.i("s_waitcnt lgkmcnt(1)")
    e.i(f"ds_write_b128 v16, {vr(80,4)} offset:64")
    e.i("s_waitcnt lgkmcnt(0)")
    e.i(f"ds_read_b128 {vr(84,4)}, v17")
    e.i(f"ds_read_b128 {vr(88,4)}, v17 offset:{8*144}")
    e.i("s_waitcnt lgkmcnt(1)")
    e.i(f"buffer_store_dwordx4 {vr(84,4)}, v18, {rs(R_WS)}, s{T} offen sc1")
    e.i("s_waitcnt lgkmcnt(0)")
    e.i(f"buffer_store_dwordx4 {vr(88,4)}, v18, {rs(R_WS)}, s{T+1} offen sc1")

V_NONCE = 22
def nonce_early(e, cfg):
    e.i("v_mov_b32 v21, 0")
    e.i(f"buffer_load_dwordx2 v[{V_NONCE}:{V_NONCE+1}], v21, {rs(R_DBG)}, 0 offen sc1")

def get_nonce(e, cfg):
    e.c("fetch nonce (early load, else poll d_debug)")
    e.i(f"v_readfirstlane_b32 s{S_NONCE}, v{V_NONCE}")
    e.i(f"v_readfirstlane_b32 s{S_NONCE+1}, v{V_NONCE+1}")
    e.i("s_nop 3")
    e.i(f"s_or_b32 s{S_T0}, s{S_NONCE}, s{S_NONCE+1}")
    e.i(f"s_cbranch_scc1 L_nonce_done")
    e.i(f"s_mov_b32 s{S_IT}, 0x40000")
    e.label("L_nonce")
    e.i(f"buffer_load_dwordx2 v[{V_NONCE}:{V_NONCE+1}], v21, {rs(R_DBG)}, 0 offen sc1")
    e.i("s_waitcnt vmcnt(0)")
    e.i(f"v_readfirstlane_b32 s{S_NONCE}, v{V_NONCE}")
    e.i(f"v_readfirstlane_b32 s{S_NONCE+1}, v{V_NONCE+1}")
    e.i("s_nop 3")
    e.i(f"s_or_b32 s{S_T0}, s{S_NONCE}, s{S_NONCE+1}")
    e.i(f"s_cbranch_scc1 L_nonce_done")
    e.i(f"s_sub_u32 s{S_IT}, s{S_IT}, 1")
    e.i(f"s_cbranch_scc1 L_nonce_done")
    e.i("s_sleep 2")
    e.i("s_branch L_nonce")
    e.label("L_nonce_done")

def publish(e, cfg, arr, idx_lines, tmp=4):
    T = S_T0
    for ln in idx_lines: e.i(ln)
    e.i(f"s_lshl_b32 s{T}, s{T}, 2")
    e.i(f"s_add_u32 s{T}, s{T}, s{S_W}")
    e.i(f"s_lshl_b32 s{T}, s{T}, {FL_SH}")
    e.i(f"s_add_u32 s{T}, s{T}, {WS_FL + arr}")
    e.i(f"v_mov_b32 v{tmp}, s{S_NONCE}")
    e.i(f"v_mov_b32 v{tmp+1}, s{S_NONCE+1}")
    e.i(f"v_mov_b32 v{tmp+2}, 0")
    e.i("s_mov_b64 exec, 1")
    e.i(f"buffer_store_dwordx2 v[{tmp}:{tmp+1}], v{tmp+2}, {rs(R_WS)}, s{T} offen sc1")
    e.i("s_mov_b64 exec, -1")

def poll(e, cfg, arr, vidx, tag, tmp=4):
    e.c(f"poll {tag}")
    e.i(f"v_lshlrev_b32 v{vidx}, {FL_SH}, v{vidx}")
    e.i(f"v_add_u32 v{vidx}, {WS_FL + arr}, v{vidx}")
    if cfg.nosync: return
    e.i(f"s_mov_b32 s{S_IT}, 0x40000")
    e.label(f"L_poll_{tag}")
    e.i(f"buffer_load_dwordx2 v[{tmp}:{tmp+1}], v{vidx}, {rs(R_WS)}, 0 offen sc1")
    e.i("s_waitcnt vmcnt(0)")
    e.i(f"v_cmp_ne_u64 vcc, s[{S_NONCE}:{S_NONCE+1}], v[{tmp}:{tmp+1}]")
    e.i(f"s_cbranch_vccz L_poll_done_{tag}")
    e.i(f"s_sub_u32 s{S_IT}, s{S_IT}, 1")
    e.i(f"s_cbranch_scc1 L_poll_done_{tag}")
    e.i("s_sleep 3")
    e.i(f"s_branch L_poll_{tag}")
    e.label(f"L_poll_done_{tag}")

ACCQ, ACCK, ACCV = 100, 116, 132
WF = 176
XF = 200
V_WTR = 208
V_XR = 212
KVB = 160
def b1_traddr(e, cfg):
    T = S_T0
    e.c("B1 lds read addresses")
    e.i(f"v_lshrrev_b32 v3, 5, v{V_LANE}")
    e.i(f"v_lshlrev_b32 v16, 3, v3")
    e.i(f"v_bfe_u32 v13, v{V_LANE}, 2, 2")
    e.i(f"v_add_u32 v16, v16, v13")
    e.i(f"v_mul_u32_u24 v16, 192, v16")
    e.i(f"v_bfe_u32 v13, v{V_LANE}, 4, 1")
    e.i(f"v_lshl_add_u32 v16, v13, 5, v16")
    e.i(f"v_add_u32 v16, 16384, v16")
    e.i(f"v_and_b32 v13, 3, v{V_LANE}")
    e.i(f"v_lshl_add_u32 v{V_WTR}, v13, 3, v16")
    e.i(f"v_and_b32 v14, 1, v13")
    e.i(f"v_lshlrev_b32 v14, 4, v14")
    e.i(f"v_lshrrev_b32 v13, 1, v13")
    e.i(f"v_lshlrev_b32 v13, 3, v13")
    e.i(f"v_add3_u32 v{V_WTR+1}, v16, v14, v13")
    e.i(f"v_add_u32 v{V_WTR+1}, 128, v{V_WTR+1}")
    e.i(f"v_and_b32 v13, 31, v{V_LANE}")
    e.i(f"v_bfe_u32 v14, v{V_LANE}, 1, 3")
    e.i(f"v_xor_b32 v14, v14, v3")
    e.i(f"v_lshlrev_b32 v14, 4, v14")
    e.i(f"v_lshl_add_u32 v14, v13, 7, v14")
    e.i(f"s_lshl_b32 s{T}, s{S_W}, 12")
    e.i(f"v_add_u32 v{V_XR}, s{T}, v14")
    for n in range(1, 4):
        e.i(f"v_xor_b32 v{V_XR+n}, {32*n}, v{V_XR}")
    for i in range(48):
        e.i(f"v_mov_b32 v{ACCQ+i}, 0")

def b1_reads(e, n):
    s = WF + 12 * (n & 1)
    e.i(f"ds_read_b128 {vr(XF+4*(n&1),4)}, v{V_XR+4+n}")
    for j in range(2):
        e.i(f"ds_read_b64_tr_b16 {vr(s+2*j,2)}, v{V_WTR+2} offset:{n*3072 + j*768}")
    for j in range(2):
        e.i(f"ds_read_b64_tr_b16 {vr(s+4+2*j,2)}, v{V_WTR+2} offset:{n*3072 + j*768 + 64}")
    for j in range(2):
        e.i(f"ds_read_b64_tr_b16 {vr(s+8+2*j,2)}, v{V_WTR+3} offset:{n*3072 + j*768}")

def b1_mfma(e, n):
    s = WF + 12 * (n & 1)
    x = vr(XF+4*(n&1), 4)
    e.i(f"v_mfma_f32_32x32x16_bf16 {vr(ACCQ,16)}, {vr(s,4)}, {x}, {vr(ACCQ,16)}")
    e.i(f"v_mfma_f32_32x32x16_bf16 {vr(ACCK,16)}, {vr(s+4,4)}, {x}, {vr(ACCK,16)}")
    e.i(f"v_mfma_f32_32x32x16_bf16 {vr(ACCV,16)}, {x}, {vr(s+8,4)}, {vr(ACCV,16)}")

def b1_loop(e, cfg):
    e.i(f"s_mov_b32 s{S_JJ}, 0")
    e.i(f"s_mov_b32 s{S_SLC}, {L_RING}")
    e.label("L_b1_loop")
    e.i(f"s_cmp_eq_u32 s{S_JJ}, 6")
    e.i("s_cbranch_scc1 L_b1_w0")
    e.i("s_waitcnt vmcnt(7)")
    e.i("s_branch L_b1_w1")
    e.label("L_b1_w0")
    e.i("s_waitcnt vmcnt(0)")
    e.label("L_b1_w1")
    if cfg.stamps:
        e.i(f"{'s_memrealtime' if cfg.realtime else 's_memtime'} s[{S_TS}:{S_TS+1}]")
        e.i(f"s_add_u32 m0, s{S_JJ}, 24")
        e.i("s_waitcnt lgkmcnt(0)")
        e.i(f"v_writelane_b32 v250, s{S_TS}, m0")
    e.i("s_barrier")
    for n in range(4):
        e.i(f"v_add_u32 v{V_XR+4+n}, s{S_SLC}, v{V_XR+n}")
    e.i(f"v_add_u32 v{V_WTR+2}, s{S_SLC}, v{V_WTR}")
    e.i(f"v_add_u32 v{V_WTR+3}, s{S_SLC}, v{V_WTR+1}")
    b1_reads(e, 0)
    e.i(f"s_cmp_lg_u32 s{S_JJ}, 1")
    e.i("s_cbranch_scc1 L_b1_nopub")
    get_nonce(e, cfg)
    publish(e, cfg, FL_A1, [f"s_mov_b32 s{S_T0}, s2"], tmp=24)
    e.label("L_b1_nopub")
    e.i(f"s_cmp_ge_u32 s{S_JJ}, 5")
    e.i("s_cbranch_scc1 L_b1_noissue")
    b1_issue(e)
    e.label("L_b1_noissue")
    if cfg.stamps:
        e.i(f"{'s_memrealtime' if cfg.realtime else 's_memtime'} s[{S_TS}:{S_TS+1}]")
        e.i(f"s_add_u32 m0, s{S_JJ}, 32")
        e.i("s_waitcnt lgkmcnt(0)")
        e.i(f"v_writelane_b32 v250, s{S_TS}, m0")
    for n in range(4):
        if n + 1 < 4:
            b1_reads(e, n + 1)
            e.i("s_waitcnt lgkmcnt(7)")
        else:
            e.i("s_waitcnt lgkmcnt(0)")
        b1_mfma(e, n)
    e.i(f"s_add_u32 s{S_SLC}, s{S_SLC}, {SLOT}")
    e.i(f"s_cmp_eq_u32 s{S_SLC}, {3*SLOT + L_RING}")
    e.i(f"s_cselect_b32 s{S_SLC}, {L_RING}, s{S_SLC}")
    e.i(f"s_add_u32 s{S_JJ}, s{S_JJ}, 1")
    e.i(f"s_cmp_lt_u32 s{S_JJ}, 7")
    e.i("s_cbranch_scc1 L_b1_loop")

def b1_epilogue(e, cfg):
    T = S_T0
    e.c("B1 epilogue")
    e.i(f"s_mov_b32 s{S_MHH}, 0")
    e.i(f"s_mov_b32 s{S_MHH+1}, -1")
    m = (1 << 0) | (1 << 4) | (1 << 16) | (1 << 20)
    e.i(f"s_mov_b32 s{S_MONE}, {m}")
    e.i(f"s_mov_b32 s{S_MONE+1}, {m}")
    e.i(f"s_mov_b32 s{T+2}, {f2u(QSCALE)}")
    e.i(f"v_mov_b32 v14, 0x3f803f80")
    e.i(f"s_lshl_b32 s{T}, s{S_H}, 18")
    e.i(f"s_lshl_b32 s{T+1}, s{S_R}, 2")
    e.i(f"s_add_u32 s{T+1}, s{T+1}, s{S_W}")
    e.i(f"s_lshl_b32 s{T+1}, s{T+1}, 12")
    e.i(f"s_add_u32 s{T}, s{T}, s{T+1}")
    if WS_KV: e.i(f"s_add_u32 s{T}, s{T}, {WS_KV}")
    e.i(f"s_lshl_b32 s{T+1}, s{S_W}, 11")
    e.i(f"s_add_u32 s{T+1}, s{T+1}, {L_Q}")
    e.i(f"v_add_u32 v3, s{T+1}, v{V_L16}")
    e.i("s_nop 4")
    for m_ in range(8):
        e.i(f"v_cvt_pk_bf16_f32 v{KVB+m_}, v{ACCK+2*m_}, v{ACCK+2*m_+1}")
    for m_ in range(8):
        e.i(f"v_cvt_pk_bf16_f32 v{KVB+8+m_}, v{ACCV+2*m_}, v{ACCV+2*m_+1}")
    for m_ in (6, 7):
        e.i(f"v_cndmask_b32 v{KVB+m_}, v{KVB+m_}, v14, s[{S_MHH}:{S_MHH+1}]")
    for m_ in range(8):
        e.i(f"v_cndmask_b32 v{KVB+8+m_}, v{KVB+8+m_}, v14, s[{S_MONE}:{S_MONE+1}]")
    for f in range(4):
        e.i(f"buffer_store_dwordx4 {vr(KVB+4*f,4)}, v{V_L16}, {rs(R_WS)}, s{T} offen offset:{1024*f} sc1")
    QP = 16
    for i in range(16):
        e.i(f"v_mul_f32 v{ACCQ+i}, s{T+2}, v{ACCQ+i}")
    for m_ in range(8):
        e.i(f"v_cvt_pk_bf16_f32 v{QP+m_}, v{ACCQ+2*m_}, v{ACCQ+2*m_+1}")
    for m_ in (6, 7):
        e.i(f"v_cndmask_b32 v{QP+m_}, v{QP+m_}, 0, s[{S_MHH}:{S_MHH+1}]")
    e.i(f"ds_write_b128 v3, {vr(QP,4)}")
    e.i(f"ds_write_b128 v3, {vr(QP+4,4)} offset:1024")

def a2_dload(e, cfg):
    e.i(f"s_min_u32 s{S_T0}, s2, 223")
    e.i(f"s_lshl_b32 s{S_T0}, s{S_T0}, 2")
    e.i(f"s_load_dword s{S_D2}, s[{S_DP}:{S_DP+1}], s{S_T0}")

def a2_hstage(e, cfg):
    T = S_T0
    e.c("A2: stage h into LDS (with h0 += D), zero pads")
    e.i(f"s_lshr_b32 s{T}, s{S_W}, 1")
    e.i(f"s_lshl_b32 s{T+1}, s{S_D2}, 16")
    e.i(f"s_and_b32 s{T+2}, s{S_D2}, 0xffff0000")
    e.i(f"s_cmp_eq_u32 s{T}, 0")
    e.i(f"s_cselect_b32 s{T+1}, s{T+1}, s{T+2}")
    e.i(f"v_lshlrev_b32 v3, 16, v{HREG}")
    e.i(f"v_add_f32 v3, s{T+1}, v3")
    e.i(f"v_cvt_pk_bf16_f32 v3, v3, v3")
    e.i(f"s_mov_b32 s{T+2}, 0xffff")
    e.i(f"v_bfi_b32 v3, s{T+2}, v3, v{HREG}")
    e.i(f"s_and_b32 s{T+2}, s{S_W}, 1")
    e.i(f"s_xor_b32 s{T+4}, s{T+2}, 1")
    e.i(f"s_mov_b32 s{T+5}, 0")
    e.i(f"v_cndmask_b32 v{HREG}, v{HREG}, v3, s[{T+4}:{T+5}]")
    e.i(f"s_mul_i32 s{T+1}, s{T}, {H_CH}")
    e.i(f"s_add_u32 s{T+1}, s{T+1}, {L_H}")
    e.i(f"v_add_u32 v13, s{T+1}, v{V_L16}")
    e.i(f"s_lshl_b32 s{T+2}, s{T+2}, 11")
    e.i(f"s_add_u32 s{T+2}, s{T+2}, 64")
    e.i(f"v_add_u32 v3, s{T+2}, v13")
    e.i(f"ds_write_b128 v3, {vr(HREG,4)}")
    e.i(f"ds_write_b128 v3, {vr(HREG+4,4)} offset:1024")
    for i in range(4): e.i(f"v_mov_b32 v{76+i}, 0")
    e.i(f"s_mul_i32 s{T+1}, s{T}, {X_CH}")
    e.i(f"s_add_u32 s{T+1}, s{T+1}, {L_X}")
    e.i(f"v_add_u32 v14, s{T+1}, v{V_L16}")
    e.i(f"s_mov_b64 exec, 0xf")
    e.i(f"ds_write_b128 v13, {vr(76,4)}")
    e.i(f"s_mov_b32 exec_lo, -1")
    e.i(f"s_mov_b32 exec_hi, 0xf")
    e.i(f"ds_write_b128 v14, {vr(76,4)}")
    e.i(f"s_mov_b64 exec, -1")

CACC = 64
V_HA = 204
V_XA = 205
QPF = 224
V_A3OFF = 232
def a3_qaddr(e, cfg):
    T = S_T0
    e.c("A3 addresses: row = 64 rb + 16 w + 8 it + (l>>3), piece l&7")
    e.i(f"s_lshl_b32 s{T}, s{S_RB}, 6")
    e.i(f"s_lshl_b32 s{T+1}, s{S_W}, 4")
    e.i(f"s_add_u32 s{T}, s{T}, s{T+1}")
    e.i(f"s_mul_i32 s{T+1}, s{T}, 896")
    e.i(f"s_mul_i32 s{T+2}, s{T}, 1792")
    e.i(f"s_lshl_b32 s{T+3}, s{S_CB}, 7")
    e.i(f"s_add_u32 s{T+1}, s{T+1}, s{T+3}")
    e.i(f"s_add_u32 s{T+2}, s{T+2}, s{T+3}")
    e.i(f"v_lshrrev_b32 v3, 3, v{V_LANE}")
    e.i(f"v_and_b32 v13, 7, v{V_LANE}")
    e.i(f"v_lshlrev_b32 v13, 4, v13")
    e.i(f"v_mul_u32_u24 v14, 896, v3")
    e.i(f"v_add3_u32 v{V_A3OFF}, v14, v13, s{T+1}")
    e.i(f"v_mul_u32_u24 v14, 1792, v3")
    e.i(f"v_add3_u32 v{V_A3OFF+1}, v14, v13, s{T+2}")

V_WO = 234
def wo_addr(e, cfg):
    T = S_T0
    e.i(f"v_lshrrev_b32 v3, 3, v{V_LANE}")
    e.i(f"v_mul_u32_u24 v3, 896, v3")
    e.i(f"v_bfe_u32 v13, v{V_LANE}, 2, 1")
    e.i(f"v_bfe_u32 v14, v{V_LANE}, 4, 1")
    e.i(f"v_xor_b32 v13, v13, v14")
    e.i(f"v_lshlrev_b32 v13, 6, v13")
    e.i(f"v_and_b32 v14, 3, v{V_LANE}")
    e.i(f"v_lshlrev_b32 v14, 4, v14")
    e.i(f"v_add3_u32 v3, v3, v13, v14")
    e.i(f"s_lshl_b32 s{T}, s{S_CB}, 7")
    e.i(f"v_add_u32 v{V_WO}, s{T}, v3")

def wo_first(e, cfg):
    T = S_T0
    e.i(f"s_cmp_eq_u32 s{S_W}, 0")
    e.i(f"s_cselect_b32 s{T+2}, 896, 0")
    e.i(f"v_subrev_u32 v4, s{T+2}, v{V_WO}")
    e.i(f"s_mul_i32 s{T+1}, s{S_W}, 7168")
    e.i(f"s_sub_u32 s{T+1}, s{T+1}, 896")
    e.i(f"s_max_i32 s{T+1}, s{T+1}, 0")
    e.i(f"s_lshl_b32 s{T}, s{S_W}, 10")
    e.i(f"s_add_u32 m0, s{T}, {L_WO}")
    e.i("s_nop 0")
    e.i(f"buffer_load_dwordx4 v4, {rs(R_WO)}, s{T+1} offen lds")
    e.i(f"s_mov_b32 m0, {L_WO + 56*1024}")
    e.i(f"s_mov_b32 s{T+1}, {56*7168 - 896}")
    e.i(f"buffer_load_dwordx4 v{V_WO}, {rs(R_WO)}, s{T+1} offen lds")
    e.i(f"s_mov_b32 s{S_WOI}, s{S_W}")

def wo_next(e):
    T = S_T0
    e.i(f"s_add_u32 s{S_WOI}, s{S_WOI}, 4")
    e.i(f"s_min_u32 s{S_WOI}, s{S_WOI}, 55")
    e.i(f"s_mul_i32 s{T+1}, s{S_WOI}, 7168")
    e.i(f"s_sub_u32 s{T+1}, s{T+1}, 896")
    e.i(f"s_lshl_b32 s{T}, s{S_WOI}, 10")
    e.i(f"s_add_u32 m0, s{T}, {L_WO}")
    e.i("s_nop 0")
    e.i(f"buffer_load_dwordx4 v{V_WO}, {rs(R_WO)}, s{T+1} offen lds")

def a2_main(e, cfg):
    T = S_T0
    e.c("==== A2 conv ====")
    e.i(f"s_lshl_b32 s{T}, s2, 1")
    e.i(f"s_bfe_u32 s{T}, s{T}, 0x20004")
    e.i(f"s_lshl_b32 s{T+1}, s{S_CB}, 5")
    e.i(f"s_and_b32 s{T+2}, s{S_W}, 1")
    e.i(f"s_lshl_b32 s{T+2}, s{T+2}, 4")
    e.i(f"s_add_u32 s{T+1}, s{T+1}, s{T+2}")
    e.i(f"s_lshl_b32 s{T+1}, s{T+1}, 2")
    e.i(f"s_add_u32 s{T}, s{T}, s{T+1}")
    e.i(f"v_and_b32 v7, 15, v{V_LANE}")
    e.i(f"v_lshlrev_b32 v7, 2, v7")
    e.i(f"v_add_u32 v7, s{T}, v7")
    poll(e, cfg, FL_A1, 7, "a1")
    stamp(e, cfg, 6)
    e.i(f"s_lshr_b32 s{T}, s{S_W}, 1")
    e.i(f"s_lshl_b32 s{T+1}, s2, 1")
    e.i(f"s_add_u32 s{T+1}, s{T}, s{T+1}")
    e.i(f"s_lshl_b32 s{T+1}, s{T+1}, 12")
    e.i(f"s_and_b32 s{T+2}, s{S_W}, 1")
    e.i(f"s_lshl_b32 s{T+3}, s{T+2}, 11")
    e.i(f"s_add_u32 s{T+1}, s{T+1}, s{T+3}")
    e.i(f"s_add_u32 s{T+1}, s{T+1}, {WS_XT}")
    e.i(f"buffer_load_dwordx4 v[16:19], v{V_L16}, {rs(R_WS)}, s{T+1} offen sc1")
    e.i(f"buffer_load_dwordx4 v[20:23], v{V_L16}, {rs(R_WS)}, s{T+1} offen offset:1024 sc1")
    e.i(f"buffer_load_dwordx4 {vr(QPF,4)}, v{V_A3OFF}, {rs(R_Q)}, 0 offen")
    e.i(f"s_mov_b32 s{T+1}, 7168")
    e.i(f"buffer_load_dwordx4 {vr(QPF+4,4)}, v{V_A3OFF}, {rs(R_Q)}, s{T+1} offen")
    wo_first(e, cfg)
    e.i(f"s_lshr_b32 s{T}, s{S_W}, 1")
    e.i(f"s_and_b32 s{T+2}, s{S_W}, 1")
    e.i(f"s_mul_i32 s{T+1}, s{T}, {X_CH}")
    e.i(f"s_mul_i32 s{T+3}, s{T+2}, {2048+256}")
    e.i(f"s_add_u32 s{T+1}, s{T+1}, s{T+3}")
    e.i(f"s_add_u32 s{T+1}, s{T+1}, {L_X + 512 + 64}")
    e.i(f"v_lshrrev_b32 v3, 4, v{V_LANE}")
    e.i(f"v_lshlrev_b32 v3, 5, v3")
    e.i(f"v_add3_u32 v3, v3, v{V_L16}, s{T+1}")
    e.i(f"v_bfe_u32 v8, v{V_LANE}, 4, 1")
    e.i(f"v_lshrrev_b32 v9, 5, v{V_LANE}")
    e.i(f"v_bfe_u32 v10, v{V_LANE}, 2, 2")
    e.i(f"v_and_b32 v11, 3, v{V_LANE}")
    e.i(f"v_lshlrev_b32 v12, 2, v8")
    e.i(f"v_add_u32 v12, v12, v11")
    e.i(f"v_lshl_add_u32 v13, v9, 3, v12")
    e.i(f"v_add_u32 v13, v13, v10")
    e.i(f"s_mul_i32 s{T+1}, s{T}, {H_CH}")
    e.i(f"s_add_u32 s{T+1}, s{T+1}, {L_H + 64 - 56}")
    e.i(f"v_lshlrev_b32 v13, 3, v13")
    e.i(f"v_add_u32 v{V_HA}, s{T+1}, v13")
    e.i(f"v_sub_u32 v12, v12, v9")
    e.i(f"v_lshlrev_b32 v12, 5, v12")
    e.i(f"v_lshlrev_b32 v10, 2, v10")
    e.i(f"v_sub_u32 v12, v12, v10")
    e.i(f"v_add_u32 v12, 28, v12")
    e.i(f"s_mul_i32 s{T+1}, s{T}, {X_CH}")
    e.i(f"s_add_u32 s{T+1}, s{T+1}, {L_X}")
    for par in range(2):
        for j in range(2):
            d = V_XA + 2*par + j
            e.i(f"v_add_u32 v13, {64*par - 16*j}, v12")
            e.i(f"v_ashrrev_i32 v14, 7, v13")
            e.i(f"v_lshlrev_b32 v14, 5, v14")
            e.i(f"v_lshl_add_u32 v13, v13, 1, v14")
            e.i(f"v_add_u32 v{d}, s{T+1}, v13")
    e.i("s_waitcnt vmcnt(4)")
    e.i(f"ds_write_b128 v3, v[16:19]")
    e.i(f"ds_write_b128 v3, v[20:23] offset:{1024+128}")
    e.i("s_waitcnt lgkmcnt(0)")
    e.i("s_barrier")
    stamp(e, cfg, 7)
    e.i(f"s_and_b32 s{T}, s{S_W}, 1")
    e.i(f"s_cmp_eq_u32 s{T}, 0")
    e.i("s_cbranch_scc0 L_conv_setB")
    conv_set(e, [0, 1, 6, 7])
    e.i("s_branch L_conv_post")
    e.label("L_conv_setB")
    conv_set(e, [2, 3, 4, 5])
    e.label("L_conv_post")
    stamp(e, cfg, 8)
    conv_post(e, cfg)

def conv_set(e, tiles):
    nmax = 4 * max(tiles) + 3
    steps = [[(t, T) for t, T in enumerate(tiles) if n <= 4*T + 3] for n in range(nmax + 1)]
    reads = []
    loaded = set()
    need_idx = []
    for n in range(nmax + 1):
        for j in range(2):
            reads.append((("H", n), f"ds_read_b64_tr_b16 {ar(128+4*n+2*j,2)}, v{V_HA} offset:{128*n + 32*j}"))
        for t, T in steps[n]:
            v = 4*T - n
            if v in loaded: continue
            loaded.add(v)
            vp = v + 4
            q, par = vp >> 1, vp & 1
            for j in range(2):
                reads.append((("X", v), f"ds_read_b64_tr_b16 {ar(4*(vp-1)+2*j,2)}, v{V_XA+2*par+j} offset:{288*q}"))
        need_idx.append(len(reads) - 1)
    AHEAD = 14
    issued = 0
    first = {t: True for t in range(4)}
    for n in range(nmax + 1):
        target = min(len(reads), need_idx[n] + 1 + AHEAD)
        while issued < target:
            e.i(reads[issued][1]); issued += 1
        younger = issued - 1 - need_idx[n]
        e.i(f"s_waitcnt lgkmcnt({min(younger, 15)})")
        for t, T in steps[n]:
            vp = 4*T - n + 4
            acc = vr(CACC + 16*t, 16)
            c = "0" if first[t] else acc
            first[t] = False
            e.i(f"v_mfma_f32_32x32x16_bf16 {acc}, {ar(4*(vp-1),4)}, {ar(128+4*n,4)}, {c}")
    for t, T in enumerate(tiles):
        e.i(f"s_mov_b32 s{S_T1+t}, {T}")

def conv_post(e, cfg):
    T = S_T0
    e.i(f"s_mov_b32 s{S63}, 0")
    e.i(f"s_mov_b32 s{S63+1}, 0x80000000")
    e.i(f"s_lshr_b32 s{T}, s{S_W}, 1")
    e.i(f"s_mul_i32 s{T}, s{T}, 144")
    e.i(f"s_add_u32 s{T}, s{T}, {L_CARRY}")
    for t in range(4):
        e.i(f"s_lshl_b32 s{T+1}, s{S_T1+t}, 4")
        e.i(f"s_add_u32 s{T+1}, s{T+1}, s{T}")
        e.i(f"v_mov_b32 v{24+t}, s{T+1}")
    e.i(f"v_mov_b32 v28, s{T}")
    e.i("v_mov_b32 v29, 0")
    e.i("s_nop 1")
    R = lambda t, g, i: CACC + 16*t + 4*g + i
    EX = 16
    for t in range(4):
        e.i(f"v_add_f32_dpp v{EX+t}, v{R(t,3,3)}, v{R(t,3,2)} wave_ror:1 row_mask:0xf bank_mask:0xf")
    e.i("s_nop 0")
    for t in range(4):
        e.i(f"v_add_f32_dpp v{EX+4+t}, v{EX+t}, v{R(t,3,1)} wave_ror:1 row_mask:0xf bank_mask:0xf")
    e.i(f"s_mov_b64 exec, s[{S63}:{S63+1}]")
    for t in range(4):
        e.i(f"ds_write_b32 v{24+t}, v{R(t,3,3)} offset:16")
        e.i(f"ds_write_b32 v{24+t}, v{EX+t} offset:20")
        e.i(f"ds_write_b32 v{24+t}, v{EX+4+t} offset:24")
    e.i("ds_write_b32 v28, v29")
    e.i("ds_write_b32 v28, v29 offset:4")
    e.i("ds_write_b32 v28, v29 offset:8")
    e.i("s_mov_b64 exec, -1")
    e.i("s_waitcnt lgkmcnt(0)")
    e.i("s_barrier")
    PU, P1, P2 = 32, 36, 40
    for t in range(4):
        e.i(f"ds_read_b32 v{PU+t}, v{24+t}")
        e.i(f"ds_read_b32 v{P1+t}, v{24+t} offset:4")
        e.i(f"ds_read_b32 v{P2+t}, v{24+t} offset:8")
    e.i(f"s_lshr_b32 s{T}, s{S_W}, 1")
    e.i(f"s_mul_i32 s{T}, s{T}, {X_CH}")
    e.i(f"s_add_u32 s{T}, s{T}, {L_Y}")
    e.i(f"v_lshlrev_b32 v3, 1, v{V_LANE}")
    for t in range(4):
        e.i(f"s_lshl_b32 s{T+1}, s{S_T1+t}, 9")
        e.i(f"s_add_u32 s{T+1}, s{T+1}, s{T}")
        e.i(f"v_add_u32 v{28+t}, s{T+1}, v3")
    e.i("s_waitcnt lgkmcnt(0)")
    SEL = 44
    m63 = f"s[{S63}:{S63+1}]"
    prevU = [PU+t for t in range(4)]
    prev1 = [P1+t for t in range(4)]
    prev2 = [P2+t for t in range(4)]
    for g in range(4):
        cur1 = [48 + 4*(g & 1) + t for t in range(4)]
        cur2 = [56 + 4*(g & 1) + t for t in range(4)]
        for t in range(4):
            e.i(f"v_cndmask_b32 v{SEL+t}, v{R(t,g,3)}, v{prevU[t]}, {m63}")
        for t in range(4):
            e.i(f"v_add_f32_dpp v{cur1[t]}, v{SEL+t}, v{R(t,g,2)} wave_ror:1 row_mask:0xf bank_mask:0xf")
        for t in range(4):
            e.i(f"v_cndmask_b32 v{SEL+t}, v{cur1[t]}, v{prev1[t]}, {m63}")
        for t in range(4):
            e.i(f"v_add_f32_dpp v{cur2[t]}, v{SEL+t}, v{R(t,g,1)} wave_ror:1 row_mask:0xf bank_mask:0xf")
        for t in range(4):
            e.i(f"v_cndmask_b32 v{SEL+t}, v{cur2[t]}, v{prev2[t]}, {m63}")
        for t in range(4):
            e.i(f"v_add_f32_dpp v{R(t,g,0)}, v{SEL+t}, v{R(t,g,0)} wave_ror:1 row_mask:0xf bank_mask:0xf")
        prevU = [R(t,g,3) for t in range(4)]
        prev1 = cur1
        prev2 = cur2
        if g & 1:
            gp = g >> 1
            for t in range(4):
                e.i(f"v_cvt_pk_bf16_f32 v{16+2*t+gp}, v{R(t,g-1,0)}, v{R(t,g,0)}")
            for t in range(4):
                e.i(f"ds_write_b16 v{28+t}, v{16+2*t+gp} offset:{256*gp}")
                e.i(f"ds_write_b16_d16_hi v{28+t}, v{16+2*t+gp} offset:{256*gp+128}")
    e.i(f"s_lshr_b32 s{T+2}, s{S_W}, 1")
    e.i(f"s_lshl_b32 s{T+3}, s2, 1")
    e.i(f"s_add_u32 s{T+3}, s{T+3}, s{T+2}")
    e.i(f"s_lshl_b32 s{T+3}, s{T+3}, 12")
    e.i(f"s_add_u32 s{T+3}, s{T+3}, {WS_YT}")
    for pz in range(2):
        e.i(f"s_lshl_b32 s{T+1}, s{S_T1+2*pz}, 9")
        e.i(f"s_add_u32 s{T+4+pz}, s{T+1}, s{T+3}")
        e.i(f"s_add_u32 s{T+1}, s{T+1}, s{T}")
        e.i(f"v_add_u32 v{32+pz}, s{T+1}, v{V_L16}")
    e.i("s_waitcnt lgkmcnt(0)")
    for pz in range(2):
        e.i(f"ds_read_b128 {vr(48+4*pz,4)}, v{32+pz}")
    e.i("s_waitcnt lgkmcnt(1)")
    e.i(f"buffer_store_dwordx4 {vr(48,4)}, v{V_L16}, {rs(R_WS)}, s{T+4} offen sc1")
    e.i("s_waitcnt lgkmcnt(0)")
    e.i(f"buffer_store_dwordx4 {vr(52,4)}, v{V_L16}, {rs(R_WS)}, s{T+5} offen sc1")

SB = [16, 32]
PB = [48, 56]
OB = 64
QB = 128
def kvbuf(b): return KVB + 16 * (b & 3)

def kv_load(e, b, advance=True, wo=True):
    if wo: wo_next(e)
    if advance:
        e.i(f"s_add_u32 s{S_KV+1}, s{S_KV+1}, 1")
        e.i(f"s_and_b32 s{S_KV+1}, s{S_KV+1}, 15")
    e.i(f"s_lshl_b32 s{S_KV+2}, s{S_KV+1}, 14")
    e.i(f"s_add_u32 s{S_KV+2}, s{S_KV+2}, s{S_KV}")
    for f in range(4):
        e.i(f"buffer_load_dwordx4 {vr(kvbuf(b)+4*f,4)}, v{V_L16}, {rs(R_WS)}, s{S_KV+2} offen offset:{1024*f} sc1")

def slot(e, j, s_next, pv, pre=None, loads=None):
    mf = []
    if s_next is not None:
        kb, jn = s_next
        Sx = vr(SB[jn & 1], 16)
        mf.append(f"v_mfma_f32_32x32x16_bf16 {Sx}, {vr(kvbuf(kb),4)}, {vr(QB+8*jn,4)}, 0")
        mf.append(f"v_mfma_f32_32x32x16_bf16 {Sx}, {vr(kvbuf(kb)+4,4)}, {vr(QB+8*jn+4,4)}, {Sx}")
    if pv is not None:
        vb, jp, first = pv
        O = vr(OB + 16*jp, 16)
        P = PB[jp & 1]
        mf.append(f"v_mfma_f32_32x32x16_bf16 {O}, {vr(kvbuf(vb)+8,4)}, {vr(P,4)}, {'0' if first else O}")
        mf.append(f"v_mfma_f32_32x32x16_bf16 {O}, {vr(kvbuf(vb)+12,4)}, {vr(P+4,4)}, {O}")
    groups = []
    if j is not None:
        Sx = SB[j & 1]; P = PB[j & 1]
        for g in range(4):
            gl = [f"v_exp_f32 v{Sx+4*g+i}, v{Sx+4*g+i}" for i in range(4)]
            gl.append(f"v_cvt_pk_bf16_f32 v{P+2*g}, v{Sx+4*g}, v{Sx+4*g+1}")
            gl.append(f"v_cvt_pk_bf16_f32 v{P+2*g+1}, v{Sx+4*g+2}, v{Sx+4*g+3}")
            groups.append(gl)
    if pre:
        for ln in pre: e.i(ln)
    n = max(len(mf), len(groups))
    for k in range(n):
        if k < len(mf): e.i(mf[k])
        if loads is not None and k == 2:
            loads()
        if k < len(groups):
            for ln in groups[k]: e.i(ln)

YL = 236
def b2_main(e, cfg):
    T = S_T0
    e.c("==== B2 attention ====")
    e.i(f"s_lshl_b32 s{T}, s{S_H}, 6")
    e.i(f"s_add_u32 s{T}, s{T}, s{S_W}")
    e.i(f"v_and_b32 v7, 15, v{V_LANE}")
    e.i(f"v_lshlrev_b32 v7, 2, v7")
    e.i(f"v_add_u32 v7, s{T}, v7")
    e.i(f"v_add_u32 v3, {L_Q}, v{V_L16}")
    for j in range(4):
        for f in range(2):
            e.i(f"ds_read_b128 {vr(QB+8*j+4*f,4)}, v3 offset:{2048*j+1024*f}")
    poll(e, cfg, FL_B1, 7, "b1")
    if cfg.nosync: e.i("s_waitcnt vmcnt(0)")
    publish(e, cfg, FL_A2, [f"s_mov_b32 s{T}, s2"])
    stamp(e, cfg, 10)
    e.i(f"s_mov_b32 s{S_SLOW}, 0")
    e.i(f"s_lshl_b32 s{S_KV}, s{S_H}, 18")
    e.i(f"s_lshl_b32 s{T}, s{S_W}, 12")
    e.i(f"s_add_u32 s{S_KV}, s{S_KV}, s{T}")
    if WS_KV: e.i(f"s_add_u32 s{S_KV}, s{S_KV}, {WS_KV}")
    e.label("L_attn_start")
    e.i(f"s_mov_b32 s{S_KV+1}, s{S_R}")
    kv_load(e, 1); kv_load(e, 2); kv_load(e, 3)
    e.i("s_waitcnt lgkmcnt(0)")
    slot(e, None, (0, 0), None)
    e.i("s_nop 7")
    e.i("s_nop 3")
    slot(e, 0, (0, 1), None)
    slot(e, 1, (0, 2), (0, 0, True))
    slot(e, 2, (0, 3), (0, 1, True))
    slot(e, 3, (1, 0), (0, 2, True), pre=["s_waitcnt vmcnt(10)"])
    slot(e, 0, (1, 1), (0, 3, True))
    e.i(f"s_mov_b32 s{S_IT}, 0")
    e.i(".p2align 3")
    e.label("L_attn_loop")
    if cfg.stamps:
        e.i(f"{'s_memrealtime' if cfg.realtime else 's_memtime'} s[{S_TS}:{S_TS+1}]")
        e.i(f"s_add_u32 m0, s{S_IT}, 40")
        e.i("s_waitcnt lgkmcnt(0)")
        e.i(f"v_writelane_b32 v250, s{S_TS}, m0")
    for k in range(4):
        i = k + 1
        b, bn = i & 3, (i + 1) & 3
        slot(e, 1, (b, 2), (b, 0, False), loads=lambda: kv_load(e, (i + 3) & 3))
        slot(e, 2, (b, 3), (b, 1, False))
        slot(e, 3, (bn, 0), (b, 2, False), pre=["s_waitcnt vmcnt(10)"])
        slot(e, 0, (bn, 1), (b, 3, False))
        if k == 1:
            e.i(f"s_cmp_eq_u32 s{S_IT}, 3")
            e.i("s_cbranch_scc1 L_attn_tail")
    e.i(f"s_add_u32 s{S_IT}, s{S_IT}, 1")
    e.i("s_branch L_attn_loop")
    e.label("L_attn_tail")
    stamp(e, cfg, 44)
    e.i(f"s_lshr_b32 s{T}, s{S_RB}, 2")
    e.i(f"s_add_u32 s{T}, s{T}, 2")
    e.i(f"s_and_b32 s{T}, s{T}, 7")
    e.i(f"s_lshr_b32 s{T}, s{T}, 2")
    slot(e, 1, (3, 2), (3, 0, False))
    slot(e, 2, (3, 3), (3, 1, False))
    slot(e, 3, None, (3, 2, False))
    e.i("s_nop 1")
    slot(e, None, None, (3, 3, False))
    stamp(e, cfg, 45)
    e.i(f"s_lshl_b32 s{T+1}, s{S_CB}, 6")
    e.i(f"s_lshl_b32 s{T+2}, s{S_W}, 4")
    e.i(f"s_add_u32 s{T+1}, s{T+1}, s{T+2}")
    e.i(f"v_and_b32 v7, 15, v{V_LANE}")
    e.i(f"v_add_u32 v7, s{T+1}, v7")
    e.i(f"v_lshrrev_b32 v8, 1, v7")
    e.i(f"v_and_b32 v7, 1, v7")
    e.i(f"v_lshlrev_b32 v7, 1, v7")
    e.i(f"v_lshl_add_u32 v7, v8, 2, v7")
    e.i(f"v_add_u32 v7, s{T}, v7")
    e.i(f"s_cmp_ge_u32 s2, 224")
    e.i(f"s_cbranch_scc1 L_noy")
    poll(e, cfg, FL_A2, 7, "a2", tmp=8)
    e.i(f"s_lshl_b32 s{T}, s{S_CB}, 6")
    e.i(f"s_lshl_b32 s{T+1}, s{S_W}, 4")
    e.i(f"s_add_u32 s{T}, s{T}, s{T+1}")
    e.i(f"s_lshl_b32 s{T}, s{T}, 12")
    e.i(f"s_lshl_b32 s{T+1}, s{S_RB}, 7")
    e.i(f"s_add_u32 s{T}, s{T}, s{T+1}")
    e.i(f"s_add_u32 s{T}, s{T}, {WS_YT}")
    e.i(f"s_add_u32 s{T+1}, s{T}, {8*4096}")
    e.i(f"v_lshrrev_b32 v3, 3, v{V_LANE}")
    e.i(f"v_lshlrev_b32 v13, 12, v3")
    e.i(f"v_and_b32 v14, 7, v{V_LANE}")
    e.i(f"v_lshl_add_u32 v13, v14, 4, v13")
    e.i(f"buffer_load_dwordx4 {vr(YL,4)}, v13, {rs(R_WS)}, s{T} offen sc1")
    e.i(f"buffer_load_dwordx4 {vr(YL+4,4)}, v13, {rs(R_WS)}, s{T+1} offen sc1")
    e.label("L_noy")
    stamp(e, cfg, 11)
    e.i(f"s_mov_b32 s{T}, {f2u(2.0**-60)}")
    e.i(f"s_mov_b32 s{T+1}, {f2u(2.0**60)}")
    e.i(f"s_mov_b64 s[{T+2}:{T+3}], -1")
    for j in range(4):
        e.i(f"v_cmp_le_f32 vcc, s{T}, v{OB+16*j}")
        e.i(f"s_and_b64 s[{T+2}:{T+3}], s[{T+2}:{T+3}], vcc")
        e.i(f"v_cmp_ge_f32 vcc, s{T+1}, v{OB+16*j}")
        e.i(f"s_and_b64 s[{T+2}:{T+3}], s[{T+2}:{T+3}], vcc")
    e.i(f"s_cmp_eq_u64 s[{T+2}:{T+3}], -1")
    e.i(f"s_cselect_b32 s{T}, 0, 1")
    e.i(f"v_mov_b32 v3, s{T}")
    e.i(f"s_lshl_b32 s{T+1}, s{S_W}, 2")
    e.i(f"s_add_u32 s{T+1}, s{T+1}, {L_MISC}")
    e.i(f"v_mov_b32 v4, s{T+1}")
    e.i(f"ds_write_b32 v4, v3")
    for w in range(4):
        if w > 0: e.label(f"L_red_w{w}")
        if w < 3:
            e.i(f"s_cmp_lg_u32 s{S_W}, {w}")
            e.i(f"s_cbranch_scc1 L_red_w{w+1}")
        for j in range(4):
            if j == w: continue
            sl = j * 3 + ((w - j - 1) & 3)
            e.i(f"v_add_u32 v3, {L_RED + sl*4096}, v{V_L16}")
            for q4 in range(4):
                e.i(f"ds_write_b128 v3, {vr(OB+16*j+4*q4,4)} offset:{1024*q4}")
        for k in range(16):
            e.i(f"v_mov_b32 v{16+k}, v{OB+16*w+k}")
        if w < 3: e.i("s_branch L_red_done")
    e.label("L_red_done")
    e.i("s_waitcnt lgkmcnt(0)")
    e.i("s_barrier")
    e.i(f"v_mov_b32 v4, {L_MISC}")
    e.i(f"ds_read_b128 v[8:11], v4")
    e.i(f"s_mul_i32 s{T}, s{S_W}, {3*4096}")
    e.i(f"s_add_u32 s{T}, s{T}, {L_RED}")
    e.i(f"v_add_u32 v3, s{T}, v{V_L16}")
    for s_ in range(3):
        for q4 in range(4):
            e.i(f"ds_read_b128 {vr(64+16*s_+4*q4,4)}, v3 offset:{4096*s_+1024*q4}")
    e.i(f"s_lshl_b32 s{T}, s{S_R}, 2")
    e.i(f"s_add_u32 s{T}, s{T}, s{S_W}")
    e.i(f"s_lshl_b32 s{T}, s{T}, 4")
    e.i(f"s_add_u32 s{T}, s{T}, s{S_H}")
    e.i(f"s_lshl_b32 s{T}, s{T}, 11")
    e.i(f"s_add_u32 s{T+4}, s{T}, {WS_OF}")
    e.i("s_waitcnt lgkmcnt(12)")
    e.i("v_or_b32 v8, v8, v9")
    e.i("v_or3_b32 v8, v8, v10, v11")
    e.i("s_nop 0")
    e.i(f"v_readfirstlane_b32 s{T}, v8")
    e.i("s_nop 3")
    e.i(f"s_andn2_b32 s{T}, s{T}, s{S_SLOW}")
    e.i(f"s_cmp_lg_u32 s{T}, 0")
    e.i("s_cbranch_scc1 L_slow")
    for s_ in range(3):
        e.i(f"s_waitcnt lgkmcnt({8-4*s_})")
        for k in range(16):
            e.i(f"v_add_f32 v{16+k}, v{16+k}, v{64+16*s_+k}")
    e.i("v_rcp_f32 v3, v16")
    e.i("s_nop 0")
    for k in range(16):
        if k in (0, 8): continue
        e.i(f"v_mul_f32 v{16+k}, v{16+k}, v3")
    for m in range(8):
        if m in (0, 4):
            e.i(f"v_cvt_pk_bf16_f32 v{32+m}, 0, v{16+2*m+1}")
        else:
            e.i(f"v_cvt_pk_bf16_f32 v{32+m}, v{16+2*m}, v{16+2*m+1}")
    e.i(f"buffer_store_dwordx4 v[32:35], v{V_L16}, {rs(R_WS)}, s{T+4} offen sc1")
    e.i(f"buffer_store_dwordx4 v[36:39], v{V_L16}, {rs(R_WS)}, s{T+4} offen offset:1024 sc1")

def b2_slow(e, cfg):
    T = S_T0
    e.c("==== slow path: true row max ====")
    e.label("L_slow")
    e.i("s_waitcnt vmcnt(0) lgkmcnt(0)")
    M = 48
    for j in range(4): e.i(f"v_mov_b32 v{M+j}, 0xff800000")
    e.i(f"s_mov_b32 s{S_KV+1}, 0")
    e.label("L_slow_loop")
    e.i(f"s_lshl_b32 s{S_KV+2}, s{S_KV+1}, 14")
    e.i(f"s_add_u32 s{S_KV+2}, s{S_KV+2}, s{S_KV}")
    for f in range(2):
        e.i(f"buffer_load_dwordx4 {vr(KVB+4*f,4)}, v{V_L16}, {rs(R_WS)}, s{S_KV+2} offen offset:{1024*f} sc1")
    e.i("s_waitcnt vmcnt(0)")
    for j in range(4):
        e.i(f"v_mfma_f32_32x32x16_bf16 v[16:31], {vr(KVB,4)}, {vr(QB+8*j,4)}, 0")
        e.i(f"v_mfma_f32_32x32x16_bf16 v[16:31], {vr(KVB+4,4)}, {vr(QB+8*j+4,4)}, v[16:31]")
        e.i("s_nop 7"); e.i("s_nop 7")
        for k in range(0, 16, 2):
            e.i(f"v_max3_f32 v{M+j}, v{16+k}, v{17+k}, v{M+j}")
        e.i("s_nop 7")
    e.i(f"s_add_u32 s{S_KV+1}, s{S_KV+1}, 1")
    e.i(f"s_cmp_lt_u32 s{S_KV+1}, 16")
    e.i("s_cbranch_scc1 L_slow_loop")
    for j in range(4):
        e.i(f"v_mov_b32 v{52+j}, v{M+j}")
    e.i("s_nop 1")
    for j in range(4):
        e.i(f"v_permlane32_swap_b32 v{52+j}, v{M+j}")
    e.i("s_nop 1")
    for j in range(4):
        e.i(f"v_max_f32 v{M+j}, v{52+j}, v{M+j}")
    e.i("s_barrier")
    e.i(f"s_lshl_b32 s{T}, s{S_W}, 10")
    e.i(f"s_add_u32 s{T}, s{T}, {L_RED}")
    e.i(f"v_add_u32 v3, s{T}, v{V_L16}")
    e.i(f"ds_write_b128 v3, {vr(M,4)}")
    e.i("s_waitcnt lgkmcnt(0)")
    e.i("s_barrier")
    e.i(f"v_add_u32 v3, {L_RED}, v{V_L16}")
    for w in range(4):
        e.i(f"ds_read_b128 {vr(16+4*w,4)}, v3 offset:{1024*w}")
    e.i("s_waitcnt lgkmcnt(0)")
    for j in range(4):
        e.i(f"v_max3_f32 v{M+j}, v{16+j}, v{20+j}, v{24+j}")
        e.i(f"v_max_f32 v{M+j}, v{M+j}, v{28+j}")
    e.i(f"s_mov_b32 s{T}, 0xffff")
    for j in range(4):
        e.i(f"v_sub_f32 v16, 0, v{M+j}")
        e.i(f"v_cvt_pk_bf16_f32 v17, v16, v16")
        e.i(f"v_lshlrev_b32 v18, 16, v17")
        e.i(f"v_sub_f32 v16, v16, v18")
        e.i(f"v_cvt_pk_bf16_f32 v19, v16, v16")
        e.i(f"v_lshlrev_b32 v18, 16, v19")
        e.i(f"v_sub_f32 v16, v16, v18")
        e.i(f"v_bfi_b32 v17, s{T}, v17, v19")
        e.i(f"v_cvt_pk_bf16_f32 v18, v16, 0")
        e.i(f"v_cndmask_b32 v{QB+8*j+6}, v{QB+8*j+6}, v17, s[{S_MHH}:{S_MHH+1}]")
        e.i(f"v_cndmask_b32 v{QB+8*j+7}, v{QB+8*j+7}, v18, s[{S_MHH}:{S_MHH+1}]")
    e.i(f"s_mov_b32 s{S_SLOW}, 1")
    e.i(f"s_mov_b32 s{S_KV+1}, s{S_R}")
    kv_load(e, 0, advance=False, wo=False)
    e.i("s_waitcnt vmcnt(0)")
    e.i("s_barrier")
    e.i("s_branch L_attn_start")

def a3_main(e, cfg):
    T = S_T0
    e.c("==== A3: out_a = q * y ====")
    e.i(f"v_lshrrev_b32 v3, 3, v{V_LANE}")
    e.i(f"v_and_b32 v14, 7, v{V_LANE}")
    e.i(f"v_mul_u32_u24 v3, 144, v3")
    e.i(f"v_lshl_add_u32 v15, v14, 4, v3")
    e.i(f"s_mul_i32 s{T}, s{S_W}, {16*144}")
    e.i(f"s_add_u32 s{T+1}, s{T}, {L_A3}")
    e.i(f"v_add_u32 v3, s{T+1}, v15")
    e.i(f"s_add_u32 s{T+1}, s{T}, {L_A3R}")
    e.i(f"v_add_u32 v12, s{T+1}, v15")
    e.i(f"v_and_b32 v8, 15, v{V_LANE}")
    e.i(f"v_mul_u32_u24 v8, 144, v8")
    e.i(f"v_and_b32 v9, 0x30, v{V_LANE}")
    e.i(f"v_add3_u32 v8, v8, v9, s{T+1}")
    e.i(f"v_lshrrev_b32 v13, 4, v{V_LANE}")
    e.i(f"v_lshlrev_b32 v13, 3, v13")
    e.i(f"v_bfe_u32 v14, v{V_LANE}, 2, 2")
    e.i(f"v_add_u32 v13, v13, v14")
    e.i(f"v_mul_u32_u24 v13, 144, v13")
    e.i(f"v_and_b32 v14, 3, v{V_LANE}")
    e.i(f"v_lshlrev_b32 v14, 3, v14")
    e.i(f"s_lshl_b32 s{T}, s{S_W}, 5")
    e.i(f"s_add_u32 s{T}, s{T}, {L_A3}")
    e.i(f"v_add3_u32 v13, v13, v14, s{T}")
    e.i("s_waitcnt vmcnt(2)")
    e.i(f"ds_write_b128 v3, {vr(YL,4)}")
    e.i(f"ds_write_b128 v3, {vr(YL+4,4)} offset:{8*144}")
    e.i("s_waitcnt lgkmcnt(0)")
    e.i("s_barrier")
    for it in range(2):
        for jj in range(2):
            e.i(f"ds_read_b64_tr_b16 {vr(16+4*it+2*jj,2)}, v13 offset:{(32*it+4*jj)*144}")
    e.i("s_waitcnt lgkmcnt(2)")
    e.i(f"ds_write_b128 v8, v[16:19]")
    e.i("s_waitcnt lgkmcnt(1)")
    e.i(f"ds_write_b128 v8, v[20:23] offset:64")
    e.i("s_waitcnt lgkmcnt(0)")
    e.i(f"ds_read_b128 v[16:19], v12")
    e.i(f"ds_read_b128 v[20:23], v12 offset:{8*144}")
    e.i(f"s_mov_b32 s{T}, 0xffff0000")
    e.i("s_waitcnt vmcnt(0)")
    publish(e, cfg, FL_B2, [f"s_lshl_b32 s{S_T0}, s{S_H}, 4", f"s_add_u32 s{S_T0}, s{S_T0}, s{S_R}"], tmp=4)
    e.i(f"s_mov_b32 s{T}, 0xffff0000")
    e.i("s_waitcnt lgkmcnt(0)")
    for it in range(2):
        for m in range(4):
            y = 16 + 4*it + m; q = QPF + 4*it + m
            e.i(f"v_lshlrev_b32 v24, 16, v{y}")
            e.i(f"v_and_b32 v25, s{T}, v{y}")
            e.i(f"v_lshlrev_b32 v26, 16, v{q}")
            e.i(f"v_and_b32 v27, s{T}, v{q}")
            e.i(f"v_mul_f32 v24, v24, v26")
            e.i(f"v_mul_f32 v25, v25, v27")
            e.i(f"v_cvt_pk_bf16_f32 v{32+4*it+m}, v24, v25")
    e.i(f"buffer_store_dwordx4 v[32:35], v{V_A3OFF+1}, {rs(R_OUT)}, 0 offen")
    e.i(f"s_mov_b32 s{T}, {8*1792}")
    e.i(f"buffer_store_dwordx4 v[36:39], v{V_A3OFF+1}, {rs(R_OUT)}, s{T} offen")

def b3_main(e, cfg):
    T = S_T0
    e.c("==== B3: out projection ====")
    e.i(f"s_lshr_b32 s{T}, s{S_W}, 1")
    e.i(f"s_lshl_b32 s{T+1}, s{S_RB}, 1")
    e.i(f"s_add_u32 s{T+2}, s{T}, s{T+1}")
    e.i(f"s_and_b32 s{T+3}, s{S_W}, 1")
    e.i(f"s_lshl_b32 s{T+4}, s{T+3}, 9")
    e.i(f"s_add_u32 s{T+4}, s{T+4}, s{T+2}")
    e.i(f"v_and_b32 v7, 7, v{V_LANE}")
    e.i(f"v_lshlrev_b32 v7, 6, v7")
    e.i(f"v_add_u32 v7, s{T+4}, v7")
    poll(e, cfg, FL_B2, 7, "b2")
    stamp(e, cfg, 14)
    e.i(f"s_lshr_b32 s{T}, s{S_W}, 1")
    e.i(f"s_lshl_b32 s{T+1}, s{S_RB}, 1")
    e.i(f"s_add_u32 s{T+2}, s{T}, s{T+1}")
    e.i(f"s_and_b32 s{T+3}, s{S_W}, 1")
    e.i(f"s_lshl_b32 s{T+2}, s{T+2}, 15")
    e.i(f"s_lshl_b32 s{T+4}, s{T+3}, 14")
    e.i(f"s_add_u32 s{T+2}, s{T+2}, s{T+4}")
    e.i(f"s_add_u32 s{T+2}, s{T+2}, {WS_OF}")
    e.i(f"s_lshl_b32 s{T}, s{T}, 15")
    e.i(f"s_add_u32 s{T}, s{T}, s{T+4}")
    e.i(f"s_add_u32 s{T}, s{T}, {L_OF}")
    for u in range(16):
        e.i(f"s_add_u32 m0, s{T}, {1024*u}")
        if u == 0: e.i("s_nop 0")
        e.i(f"buffer_load_dwordx4 v{V_L16}, {rs(R_WS)}, s{T+2} offen sc1 lds")
        if u < 15: e.i(f"s_add_u32 s{T+2}, s{T+2}, 1024")
    e.i(f"v_lshrrev_b32 v8, 5, v{V_LANE}")
    e.i(f"v_mul_u32_u24 v8, 7, v8")
    e.i(f"v_bfe_u32 v9, v{V_LANE}, 2, 2")
    e.i(f"v_add_u32 v8, v8, v9")
    e.i(f"v_bfe_u32 v9, v{V_LANE}, 4, 1")
    e.i(f"v_lshlrev_b32 v9, 5, v9")
    e.i(f"v_and_b32 v10, 3, v{V_LANE}")
    e.i(f"v_lshl_add_u32 v9, v10, 3, v9")
    for f in range(2):
        e.i(f"v_add_u32 v10, {14*f}, v8")
        e.i(f"v_bfe_u32 v11, v10, 1, 1")
        e.i(f"v_xor_b32 v11, s{T+3}, v11")
        e.i(f"v_lshlrev_b32 v11, 6, v11")
        e.i(f"v_lshl_add_u32 v10, v10, 7, v11")
        e.i(f"v_add_u32 v{12+f}, v10, v9")
        if L_WO: e.i(f"v_add_u32 v{12+f}, {L_WO}, v{12+f}")
    e.i(f"s_lshr_b32 s{T}, s{S_W}, 1")
    e.i(f"s_lshl_b32 s{T}, s{T}, 15")
    e.i(f"s_add_u32 s{T}, s{T}, {L_OF}")
    e.i(f"v_add_u32 v15, s{T}, v{V_L16}")
    e.i(f"s_mul_i32 s{T}, s{S_W}, 2560")
    e.i(f"s_add_u32 s{T}, s{T}, {L_A3R}")
    e.i(f"v_and_b32 v8, 31, v{V_LANE}")
    e.i(f"v_mul_u32_u24 v8, 80, v8")
    e.i(f"v_lshrrev_b32 v9, 5, v{V_LANE}")
    e.i(f"v_lshlrev_b32 v9, 3, v9")
    e.i(f"v_add3_u32 v8, v8, v9, s{T}")
    e.i(f"v_lshrrev_b32 v9, 2, v{V_LANE}")
    e.i(f"v_mul_u32_u24 v10, 80, v9")
    e.i(f"v_and_b32 v11, 3, v{V_LANE}")
    e.i(f"v_lshlrev_b32 v11, 4, v11")
    e.i(f"v_add3_u32 v10, v10, v11, s{T}")
    e.i(f"s_lshl_b32 s{T}, s{S_RB}, 6")
    e.i(f"s_lshr_b32 s{T+2}, s{S_W}, 1")
    e.i(f"s_lshl_b32 s{T+2}, s{T+2}, 5")
    e.i(f"s_add_u32 s{T}, s{T}, s{T+2}")
    e.i(f"s_mul_i32 s{T}, s{T}, 1792")
    e.i(f"s_lshl_b32 s{T+2}, s{S_CB}, 7")
    e.i(f"s_lshl_b32 s{T+3}, s{T+3}, 6")
    e.i(f"s_add_u32 s{T}, s{T}, s{T+2}")
    e.i(f"s_add_u32 s{T}, s{T}, s{T+3}")
    e.i(f"s_add_u32 s{T}, s{T}, 896")
    e.i(f"v_mul_u32_u24 v9, 1792, v9")
    e.i(f"v_add3_u32 v14, v9, v11, s{T}")
    e.i("s_waitcnt vmcnt(0)")
    e.i("s_barrier")
    steps = [(h, f) for h in range(16) for f in range(2)]
    NB = 4
    def rd(k):
        h, f = steps[k]
        b = 32 + 8*(k % NB)
        for jj in range(2):
            e.i(f"ds_read_b64_tr_b16 {vr(b+2*jj,2)}, v{12+f} offset:{(28*h+4*jj)*128}")
        e.i(f"ds_read_b128 {vr(b+4,4)}, v15 offset:{1024*k}")
    for k in range(NB-1): rd(k)
    for k in range(32):
        if k + NB - 1 < 32: rd(k + NB - 1)
        nyl = 3 * min(NB - 1, 31 - k)
        e.i(f"s_waitcnt lgkmcnt({nyl})")
        b = 32 + 8*(k % NB)
        e.i(f"v_mfma_f32_32x32x16_bf16 v[16:31], {vr(b,4)}, {vr(b+4,4)}, {'0' if k == 0 else 'v[16:31]'}")
    e.i("s_nop 7"); e.i("s_nop 7")
    for m in range(8):
        e.i(f"v_cvt_pk_bf16_f32 v{48+m}, v{16+2*m}, v{17+2*m}")
    for g in range(4):
        e.i(f"ds_write_b64 v8, {vr(48+2*g,2)} offset:{16*g}")
    e.i("s_waitcnt lgkmcnt(0)")
    e.i(f"ds_read_b128 v[56:59], v10")
    e.i(f"ds_read_b128 v[60:63], v10 offset:{16*80}")
    e.i(f"s_mov_b32 s{T}, {16*1792}")
    e.i("s_waitcnt lgkmcnt(1)")
    e.i(f"buffer_store_dwordx4 v[56:59], v14, {rs(R_OUT)}, 0 offen")
    e.i("s_waitcnt lgkmcnt(0)")
    e.i(f"buffer_store_dwordx4 v[60:63], v14, {rs(R_OUT)}, s{T} offen")

def build(cfg):
    e = E()
    T = S_T0
    prologue(e, cfg)
    addr_early(e, cfg)
    if cfg.prefetch: l2_prefetch_addr(e, cfg)
    e.i("s_waitcnt lgkmcnt(0)")
    if cfg.stamps:
        e.i(f"v_writelane_b32 v250, s{S_TS}, 16")
    stamp(e, cfg, 17)
    a1_loads(e, cfg)
    if cfg.prefetch: l2_prefetch(e, cfg)
    a2_dload(e, cfg)
    e.i(f"s_mov_b32 s{S_SLI}, {L_RING}")
    b1_issue(e)
    b1_issue(e)
    stamp(e, cfg, 19)
    e.i(f"s_or_b32 s{T}, s2, s{S_W}")
    e.i("s_cbranch_scc1 L_nononce")
    e.i(f"s_memrealtime s[{S_NONCE}:{S_NONCE+1}]")
    e.i("s_waitcnt lgkmcnt(0)")
    e.i(f"s_or_b32 s{S_NONCE}, s{S_NONCE}, 1")
    e.i(f"v_mov_b32 v76, s{S_NONCE}")
    e.i(f"v_mov_b32 v77, s{S_NONCE+1}")
    e.i("v_mov_b32 v78, 0")
    e.i("s_mov_b64 exec, 1")
    e.i(f"buffer_store_dwordx2 v[76:77], v78, {rs(R_DBG)}, 0 offen sc1")
    e.i("s_mov_b64 exec, -1")
    e.label("L_nononce")
    a1_compute(e, cfg, 14 + (N_PF if cfg.prefetch else 0))
    nonce_early(e, cfg)
    h_loads(e, cfg)
    stamp(e, cfg, 1)
    b1_traddr(e, cfg)
    a3_qaddr(e, cfg)
    wo_addr(e, cfg)
    e.i(f"s_mov_b32 s{S_WOI}, s{S_W}")
    stamp(e, cfg, 21)
    b1_loop(e, cfg)
    stamp(e, cfg, 3)
    b1_epilogue(e, cfg)
    a2_hstage(e, cfg)
    e.i("s_waitcnt vmcnt(0)")
    publish(e, cfg, FL_B1, [f"s_lshl_b32 s{T}, s{S_H}, 4", f"s_add_u32 s{T}, s{T}, s{S_R}"])
    e.i("s_waitcnt lgkmcnt(0)")
    e.i("s_barrier")
    stamp(e, cfg, 4)
    if cfg.stop_after >= 2:
        e.i("s_cmp_ge_u32 s2, 224")
        e.i("s_cbranch_scc1 L_skipA2")
        a2_main(e, cfg)
        e.label("L_skipA2")
        stamp(e, cfg, 9)
    if cfg.stop_after >= 3:
        b2_main(e, cfg)
        stamp(e, cfg, 12)
    if cfg.stop_after >= 4:
        e.i("s_cmp_ge_u32 s2, 224")
        e.i("s_cbranch_scc1 L_pubonly")
        a3_main(e, cfg)
        stamp(e, cfg, 13)
        b3_main(e, cfg)
        e.i("s_branch L_fin")
        e.label("L_pubonly")
        e.i("s_waitcnt vmcnt(0)")
        publish(e, cfg, FL_B2, [f"s_lshl_b32 s{S_T0}, s{S_H}, 4", f"s_add_u32 s{S_T0}, s{S_T0}, s{S_R}"], tmp=4)
        e.label("L_fin")
    stamp(e, cfg, 15)
    if cfg.stamps:
        e.i(f"s_lshl_b32 s{T}, s2, 2")
        e.i(f"s_add_u32 s{T}, s{T}, s{S_W}")
        e.i(f"s_lshl_b32 s{T}, s{T}, 8")
        e.i(f"s_add_u32 s{T}, s{T}, {WS_TS}")
        e.i(f"v_lshlrev_b32 v3, 2, v{V_LANE}")
        e.i(f"buffer_store_dword v{V_TS}, v3, {rs(R_WS)}, s{T} offen")
    e.label("L_end")
    e.i("s_endpgm")
    if cfg.stop_after >= 3:
        b2_slow(e, cfg)
        e.i("s_endpgm")
    return e

HEADER = f"""; Kernarg layout (96 bytes): A_q A_k A_v A_shift_k A_ssm_k A_ssm_D B_x B_wqkv B_wo out debug ws
; @launch grid=(256,1,1) block=(256,1,1) lds={LDS_SIZE}
.amdgcn_target "amdgcn-amd-amdhsa--gfx950"
.text
.globl {KNAME}
.p2align 8
.type {KNAME},@function
{KNAME}:
"""
FOOTER = f"""
.section .rodata,"a"
.p2align 6
.amdhsa_kernel {KNAME}
  .amdhsa_next_free_vgpr 512
  .amdhsa_next_free_sgpr 102
  .amdhsa_accum_offset 256
  .amdhsa_group_segment_fixed_size 0
  .amdhsa_kernarg_size 96
  .amdhsa_user_sgpr_count 2
  .amdhsa_user_sgpr_kernarg_segment_ptr 1
  .amdhsa_system_sgpr_workgroup_id_x 1
  .amdhsa_float_denorm_mode_32 3
.end_amdhsa_kernel
"""

if __name__ == "__main__":
    import argparse
    ap = argparse.ArgumentParser()
    ap.add_argument("-o", default=f"cdna_kernels/{NAME}.s")
    ap.add_argument("--stop", type=int, default=99)
    ap.add_argument("--stamps", action="store_true")
    ap.add_argument("--nosync", action="store_true")
    ap.add_argument("--realtime", action="store_true")
    ap.add_argument("--noprefetch", action="store_true")
    a = ap.parse_args()
    cfg = Cfg(); cfg.stop_after = a.stop; cfg.stamps = a.stamps; cfg.nosync = a.nosync; cfg.realtime = a.realtime; cfg.prefetch = not a.noprefetch
    e = build(cfg)
    open(a.o, "w").write(HEADER + e.text() + FOOTER)
    print("wrote", a.o, len(e.lines), "lines")
```

```python
import sys, math, struct

NAME = "concat_heads__ssm_conv_h3__softmax_full_mha__prompt"
KNAME = NAME + "_kernel"

class E:
    def __init__(self):
        self.lines = []
    def c(self, s):
        self.lines.append("    ; " + s)
    def i(self, s):
        self.lines.append("    " + s)
    def label(self, s):
        self.lines.append(s + ":")
    def text(self):
        return "\n".join(self.lines) + "\n"

def vr(a, n=1):
    return f"v{a}" if n == 1 else f"v[{a}:{a+n-1}]"
def ar(a, n=1):
    return f"a{a}" if n == 1 else f"a[{a}:{a+n-1}]"
def rs(r): return f"s[{r}:{r+3}]"

S, D, H, DH = 2048, 448, 16, 28
SZ_SD   = S * D * 2
SZ_SHK  = D * 4 * 2
SZ_WQKV = D * 3 * D * 2
SZ_WO   = D * D * 2
SZ_OUT  = S * 2 * D * 2
WS_KV = 0x000000
WS_XT = 0x400000
WS_YT = 0x600000
WS_OF = 0x800000
WS_FL = 0xA00000
FL_A1, FL_B1, FL_A2, FL_B2 = 0, 0x10000, 0x20000, 0x30000
FL_SH = 6
WS_TS = 0xB00000
WS_SIZE = 0xC00000

L_RING = 0
SLOT   = 28672
L_KS   = 86016
L_Q    = 86016
L_SHK  = 98304
L_KVT  = 102400
L_H    = 111616
H_CH   = 4160
L_X    = 119936
X_CH   = 5248
L_CARRY= 130432
L_Y    = L_X
L_WO   = 0
L_RED  = 58368
L_OF   = 58368
L_A3   = 123904
L_A3R  = 133120
L_MISC = 143616
LDS_SIZE = 143680

S_W = 3
R_K, R_V, R_Q, R_SHK, R_SSMK, R_X, R_WQKV, R_WO, R_OUT, R_WS, R_DBG = 4, 8, 12, 16, 20, 24, 28, 32, 36, 40, 44
S_H, S_R, S_CB, S_RB = 48, 49, 50, 51
S_NONCE = 52
S_D2 = 54
S_DP = 62
S_T0 = 56
S_MHH = 64
S_MONE = 66
S63 = 68
S_KV = 70
S_J = 76
S_JJ = 77
S_SLI = 78
S_SLC = 79
S_XB = 80
S_WOI = 81
S_T1 = 88
S_SLOW = 96
S_IT = 97
S_TS = 98

QSCALE = (DH ** -0.5) * math.log2(math.e)
def f2u(x): return struct.unpack("<I", struct.pack("<f", x))[0]

class Cfg:
    stop_after = 99
    stamps = False
    nosync = False
    realtime = False
    prefetch = True
    span = False

def stamp(e, cfg, idx):
    if not cfg.stamps: return
    e.c(f"stamp {idx}")
    e.i(f"{'s_memrealtime' if cfg.realtime else 's_memtime'} s[{S_TS}:{S_TS+1}]")
    e.i("s_waitcnt lgkmcnt(0)")
    e.i(f"v_writelane_b32 v250, s{S_TS}, {idx}")

V_LANE, V_L16 = 1, 2
V_TS = 250

def prologue(e, cfg):
    e.c("==== prologue ====")
    ptrs = [(R_K, 8), (R_V, 16), (R_SHK, 24), (R_SSMK, 32), (R_X, 48), (R_WQKV, 56), (R_Q, 0), (R_WO, 64), (R_OUT, 72), (R_DBG, 80), (R_WS, 88), (S_DP, 40)]
    for r, off in ptrs:
        e.i(f"s_load_dwordx2 s[{r}:{r+1}], s[0:1], {off}")
    if cfg.span: e.i("s_memrealtime s[100:101]")
    e.i("s_cmp_ge_u32 s2, 256")
    e.i("s_cbranch_scc1 L_end")
    if cfg.stamps:
        e.i(f"v_mov_b32 v{V_TS}, 0")
        e.c("stamp 16 (no wait on kernarg)")
        e.i(f"s_memrealtime s[{S_TS}:{S_TS+1}]" if cfg.realtime else f"s_memtime s[{S_TS}:{S_TS+1}]")
    e.i(f"v_lshrrev_b32 v3, 6, v0")
    e.i(f"v_and_b32 v{V_LANE}, 63, v0")
    e.i(f"v_readfirstlane_b32 s{S_W}, v3")
    e.i(f"v_lshlrev_b32 v{V_L16}, 4, v{V_LANE}")
    sizes = {R_K: SZ_SD, R_V: SZ_SD, R_SHK: SZ_SHK, R_SSMK: SZ_SD, R_X: SZ_SD, R_WQKV: SZ_WQKV, R_Q: SZ_SD, R_WO: SZ_WO, R_OUT: SZ_OUT, R_DBG: 256, R_WS: WS_SIZE}
    for r, sz in sizes.items():
        e.i(f"s_mov_b32 s{r+2}, {sz}")
        e.i(f"s_mov_b32 s{r+3}, 0x20000")
    T = S_T0
    e.i(f"s_and_b32 s{T}, s2, 7")
    e.i(f"s_lshr_b32 s{T+1}, s2, 3")
    e.i(f"s_and_b32 s{S_H}, s{T}, 3")
    e.i(f"s_lshl_b32 s{S_H}, s{S_H}, 2")
    e.i(f"s_and_b32 s{T+2}, s{T+1}, 3")
    e.i(f"s_add_u32 s{S_H}, s{S_H}, s{T+2}")
    e.i(f"s_lshr_b32 s{S_R}, s{T}, 2")
    e.i(f"s_lshl_b32 s{S_R}, s{S_R}, 3")
    e.i(f"s_lshr_b32 s{T+2}, s{T+1}, 2")
    e.i(f"s_add_u32 s{S_R}, s{S_R}, s{T+2}")
    e.i(f"s_lshr_b32 s{S_CB}, s2, 5")
    e.i(f"s_min_u32 s{S_CB}, s{S_CB}, 6")
    e.i(f"s_and_b32 s{S_RB}, s2, 31")
    e.i(f"s_and_b32 s{S_J}, s{S_H}, 3")
    e.i(f"s_lshl_b32 s{S_J}, s{S_J}, 1")
    e.i(f"s_and_b32 s{T}, s{S_R}, 7")
    e.i(f"s_add_u32 s{S_J}, s{S_J}, s{T}")
    e.i(f"s_cmp_ge_u32 s{S_J}, 7")
    e.i(f"s_cselect_b32 s{T}, 7, 0")
    e.i(f"s_sub_u32 s{S_J}, s{S_J}, s{T}")
    e.i(f"s_cmp_ge_u32 s{S_J}, 7")
    e.i(f"s_cselect_b32 s{T}, 7, 0")
    e.i(f"s_sub_u32 s{S_J}, s{S_J}, s{T}")

V_KOFF = 4
VA = 48
V_XE, V_XO = 8, 9
V_DMA = 10
V_HOFF = 7
HREG = 236

def addr_early(e, cfg):
    T = S_T0
    e.c("A1 addresses")
    e.i(f"s_lshl_b32 s{T}, s{S_RB}, 6")
    e.i(f"s_lshl_b32 s{T+1}, s{S_W}, 4")
    e.i(f"s_add_u32 s{T}, s{T}, s{T+1}")
    e.i(f"s_mul_i32 s{T}, s{T}, 896")
    e.i(f"s_lshl_b32 s{T+1}, s{S_CB}, 7")
    e.i(f"s_add_u32 s{T}, s{T}, s{T+1}")
    e.i(f"v_lshrrev_b32 v3, 3, v{V_LANE}")
    e.i(f"v_mul_u32_u24 v13, 896, v3")
    e.i(f"v_and_b32 v14, 7, v{V_LANE}")
    e.i(f"v_lshl_add_u32 v15, v14, 4, v13")
    e.i(f"v_add_u32 v{V_KOFF+1}, s{T}, v15")
    e.i(f"v_add_u32 v{V_KOFF+2}, 7168, v{V_KOFF+1}")
    e.i(f"v_subrev_u32 v{V_KOFF}, 7168, v{V_KOFF+1}")
    e.c("h offset")
    e.i(f"s_lshr_b32 s{T}, s{S_W}, 1")
    e.i(f"s_lshl_b32 s{T+1}, s2, 1")
    e.i(f"s_add_u32 s{T}, s{T}, s{T+1}")
    e.i(f"s_lshl_b32 s{T}, s{T}, 12")
    e.i(f"s_and_b32 s{T+1}, s{S_W}, 1")
    e.i(f"s_lshl_b32 s{T+1}, s{T+1}, 11")
    e.i(f"s_add_u32 s{T}, s{T}, s{T+1}")
    e.i(f"v_add_u32 v{V_HOFF}, s{T}, v{V_L16}")
    e.c("B1 x dma offsets: (128r + 32w + (l>>3))*896 + ((l&7) ^ f)*16, f = (l>>4) ^ (4*(t&1))")
    e.i(f"s_lshl_b32 s{T}, s{S_R}, 7")
    e.i(f"s_lshl_b32 s{T+1}, s{S_W}, 5")
    e.i(f"s_add_u32 s{T}, s{T}, s{T+1}")
    e.i(f"s_mul_i32 s{T}, s{T}, 896")
    e.i(f"v_lshrrev_b32 v3, 4, v{V_LANE}")
    e.i(f"v_xor_b32 v3, v3, v14")
    e.i(f"v_lshl_add_u32 v15, v3, 4, v13")
    e.i(f"v_add_u32 v{V_XE}, s{T}, v15")
    e.i(f"v_xor_b32 v{V_XO}, 64, v{V_XE}")
    e.c("W dma offsets")
    e.i(f"s_mul_i32 s{T}, s{S_H}, 56")
    for t in range(3):
        d = V_DMA + t
        e.i(f"v_add_u32 v3, {64*t}, v{V_LANE}")
        e.i(f"v_mul_u32_u24 v13, 43691, v3")
        e.i(f"v_lshrrev_b32 v13, 19, v13")
        e.i(f"v_mul_u32_u24 v14, 12, v13")
        e.i(f"v_sub_u32 v3, v3, v14")
        e.i(f"v_mul_u32_u24 v{d}, 2688, v13")
        e.i(f"v_lshrrev_b32 v13, 2, v3")
        e.i(f"v_and_b32 v3, 3, v3")
        e.i(f"v_mul_u32_u24 v14, 896, v13")
        e.i(f"v_add3_u32 v{d}, v{d}, v14, s{T}")
        e.i(f"v_lshrrev_b32 v13, 1, v13")
        e.i(f"v_add_u32 v14, 1, v3")
        e.i(f"v_mul_u32_u24 v13, v13, v14")
        e.i(f"v_lshlrev_b32 v3, 3, v3")
        e.i(f"v_sub_u32 v3, v3, v13")
        e.i(f"v_lshl_add_u32 v{d}, v3, 1, v{d}")

def a1_loads(e, cfg):
    T = S_T0
    e.c("A1 loads: k dma x3, shk dma, v x2, h x2")
    e.i(f"s_mul_i32 s{T}, s{S_W}, 3072")
    for t in range(3):
        e.i(f"s_add_u32 m0, s{T}, {L_KS + 1024*t}")
        e.i("s_nop 0")
        e.i(f"buffer_load_dwordx4 v{V_KOFF+t}, {rs(R_K)}, 0 offen lds")
    e.i(f"s_lshl_b32 s{T}, s{S_W}, 10")
    e.i(f"s_add_u32 m0, s{T}, {L_SHK}")
    e.i(f"s_lshl_b32 s{T+1}, s{S_CB}, 9")
    e.i(f"buffer_load_dwordx4 v{V_L16}, {rs(R_SHK)}, s{T+1} offen lds")
    for it in range(2):
        e.i(f"buffer_load_dwordx4 {vr(VA+4*it,4)}, v{V_KOFF+1+it}, {rs(R_V)}, 0 offen")

def h_loads(e, cfg):
    e.i(f"buffer_load_dwordx4 {vr(HREG,4)}, v{V_HOFF}, {rs(R_SSMK)}, 0 offen")
    e.i(f"buffer_load_dwordx4 {vr(HREG+4,4)}, v{V_HOFF}, {rs(R_SSMK)}, 0 offen offset:1024")

V_PF = 24
def l2_prefetch_addr(e, cfg):
    T = S_T0
    e.i(f"s_and_b32 s{T}, s2, 7")
    e.i(f"s_lshr_b32 s{T}, s{T}, 2")
    e.i(f"s_mul_i32 s{T}, s{T}, {1024*896}")
    e.i(f"s_lshr_b32 s{T+1}, s2, 3")
    e.i(f"s_mul_i32 s{T+2}, s{T+1}, 28672")
    e.i(f"s_add_u32 s{T}, s{T}, s{T+2}")
    e.i(f"s_lshl_b32 s{T+2}, s{S_W}, 12")
    e.i(f"s_add_u32 s{T}, s{T}, s{T+2}")
    e.i(f"v_lshlrev_b32 v3, 6, v{V_LANE}")
    e.i(f"v_add_u32 v{V_PF}, s{T}, v3")
    e.i(f"s_lshl_b32 s{T}, s{S_W}, 6")
    e.i(f"v_add_u32 v3, s{T}, v{V_LANE}")
    e.i(f"v_mul_u32_u24 v13, 43691, v3")
    e.i(f"v_lshrrev_b32 v13, 19, v13")
    e.i(f"v_mul_u32_u24 v14, 12, v13")
    e.i(f"v_sub_u32 v3, v3, v14")
    e.i(f"v_lshrrev_b32 v14, 2, v3")
    e.i(f"v_mul_u32_u24 v14, 896, v14")
    e.i(f"v_and_b32 v3, 3, v3")
    e.i(f"v_lshl_add_u32 v14, v3, 6, v14")
    e.i(f"s_mul_i32 s{T}, s{T+1}, 14")
    e.i(f"v_add_u32 v13, s{T}, v13")
    e.i(f"v_mul_u32_u24 v13, 2688, v13")
    e.i(f"s_and_b32 s{T}, s2, 3")
    e.i(f"s_mul_i32 s{T}, s{T}, 224")
    e.i(f"s_and_b32 s{T}, s{T}, 0xffffffc0")
    e.i(f"v_add3_u32 v{V_PF+1}, v13, v14, s{T}")

def l2_prefetch(e, cfg):
    T = S_T0
    e.i(f"buffer_load_dword v244, v{V_PF}, {rs(R_X)}, 0 offen")
    e.i(f"s_mov_b32 s{T}, 16384")
    e.i(f"s_cmp_eq_u32 s{S_W}, 3")
    e.i(f"s_cselect_b32 s{T}, 0, s{T}")
    e.i(f"buffer_load_dword v245, v{V_PF}, {rs(R_X)}, s{T} offen")
    e.i(f"buffer_load_dword v246, v{V_PF+1}, {rs(R_WQKV)}, 0 offen")
N_PF = 3

def b1_issue(e):
    T = S_T0
    e.i(f"s_lshl_b32 s{T}, s{S_J}, 7")
    e.i(f"s_lshl_b32 s{T+1}, s{S_W}, 12")
    e.i(f"s_add_u32 s{T+1}, s{T+1}, s{S_SLI}")
    for t in range(4):
        if t: e.i(f"s_add_u32 s{T}, s{T}, 7168")
        e.i(f"s_add_u32 m0, s{T+1}, {1024*t}")
        if t == 0: e.i("s_nop 0")
        e.i(f"buffer_load_dwordx4 v{V_XE if t % 2 == 0 else V_XO}, {rs(R_X)}, s{T} offen lds")
    e.i(f"s_lshl_b32 s{T}, s{S_J}, 2")
    e.i(f"s_add_u32 s{T}, s{T}, s{S_W}")
    e.i(f"s_mul_i32 s{T}, s{T}, 43008")
    e.i(f"s_mul_i32 s{T+1}, s{S_W}, 3072")
    e.i(f"s_add_u32 s{T+1}, s{T+1}, s{S_SLI}")
    for t in range(3):
        e.i(f"s_add_u32 m0, s{T+1}, {16384 + 1024*t}")
        if t == 0: e.i("s_nop 0")
        e.i(f"buffer_load_dwordx4 v{V_DMA+t}, {rs(R_WQKV)}, s{T} offen lds")
    e.i(f"s_add_u32 s{S_J}, s{S_J}, 1")
    e.i(f"s_cmp_eq_u32 s{S_J}, 7")
    e.i(f"s_cselect_b32 s{S_J}, 0, s{S_J}")
    e.i(f"s_add_u32 s{S_SLI}, s{S_SLI}, {SLOT}")
    e.i(f"s_cmp_eq_u32 s{S_SLI}, {3*SLOT + L_RING}")
    e.i(f"s_cselect_b32 s{S_SLI}, {L_RING}, s{S_SLI}")

KA, WSH = 16, 56
def a1_compute(e, cfg, nyounger):
    T = S_T0
    e.c("A1 compute")
    e.i(f"s_mul_i32 s{T}, s{S_W}, 3072")
    e.i(f"s_add_u32 s{T}, s{T}, {L_KS}")
    e.i(f"v_add_u32 v3, s{T}, v{V_L16}")
    e.i(f"s_lshl_b32 s{T}, s{S_W}, 10")
    e.i(f"s_add_u32 s{T}, s{T}, {L_SHK}")
    e.i(f"v_and_b32 v14, 7, v{V_LANE}")
    e.i(f"v_lshlrev_b32 v13, 6, v14")
    e.i(f"v_add_u32 v13, s{T}, v13")
    e.i(f"s_waitcnt vmcnt({nyounger})")
    stamp(e, cfg, 20)
    for m in range(4):
        e.i(f"ds_read_b128 {vr(WSH+4*m,4)}, v13 offset:{16*m}")
    for it in range(2):
        for j in range(4):
            e.i(f"ds_read_b128 {vr(KA+16*it+4*j,4)}, v3 offset:{(8+8*it-j)*128}")
    e.i(f"s_mov_b32 s{T}, 0x05040100")
    e.i(f"s_mov_b32 s{T+1}, 0x07060302")
    e.i(f"s_mov_b32 s{T+2}, 0xffff0000")
    TT = 76; OUTR = 108
    for it in range(2):
        e.i(f"s_waitcnt lgkmcnt({4 if it == 0 else 0})")
        for m in range(4):
            k = lambda j: KA + 16*it + 4*j + m
            b = TT + 4*m
            e.i(f"v_perm_b32 v{b+0}, v{k(1)}, v{k(0)}, s{T}")
            e.i(f"v_perm_b32 v{b+1}, v{k(1)}, v{k(0)}, s{T+1}")
            e.i(f"v_perm_b32 v{b+2}, v{k(3)}, v{k(2)}, s{T}")
            e.i(f"v_perm_b32 v{b+3}, v{k(3)}, v{k(2)}, s{T+1}")
        A = TT + 16
        for m in range(4):
            b = TT + 4*m
            e.i(f"v_dot2_f32_bf16 v{A+2*m}, v{b+0}, v{WSH+4*m+0}, 0")
            e.i(f"v_dot2_f32_bf16 v{A+2*m+1}, v{b+1}, v{WSH+4*m+2}, 0")
        U = TT + 24
        for m in range(4):
            e.i(f"v_lshlrev_b32 v{U+2*m}, 16, v{VA+4*it+m}")
            e.i(f"v_and_b32 v{U+2*m+1}, s{T+2}, v{VA+4*it+m}")
        for m in range(4):
            b = TT + 4*m
            e.i(f"v_dot2_f32_bf16 v{A+2*m}, v{b+2}, v{WSH+4*m+1}, v{A+2*m}")
            e.i(f"v_dot2_f32_bf16 v{A+2*m+1}, v{b+3}, v{WSH+4*m+3}, v{A+2*m+1}")
        e.i("s_nop 2")
        for c in range(8):
            e.i(f"v_mul_f32 v{A+c}, v{A+c}, v{U+c}")
        for m in range(4):
            e.i(f"v_cvt_pk_bf16_f32 v{OUTR+4*it+m}, v{A+2*m}, v{A+2*m+1}")
    e.i(f"s_mul_i32 s{T}, s{S_W}, {16*144}")
    e.i(f"s_add_u32 s{T}, s{T}, {L_KVT}")
    e.i(f"v_lshrrev_b32 v13, 3, v{V_LANE}")
    e.i(f"v_mul_u32_u24 v15, 144, v13")
    e.i(f"v_lshl_add_u32 v15, v14, 4, v15")
    e.i(f"v_add_u32 v3, s{T}, v15")
    e.i(f"ds_write_b128 v3, {vr(OUTR,4)}")
    e.i(f"ds_write_b128 v3, {vr(OUTR+4,4)} offset:{8*144}")
    e.i(f"v_lshrrev_b32 v3, 4, v{V_LANE}")
    e.i(f"v_lshlrev_b32 v3, 3, v3")
    e.i(f"v_bfe_u32 v16, v{V_LANE}, 2, 2")
    e.i(f"v_add_u32 v3, v3, v16")
    e.i(f"v_mul_u32_u24 v3, 144, v3")
    e.i(f"v_and_b32 v16, 3, v{V_LANE}")
    e.i(f"v_lshlrev_b32 v16, 3, v16")
    e.i(f"s_lshl_b32 s{T}, s{S_W}, 5")
    e.i(f"s_add_u32 s{T}, s{T}, {L_KVT}")
    e.i(f"v_add3_u32 v3, v3, v16, s{T}")
    e.i(f"s_mul_i32 s{T}, s{S_W}, 3072")
    e.i(f"s_add_u32 s{T}, s{T}, {L_KS}")
    e.i(f"v_and_b32 v16, 15, v{V_LANE}")
    e.i(f"v_mul_u32_u24 v16, 144, v16")
    e.i(f"v_and_b32 v17, 0x30, v{V_LANE}")
    e.i(f"v_add3_u32 v16, v16, v17, s{T}")
    e.i(f"v_add_u32 v17, s{T}, v15")
    e.i(f"v_lshlrev_b32 v18, 12, v13")
    e.i(f"v_lshl_add_u32 v18, v14, 4, v18")
    e.i(f"s_lshl_b32 s{T}, s{S_CB}, 6")
    e.i(f"s_lshl_b32 s{T+1}, s{S_W}, 4")
    e.i(f"s_add_u32 s{T}, s{T}, s{T+1}")
    e.i(f"s_lshl_b32 s{T}, s{T}, 12")
    e.i(f"s_lshl_b32 s{T+1}, s{S_RB}, 7")
    e.i(f"s_add_u32 s{T}, s{T}, s{T+1}")
    e.i(f"s_add_u32 s{T}, s{T}, {WS_XT}")
    e.i(f"s_add_u32 s{T+1}, s{T}, {8*4096}")
    e.i("s_waitcnt lgkmcnt(0)")
    e.i("s_barrier")
    for it2 in range(2):
        for jj in range(2):
            e.i(f"ds_read_b64_tr_b16 {vr(76+4*it2+2*jj,2)}, v3 offset:{(32*it2+4*jj)*144}")
    e.i("s_waitcnt lgkmcnt(2)")
    e.i(f"ds_write_b128 v16, {vr(76,4)}")
    e.i("s_waitcnt lgkmcnt(1)")
    e.i(f"ds_write_b128 v16, {vr(80,4)} offset:64")
    e.i("s_waitcnt lgkmcnt(0)")
    e.i(f"ds_read_b128 {vr(84,4)}, v17")
    e.i(f"ds_read_b128 {vr(88,4)}, v17 offset:{8*144}")
    e.i("s_waitcnt lgkmcnt(1)")
    e.i(f"buffer_store_dwordx4 {vr(84,4)}, v18, {rs(R_WS)}, s{T} offen sc1")
    e.i("s_waitcnt lgkmcnt(0)")
    e.i(f"buffer_store_dwordx4 {vr(88,4)}, v18, {rs(R_WS)}, s{T+1} offen sc1")

V_NONCE = 22
def nonce_early(e, cfg):
    e.i("v_mov_b32 v21, 0")
    e.i(f"buffer_load_dwordx2 v[{V_NONCE}:{V_NONCE+1}], v21, {rs(R_DBG)}, 0 offen sc1")

def get_nonce(e, cfg):
    e.c("fetch nonce (early load, else poll d_debug)")
    e.i(f"v_readfirstlane_b32 s{S_NONCE}, v{V_NONCE}")
    e.i(f"v_readfirstlane_b32 s{S_NONCE+1}, v{V_NONCE+1}")
    e.i("s_nop 3")
    e.i(f"s_or_b32 s{S_T0}, s{S_NONCE}, s{S_NONCE+1}")
    e.i(f"s_cbranch_scc1 L_nonce_done")
    e.i(f"s_mov_b32 s{S_IT}, 0x40000")
    e.label("L_nonce")
    e.i(f"buffer_load_dwordx2 v[{V_NONCE}:{V_NONCE+1}], v21, {rs(R_DBG)}, 0 offen sc1")
    e.i("s_waitcnt vmcnt(0)")
    e.i(f"v_readfirstlane_b32 s{S_NONCE}, v{V_NONCE}")
    e.i(f"v_readfirstlane_b32 s{S_NONCE+1}, v{V_NONCE+1}")
    e.i("s_nop 3")
    e.i(f"s_or_b32 s{S_T0}, s{S_NONCE}, s{S_NONCE+1}")
    e.i(f"s_cbranch_scc1 L_nonce_done")
    e.i(f"s_sub_u32 s{S_IT}, s{S_IT}, 1")
    e.i(f"s_cbranch_scc1 L_nonce_done")
    e.i("s_sleep 2")
    e.i("s_branch L_nonce")
    e.label("L_nonce_done")

def publish(e, cfg, arr, idx_lines, tmp=4):
    T = S_T0
    for ln in idx_lines: e.i(ln)
    e.i(f"s_lshl_b32 s{T}, s{T}, 2")
    e.i(f"s_add_u32 s{T}, s{T}, s{S_W}")
    e.i(f"s_lshl_b32 s{T}, s{T}, {FL_SH}")
    e.i(f"s_add_u32 s{T}, s{T}, {WS_FL + arr}")
    e.i(f"v_mov_b32 v{tmp}, s{S_NONCE}")
    e.i(f"v_mov_b32 v{tmp+1}, s{S_NONCE+1}")
    e.i(f"v_mov_b32 v{tmp+2}, 0")
    e.i("s_mov_b64 exec, 1")
    e.i(f"buffer_store_dwordx2 v[{tmp}:{tmp+1}], v{tmp+2}, {rs(R_WS)}, s{T} offen sc1")
    e.i("s_mov_b64 exec, -1")

def poll(e, cfg, arr, vidx, tag, tmp=4):
    e.c(f"poll {tag}")
    e.i(f"v_lshlrev_b32 v{vidx}, {FL_SH}, v{vidx}")
    e.i(f"v_add_u32 v{vidx}, {WS_FL + arr}, v{vidx}")
    if cfg.nosync: return
    e.i(f"s_mov_b32 s{S_IT}, 0x40000")
    e.label(f"L_poll_{tag}")
    e.i(f"buffer_load_dwordx2 v[{tmp}:{tmp+1}], v{vidx}, {rs(R_WS)}, 0 offen sc1")
    e.i("s_waitcnt vmcnt(0)")
    e.i(f"v_cmp_ne_u64 vcc, s[{S_NONCE}:{S_NONCE+1}], v[{tmp}:{tmp+1}]")
    e.i(f"s_cbranch_vccz L_poll_done_{tag}")
    e.i(f"s_sub_u32 s{S_IT}, s{S_IT}, 1")
    e.i(f"s_cbranch_scc1 L_poll_done_{tag}")
    e.i("s_sleep 3")
    e.i(f"s_branch L_poll_{tag}")
    e.label(f"L_poll_done_{tag}")

ACCQ, ACCK, ACCV = 100, 116, 132
WF = 176
XF = 200
V_WTR = 208
V_XR = 212
KVB = 160
def b1_traddr(e, cfg):
    T = S_T0
    e.c("B1 lds read addresses")
    e.i(f"v_lshrrev_b32 v3, 5, v{V_LANE}")
    e.i(f"v_lshlrev_b32 v16, 3, v3")
    e.i(f"v_bfe_u32 v13, v{V_LANE}, 2, 2")
    e.i(f"v_add_u32 v16, v16, v13")
    e.i(f"v_mul_u32_u24 v16, 192, v16")
    e.i(f"v_bfe_u32 v13, v{V_LANE}, 4, 1")
    e.i(f"v_lshl_add_u32 v16, v13, 5, v16")
    e.i(f"v_add_u32 v16, 16384, v16")
    e.i(f"v_and_b32 v13, 3, v{V_LANE}")
    e.i(f"v_lshl_add_u32 v{V_WTR}, v13, 3, v16")
    e.i(f"v_and_b32 v14, 1, v13")
    e.i(f"v_lshlrev_b32 v14, 4, v14")
    e.i(f"v_lshrrev_b32 v13, 1, v13")
    e.i(f"v_lshlrev_b32 v13, 3, v13")
    e.i(f"v_add3_u32 v{V_WTR+1}, v16, v14, v13")
    e.i(f"v_add_u32 v{V_WTR+1}, 128, v{V_WTR+1}")
    e.i(f"v_and_b32 v13, 31, v{V_LANE}")
    e.i(f"v_bfe_u32 v14, v{V_LANE}, 1, 3")
    e.i(f"v_xor_b32 v14, v14, v3")
    e.i(f"v_lshlrev_b32 v14, 4, v14")
    e.i(f"v_lshl_add_u32 v14, v13, 7, v14")
    e.i(f"s_lshl_b32 s{T}, s{S_W}, 12")
    e.i(f"v_add_u32 v{V_XR}, s{T}, v14")
    for n in range(1, 4):
        e.i(f"v_xor_b32 v{V_XR+n}, {32*n}, v{V_XR}")
    for i in range(48):
        e.i(f"v_mov_b32 v{ACCQ+i}, 0")

def b1_reads(e, n):
    s = WF + 12 * (n & 1)
    e.i(f"ds_read_b128 {vr(XF+4*(n&1),4)}, v{V_XR+4+n}")
    for j in range(2):
        e.i(f"ds_read_b64_tr_b16 {vr(s+2*j,2)}, v{V_WTR+2} offset:{n*3072 + j*768}")
    for j in range(2):
        e.i(f"ds_read_b64_tr_b16 {vr(s+4+2*j,2)}, v{V_WTR+2} offset:{n*3072 + j*768 + 64}")
    for j in range(2):
        e.i(f"ds_read_b64_tr_b16 {vr(s+8+2*j,2)}, v{V_WTR+3} offset:{n*3072 + j*768}")

def b1_mfma(e, n):
    s = WF + 12 * (n & 1)
    x = vr(XF+4*(n&1), 4)
    e.i(f"v_mfma_f32_32x32x16_bf16 {vr(ACCQ,16)}, {vr(s,4)}, {x}, {vr(ACCQ,16)}")
    e.i(f"v_mfma_f32_32x32x16_bf16 {vr(ACCK,16)}, {vr(s+4,4)}, {x}, {vr(ACCK,16)}")
    e.i(f"v_mfma_f32_32x32x16_bf16 {vr(ACCV,16)}, {x}, {vr(s+8,4)}, {vr(ACCV,16)}")

def b1_loop(e, cfg):
    e.i(f"s_mov_b32 s{S_JJ}, 0")
    e.i(f"s_mov_b32 s{S_SLC}, {L_RING}")
    e.label("L_b1_loop")
    e.i(f"s_cmp_eq_u32 s{S_JJ}, 6")
    e.i("s_cbranch_scc1 L_b1_w0")
    e.i("s_waitcnt vmcnt(7)")
    e.i("s_branch L_b1_w1")
    e.label("L_b1_w0")
    e.i("s_waitcnt vmcnt(0)")
    e.label("L_b1_w1")
    if cfg.stamps:
        e.i(f"{'s_memrealtime' if cfg.realtime else 's_memtime'} s[{S_TS}:{S_TS+1}]")
        e.i(f"s_add_u32 m0, s{S_JJ}, 24")
        e.i("s_waitcnt lgkmcnt(0)")
        e.i(f"v_writelane_b32 v250, s{S_TS}, m0")
    e.i("s_barrier")
    for n in range(4):
        e.i(f"v_add_u32 v{V_XR+4+n}, s{S_SLC}, v{V_XR+n}")
    e.i(f"v_add_u32 v{V_WTR+2}, s{S_SLC}, v{V_WTR}")
    e.i(f"v_add_u32 v{V_WTR+3}, s{S_SLC}, v{V_WTR+1}")
    b1_reads(e, 0)
    e.i(f"s_cmp_lg_u32 s{S_JJ}, 1")
    e.i("s_cbranch_scc1 L_b1_nopub")
    get_nonce(e, cfg)
    publish(e, cfg, FL_A1, [f"s_mov_b32 s{S_T0}, s2"], tmp=24)
    e.label("L_b1_nopub")
    e.i(f"s_cmp_ge_u32 s{S_JJ}, 5")
    e.i("s_cbranch_scc1 L_b1_noissue")
    b1_issue(e)
    e.label("L_b1_noissue")
    if cfg.stamps:
        e.i(f"{'s_memrealtime' if cfg.realtime else 's_memtime'} s[{S_TS}:{S_TS+1}]")
        e.i(f"s_add_u32 m0, s{S_JJ}, 32")
        e.i("s_waitcnt lgkmcnt(0)")
        e.i(f"v_writelane_b32 v250, s{S_TS}, m0")
    for n in range(4):
        if n + 1 < 4:
            b1_reads(e, n + 1)
            e.i("s_waitcnt lgkmcnt(7)")
        else:
            e.i("s_waitcnt lgkmcnt(0)")
        b1_mfma(e, n)
    e.i(f"s_add_u32 s{S_SLC}, s{S_SLC}, {SLOT}")
    e.i(f"s_cmp_eq_u32 s{S_SLC}, {3*SLOT + L_RING}")
    e.i(f"s_cselect_b32 s{S_SLC}, {L_RING}, s{S_SLC}")
    e.i(f"s_add_u32 s{S_JJ}, s{S_JJ}, 1")
    e.i(f"s_cmp_lt_u32 s{S_JJ}, 7")
    e.i("s_cbranch_scc1 L_b1_loop")

def b1_epilogue(e, cfg):
    T = S_T0
    e.c("B1 epilogue")
    e.i(f"s_mov_b32 s{S_MHH}, 0")
    e.i(f"s_mov_b32 s{S_MHH+1}, -1")
    m = (1 << 0) | (1 << 4) | (1 << 16) | (1 << 20)
    e.i(f"s_mov_b32 s{S_MONE}, {m}")
    e.i(f"s_mov_b32 s{S_MONE+1}, {m}")
    e.i(f"s_mov_b32 s{T+2}, {f2u(QSCALE)}")
    e.i(f"v_mov_b32 v14, 0x3f803f80")
    e.i(f"s_lshl_b32 s{T}, s{S_H}, 18")
    e.i(f"s_lshl_b32 s{T+1}, s{S_R}, 2")
    e.i(f"s_add_u32 s{T+1}, s{T+1}, s{S_W}")
    e.i(f"s_lshl_b32 s{T+1}, s{T+1}, 12")
    e.i(f"s_add_u32 s{T}, s{T}, s{T+1}")
    if WS_KV: e.i(f"s_add_u32 s{T}, s{T}, {WS_KV}")
    e.i(f"s_lshl_b32 s{T+1}, s{S_W}, 11")
    e.i(f"s_add_u32 s{T+1}, s{T+1}, {L_Q}")
    e.i(f"v_add_u32 v3, s{T+1}, v{V_L16}")
    e.i("s_nop 4")
    for m_ in range(8):
        e.i(f"v_cvt_pk_bf16_f32 v{KVB+m_}, v{ACCK+2*m_}, v{ACCK+2*m_+1}")
    for m_ in range(8):
        e.i(f"v_cvt_pk_bf16_f32 v{KVB+8+m_}, v{ACCV+2*m_}, v{ACCV+2*m_+1}")
    for m_ in (6, 7):
        e.i(f"v_cndmask_b32 v{KVB+m_}, v{KVB+m_}, v14, s[{S_MHH}:{S_MHH+1}]")
    for m_ in range(8):
        e.i(f"v_cndmask_b32 v{KVB+8+m_}, v{KVB+8+m_}, v14, s[{S_MONE}:{S_MONE+1}]")
    for f in range(4):
        e.i(f"buffer_store_dwordx4 {vr(KVB+4*f,4)}, v{V_L16}, {rs(R_WS)}, s{T} offen offset:{1024*f} sc1")
    QP = 16
    for i in range(16):
        e.i(f"v_mul_f32 v{ACCQ+i}, s{T+2}, v{ACCQ+i}")
    for m_ in range(8):
        e.i(f"v_cvt_pk_bf16_f32 v{QP+m_}, v{ACCQ+2*m_}, v{ACCQ+2*m_+1}")
    for m_ in (6, 7):
        e.i(f"v_cndmask_b32 v{QP+m_}, v{QP+m_}, 0, s[{S_MHH}:{S_MHH+1}]")
    e.i(f"ds_write_b128 v3, {vr(QP,4)}")
    e.i(f"ds_write_b128 v3, {vr(QP+4,4)} offset:1024")

def a2_dload(e, cfg):
    e.i(f"s_min_u32 s{S_T0}, s2, 223")
    e.i(f"s_lshl_b32 s{S_T0}, s{S_T0}, 2")
    e.i(f"s_load_dword s{S_D2}, s[{S_DP}:{S_DP+1}], s{S_T0}")

def a2_hstage(e, cfg):
    T = S_T0
    e.c("A2: stage h into LDS (with h0 += D), zero pads")
    e.i(f"s_lshr_b32 s{T}, s{S_W}, 1")
    e.i(f"s_lshl_b32 s{T+1}, s{S_D2}, 16")
    e.i(f"s_and_b32 s{T+2}, s{S_D2}, 0xffff0000")
    e.i(f"s_cmp_eq_u32 s{T}, 0")
    e.i(f"s_cselect_b32 s{T+1}, s{T+1}, s{T+2}")
    e.i(f"v_lshlrev_b32 v3, 16, v{HREG}")
    e.i(f"v_add_f32 v3, s{T+1}, v3")
    e.i(f"v_cvt_pk_bf16_f32 v3, v3, v3")
    e.i(f"s_mov_b32 s{T+2}, 0xffff")
    e.i(f"v_bfi_b32 v3, s{T+2}, v3, v{HREG}")
    e.i(f"s_and_b32 s{T+2}, s{S_W}, 1")
    e.i(f"s_xor_b32 s{T+4}, s{T+2}, 1")
    e.i(f"s_mov_b32 s{T+5}, 0")
    e.i(f"v_cndmask_b32 v{HREG}, v{HREG}, v3, s[{T+4}:{T+5}]")
    e.i(f"s_mul_i32 s{T+1}, s{T}, {H_CH}")
    e.i(f"s_add_u32 s{T+1}, s{T+1}, {L_H}")
    e.i(f"v_add_u32 v13, s{T+1}, v{V_L16}")
    e.i(f"s_lshl_b32 s{T+2}, s{T+2}, 11")
    e.i(f"s_add_u32 s{T+2}, s{T+2}, 64")
    e.i(f"v_add_u32 v3, s{T+2}, v13")
    e.i(f"ds_write_b128 v3, {vr(HREG,4)}")
    e.i(f"ds_write_b128 v3, {vr(HREG+4,4)} offset:1024")
    for i in range(4): e.i(f"v_mov_b32 v{76+i}, 0")
    e.i(f"s_mul_i32 s{T+1}, s{T}, {X_CH}")
    e.i(f"s_add_u32 s{T+1}, s{T+1}, {L_X}")
    e.i(f"v_add_u32 v14, s{T+1}, v{V_L16}")
    e.i(f"s_mov_b64 exec, 0xf")
    e.i(f"ds_write_b128 v13, {vr(76,4)}")
    e.i(f"s_mov_b32 exec_lo, -1")
    e.i(f"s_mov_b32 exec_hi, 0xf")
    e.i(f"ds_write_b128 v14, {vr(76,4)}")
    e.i(f"s_mov_b64 exec, -1")

CACC = 64
V_HA = 204
V_XA = 205
QPF = 224
V_A3OFF = 232
def a3_qaddr(e, cfg):
    T = S_T0
    e.c("A3 addresses: row = 64 rb + 16 w + 8 it + (l>>3), piece l&7")
    e.i(f"s_lshl_b32 s{T}, s{S_RB}, 6")
    e.i(f"s_lshl_b32 s{T+1}, s{S_W}, 4")
    e.i(f"s_add_u32 s{T}, s{T}, s{T+1}")
    e.i(f"s_mul_i32 s{T+1}, s{T}, 896")
    e.i(f"s_mul_i32 s{T+2}, s{T}, 1792")
    e.i(f"s_lshl_b32 s{T+3}, s{S_CB}, 7")
    e.i(f"s_add_u32 s{T+1}, s{T+1}, s{T+3}")
    e.i(f"s_add_u32 s{T+2}, s{T+2}, s{T+3}")
    e.i(f"v_lshrrev_b32 v3, 3, v{V_LANE}")
    e.i(f"v_and_b32 v13, 7, v{V_LANE}")
    e.i(f"v_lshlrev_b32 v13, 4, v13")
    e.i(f"v_mul_u32_u24 v14, 896, v3")
    e.i(f"v_add3_u32 v{V_A3OFF}, v14, v13, s{T+1}")
    e.i(f"v_mul_u32_u24 v14, 1792, v3")
    e.i(f"v_add3_u32 v{V_A3OFF+1}, v14, v13, s{T+2}")

V_WO = 234
def wo_addr(e, cfg):
    T = S_T0
    e.i(f"v_lshrrev_b32 v3, 3, v{V_LANE}")
    e.i(f"v_mul_u32_u24 v3, 896, v3")
    e.i(f"v_bfe_u32 v13, v{V_LANE}, 2, 1")
    e.i(f"v_bfe_u32 v14, v{V_LANE}, 4, 1")
    e.i(f"v_xor_b32 v13, v13, v14")
    e.i(f"v_lshlrev_b32 v13, 6, v13")
    e.i(f"v_and_b32 v14, 3, v{V_LANE}")
    e.i(f"v_lshlrev_b32 v14, 4, v14")
    e.i(f"v_add3_u32 v3, v3, v13, v14")
    e.i(f"s_lshl_b32 s{T}, s{S_CB}, 7")
    e.i(f"v_add_u32 v{V_WO}, s{T}, v3")

def wo_first(e, cfg):
    T = S_T0
    e.i(f"s_cmp_eq_u32 s{S_W}, 0")
    e.i(f"s_cselect_b32 s{T+2}, 896, 0")
    e.i(f"v_subrev_u32 v4, s{T+2}, v{V_WO}")
    e.i(f"s_mul_i32 s{T+1}, s{S_W}, 7168")
    e.i(f"s_sub_u32 s{T+1}, s{T+1}, 896")
    e.i(f"s_max_i32 s{T+1}, s{T+1}, 0")
    e.i(f"s_lshl_b32 s{T}, s{S_W}, 10")
    e.i(f"s_add_u32 m0, s{T}, {L_WO}")
    e.i("s_nop 0")
    e.i(f"buffer_load_dwordx4 v4, {rs(R_WO)}, s{T+1} offen lds")
    e.i(f"s_mov_b32 m0, {L_WO + 56*1024}")
    e.i(f"s_mov_b32 s{T+1}, {56*7168 - 896}")
    e.i(f"buffer_load_dwordx4 v{V_WO}, {rs(R_WO)}, s{T+1} offen lds")
    e.i(f"s_mov_b32 s{S_WOI}, s{S_W}")

def wo_next(e):
    T = S_T0
    e.i(f"s_add_u32 s{S_WOI}, s{S_WOI}, 4")
    e.i(f"s_min_u32 s{S_WOI}, s{S_WOI}, 55")
    e.i(f"s_mul_i32 s{T+1}, s{S_WOI}, 7168")
    e.i(f"s_sub_u32 s{T+1}, s{T+1}, 896")
    e.i(f"s_lshl_b32 s{T}, s{S_WOI}, 10")
    e.i(f"s_add_u32 m0, s{T}, {L_WO}")
    e.i("s_nop 0")
    e.i(f"buffer_load_dwordx4 v{V_WO}, {rs(R_WO)}, s{T+1} offen lds")

def a2_main(e, cfg):
    T = S_T0
    e.c("==== A2 conv ====")
    e.i(f"s_lshl_b32 s{T}, s2, 1")
    e.i(f"s_bfe_u32 s{T}, s{T}, 0x20004")
    e.i(f"s_lshl_b32 s{T+1}, s{S_CB}, 5")
    e.i(f"s_and_b32 s{T+2}, s{S_W}, 1")
    e.i(f"s_lshl_b32 s{T+2}, s{T+2}, 4")
    e.i(f"s_add_u32 s{T+1}, s{T+1}, s{T+2}")
    e.i(f"s_lshl_b32 s{T+1}, s{T+1}, 2")
    e.i(f"s_add_u32 s{T}, s{T}, s{T+1}")
    e.i(f"v_and_b32 v7, 15, v{V_LANE}")
    e.i(f"v_lshlrev_b32 v7, 2, v7")
    e.i(f"v_add_u32 v7, s{T}, v7")
    poll(e, cfg, FL_A1, 7, "a1")
    stamp(e, cfg, 6)
    e.i(f"s_lshr_b32 s{T}, s{S_W}, 1")
    e.i(f"s_lshl_b32 s{T+1}, s2, 1")
    e.i(f"s_add_u32 s{T+1}, s{T}, s{T+1}")
    e.i(f"s_lshl_b32 s{T+1}, s{T+1}, 12")
    e.i(f"s_and_b32 s{T+2}, s{S_W}, 1")
    e.i(f"s_lshl_b32 s{T+3}, s{T+2}, 11")
    e.i(f"s_add_u32 s{T+1}, s{T+1}, s{T+3}")
    e.i(f"s_add_u32 s{T+1}, s{T+1}, {WS_XT}")
    e.i(f"buffer_load_dwordx4 v[16:19], v{V_L16}, {rs(R_WS)}, s{T+1} offen sc1")
    e.i(f"buffer_load_dwordx4 v[20:23], v{V_L16}, {rs(R_WS)}, s{T+1} offen offset:1024 sc1")
    e.i(f"buffer_load_dwordx4 {vr(QPF,4)}, v{V_A3OFF}, {rs(R_Q)}, 0 offen")
    e.i(f"s_mov_b32 s{T+1}, 7168")
    e.i(f"buffer_load_dwordx4 {vr(QPF+4,4)}, v{V_A3OFF}, {rs(R_Q)}, s{T+1} offen")
    wo_first(e, cfg)
    e.i(f"s_lshr_b32 s{T}, s{S_W}, 1")
    e.i(f"s_and_b32 s{T+2}, s{S_W}, 1")
    e.i(f"s_mul_i32 s{T+1}, s{T}, {X_CH}")
    e.i(f"s_mul_i32 s{T+3}, s{T+2}, {2048+256}")
    e.i(f"s_add_u32 s{T+1}, s{T+1}, s{T+3}")
    e.i(f"s_add_u32 s{T+1}, s{T+1}, {L_X + 512 + 64}")
    e.i(f"v_lshrrev_b32 v3, 4, v{V_LANE}")
    e.i(f"v_lshlrev_b32 v3, 5, v3")
    e.i(f"v_add3_u32 v3, v3, v{V_L16}, s{T+1}")
    e.i(f"v_bfe_u32 v8, v{V_LANE}, 4, 1")
    e.i(f"v_lshrrev_b32 v9, 5, v{V_LANE}")
    e.i(f"v_bfe_u32 v10, v{V_LANE}, 2, 2")
    e.i(f"v_and_b32 v11, 3, v{V_LANE}")
    e.i(f"v_lshlrev_b32 v12, 2, v8")
    e.i(f"v_add_u32 v12, v12, v11")
    e.i(f"v_lshl_add_u32 v13, v9, 3, v12")
    e.i(f"v_add_u32 v13, v13, v10")
    e.i(f"s_mul_i32 s{T+1}, s{T}, {H_CH}")
    e.i(f"s_add_u32 s{T+1}, s{T+1}, {L_H + 64 - 56}")
    e.i(f"v_lshlrev_b32 v13, 3, v13")
    e.i(f"v_add_u32 v{V_HA}, s{T+1}, v13")
    e.i(f"v_sub_u32 v12, v12, v9")
    e.i(f"v_lshlrev_b32 v12, 5, v12")
    e.i(f"v_lshlrev_b32 v10, 2, v10")
    e.i(f"v_sub_u32 v12, v12, v10")
    e.i(f"v_add_u32 v12, 28, v12")
    e.i(f"s_mul_i32 s{T+1}, s{T}, {X_CH}")
    e.i(f"s_add_u32 s{T+1}, s{T+1}, {L_X}")
    for par in range(2):
        for j in range(2):
            d = V_XA + 2*par + j
            e.i(f"v_add_u32 v13, {64*par - 16*j}, v12")
            e.i(f"v_ashrrev_i32 v14, 7, v13")
            e.i(f"v_lshlrev_b32 v14, 5, v14")
            e.i(f"v_lshl_add_u32 v13, v13, 1, v14")
            e.i(f"v_add_u32 v{d}, s{T+1}, v13")
    e.i("s_waitcnt vmcnt(4)")
    e.i(f"ds_write_b128 v3, v[16:19]")
    e.i(f"ds_write_b128 v3, v[20:23] offset:{1024+128}")
    e.i("s_waitcnt lgkmcnt(0)")
    e.i("s_barrier")
    stamp(e, cfg, 7)
    e.i(f"s_and_b32 s{T}, s{S_W}, 1")
    e.i(f"s_cmp_eq_u32 s{T}, 0")
    e.i("s_cbranch_scc0 L_conv_setB")
    conv_set(e, [0, 1, 6, 7])
    e.i("s_branch L_conv_post")
    e.label("L_conv_setB")
    conv_set(e, [2, 3, 4, 5])
    e.label("L_conv_post")
    stamp(e, cfg, 8)
    conv_post(e, cfg)

def conv_set(e, tiles):
    nmax = 4 * max(tiles) + 3
    steps = [[(t, T) for t, T in enumerate(tiles) if n <= 4*T + 3] for n in range(nmax + 1)]
    reads = []
    loaded = set()
    need_idx = []
    for n in range(nmax + 1):
        for j in range(2):
            reads.append((("H", n), f"ds_read_b64_tr_b16 {ar(128+4*n+2*j,2)}, v{V_HA} offset:{128*n + 32*j}"))
        for t, T in steps[n]:
            v = 4*T - n
            if v in loaded: continue
            loaded.add(v)
            vp = v + 4
            q, par = vp >> 1, vp & 1
            for j in range(2):
                reads.append((("X", v), f"ds_read_b64_tr_b16 {ar(4*(vp-1)+2*j,2)}, v{V_XA+2*par+j} offset:{288*q}"))
        need_idx.append(len(reads) - 1)
    AHEAD = 14
    issued = 0
    first = {t: True for t in range(4)}
    for n in range(nmax + 1):
        target = min(len(reads), need_idx[n] + 1 + AHEAD)
        while issued < target:
            e.i(reads[issued][1]); issued += 1
        younger = issued - 1 - need_idx[n]
        e.i(f"s_waitcnt lgkmcnt({min(younger, 15)})")
        for t, T in steps[n]:
            vp = 4*T - n + 4
            acc = vr(CACC + 16*t, 16)
            c = "0" if first[t] else acc
            first[t] = False
            e.i(f"v_mfma_f32_32x32x16_bf16 {acc}, {ar(4*(vp-1),4)}, {ar(128+4*n,4)}, {c}")
    for t, T in enumerate(tiles):
        e.i(f"s_mov_b32 s{S_T1+t}, {T}")

def conv_post(e, cfg):
    T = S_T0
    e.i(f"s_mov_b32 s{S63}, 0")
    e.i(f"s_mov_b32 s{S63+1}, 0x80000000")
    e.i(f"s_lshr_b32 s{T}, s{S_W}, 1")
    e.i(f"s_mul_i32 s{T}, s{T}, 144")
    e.i(f"s_add_u32 s{T}, s{T}, {L_CARRY}")
    for t in range(4):
        e.i(f"s_lshl_b32 s{T+1}, s{S_T1+t}, 4")
        e.i(f"s_add_u32 s{T+1}, s{T+1}, s{T}")
        e.i(f"v_mov_b32 v{24+t}, s{T+1}")
    e.i(f"v_mov_b32 v28, s{T}")
    e.i("v_mov_b32 v29, 0")
    e.i("s_nop 1")
    R = lambda t, g, i: CACC + 16*t + 4*g + i
    EX = 16
    for t in range(4):
        e.i(f"v_add_f32_dpp v{EX+t}, v{R(t,3,3)}, v{R(t,3,2)} wave_ror:1 row_mask:0xf bank_mask:0xf")
    e.i("s_nop 0")
    for t in range(4):
        e.i(f"v_add_f32_dpp v{EX+4+t}, v{EX+t}, v{R(t,3,1)} wave_ror:1 row_mask:0xf bank_mask:0xf")
    e.i(f"s_mov_b64 exec, s[{S63}:{S63+1}]")
    for t in range(4):
        e.i(f"ds_write_b32 v{24+t}, v{R(t,3,3)} offset:16")
        e.i(f"ds_write_b32 v{24+t}, v{EX+t} offset:20")
        e.i(f"ds_write_b32 v{24+t}, v{EX+4+t} offset:24")
    e.i("ds_write_b32 v28, v29")
    e.i("ds_write_b32 v28, v29 offset:4")
    e.i("ds_write_b32 v28, v29 offset:8")
    e.i("s_mov_b64 exec, -1")
    e.i("s_waitcnt lgkmcnt(0)")
    e.i("s_barrier")
    PU, P1, P2 = 32, 36, 40
    for t in range(4):
        e.i(f"ds_read_b32 v{PU+t}, v{24+t}")
        e.i(f"ds_read_b32 v{P1+t}, v{24+t} offset:4")
        e.i(f"ds_read_b32 v{P2+t}, v{24+t} offset:8")
    e.i(f"s_lshr_b32 s{T}, s{S_W}, 1")
    e.i(f"s_mul_i32 s{T}, s{T}, {X_CH}")
    e.i(f"s_add_u32 s{T}, s{T}, {L_Y}")
    e.i(f"v_lshlrev_b32 v3, 1, v{V_LANE}")
    for t in range(4):
        e.i(f"s_lshl_b32 s{T+1}, s{S_T1+t}, 9")
        e.i(f"s_add_u32 s{T+1}, s{T+1}, s{T}")
        e.i(f"v_add_u32 v{28+t}, s{T+1}, v3")
    e.i("s_waitcnt lgkmcnt(0)")
    SEL = 44
    m63 = f"s[{S63}:{S63+1}]"
    prevU = [PU+t for t in range(4)]
    prev1 = [P1+t for t in range(4)]
    prev2 = [P2+t for t in range(4)]
    for g in range(4):
        cur1 = [48 + 4*(g & 1) + t for t in range(4)]
        cur2 = [56 + 4*(g & 1) + t for t in range(4)]
        for t in range(4):
            e.i(f"v_cndmask_b32 v{SEL+t}, v{R(t,g,3)}, v{prevU[t]}, {m63}")
        for t in range(4):
            e.i(f"v_add_f32_dpp v{cur1[t]}, v{SEL+t}, v{R(t,g,2)} wave_ror:1 row_mask:0xf bank_mask:0xf")
        for t in range(4):
            e.i(f"v_cndmask_b32 v{SEL+t}, v{cur1[t]}, v{prev1[t]}, {m63}")
        for t in range(4):
            e.i(f"v_add_f32_dpp v{cur2[t]}, v{SEL+t}, v{R(t,g,1)} wave_ror:1 row_mask:0xf bank_mask:0xf")
        for t in range(4):
            e.i(f"v_cndmask_b32 v{SEL+t}, v{cur2[t]}, v{prev2[t]}, {m63}")
        for t in range(4):
            e.i(f"v_add_f32_dpp v{R(t,g,0)}, v{SEL+t}, v{R(t,g,0)} wave_ror:1 row_mask:0xf bank_mask:0xf")
        prevU = [R(t,g,3) for t in range(4)]
        prev1 = cur1
        prev2 = cur2
        if g & 1:
            gp = g >> 1
            for t in range(4):
                e.i(f"v_cvt_pk_bf16_f32 v{16+2*t+gp}, v{R(t,g-1,0)}, v{R(t,g,0)}")
            for t in range(4):
                e.i(f"ds_write_b16 v{28+t}, v{16+2*t+gp} offset:{256*gp}")
                e.i(f"ds_write_b16_d16_hi v{28+t}, v{16+2*t+gp} offset:{256*gp+128}")
    e.i(f"s_lshr_b32 s{T+2}, s{S_W}, 1")
    e.i(f"s_lshl_b32 s{T+3}, s2, 1")
    e.i(f"s_add_u32 s{T+3}, s{T+3}, s{T+2}")
    e.i(f"s_lshl_b32 s{T+3}, s{T+3}, 12")
    e.i(f"s_add_u32 s{T+3}, s{T+3}, {WS_YT}")
    for pz in range(2):
        e.i(f"s_lshl_b32 s{T+1}, s{S_T1+2*pz}, 9")
        e.i(f"s_add_u32 s{T+4+pz}, s{T+1}, s{T+3}")
        e.i(f"s_add_u32 s{T+1}, s{T+1}, s{T}")
        e.i(f"v_add_u32 v{32+pz}, s{T+1}, v{V_L16}")
    e.i("s_waitcnt lgkmcnt(0)")
    for pz in range(2):
        e.i(f"ds_read_b128 {vr(48+4*pz,4)}, v{32+pz}")
    e.i("s_waitcnt lgkmcnt(1)")
    e.i(f"buffer_store_dwordx4 {vr(48,4)}, v{V_L16}, {rs(R_WS)}, s{T+4} offen sc1")
    e.i("s_waitcnt lgkmcnt(0)")
    e.i(f"buffer_store_dwordx4 {vr(52,4)}, v{V_L16}, {rs(R_WS)}, s{T+5} offen sc1")

SB = [16, 32]
PB = [48, 56]
OB = 64
QB = 128
def kvbuf(b): return KVB + 16 * (b & 3)

def kv_load(e, b, advance=True, wo=True):
    if wo: wo_next(e)
    if advance:
        e.i(f"s_add_u32 s{S_KV+1}, s{S_KV+1}, 1")
        e.i(f"s_and_b32 s{S_KV+1}, s{S_KV+1}, 15")
    e.i(f"s_lshl_b32 s{S_KV+2}, s{S_KV+1}, 14")
    e.i(f"s_add_u32 s{S_KV+2}, s{S_KV+2}, s{S_KV}")
    for f in range(4):
        e.i(f"buffer_load_dwordx4 {vr(kvbuf(b)+4*f,4)}, v{V_L16}, {rs(R_WS)}, s{S_KV+2} offen offset:{1024*f} sc1")

def slot(e, j, s_next, pv, pre=None, loads=None):
    mf = []
    if s_next is not None:
        kb, jn = s_next
        Sx = vr(SB[jn & 1], 16)
        mf.append(f"v_mfma_f32_32x32x16_bf16 {Sx}, {vr(kvbuf(kb),4)}, {vr(QB+8*jn,4)}, 0")
        mf.append(f"v_mfma_f32_32x32x16_bf16 {Sx}, {vr(kvbuf(kb)+4,4)}, {vr(QB+8*jn+4,4)}, {Sx}")
    if pv is not None:
        vb, jp, first = pv
        O = vr(OB + 16*jp, 16)
        P = PB[jp & 1]
        mf.append(f"v_mfma_f32_32x32x16_bf16 {O}, {vr(kvbuf(vb)+8,4)}, {vr(P,4)}, {'0' if first else O}")
        mf.append(f"v_mfma_f32_32x32x16_bf16 {O}, {vr(kvbuf(vb)+12,4)}, {vr(P+4,4)}, {O}")
    groups = []
    if j is not None:
        Sx = SB[j & 1]; P = PB[j & 1]
        for g in range(4):
            gl = [f"v_exp_f32 v{Sx+4*g+i}, v{Sx+4*g+i}" for i in range(4)]
            gl.append(f"v_cvt_pk_bf16_f32 v{P+2*g}, v{Sx+4*g}, v{Sx+4*g+1}")
            gl.append(f"v_cvt_pk_bf16_f32 v{P+2*g+1}, v{Sx+4*g+2}, v{Sx+4*g+3}")
            groups.append(gl)
    if pre:
        for ln in pre: e.i(ln)
    n = max(len(mf), len(groups))
    for k in range(n):
        if k < len(mf): e.i(mf[k])
        if loads is not None and k == 2:
            loads()
        if k < len(groups):
            for ln in groups[k]: e.i(ln)

YL = 236
def b2_main(e, cfg):
    T = S_T0
    e.c("==== B2 attention ====")
    e.i(f"s_lshl_b32 s{T}, s{S_H}, 6")
    e.i(f"s_add_u32 s{T}, s{T}, s{S_W}")
    e.i(f"v_and_b32 v7, 15, v{V_LANE}")
    e.i(f"v_lshlrev_b32 v7, 2, v7")
    e.i(f"v_add_u32 v7, s{T}, v7")
    e.i(f"v_add_u32 v3, {L_Q}, v{V_L16}")
    for j in range(4):
        for f in range(2):
            e.i(f"ds_read_b128 {vr(QB+8*j+4*f,4)}, v3 offset:{2048*j+1024*f}")
    poll(e, cfg, FL_B1, 7, "b1")
    if cfg.nosync: e.i("s_waitcnt vmcnt(0)")
    publish(e, cfg, FL_A2, [f"s_mov_b32 s{T}, s2"])
    stamp(e, cfg, 10)
    e.i(f"s_mov_b32 s{S_SLOW}, 0")
    e.i(f"s_lshl_b32 s{S_KV}, s{S_H}, 18")
    e.i(f"s_lshl_b32 s{T}, s{S_W}, 12")
    e.i(f"s_add_u32 s{S_KV}, s{S_KV}, s{T}")
    if WS_KV: e.i(f"s_add_u32 s{S_KV}, s{S_KV}, {WS_KV}")
    e.label("L_attn_start")
    e.i(f"s_mov_b32 s{S_KV+1}, s{S_R}")
    kv_load(e, 1); kv_load(e, 2); kv_load(e, 3)
    e.i("s_waitcnt lgkmcnt(0)")
    slot(e, None, (0, 0), None)
    e.i("s_nop 7")
    e.i("s_nop 3")
    slot(e, 0, (0, 1), None)
    slot(e, 1, (0, 2), (0, 0, True))
    slot(e, 2, (0, 3), (0, 1, True))
    slot(e, 3, (1, 0), (0, 2, True), pre=["s_waitcnt vmcnt(10)"])
    slot(e, 0, (1, 1), (0, 3, True))
    e.i(f"s_mov_b32 s{S_IT}, 0")
    e.i(".p2align 3")
    e.label("L_attn_loop")
    if cfg.stamps:
        e.i(f"{'s_memrealtime' if cfg.realtime else 's_memtime'} s[{S_TS}:{S_TS+1}]")
        e.i(f"s_add_u32 m0, s{S_IT}, 40")
        e.i("s_waitcnt lgkmcnt(0)")
        e.i(f"v_writelane_b32 v250, s{S_TS}, m0")
    for k in range(4):
        i = k + 1
        b, bn = i & 3, (i + 1) & 3
        slot(e, 1, (b, 2), (b, 0, False), loads=lambda: kv_load(e, (i + 3) & 3))
        slot(e, 2, (b, 3), (b, 1, False))
        slot(e, 3, (bn, 0), (b, 2, False), pre=["s_waitcnt vmcnt(10)"])
        slot(e, 0, (bn, 1), (b, 3, False))
        if k == 1:
            e.i(f"s_cmp_eq_u32 s{S_IT}, 3")
            e.i("s_cbranch_scc1 L_attn_tail")
    e.i(f"s_add_u32 s{S_IT}, s{S_IT}, 1")
    e.i("s_branch L_attn_loop")
    e.label("L_attn_tail")
    stamp(e, cfg, 44)
    e.i(f"s_lshr_b32 s{T}, s{S_RB}, 2")
    e.i(f"s_add_u32 s{T}, s{T}, 2")
    e.i(f"s_and_b32 s{T}, s{T}, 7")
    e.i(f"s_lshr_b32 s{T}, s{T}, 2")
    slot(e, 1, (3, 2), (3, 0, False))
    slot(e, 2, (3, 3), (3, 1, False))
    slot(e, 3, None, (3, 2, False))
    e.i("s_nop 1")
    slot(e, None, None, (3, 3, False))
    stamp(e, cfg, 45)
    e.i(f"s_lshl_b32 s{T+1}, s{S_CB}, 6")
    e.i(f"s_lshl_b32 s{T+2}, s{S_W}, 4")
    e.i(f"s_add_u32 s{T+1}, s{T+1}, s{T+2}")
    e.i(f"v_and_b32 v7, 15, v{V_LANE}")
    e.i(f"v_add_u32 v7, s{T+1}, v7")
    e.i(f"v_lshrrev_b32 v8, 1, v7")
    e.i(f"v_and_b32 v7, 1, v7")
    e.i(f"v_lshlrev_b32 v7, 1, v7")
    e.i(f"v_lshl_add_u32 v7, v8, 2, v7")
    e.i(f"v_add_u32 v7, s{T}, v7")
    e.i(f"s_cmp_ge_u32 s2, 224")
    e.i(f"s_cbranch_scc1 L_noy")
    poll(e, cfg, FL_A2, 7, "a2", tmp=8)
    e.i(f"s_lshl_b32 s{T}, s{S_CB}, 6")
    e.i(f"s_lshl_b32 s{T+1}, s{S_W}, 4")
    e.i(f"s_add_u32 s{T}, s{T}, s{T+1}")
    e.i(f"s_lshl_b32 s{T}, s{T}, 12")
    e.i(f"s_lshl_b32 s{T+1}, s{S_RB}, 7")
    e.i(f"s_add_u32 s{T}, s{T}, s{T+1}")
    e.i(f"s_add_u32 s{T}, s{T}, {WS_YT}")
    e.i(f"s_add_u32 s{T+1}, s{T}, {8*4096}")
    e.i(f"v_lshrrev_b32 v3, 3, v{V_LANE}")
    e.i(f"v_lshlrev_b32 v13, 12, v3")
    e.i(f"v_and_b32 v14, 7, v{V_LANE}")
    e.i(f"v_lshl_add_u32 v13, v14, 4, v13")
    e.i(f"buffer_load_dwordx4 {vr(YL,4)}, v13, {rs(R_WS)}, s{T} offen sc1")
    e.i(f"buffer_load_dwordx4 {vr(YL+4,4)}, v13, {rs(R_WS)}, s{T+1} offen sc1")
    e.label("L_noy")
    stamp(e, cfg, 11)
    e.i(f"s_mov_b32 s{T}, {f2u(2.0**-60)}")
    e.i(f"s_mov_b32 s{T+1}, {f2u(2.0**60)}")
    e.i(f"s_mov_b64 s[{T+2}:{T+3}], -1")
    for j in range(4):
        e.i(f"v_cmp_le_f32 vcc, s{T}, v{OB+16*j}")
        e.i(f"s_and_b64 s[{T+2}:{T+3}], s[{T+2}:{T+3}], vcc")
        e.i(f"v_cmp_ge_f32 vcc, s{T+1}, v{OB+16*j}")
        e.i(f"s_and_b64 s[{T+2}:{T+3}], s[{T+2}:{T+3}], vcc")
    e.i(f"s_cmp_eq_u64 s[{T+2}:{T+3}], -1")
    e.i(f"s_cselect_b32 s{T}, 0, 1")
    e.i(f"v_mov_b32 v3, s{T}")
    e.i(f"s_lshl_b32 s{T+1}, s{S_W}, 2")
    e.i(f"s_add_u32 s{T+1}, s{T+1}, {L_MISC}")
    e.i(f"v_mov_b32 v4, s{T+1}")
    e.i(f"ds_write_b32 v4, v3")
    for w in range(4):
        if w > 0: e.label(f"L_red_w{w}")
        if w < 3:
            e.i(f"s_cmp_lg_u32 s{S_W}, {w}")
            e.i(f"s_cbranch_scc1 L_red_w{w+1}")
        for j in range(4):
            if j == w: continue
            sl = j * 3 + ((w - j - 1) & 3)
            e.i(f"v_add_u32 v3, {L_RED + sl*4096}, v{V_L16}")
            for q4 in range(4):
                e.i(f"ds_write_b128 v3, {vr(OB+16*j+4*q4,4)} offset:{1024*q4}")
        for k in range(16):
            e.i(f"v_mov_b32 v{16+k}, v{OB+16*w+k}")
        if w < 3: e.i("s_branch L_red_done")
    e.label("L_red_done")
    e.i("s_waitcnt lgkmcnt(0)")
    e.i("s_barrier")
    e.i(f"v_mov_b32 v4, {L_MISC}")
    e.i(f"ds_read_b128 v[8:11], v4")
    e.i(f"s_mul_i32 s{T}, s{S_W}, {3*4096}")
    e.i(f"s_add_u32 s{T}, s{T}, {L_RED}")
    e.i(f"v_add_u32 v3, s{T}, v{V_L16}")
    for s_ in range(3):
        for q4 in range(4):
            e.i(f"ds_read_b128 {vr(64+16*s_+4*q4,4)}, v3 offset:{4096*s_+1024*q4}")
    e.i(f"s_lshl_b32 s{T}, s{S_R}, 2")
    e.i(f"s_add_u32 s{T}, s{T}, s{S_W}")
    e.i(f"s_lshl_b32 s{T}, s{T}, 4")
    e.i(f"s_add_u32 s{T}, s{T}, s{S_H}")
    e.i(f"s_lshl_b32 s{T}, s{T}, 11")
    e.i(f"s_add_u32 s{T+4}, s{T}, {WS_OF}")
    e.i("s_waitcnt lgkmcnt(12)")
    e.i("v_or_b32 v8, v8, v9")
    e.i("v_or3_b32 v8, v8, v10, v11")
    e.i("s_nop 0")
    e.i(f"v_readfirstlane_b32 s{T}, v8")
    e.i("s_nop 3")
    e.i(f"s_andn2_b32 s{T}, s{T}, s{S_SLOW}")
    e.i(f"s_cmp_lg_u32 s{T}, 0")
    e.i("s_cbranch_scc1 L_slow")
    for s_ in range(3):
        e.i(f"s_waitcnt lgkmcnt({8-4*s_})")
        for k in range(16):
            e.i(f"v_add_f32 v{16+k}, v{16+k}, v{64+16*s_+k}")
    e.i("v_rcp_f32 v3, v16")
    e.i("s_nop 0")
    for k in range(16):
        if k in (0, 8): continue
        e.i(f"v_mul_f32 v{16+k}, v{16+k}, v3")
    for m in range(8):
        if m in (0, 4):
            e.i(f"v_cvt_pk_bf16_f32 v{32+m}, 0, v{16+2*m+1}")
        else:
            e.i(f"v_cvt_pk_bf16_f32 v{32+m}, v{16+2*m}, v{16+2*m+1}")
    e.i(f"buffer_store_dwordx4 v[32:35], v{V_L16}, {rs(R_WS)}, s{T+4} offen sc1")
    e.i(f"buffer_store_dwordx4 v[36:39], v{V_L16}, {rs(R_WS)}, s{T+4} offen offset:1024 sc1")

def b2_slow(e, cfg):
    T = S_T0
    e.c("==== slow path: true row max ====")
    e.label("L_slow")
    e.i("s_waitcnt vmcnt(0) lgkmcnt(0)")
    M = 48
    for j in range(4): e.i(f"v_mov_b32 v{M+j}, 0xff800000")
    e.i(f"s_mov_b32 s{S_KV+1}, 0")
    e.label("L_slow_loop")
    e.i(f"s_lshl_b32 s{S_KV+2}, s{S_KV+1}, 14")
    e.i(f"s_add_u32 s{S_KV+2}, s{S_KV+2}, s{S_KV}")
    for f in range(2):
        e.i(f"buffer_load_dwordx4 {vr(KVB+4*f,4)}, v{V_L16}, {rs(R_WS)}, s{S_KV+2} offen offset:{1024*f} sc1")
    e.i("s_waitcnt vmcnt(0)")
    for j in range(4):
        e.i(f"v_mfma_f32_32x32x16_bf16 v[16:31], {vr(KVB,4)}, {vr(QB+8*j,4)}, 0")
        e.i(f"v_mfma_f32_32x32x16_bf16 v[16:31], {vr(KVB+4,4)}, {vr(QB+8*j+4,4)}, v[16:31]")
        e.i("s_nop 7"); e.i("s_nop 7")
        for k in range(0, 16, 2):
            e.i(f"v_max3_f32 v{M+j}, v{16+k}, v{17+k}, v{M+j}")
        e.i("s_nop 7")
    e.i(f"s_add_u32 s{S_KV+1}, s{S_KV+1}, 1")
    e.i(f"s_cmp_lt_u32 s{S_KV+1}, 16")
    e.i("s_cbranch_scc1 L_slow_loop")
    for j in range(4):
        e.i(f"v_mov_b32 v{52+j}, v{M+j}")
    e.i("s_nop 1")
    for j in range(4):
        e.i(f"v_permlane32_swap_b32 v{52+j}, v{M+j}")
    e.i("s_nop 1")
    for j in range(4):
        e.i(f"v_max_f32 v{M+j}, v{52+j}, v{M+j}")
    e.i("s_barrier")
    e.i(f"s_lshl_b32 s{T}, s{S_W}, 10")
    e.i(f"s_add_u32 s{T}, s{T}, {L_RED}")
    e.i(f"v_add_u32 v3, s{T}, v{V_L16}")
    e.i(f"ds_write_b128 v3, {vr(M,4)}")
    e.i("s_waitcnt lgkmcnt(0)")
    e.i("s_barrier")
    e.i(f"v_add_u32 v3, {L_RED}, v{V_L16}")
    for w in range(4):
        e.i(f"ds_read_b128 {vr(16+4*w,4)}, v3 offset:{1024*w}")
    e.i("s_waitcnt lgkmcnt(0)")
    for j in range(4):
        e.i(f"v_max3_f32 v{M+j}, v{16+j}, v{20+j}, v{24+j}")
        e.i(f"v_max_f32 v{M+j}, v{M+j}, v{28+j}")
    e.i(f"s_mov_b32 s{T}, 0xffff")
    for j in range(4):
        e.i(f"v_sub_f32 v16, 0, v{M+j}")
        e.i(f"v_cvt_pk_bf16_f32 v17, v16, v16")
        e.i(f"v_lshlrev_b32 v18, 16, v17")
        e.i(f"v_sub_f32 v16, v16, v18")
        e.i(f"v_cvt_pk_bf16_f32 v19, v16, v16")
        e.i(f"v_lshlrev_b32 v18, 16, v19")
        e.i(f"v_sub_f32 v16, v16, v18")
        e.i(f"v_bfi_b32 v17, s{T}, v17, v19")
        e.i(f"v_cvt_pk_bf16_f32 v18, v16, 0")
        e.i(f"v_cndmask_b32 v{QB+8*j+6}, v{QB+8*j+6}, v17, s[{S_MHH}:{S_MHH+1}]")
        e.i(f"v_cndmask_b32 v{QB+8*j+7}, v{QB+8*j+7}, v18, s[{S_MHH}:{S_MHH+1}]")
    e.i(f"s_mov_b32 s{S_SLOW}, 1")
    e.i(f"s_mov_b32 s{S_KV+1}, s{S_R}")
    kv_load(e, 0, advance=False, wo=False)
    e.i("s_waitcnt vmcnt(0)")
    e.i("s_barrier")
    e.i("s_branch L_attn_start")

def a3_main(e, cfg):
    T = S_T0
    e.c("==== A3: out_a = q * y ====")
    e.i(f"v_lshrrev_b32 v3, 3, v{V_LANE}")
    e.i(f"v_and_b32 v14, 7, v{V_LANE}")
    e.i(f"v_mul_u32_u24 v3, 144, v3")
    e.i(f"v_lshl_add_u32 v15, v14, 4, v3")
    e.i(f"s_mul_i32 s{T}, s{S_W}, {16*144}")
    e.i(f"s_add_u32 s{T+1}, s{T}, {L_A3}")
    e.i(f"v_add_u32 v3, s{T+1}, v15")
    e.i(f"s_add_u32 s{T+1}, s{T}, {L_A3R}")
    e.i(f"v_add_u32 v12, s{T+1}, v15")
    e.i(f"v_and_b32 v8, 15, v{V_LANE}")
    e.i(f"v_mul_u32_u24 v8, 144, v8")
    e.i(f"v_and_b32 v9, 0x30, v{V_LANE}")
    e.i(f"v_add3_u32 v8, v8, v9, s{T+1}")
    e.i(f"v_lshrrev_b32 v13, 4, v{V_LANE}")
    e.i(f"v_lshlrev_b32 v13, 3, v13")
    e.i(f"v_bfe_u32 v14, v{V_LANE}, 2, 2")
    e.i(f"v_add_u32 v13, v13, v14")
    e.i(f"v_mul_u32_u24 v13, 144, v13")
    e.i(f"v_and_b32 v14, 3, v{V_LANE}")
    e.i(f"v_lshlrev_b32 v14, 3, v14")
    e.i(f"s_lshl_b32 s{T}, s{S_W}, 5")
    e.i(f"s_add_u32 s{T}, s{T}, {L_A3}")
    e.i(f"v_add3_u32 v13, v13, v14, s{T}")
    e.i("s_waitcnt vmcnt(2)")
    e.i(f"ds_write_b128 v3, {vr(YL,4)}")
    e.i(f"ds_write_b128 v3, {vr(YL+4,4)} offset:{8*144}")
    e.i("s_waitcnt lgkmcnt(0)")
    e.i("s_barrier")
    for it in range(2):
        for jj in range(2):
            e.i(f"ds_read_b64_tr_b16 {vr(16+4*it+2*jj,2)}, v13 offset:{(32*it+4*jj)*144}")
    e.i("s_waitcnt lgkmcnt(2)")
    e.i(f"ds_write_b128 v8, v[16:19]")
    e.i("s_waitcnt lgkmcnt(1)")
    e.i(f"ds_write_b128 v8, v[20:23] offset:64")
    e.i("s_waitcnt lgkmcnt(0)")
    e.i(f"ds_read_b128 v[16:19], v12")
    e.i(f"ds_read_b128 v[20:23], v12 offset:{8*144}")
    e.i(f"s_mov_b32 s{T}, 0xffff0000")
    e.i("s_waitcnt vmcnt(0)")
    publish(e, cfg, FL_B2, [f"s_lshl_b32 s{S_T0}, s{S_H}, 4", f"s_add_u32 s{S_T0}, s{S_T0}, s{S_R}"], tmp=4)
    e.i(f"s_mov_b32 s{T}, 0xffff0000")
    e.i("s_waitcnt lgkmcnt(0)")
    for it in range(2):
        for m in range(4):
            y = 16 + 4*it + m; q = QPF + 4*it + m
            e.i(f"v_lshlrev_b32 v24, 16, v{y}")
            e.i(f"v_and_b32 v25, s{T}, v{y}")
            e.i(f"v_lshlrev_b32 v26, 16, v{q}")
            e.i(f"v_and_b32 v27, s{T}, v{q}")
            e.i(f"v_mul_f32 v24, v24, v26")
            e.i(f"v_mul_f32 v25, v25, v27")
            e.i(f"v_cvt_pk_bf16_f32 v{32+4*it+m}, v24, v25")
    e.i(f"buffer_store_dwordx4 v[32:35], v{V_A3OFF+1}, {rs(R_OUT)}, 0 offen")
    e.i(f"s_mov_b32 s{T}, {8*1792}")
    e.i(f"buffer_store_dwordx4 v[36:39], v{V_A3OFF+1}, {rs(R_OUT)}, s{T} offen")

def b3_main(e, cfg):
    T = S_T0
    e.c("==== B3: out projection ====")
    e.i(f"s_lshr_b32 s{T}, s{S_W}, 1")
    e.i(f"s_lshl_b32 s{T+1}, s{S_RB}, 1")
    e.i(f"s_add_u32 s{T+2}, s{T}, s{T+1}")
    e.i(f"s_and_b32 s{T+3}, s{S_W}, 1")
    e.i(f"s_lshl_b32 s{T+4}, s{T+3}, 9")
    e.i(f"s_add_u32 s{T+4}, s{T+4}, s{T+2}")
    e.i(f"v_and_b32 v7, 7, v{V_LANE}")
    e.i(f"v_lshlrev_b32 v7, 6, v7")
    e.i(f"v_add_u32 v7, s{T+4}, v7")
    poll(e, cfg, FL_B2, 7, "b2")
    stamp(e, cfg, 14)
    e.i(f"s_lshr_b32 s{T}, s{S_W}, 1")
    e.i(f"s_lshl_b32 s{T+1}, s{S_RB}, 1")
    e.i(f"s_add_u32 s{T+2}, s{T}, s{T+1}")
    e.i(f"s_and_b32 s{T+3}, s{S_W}, 1")
    e.i(f"s_lshl_b32 s{T+2}, s{T+2}, 15")
    e.i(f"s_lshl_b32 s{T+4}, s{T+3}, 14")
    e.i(f"s_add_u32 s{T+2}, s{T+2}, s{T+4}")
    e.i(f"s_add_u32 s{T+2}, s{T+2}, {WS_OF}")
    e.i(f"s_lshl_b32 s{T}, s{T}, 15")
    e.i(f"s_add_u32 s{T}, s{T}, s{T+4}")
    e.i(f"s_add_u32 s{T}, s{T}, {L_OF}")
    for u in range(16):
        e.i(f"s_add_u32 m0, s{T}, {1024*u}")
        if u == 0: e.i("s_nop 0")
        e.i(f"buffer_load_dwordx4 v{V_L16}, {rs(R_WS)}, s{T+2} offen sc1 lds")
        if u < 15: e.i(f"s_add_u32 s{T+2}, s{T+2}, 1024")
    e.i(f"v_lshrrev_b32 v8, 5, v{V_LANE}")
    e.i(f"v_mul_u32_u24 v8, 7, v8")
    e.i(f"v_bfe_u32 v9, v{V_LANE}, 2, 2")
    e.i(f"v_add_u32 v8, v8, v9")
    e.i(f"v_bfe_u32 v9, v{V_LANE}, 4, 1")
    e.i(f"v_lshlrev_b32 v9, 5, v9")
    e.i(f"v_and_b32 v10, 3, v{V_LANE}")
    e.i(f"v_lshl_add_u32 v9, v10, 3, v9")
    for f in range(2):
        e.i(f"v_add_u32 v10, {14*f}, v8")
        e.i(f"v_bfe_u32 v11, v10, 1, 1")
        e.i(f"v_xor_b32 v11, s{T+3}, v11")
        e.i(f"v_lshlrev_b32 v11, 6, v11")
        e.i(f"v_lshl_add_u32 v10, v10, 7, v11")
        e.i(f"v_add_u32 v{12+f}, v10, v9")
        if L_WO: e.i(f"v_add_u32 v{12+f}, {L_WO}, v{12+f}")
    e.i(f"s_lshr_b32 s{T}, s{S_W}, 1")
    e.i(f"s_lshl_b32 s{T}, s{T}, 15")
    e.i(f"s_add_u32 s{T}, s{T}, {L_OF}")
    e.i(f"v_add_u32 v15, s{T}, v{V_L16}")
    e.i(f"s_mul_i32 s{T}, s{S_W}, 2560")
    e.i(f"s_add_u32 s{T}, s{T}, {L_A3R}")
    e.i(f"v_and_b32 v8, 31, v{V_LANE}")
    e.i(f"v_mul_u32_u24 v8, 80, v8")
    e.i(f"v_lshrrev_b32 v9, 5, v{V_LANE}")
    e.i(f"v_lshlrev_b32 v9, 3, v9")
    e.i(f"v_add3_u32 v8, v8, v9, s{T}")
    e.i(f"v_lshrrev_b32 v9, 2, v{V_LANE}")
    e.i(f"v_mul_u32_u24 v10, 80, v9")
    e.i(f"v_and_b32 v11, 3, v{V_LANE}")
    e.i(f"v_lshlrev_b32 v11, 4, v11")
    e.i(f"v_add3_u32 v10, v10, v11, s{T}")
    e.i(f"s_lshl_b32 s{T}, s{S_RB}, 6")
    e.i(f"s_lshr_b32 s{T+2}, s{S_W}, 1")
    e.i(f"s_lshl_b32 s{T+2}, s{T+2}, 5")
    e.i(f"s_add_u32 s{T}, s{T}, s{T+2}")
    e.i(f"s_mul_i32 s{T}, s{T}, 1792")
    e.i(f"s_lshl_b32 s{T+2}, s{S_CB}, 7")
    e.i(f"s_lshl_b32 s{T+3}, s{T+3}, 6")
    e.i(f"s_add_u32 s{T}, s{T}, s{T+2}")
    e.i(f"s_add_u32 s{T}, s{T}, s{T+3}")
    e.i(f"s_add_u32 s{T}, s{T}, 896")
    e.i(f"v_mul_u32_u24 v9, 1792, v9")
    e.i(f"v_add3_u32 v14, v9, v11, s{T}")
    e.i("s_waitcnt vmcnt(0)")
    e.i("s_barrier")
    steps = [(h, f) for h in range(16) for f in range(2)]
    NB = 4
    def rd(k):
        h, f = steps[k]
        b = 32 + 8*(k % NB)
        for jj in range(2):
            e.i(f"ds_read_b64_tr_b16 {vr(b+2*jj,2)}, v{12+f} offset:{(28*h+4*jj)*128}")
        e.i(f"ds_read_b128 {vr(b+4,4)}, v15 offset:{1024*k}")
    for k in range(NB-1): rd(k)
    for k in range(32):
        if k + NB - 1 < 32: rd(k + NB - 1)
        nyl = 3 * min(NB - 1, 31 - k)
        e.i(f"s_waitcnt lgkmcnt({nyl})")
        b = 32 + 8*(k % NB)
        e.i(f"v_mfma_f32_32x32x16_bf16 v[16:31], {vr(b,4)}, {vr(b+4,4)}, {'0' if k == 0 else 'v[16:31]'}")
    e.i("s_nop 7"); e.i("s_nop 7")
    for m in range(8):
        e.i(f"v_cvt_pk_bf16_f32 v{48+m}, v{16+2*m}, v{17+2*m}")
    for g in range(4):
        e.i(f"ds_write_b64 v8, {vr(48+2*g,2)} offset:{16*g}")
    e.i("s_waitcnt lgkmcnt(0)")
    e.i(f"ds_read_b128 v[56:59], v10")
    e.i(f"ds_read_b128 v[60:63], v10 offset:{16*80}")
    e.i(f"s_mov_b32 s{T}, {16*1792}")
    e.i("s_waitcnt lgkmcnt(1)")
    e.i(f"buffer_store_dwordx4 v[56:59], v14, {rs(R_OUT)}, 0 offen")
    e.i("s_waitcnt lgkmcnt(0)")
    e.i(f"buffer_store_dwordx4 v[60:63], v14, {rs(R_OUT)}, s{T} offen")

def build(cfg):
    e = E()
    T = S_T0
    prologue(e, cfg)
    addr_early(e, cfg)
    if cfg.prefetch: l2_prefetch_addr(e, cfg)
    e.i("s_waitcnt lgkmcnt(0)")
    if cfg.stamps:
        e.i(f"v_writelane_b32 v250, s{S_TS}, 16")
    stamp(e, cfg, 17)
    a1_loads(e, cfg)
    if cfg.prefetch: l2_prefetch(e, cfg)
    a2_dload(e, cfg)
    e.i(f"s_mov_b32 s{S_SLI}, {L_RING}")
    b1_issue(e)
    b1_issue(e)
    stamp(e, cfg, 19)
    e.i(f"s_or_b32 s{T}, s2, s{S_W}")
    e.i("s_cbranch_scc1 L_nononce")
    e.i(f"s_memrealtime s[{S_NONCE}:{S_NONCE+1}]")
    e.i("s_waitcnt lgkmcnt(0)")
    e.i(f"s_or_b32 s{S_NONCE}, s{S_NONCE}, 1")
    e.i(f"v_mov_b32 v76, s{S_NONCE}")
    e.i(f"v_mov_b32 v77, s{S_NONCE+1}")
    e.i("v_mov_b32 v78, 0")
    e.i("s_mov_b64 exec, 1")
    e.i(f"buffer_store_dwordx2 v[76:77], v78, {rs(R_DBG)}, 0 offen sc1")
    e.i("s_mov_b64 exec, -1")
    e.label("L_nononce")
    a1_compute(e, cfg, 14 + (N_PF if cfg.prefetch else 0))
    nonce_early(e, cfg)
    h_loads(e, cfg)
    stamp(e, cfg, 1)
    b1_traddr(e, cfg)
    a3_qaddr(e, cfg)
    wo_addr(e, cfg)
    e.i(f"s_mov_b32 s{S_WOI}, s{S_W}")
    stamp(e, cfg, 21)
    b1_loop(e, cfg)
    stamp(e, cfg, 3)
    b1_epilogue(e, cfg)
    a2_hstage(e, cfg)
    e.i("s_waitcnt vmcnt(0)")
    publish(e, cfg, FL_B1, [f"s_lshl_b32 s{T}, s{S_H}, 4", f"s_add_u32 s{T}, s{T}, s{S_R}"])
    e.i("s_waitcnt lgkmcnt(0)")
    e.i("s_barrier")
    stamp(e, cfg, 4)
    if cfg.stop_after >= 2:
        e.i("s_cmp_ge_u32 s2, 224")
        e.i("s_cbranch_scc1 L_skipA2")
        a2_main(e, cfg)
        e.label("L_skipA2")
        stamp(e, cfg, 9)
    if cfg.stop_after >= 3:
        b2_main(e, cfg)
        stamp(e, cfg, 12)
    if cfg.stop_after >= 4:
        e.i("s_cmp_ge_u32 s2, 224")
        e.i("s_cbranch_scc1 L_pubonly")
        a3_main(e, cfg)
        stamp(e, cfg, 13)
        b3_main(e, cfg)
        e.i("s_branch L_fin")
        e.label("L_pubonly")
        e.i("s_waitcnt vmcnt(0)")
        publish(e, cfg, FL_B2, [f"s_lshl_b32 s{S_T0}, s{S_H}, 4", f"s_add_u32 s{S_T0}, s{S_T0}, s{S_R}"], tmp=4)
        e.label("L_fin")
    stamp(e, cfg, 15)
    if cfg.stamps:
        e.i(f"s_lshl_b32 s{T}, s2, 2")
        e.i(f"s_add_u32 s{T}, s{T}, s{S_W}")
        e.i(f"s_lshl_b32 s{T}, s{T}, 8")
        e.i(f"s_add_u32 s{T}, s{T}, {WS_TS}")
        e.i(f"v_lshlrev_b32 v3, 2, v{V_LANE}")
        e.i(f"buffer_store_dword v{V_TS}, v3, {rs(R_WS)}, s{T} offen")
    if cfg.span:
        e.i("s_waitcnt vmcnt(0)")
        e.i("s_memrealtime s[98:99]")
        e.i("s_waitcnt lgkmcnt(0)")
        e.i("s_not_b32 s100, s100")
        e.i("v_mov_b32 v4, s100")
        e.i("v_mov_b32 v5, s98")
        e.i("v_mov_b32 v6, 16")
        e.i("s_mov_b64 exec, 1")
        e.i(f"buffer_atomic_umax v4, v6, {rs(R_DBG)}, 0 offen")
        e.i(f"buffer_atomic_umax v5, v6, {rs(R_DBG)}, 0 offen offset:4")
        e.i("s_mov_b64 exec, -1")
    e.label("L_end")
    e.i("s_endpgm")
    if cfg.stop_after >= 3:
        b2_slow(e, cfg)
        e.i("s_endpgm")
    return e

HEADER = f"""; Kernarg layout (96 bytes): A_q A_k A_v A_shift_k A_ssm_k A_ssm_D B_x B_wqkv B_wo out debug ws
; @launch grid=(256,1,1) block=(256,1,1) lds={LDS_SIZE}
.amdgcn_target "amdgcn-amd-amdhsa--gfx950"
.text
.globl {KNAME}
.p2align 8
.type {KNAME},@function
{KNAME}:
"""
FOOTER = f"""
.section .rodata,"a"
.p2align 6
.amdhsa_kernel {KNAME}
  .amdhsa_next_free_vgpr 512
  .amdhsa_next_free_sgpr 102
  .amdhsa_accum_offset 256
  .amdhsa_group_segment_fixed_size 0
  .amdhsa_kernarg_size 96
  .amdhsa_user_sgpr_count 2
  .amdhsa_user_sgpr_kernarg_segment_ptr 1
  .amdhsa_system_sgpr_workgroup_id_x 1
  .amdhsa_float_denorm_mode_32 3
.end_amdhsa_kernel
"""

if __name__ == "__main__":
    import argparse
    ap = argparse.ArgumentParser()
    ap.add_argument("-o", default=f"cdna_kernels/{NAME}.s")
    ap.add_argument("--stop", type=int, default=99)
    ap.add_argument("--stamps", action="store_true")
    ap.add_argument("--nosync", action="store_true")
    ap.add_argument("--realtime", action="store_true")
    ap.add_argument("--noprefetch", action="store_true")
    ap.add_argument("--span", action="store_true")
    a = ap.parse_args()
    cfg = Cfg(); cfg.stop_after = a.stop; cfg.stamps = a.stamps; cfg.nosync = a.nosync; cfg.realtime = a.realtime; cfg.prefetch = not a.noprefetch; cfg.span = a.span
    e = build(cfg)
    open(a.o, "w").write(HEADER + e.text() + FOOTER)
    print("wrote", a.o, len(e.lines), "lines")
```

```python
import sys, math, struct

NAME = "concat_heads__ssm_conv_h3__softmax_full_mha__prompt"
KNAME = NAME + "_kernel"

class E:
    def __init__(self):
        self.lines = []
    def c(self, s):
        self.lines.append("    ; " + s)
    def i(self, s):
        self.lines.append("    " + s)
    def label(self, s):
        self.lines.append(s + ":")
    def text(self):
        return "\n".join(self.lines) + "\n"

def vr(a, n=1):
    return f"v{a}" if n == 1 else f"v[{a}:{a+n-1}]"
def ar(a, n=1):
    return f"a{a}" if n == 1 else f"a[{a}:{a+n-1}]"
def rs(r): return f"s[{r}:{r+3}]"

S, D, H, DH = 2048, 448, 16, 28
SZ_SD   = S * D * 2
SZ_SHK  = D * 4 * 2
SZ_WQKV = D * 3 * D * 2
SZ_WO   = D * D * 2
SZ_OUT  = S * 2 * D * 2
WS_KV = 0x000000
WS_XT = 0x400000
WS_YT = 0x600000
WS_OF = 0x800000
WS_FL = 0xA00000
FL_A1, FL_B1, FL_A2, FL_B2 = 0, 0x10000, 0x20000, 0x30000
FL_SH = 6
WS_TS = 0xB00000
WS_SIZE = 0xC00000

L_RING = 0
NSLOT  = 4
SLOT   = 28672
L_Q    = 114688
L_WO   = 0
L_RED  = 58368
L_OF   = 58368
LA     = 123904
L_KS   = LA
L_SHK  = LA + 12288
L_KVT  = LA + 16384
L_H    = LA + 25600
H_CH   = 4160
L_X    = LA
X_CH   = 5248
L_CARRY= LA + 10496
L_Y    = L_X
L_A3   = LA + 12288
L_A3R  = LA
L_OUTB = LA
L_MISC = LA + 33920
L_CNTA, L_CNTB, L_CNTRD = L_MISC + 16, L_MISC + 20, L_MISC + 24
LDS_SIZE = LA + 33920 + 64

S_W = 3
R_K, R_V, R_Q, R_SHK, R_SSMK, R_X, R_WQKV, R_WO, R_OUT, R_WS, R_DBG = 4, 8, 12, 16, 20, 24, 28, 32, 36, 40, 44
S_H, S_R, S_CB, S_RB = 48, 49, 50, 51
S_NONCE = 52
S_D2 = 54
S_DP = 62
S_T0 = 56
S_MHH = 64
S_MONE = 66
S63 = 68
S_KV = 70
S_J = 76
S_JJ = 77
S_SLI = 78
S_SLC = 79
S_XB = 80
S_WOI = 81
S_T1 = 88
S_SLOW = 96
S_IT = 97
S_TS = 98
S_BT = 55

QSCALE = (DH ** -0.5) * math.log2(math.e)
def f2u(x): return struct.unpack("<I", struct.pack("<f", x))[0]

class Cfg:
    stop_after = 99
    stamps = False
    nosync = False
    realtime = False
    prefetch = True
    span = False
    skipA = False
    bdelay = 0
    await_b = 0
    outflag = ''
    xmap = 4

ROLE = ["B"]
OUTF = ['']
def vts(): return 250 if ROLE[0] == "B" else 63
def stamp(e, cfg, idx):
    if not cfg.stamps: return
    e.c(f"stamp {idx}")
    e.i(f"{'s_memrealtime' if cfg.realtime else 's_memtime'} s[{S_TS}:{S_TS+1}]")
    e.i("s_waitcnt lgkmcnt(0)")
    e.i(f"v_writelane_b32 v{vts()}, s{S_TS}, {idx}")

def bar_regs():
    return (247, 248, 249) if ROLE[0] == "B" else (60, 61, 62)
BARN = [0]
def swbar_init(e):
    a, one, tmp = bar_regs()
    e.i(f"v_mov_b32 v{a}, {L_CNTB if ROLE[0] == 'B' else L_CNTA}")
    e.i(f"v_mov_b32 v{one}, 1")
    e.i(f"s_mov_b32 s{S_BT}, 0")
def sw_arrive(e, addr=None):
    a, one, tmp = bar_regs()
    e.i("s_mov_b64 exec, 1")
    e.i(f"ds_add_u32 v{addr if addr is not None else a}, v{one}")
    e.i("s_mov_b64 exec, -1")
def sw_wait(e, addr, target_sgpr=None, target_imm=None, sleep=None):
    a, one, tmp = bar_regs()
    BARN[0] += 1
    n = BARN[0]
    e.i(f"s_mov_b32 s{S_IT}, 0x100000")
    e.label(f"L_sw{n}")
    e.i(f"ds_read_b32 v{tmp}, v{addr}")
    e.i("s_waitcnt lgkmcnt(0)")
    e.i(f"v_readfirstlane_b32 s95, v{tmp}")
    e.i(f"s_cmp_ge_u32 s95, {('s%d' % target_sgpr) if target_sgpr is not None else target_imm}")
    e.i(f"s_cbranch_scc1 L_swd{n}")
    if sleep is None: sleep = 1 if ROLE[0] == "A" else 0
    if sleep: e.i(f"s_sleep {sleep}")
    e.i(f"s_sub_u32 s{S_IT}, s{S_IT}, 1")
    e.i(f"s_cbranch_scc0 L_sw{n}")
    e.label(f"L_swd{n}")
def swbar(e):
    a, one, tmp = bar_regs()
    e.i(f"s_add_u32 s{S_BT}, s{S_BT}, 4")
    sw_arrive(e)
    sw_wait(e, a, target_sgpr=S_BT)

V_LANE, V_L16 = 1, 2
V_TS = 250

def prologue(e, cfg):
    e.c("==== prologue ====")
    ptrs = [(R_K, 8), (R_V, 16), (R_SHK, 24), (R_X, 48), (R_WQKV, 56), (R_SSMK, 32), (R_Q, 0), (R_WO, 64), (R_OUT, 72), (R_DBG, 80), (R_WS, 88), (S_DP, 40)]
    for r, off in ptrs:
        e.i(f"s_load_dwordx2 s[{r}:{r+1}], s[0:1], {off}")
    if cfg.span: e.i("s_memrealtime s[100:101]")
    e.i("s_cmp_ge_u32 s2, 256")
    e.i("s_cbranch_scc1 L_end")
    if cfg.stamps:
        e.i(f"s_memrealtime s[{S_TS}:{S_TS+1}]" if cfg.realtime else f"s_memtime s[{S_TS}:{S_TS+1}]")
    e.i(f"v_lshrrev_b32 v3, 6, v0")
    e.i(f"v_and_b32 v{V_LANE}, 63, v0")
    e.i(f"v_readfirstlane_b32 s{S_W}, v3")
    e.i(f"v_lshlrev_b32 v{V_L16}, 4, v{V_LANE}")
    for i in range(4): e.i(f"v_mov_b32 v{4+i}, 0")
    e.i(f"v_mov_b32 v3, {L_MISC + 16}")
    e.i("s_mov_b64 exec, 1")
    e.i("ds_write_b128 v3, v[4:7]")
    e.i("s_mov_b64 exec, -1")
    sizes = {R_K: SZ_SD, R_V: SZ_SD, R_SHK: SZ_SHK, R_SSMK: SZ_SD, R_X: SZ_SD, R_WQKV: SZ_WQKV, R_Q: SZ_SD, R_WO: SZ_WO, R_OUT: SZ_OUT, R_DBG: 256, R_WS: WS_SIZE}
    for r, sz in sizes.items():
        e.i(f"s_mov_b32 s{r+2}, {sz}")
        e.i(f"s_mov_b32 s{r+3}, 0x20000")
    T = S_T0
    e.i(f"s_lshr_b32 s{S_CB}, s2, 5")
    e.i(f"s_min_u32 s{S_CB}, s{S_CB}, 6")
    e.i(f"s_and_b32 s{S_RB}, s2, 31")
    e.i(f"s_cmp_ge_u32 s{S_W}, 4")
    e.i("s_cbranch_scc1 L_roleA")

def ids_b(e, cfg):
    T = S_T0
    hb = {2: 1, 4: 2, 8: 3}[cfg.xmap]
    ng = 16 >> hb
    gb = 4 - hb
    e.i(f"s_and_b32 s{T}, s2, 7")
    e.i(f"s_lshr_b32 s{T+1}, s2, 3")
    e.i(f"s_and_b32 s{S_H}, s{T}, {ng-1}")
    e.i(f"s_lshl_b32 s{S_H}, s{S_H}, {hb}")
    e.i(f"s_and_b32 s{T+2}, s{T+1}, {(1<<hb)-1}")
    e.i(f"s_add_u32 s{S_H}, s{S_H}, s{T+2}")
    e.i(f"s_lshr_b32 s{S_R}, s{T}, {gb}")
    e.i(f"s_lshl_b32 s{S_R}, s{S_R}, {5-hb}")
    e.i(f"s_lshr_b32 s{T+2}, s{T+1}, {hb}")
    e.i(f"s_add_u32 s{S_R}, s{S_R}, s{T+2}")
    e.i(f"s_and_b32 s{S_J}, s{T+1}, {(1<<hb)-1}")
    e.i(f"s_lshl_b32 s{S_J}, s{S_J}, {1 if hb <= 2 else 0}")
    e.i(f"s_lshr_b32 s{T}, s{T+1}, {hb}")
    if hb == 3: e.i(f"s_lshl_b32 s{T}, s{T}, 1")
    e.i(f"s_add_u32 s{S_J}, s{S_J}, s{T}")
    for _ in range(3):
        e.i(f"s_cmp_ge_u32 s{S_J}, 7")
        e.i(f"s_cselect_b32 s{T}, 7, 0")
        e.i(f"s_sub_u32 s{S_J}, s{S_J}, s{T}")

V_KOFF = 4
VA = 48
V_XE, V_XO = 8, 9
V_DMA = 10
V_HOFF = 7
HREG = 116

def addr_a(e, cfg):
    T = S_T0
    e.c("A1 addresses")
    e.i(f"s_lshl_b32 s{T}, s{S_RB}, 6")
    e.i(f"s_lshl_b32 s{T+1}, s{S_W}, 4")
    e.i(f"s_add_u32 s{T}, s{T}, s{T+1}")
    e.i(f"s_mul_i32 s{T}, s{T}, 896")
    e.i(f"s_lshl_b32 s{T+1}, s{S_CB}, 7")
    e.i(f"s_add_u32 s{T}, s{T}, s{T+1}")
    e.i(f"v_lshrrev_b32 v3, 3, v{V_LANE}")
    e.i(f"v_mul_u32_u24 v13, 896, v3")
    e.i(f"v_and_b32 v14, 7, v{V_LANE}")
    e.i(f"v_lshl_add_u32 v15, v14, 4, v13")
    e.i(f"v_add_u32 v{V_KOFF+1}, s{T}, v15")
    e.i(f"v_add_u32 v{V_KOFF+2}, 7168, v{V_KOFF+1}")
    e.i(f"v_subrev_u32 v{V_KOFF}, 7168, v{V_KOFF+1}")
    e.c("h offset")
    e.i(f"s_lshr_b32 s{T}, s{S_W}, 1")
    e.i(f"s_lshl_b32 s{T+1}, s2, 1")
    e.i(f"s_add_u32 s{T}, s{T}, s{T+1}")
    e.i(f"s_lshl_b32 s{T}, s{T}, 12")
    e.i(f"s_and_b32 s{T+1}, s{S_W}, 1")
    e.i(f"s_lshl_b32 s{T+1}, s{T+1}, 11")
    e.i(f"s_add_u32 s{T}, s{T}, s{T+1}")
    e.i(f"v_add_u32 v{V_HOFF}, s{T}, v{V_L16}")

def addr_b(e, cfg):
    T = S_T0
    e.c("B1 x dma offsets: (128r + 32w + (l>>3))*896 + ((l&7) ^ f)*16, f = (l>>4) ^ (4*(t&1))")
    e.i(f"v_lshrrev_b32 v3, 3, v{V_LANE}")
    e.i(f"v_mul_u32_u24 v13, 896, v3")
    e.i(f"v_and_b32 v14, 7, v{V_LANE}")
    e.i(f"s_lshl_b32 s{T}, s{S_R}, 7")
    e.i(f"s_lshl_b32 s{T+1}, s{S_W}, 5")
    e.i(f"s_add_u32 s{T}, s{T}, s{T+1}")
    e.i(f"s_mul_i32 s{T}, s{T}, 896")
    e.i(f"v_lshrrev_b32 v3, 4, v{V_LANE}")
    e.i(f"v_xor_b32 v3, v3, v14")
    e.i(f"v_lshl_add_u32 v15, v3, 4, v13")
    e.i(f"v_add_u32 v{V_XE}, s{T}, v15")
    e.i(f"v_xor_b32 v{V_XO}, 64, v{V_XE}")
    e.c("W dma offsets")
    e.i(f"s_mul_i32 s{T}, s{S_H}, 56")
    for t in range(3):
        d = V_DMA + t
        e.i(f"v_add_u32 v3, {64*t}, v{V_LANE}")
        e.i(f"v_mul_u32_u24 v13, 43691, v3")
        e.i(f"v_lshrrev_b32 v13, 19, v13")
        e.i(f"v_mul_u32_u24 v14, 12, v13")
        e.i(f"v_sub_u32 v3, v3, v14")
        e.i(f"v_mul_u32_u24 v{d}, 2688, v13")
        e.i(f"v_lshrrev_b32 v13, 2, v3")
        e.i(f"v_and_b32 v3, 3, v3")
        e.i(f"v_mul_u32_u24 v14, 896, v13")
        e.i(f"v_add3_u32 v{d}, v{d}, v14, s{T}")
        e.i(f"v_lshrrev_b32 v13, 1, v13")
        e.i(f"v_add_u32 v14, 1, v3")
        e.i(f"v_mul_u32_u24 v13, v13, v14")
        e.i(f"v_lshlrev_b32 v3, 3, v3")
        e.i(f"v_sub_u32 v3, v3, v13")
        e.i(f"v_lshl_add_u32 v{d}, v3, 1, v{d}")

def a1_loads(e, cfg):
    T = S_T0
    e.c("A1 loads: k dma x3, shk dma, v x2, h x2")
    e.i(f"s_mul_i32 s{T}, s{S_W}, 3072")
    for t in range(3):
        e.i(f"s_add_u32 m0, s{T}, {L_KS + 1024*t}")
        e.i("s_nop 0")
        e.i(f"buffer_load_dwordx4 v{V_KOFF+t}, {rs(R_K)}, 0 offen lds")
    e.i(f"s_lshl_b32 s{T}, s{S_W}, 10")
    e.i(f"s_add_u32 m0, s{T}, {L_SHK}")
    e.i(f"s_lshl_b32 s{T+1}, s{S_CB}, 9")
    e.i(f"buffer_load_dwordx4 v{V_L16}, {rs(R_SHK)}, s{T+1} offen lds")
    for it in range(2):
        e.i(f"buffer_load_dwordx4 {vr(VA+4*it,4)}, v{V_KOFF+1+it}, {rs(R_V)}, 0 offen")

def h_loads(e, cfg):
    e.i(f"buffer_load_dwordx4 {vr(HREG,4)}, v{V_HOFF}, {rs(R_SSMK)}, 0 offen")
    e.i(f"buffer_load_dwordx4 {vr(HREG+4,4)}, v{V_HOFF}, {rs(R_SSMK)}, 0 offen offset:1024")

V_PF = 24
def l2_prefetch_addr(e, cfg):
    T = S_T0
    e.i(f"s_and_b32 s{T}, s2, 7")
    e.i(f"s_lshr_b32 s{T}, s{T}, 2")
    e.i(f"s_mul_i32 s{T}, s{T}, {1024*896}")
    e.i(f"s_lshr_b32 s{T+1}, s2, 3")
    e.i(f"s_mul_i32 s{T+2}, s{T+1}, 28672")
    e.i(f"s_add_u32 s{T}, s{T}, s{T+2}")
    e.i(f"s_lshl_b32 s{T+2}, s{S_W}, 12")
    e.i(f"s_add_u32 s{T}, s{T}, s{T+2}")
    e.i(f"v_lshlrev_b32 v3, 6, v{V_LANE}")
    e.i(f"v_add_u32 v{V_PF}, s{T}, v3")
    e.i(f"s_lshl_b32 s{T}, s{S_W}, 6")
    e.i(f"v_add_u32 v3, s{T}, v{V_LANE}")
    e.i(f"v_mul_u32_u24 v13, 43691, v3")
    e.i(f"v_lshrrev_b32 v13, 19, v13")
    e.i(f"v_mul_u32_u24 v14, 12, v13")
    e.i(f"v_sub_u32 v3, v3, v14")
    e.i(f"v_lshrrev_b32 v14, 2, v3")
    e.i(f"v_mul_u32_u24 v14, 896, v14")
    e.i(f"v_and_b32 v3, 3, v3")
    e.i(f"v_lshl_add_u32 v14, v3, 6, v14")
    e.i(f"s_mul_i32 s{T}, s{T+1}, 14")
    e.i(f"v_add_u32 v13, s{T}, v13")
    e.i(f"v_mul_u32_u24 v13, 2688, v13")
    e.i(f"s_and_b32 s{T}, s2, 3")
    e.i(f"s_mul_i32 s{T}, s{T}, 224")
    e.i(f"s_and_b32 s{T}, s{T}, 0xffffffc0")
    e.i(f"v_add3_u32 v{V_PF+1}, v13, v14, s{T}")

def l2_prefetch(e, cfg):
    T = S_T0
    e.i(f"buffer_load_dword v244, v{V_PF}, {rs(R_X)}, 0 offen")
    e.i(f"s_mov_b32 s{T}, 16384")
    e.i(f"s_cmp_eq_u32 s{S_W}, 3")
    e.i(f"s_cselect_b32 s{T}, 0, s{T}")
    e.i(f"buffer_load_dword v245, v{V_PF}, {rs(R_X)}, s{T} offen")
    e.i(f"buffer_load_dword v246, v{V_PF+1}, {rs(R_WQKV)}, 0 offen")
N_PF = 3

S_XL, S_WL, S_WS0 = 82, 83, 84
S_SX, S_SW = 85, 86
def b1_consts(e):
    e.i(f"s_lshl_b32 s{S_XL}, s{S_W}, 12")
    e.i(f"s_mul_i32 s{S_WL}, s{S_W}, 3072")
    e.i(f"s_add_u32 s{S_WL}, s{S_WL}, 16384")
    e.i(f"s_mul_i32 s{S_WS0}, s{S_W}, 43008")
    e.i(f"s_mov_b32 s{S_SLI}, {L_RING}")

def b1_issue_pieces():
    T = S_T0
    p = []
    p.append([f"s_lshl_b32 s{S_SX}, s{S_J}, 7",
              f"s_mul_i32 s{S_SW}, s{S_J}, 172032",
              f"s_add_u32 s{S_SW}, s{S_SW}, s{S_WS0}",
              f"s_add_u32 s{T}, s{S_SLI}, s{S_XL}",
              f"s_add_u32 s{T+1}, s{S_SLI}, s{S_WL}"])
    for t in range(4):
        l = []
        if t == 0: l.append(f"s_mov_b32 m0, s{T}")
        else:
            l.append(f"s_add_u32 m0, s{T}, {1024*t}")
            l.append(f"s_add_u32 s{S_SX}, s{S_SX}, 7168")
        if t == 0: l.append("s_nop 0")
        l.append(f"buffer_load_dwordx4 v{V_XE if t % 2 == 0 else V_XO}, {rs(R_X)}, s{S_SX} offen lds")
        p.append(l)
    for t in range(3):
        l = [f"s_add_u32 m0, s{T+1}, {1024*t}" if t else f"s_mov_b32 m0, s{T+1}", "s_nop 0",
             f"buffer_load_dwordx4 v{V_DMA+t}, {rs(R_WQKV)}, s{S_SW} offen lds"]
        if t == 2:
            l += [f"s_add_u32 s{S_J}, s{S_J}, 1",
                  f"s_cmp_eq_u32 s{S_J}, 7",
                  f"s_cselect_b32 s{S_J}, 0, s{S_J}",
                  f"s_add_u32 s{S_SLI}, s{S_SLI}, {SLOT}",
                  f"s_cmp_eq_u32 s{S_SLI}, {NSLOT*SLOT + L_RING}",
                  f"s_cselect_b32 s{S_SLI}, {L_RING}, s{S_SLI}"]
        p.append(l)
    return p

def b1_issue(e):
    for pc in b1_issue_pieces():
        for ln in pc: e.i(ln)

KA, WSH = 16, 124
def a1_compute(e, cfg, nyounger):
    T = S_T0
    e.c("A1 compute")
    e.i(f"s_mul_i32 s{T}, s{S_W}, 3072")
    e.i(f"s_add_u32 s{T}, s{T}, {L_KS}")
    e.i(f"v_add_u32 v3, s{T}, v{V_L16}")
    e.i(f"s_lshl_b32 s{T}, s{S_W}, 10")
    e.i(f"s_add_u32 s{T}, s{T}, {L_SHK}")
    e.i(f"v_and_b32 v14, 7, v{V_LANE}")
    e.i(f"v_lshlrev_b32 v13, 6, v14")
    e.i(f"v_add_u32 v13, s{T}, v13")
    e.i(f"s_waitcnt vmcnt({nyounger})")
    stamp(e, cfg, 20)
    for m in range(4):
        e.i(f"ds_read_b128 {vr(WSH+4*m,4)}, v13 offset:{16*m}")
    for it in range(2):
        for j in range(4):
            e.i(f"ds_read_b128 {vr(KA+16*it+4*j,4)}, v3 offset:{(8+8*it-j)*128}")
    e.i(f"s_mov_b32 s{T}, 0x05040100")
    e.i(f"s_mov_b32 s{T+1}, 0x07060302")
    e.i(f"s_mov_b32 s{T+2}, 0xffff0000")
    TT = 76; OUTR = 108
    for it in range(2):
        e.i(f"s_waitcnt lgkmcnt({4 if it == 0 else 0})")
        for m in range(4):
            k = lambda j: KA + 16*it + 4*j + m
            b = TT + 4*m
            e.i(f"v_perm_b32 v{b+0}, v{k(1)}, v{k(0)}, s{T}")
            e.i(f"v_perm_b32 v{b+1}, v{k(1)}, v{k(0)}, s{T+1}")
            e.i(f"v_perm_b32 v{b+2}, v{k(3)}, v{k(2)}, s{T}")
            e.i(f"v_perm_b32 v{b+3}, v{k(3)}, v{k(2)}, s{T+1}")
        A = TT + 16
        for m in range(4):
            b = TT + 4*m
            e.i(f"v_dot2_f32_bf16 v{A+2*m}, v{b+0}, v{WSH+4*m+0}, 0")
            e.i(f"v_dot2_f32_bf16 v{A+2*m+1}, v{b+1}, v{WSH+4*m+2}, 0")
        U = TT + 24
        for m in range(4):
            e.i(f"v_lshlrev_b32 v{U+2*m}, 16, v{VA+4*it+m}")
            e.i(f"v_and_b32 v{U+2*m+1}, s{T+2}, v{VA+4*it+m}")
        for m in range(4):
            b = TT + 4*m
            e.i(f"v_dot2_f32_bf16 v{A+2*m}, v{b+2}, v{WSH+4*m+1}, v{A+2*m}")
            e.i(f"v_dot2_f32_bf16 v{A+2*m+1}, v{b+3}, v{WSH+4*m+3}, v{A+2*m+1}")
        e.i("s_nop 2")
        for c in range(8):
            e.i(f"v_mul_f32 v{A+c}, v{A+c}, v{U+c}")
        for m in range(4):
            e.i(f"v_cvt_pk_bf16_f32 v{OUTR+4*it+m}, v{A+2*m}, v{A+2*m+1}")
def a1_compute_b(e, cfg):
    T = S_T0
    OUTR = 108
    e.i(f"v_and_b32 v14, 7, v{V_LANE}")
    e.i(f"s_mul_i32 s{T}, s{S_W}, {16*144}")
    e.i(f"s_add_u32 s{T}, s{T}, {L_KVT}")
    e.i(f"v_lshrrev_b32 v13, 3, v{V_LANE}")
    e.i(f"v_mul_u32_u24 v15, 144, v13")
    e.i(f"v_lshl_add_u32 v15, v14, 4, v15")
    e.i(f"v_add_u32 v3, s{T}, v15")
    e.i(f"ds_write_b128 v3, {vr(OUTR,4)}")
    e.i(f"ds_write_b128 v3, {vr(OUTR+4,4)} offset:{8*144}")
    e.i(f"v_lshrrev_b32 v3, 4, v{V_LANE}")
    e.i(f"v_lshlrev_b32 v3, 3, v3")
    e.i(f"v_bfe_u32 v16, v{V_LANE}, 2, 2")
    e.i(f"v_add_u32 v3, v3, v16")
    e.i(f"v_mul_u32_u24 v3, 144, v3")
    e.i(f"v_and_b32 v16, 3, v{V_LANE}")
    e.i(f"v_lshlrev_b32 v16, 3, v16")
    e.i(f"s_lshl_b32 s{T}, s{S_W}, 5")
    e.i(f"s_add_u32 s{T}, s{T}, {L_KVT}")
    e.i(f"v_add3_u32 v3, v3, v16, s{T}")
    e.i(f"s_mul_i32 s{T}, s{S_W}, 3072")
    e.i(f"s_add_u32 s{T}, s{T}, {L_KS}")
    e.i(f"v_and_b32 v16, 15, v{V_LANE}")
    e.i(f"v_mul_u32_u24 v16, 144, v16")
    e.i(f"v_and_b32 v17, 0x30, v{V_LANE}")
    e.i(f"v_add3_u32 v16, v16, v17, s{T}")
    e.i(f"v_add_u32 v17, s{T}, v15")
    e.i(f"v_lshlrev_b32 v18, 12, v13")
    e.i(f"v_lshl_add_u32 v18, v14, 4, v18")
    e.i(f"s_lshl_b32 s{T}, s{S_CB}, 6")
    e.i(f"s_lshl_b32 s{T+1}, s{S_W}, 4")
    e.i(f"s_add_u32 s{T}, s{T}, s{T+1}")
    e.i(f"s_lshl_b32 s{T}, s{T}, 12")
    e.i(f"s_lshl_b32 s{T+1}, s{S_RB}, 7")
    e.i(f"s_add_u32 s{T}, s{T}, s{T+1}")
    e.i(f"s_add_u32 s{T}, s{T}, {WS_XT}")
    e.i(f"s_add_u32 s{T+1}, s{T}, {8*4096}")
    swbar(e)
    for it2 in range(2):
        for jj in range(2):
            e.i(f"ds_read_b64_tr_b16 {vr(76+4*it2+2*jj,2)}, v3 offset:{(32*it2+4*jj)*144}")
    e.i("s_waitcnt lgkmcnt(2)")
    e.i(f"ds_write_b128 v16, {vr(76,4)}")
    e.i("s_waitcnt lgkmcnt(1)")
    e.i(f"ds_write_b128 v16, {vr(80,4)} offset:64")
    e.i("s_waitcnt lgkmcnt(0)")
    e.i(f"ds_read_b128 {vr(84,4)}, v17")
    e.i(f"ds_read_b128 {vr(88,4)}, v17 offset:{8*144}")
    e.i("s_waitcnt lgkmcnt(1)")
    e.i(f"buffer_store_dwordx4 {vr(84,4)}, v18, {rs(R_WS)}, s{T} offen sc1")
    e.i("s_waitcnt lgkmcnt(0)")
    e.i(f"buffer_store_dwordx4 {vr(88,4)}, v18, {rs(R_WS)}, s{T+1} offen sc1")

V_NONCE = 22
def nonce_early(e, cfg):
    e.i("v_mov_b32 v21, 0")
    e.i(f"buffer_load_dwordx2 v[{V_NONCE}:{V_NONCE+1}], v21, {rs(R_DBG)}, 0 offen sc1")

def get_nonce(e, cfg):
    e.c("fetch nonce (early load, else poll d_debug)")
    e.i(f"v_readfirstlane_b32 s{S_NONCE}, v{V_NONCE}")
    e.i(f"v_readfirstlane_b32 s{S_NONCE+1}, v{V_NONCE+1}")
    e.i("s_nop 3")
    e.i(f"s_or_b32 s{S_T0}, s{S_NONCE}, s{S_NONCE+1}")
    e.i(f"s_cbranch_scc1 L_nonce_done{ROLE[0]}")
    e.i(f"s_mov_b32 s{S_IT}, 0x40000")
    e.label(f"L_nonce{ROLE[0]}")
    e.i(f"buffer_load_dwordx2 v[{V_NONCE}:{V_NONCE+1}], v21, {rs(R_DBG)}, 0 offen sc1")
    e.i("s_waitcnt vmcnt(0)")
    e.i(f"v_readfirstlane_b32 s{S_NONCE}, v{V_NONCE}")
    e.i(f"v_readfirstlane_b32 s{S_NONCE+1}, v{V_NONCE+1}")
    e.i("s_nop 3")
    e.i(f"s_or_b32 s{S_T0}, s{S_NONCE}, s{S_NONCE+1}")
    e.i(f"s_cbranch_scc1 L_nonce_done{ROLE[0]}")
    e.i(f"s_sub_u32 s{S_IT}, s{S_IT}, 1")
    e.i(f"s_cbranch_scc1 L_nonce_done{ROLE[0]}")
    e.i("s_sleep 2")
    e.i(f"s_branch L_nonce{ROLE[0]}")
    e.label(f"L_nonce_done{ROLE[0]}")

def publish(e, cfg, arr, idx_lines, tmp=4):
    T = S_T0
    for ln in idx_lines: e.i(ln)
    e.i(f"s_lshl_b32 s{T}, s{T}, 2")
    e.i(f"s_add_u32 s{T}, s{T}, s{S_W}")
    e.i(f"s_lshl_b32 s{T}, s{T}, {FL_SH}")
    e.i(f"s_add_u32 s{T}, s{T}, {WS_FL + arr}")
    e.i(f"v_mov_b32 v{tmp}, s{S_NONCE}")
    e.i(f"v_mov_b32 v{tmp+1}, s{S_NONCE+1}")
    e.i(f"v_mov_b32 v{tmp+2}, 0")
    e.i("s_mov_b64 exec, 1")
    e.i(f"buffer_store_dwordx2 v[{tmp}:{tmp+1}], v{tmp+2}, {rs(R_WS)}, s{T} offen sc1")
    e.i("s_mov_b64 exec, -1")

def poll(e, cfg, arr, vidx, tag, tmp=4):
    e.c(f"poll {tag}")
    e.i(f"v_lshlrev_b32 v{vidx}, {FL_SH}, v{vidx}")
    e.i(f"v_add_u32 v{vidx}, {WS_FL + arr}, v{vidx}")
    if cfg.nosync: return
    e.i(f"s_mov_b32 s{S_IT}, 0x40000")
    e.label(f"L_poll_{tag}")
    e.i(f"buffer_load_dwordx2 v[{tmp}:{tmp+1}], v{vidx}, {rs(R_WS)}, 0 offen sc1")
    e.i("s_waitcnt vmcnt(0)")
    e.i(f"v_cmp_ne_u64 vcc, s[{S_NONCE}:{S_NONCE+1}], v[{tmp}:{tmp+1}]")
    e.i(f"s_cbranch_vccz L_poll_done_{tag}")
    e.i(f"s_sub_u32 s{S_IT}, s{S_IT}, 1")
    e.i(f"s_cbranch_scc1 L_poll_done_{tag}")
    e.i("s_sleep 3")
    e.i(f"s_branch L_poll_{tag}")
    e.label(f"L_poll_done_{tag}")

ACCQ, ACCK, ACCV = 100, 116, 132
WF = 176
XF = 200
V_WTR = 208
V_XR = 212
KVB = 160
def b1_traddr(e, cfg):
    T = S_T0
    e.c("B1 lds read addresses")
    e.i(f"v_lshrrev_b32 v3, 5, v{V_LANE}")
    e.i(f"v_lshlrev_b32 v16, 3, v3")
    e.i(f"v_bfe_u32 v13, v{V_LANE}, 2, 2")
    e.i(f"v_add_u32 v16, v16, v13")
    e.i(f"v_mul_u32_u24 v16, 192, v16")
    e.i(f"v_bfe_u32 v13, v{V_LANE}, 4, 1")
    e.i(f"v_lshl_add_u32 v16, v13, 5, v16")
    e.i(f"v_add_u32 v16, 16384, v16")
    e.i(f"v_and_b32 v13, 3, v{V_LANE}")
    e.i(f"v_lshl_add_u32 v{V_WTR}, v13, 3, v16")
    e.i(f"v_and_b32 v14, 1, v13")
    e.i(f"v_lshlrev_b32 v14, 4, v14")
    e.i(f"v_lshrrev_b32 v13, 1, v13")
    e.i(f"v_lshlrev_b32 v13, 3, v13")
    e.i(f"v_add3_u32 v{V_WTR+1}, v16, v14, v13")
    e.i(f"v_add_u32 v{V_WTR+1}, 128, v{V_WTR+1}")
    e.i(f"v_and_b32 v13, 31, v{V_LANE}")
    e.i(f"v_bfe_u32 v14, v{V_LANE}, 1, 3")
    e.i(f"v_xor_b32 v14, v14, v3")
    e.i(f"v_lshlrev_b32 v14, 4, v14")
    e.i(f"v_lshl_add_u32 v14, v13, 7, v14")
    e.i(f"s_lshl_b32 s{T}, s{S_W}, 12")
    e.i(f"v_add_u32 v{V_XR}, s{T}, v14")
    for n in range(1, 4):
        e.i(f"v_xor_b32 v{V_XR+n}, {32*n}, v{V_XR}")
    for i in range(48):
        e.i(f"v_mov_b32 v{ACCQ+i}, 0")

def b1_reads(e, n):
    s = WF + 12 * (n & 1)
    e.i(f"ds_read_b128 {vr(XF+4*(n&1),4)}, v{V_XR+4+n}")
    for j in range(2):
        e.i(f"ds_read_b64_tr_b16 {vr(s+2*j,2)}, v{V_WTR+2} offset:{n*3072 + j*768}")
    for j in range(2):
        e.i(f"ds_read_b64_tr_b16 {vr(s+4+2*j,2)}, v{V_WTR+2} offset:{n*3072 + j*768 + 64}")
    for j in range(2):
        e.i(f"ds_read_b64_tr_b16 {vr(s+8+2*j,2)}, v{V_WTR+3} offset:{n*3072 + j*768}")

def b1_mfma(e, n):
    s = WF + 12 * (n & 1)
    x = vr(XF+4*(n&1), 4)
    e.i(f"v_mfma_f32_32x32x16_bf16 {vr(ACCQ,16)}, {vr(s,4)}, {x}, {vr(ACCQ,16)}")
    e.i(f"v_mfma_f32_32x32x16_bf16 {vr(ACCK,16)}, {vr(s+4,4)}, {x}, {vr(ACCK,16)}")
    e.i(f"v_mfma_f32_32x32x16_bf16 {vr(ACCV,16)}, {x}, {vr(s+8,4)}, {vr(ACCV,16)}")

def b1_addr_slot(e):
    for n in range(4):
        e.i(f"v_add_u32 v{V_XR+4+n}, s{S_SLC}, v{V_XR+n}")
    e.i(f"v_add_u32 v{V_WTR+2}, s{S_SLC}, v{V_WTR}")
    e.i(f"v_add_u32 v{V_WTR+3}, s{S_SLC}, v{V_WTR+1}")
    e.i(f"s_add_u32 s{S_SLC}, s{S_SLC}, {SLOT}")
    e.i(f"s_cmp_eq_u32 s{S_SLC}, {NSLOT*SLOT + L_RING}")
    e.i(f"s_cselect_b32 s{S_SLC}, {L_RING}, s{S_SLC}")

def b1_body(e, cfg, issue, wait_next, post=None):
    pcs = b1_issue_pieces() if issue else []
    sched = {0: pcs[0:3], 1: pcs[3:6], 2: pcs[6:8]} if issue else {}
    for n in range(3):
        b1_reads(e, n + 1)
        e.i("s_waitcnt lgkmcnt(7)")
        b1_mfma(e, n)
        for pc in sched.get(n, []):
            for ln in pc: e.i(ln)
    e.i("s_waitcnt lgkmcnt(0)")
    if wait_next is not None:
        e.i(f"s_waitcnt vmcnt({wait_next})")
        swbar(e)
        if post: post()
        b1_addr_slot(e)
        b1_reads(e, 0)
    b1_mfma(e, 3)

def b1_loop(e, cfg):
    e.i(f"s_mov_b32 s{S_SLC}, {L_RING}")
    e.i(f"s_waitcnt vmcnt({7 + 7 + 1})")
    swbar(e)
    b1_addr_slot(e)
    b1_reads(e, 0)
    b1_body(e, cfg, True, 15)
    e.i(f"s_mov_b32 s{S_JJ}, 1")
    e.label("L_b1_loop")
    b1_body(e, cfg, True, 14)
    e.i(f"s_add_u32 s{S_JJ}, s{S_JJ}, 1")
    e.i(f"s_cmp_lt_u32 s{S_JJ}, 4")
    e.i("s_cbranch_scc1 L_b1_loop")
    stamp(e, cfg, 24)
    b1_body(e, cfg, False, 7)
    b1_body(e, cfg, False, 0)
    b1_body(e, cfg, False, None)

def b1_epilogue(e, cfg):
    T = S_T0
    e.c("B1 epilogue")
    e.i(f"s_mov_b32 s{S_MHH}, 0")
    e.i(f"s_mov_b32 s{S_MHH+1}, -1")
    m = (1 << 0) | (1 << 4) | (1 << 16) | (1 << 20)
    e.i(f"s_mov_b32 s{S_MONE}, {m}")
    e.i(f"s_mov_b32 s{S_MONE+1}, {m}")
    e.i(f"s_mov_b32 s{T+2}, {f2u(QSCALE)}")
    e.i(f"v_mov_b32 v14, 0x3f803f80")
    e.i(f"s_lshl_b32 s{T}, s{S_H}, 18")
    e.i(f"s_lshl_b32 s{T+1}, s{S_R}, 2")
    e.i(f"s_add_u32 s{T+1}, s{T+1}, s{S_W}")
    e.i(f"s_lshl_b32 s{T+1}, s{T+1}, 12")
    e.i(f"s_add_u32 s{T}, s{T}, s{T+1}")
    if WS_KV: e.i(f"s_add_u32 s{T}, s{T}, {WS_KV}")
    e.i(f"s_lshl_b32 s{T+1}, s{S_W}, 11")
    e.i(f"s_add_u32 s{T+1}, s{T+1}, {L_Q}")
    e.i(f"v_add_u32 v3, s{T+1}, v{V_L16}")
    e.i("s_nop 4")
    for m_ in range(8):
        e.i(f"v_cvt_pk_bf16_f32 v{KVB+m_}, v{ACCK+2*m_}, v{ACCK+2*m_+1}")
    for m_ in range(8):
        e.i(f"v_cvt_pk_bf16_f32 v{KVB+8+m_}, v{ACCV+2*m_}, v{ACCV+2*m_+1}")
    for m_ in (6, 7):
        e.i(f"v_cndmask_b32 v{KVB+m_}, v{KVB+m_}, v14, s[{S_MHH}:{S_MHH+1}]")
    for m_ in range(8):
        e.i(f"v_cndmask_b32 v{KVB+8+m_}, v{KVB+8+m_}, v14, s[{S_MONE}:{S_MONE+1}]")
    for f in range(4):
        e.i(f"buffer_store_dwordx4 {vr(KVB+4*f,4)}, v{V_L16}, {rs(R_WS)}, s{T} offen offset:{1024*f} sc1")
    QP = 16
    for i in range(16):
        e.i(f"v_mul_f32 v{ACCQ+i}, s{T+2}, v{ACCQ+i}")
    for m_ in range(8):
        e.i(f"v_cvt_pk_bf16_f32 v{QP+m_}, v{ACCQ+2*m_}, v{ACCQ+2*m_+1}")
    for m_ in (6, 7):
        e.i(f"v_cndmask_b32 v{QP+m_}, v{QP+m_}, 0, s[{S_MHH}:{S_MHH+1}]")
    e.i(f"ds_write_b128 v3, {vr(QP,4)}")
    e.i(f"ds_write_b128 v3, {vr(QP+4,4)} offset:1024")

def a2_dload(e, cfg):
    e.i(f"s_min_u32 s{S_T0}, s2, 223")
    e.i(f"s_lshl_b32 s{S_T0}, s{S_T0}, 2")
    e.i(f"s_load_dword s{S_D2}, s[{S_DP}:{S_DP+1}], s{S_T0}")

def a2_hstage(e, cfg):
    T = S_T0
    e.c("A2: stage h into LDS (with h0 += D), zero pads")
    e.i(f"s_lshr_b32 s{T}, s{S_W}, 1")
    e.i(f"s_lshl_b32 s{T+1}, s{S_D2}, 16")
    e.i(f"s_and_b32 s{T+2}, s{S_D2}, 0xffff0000")
    e.i(f"s_cmp_eq_u32 s{T}, 0")
    e.i(f"s_cselect_b32 s{T+1}, s{T+1}, s{T+2}")
    e.i(f"v_lshlrev_b32 v3, 16, v{HREG}")
    e.i(f"v_add_f32 v3, s{T+1}, v3")
    e.i(f"v_cvt_pk_bf16_f32 v3, v3, v3")
    e.i(f"s_mov_b32 s{T+2}, 0xffff")
    e.i(f"v_bfi_b32 v3, s{T+2}, v3, v{HREG}")
    e.i(f"s_and_b32 s{T+2}, s{S_W}, 1")
    e.i(f"s_xor_b32 s{T+4}, s{T+2}, 1")
    e.i(f"s_mov_b32 s{T+5}, 0")
    e.i(f"v_cndmask_b32 v{HREG}, v{HREG}, v3, s[{T+4}:{T+5}]")
    e.i(f"s_mul_i32 s{T+1}, s{T}, {H_CH}")
    e.i(f"s_add_u32 s{T+1}, s{T+1}, {L_H}")
    e.i(f"v_add_u32 v13, s{T+1}, v{V_L16}")
    e.i(f"s_lshl_b32 s{T+2}, s{T+2}, 11")
    e.i(f"s_add_u32 s{T+2}, s{T+2}, 64")
    e.i(f"v_add_u32 v3, s{T+2}, v13")
    e.i(f"ds_write_b128 v3, {vr(HREG,4)}")
    e.i(f"ds_write_b128 v3, {vr(HREG+4,4)} offset:1024")
    for i in range(4): e.i(f"v_mov_b32 v{76+i}, 0")
    e.i(f"s_mul_i32 s{T+1}, s{T}, {X_CH}")
    e.i(f"s_add_u32 s{T+1}, s{T+1}, {L_X}")
    e.i(f"v_add_u32 v14, s{T+1}, v{V_L16}")
    e.i(f"s_mov_b64 exec, 0xf")
    e.i(f"ds_write_b128 v13, {vr(76,4)}")
    e.i(f"s_mov_b32 exec_lo, -1")
    e.i(f"s_mov_b32 exec_hi, 0xf")
    e.i(f"ds_write_b128 v14, {vr(76,4)}")
    e.i(f"s_mov_b64 exec, -1")

CACC = 64
XFR = 128
HR = 16
V_HA = 48
V_XA = 49
QPF = 40
V_A3OFF = 56
def a3_qaddr(e, cfg):
    T = S_T0
    e.c("A3 addresses: row = 64 rb + 16 w + 8 it + (l>>3), piece l&7")
    e.i(f"s_lshl_b32 s{T}, s{S_RB}, 6")
    e.i(f"s_lshl_b32 s{T+1}, s{S_W}, 4")
    e.i(f"s_add_u32 s{T}, s{T}, s{T+1}")
    e.i(f"s_mul_i32 s{T+1}, s{T}, 896")
    e.i(f"s_mul_i32 s{T+2}, s{T}, 1792")
    e.i(f"s_lshl_b32 s{T+3}, s{S_CB}, 7")
    e.i(f"s_add_u32 s{T+1}, s{T+1}, s{T+3}")
    e.i(f"s_add_u32 s{T+2}, s{T+2}, s{T+3}")
    e.i(f"v_lshrrev_b32 v3, 3, v{V_LANE}")
    e.i(f"v_and_b32 v13, 7, v{V_LANE}")
    e.i(f"v_lshlrev_b32 v13, 4, v13")
    e.i(f"v_mul_u32_u24 v14, 896, v3")
    e.i(f"v_add3_u32 v{V_A3OFF}, v14, v13, s{T+1}")
    e.i(f"v_mul_u32_u24 v14, 1792, v3")
    e.i(f"v_add3_u32 v{V_A3OFF+1}, v14, v13, s{T+2}")

V_WO = 58
def wo_addr(e, cfg):
    T = S_T0
    e.i(f"v_lshrrev_b32 v3, 3, v{V_LANE}")
    e.i(f"v_mul_u32_u24 v3, 896, v3")
    e.i(f"v_bfe_u32 v13, v{V_LANE}, 2, 1")
    e.i(f"v_bfe_u32 v14, v{V_LANE}, 4, 1")
    e.i(f"v_xor_b32 v13, v13, v14")
    e.i(f"v_lshlrev_b32 v13, 6, v13")
    e.i(f"v_and_b32 v14, 3, v{V_LANE}")
    e.i(f"v_lshlrev_b32 v14, 4, v14")
    e.i(f"v_add3_u32 v3, v3, v13, v14")
    e.i(f"s_lshl_b32 s{T}, s{S_CB}, 7")
    e.i(f"v_add_u32 v{V_WO}, s{T}, v3")

def wo_first(e, cfg):
    T = S_T0
    e.i(f"s_cmp_eq_u32 s{S_W}, 0")
    e.i(f"s_cselect_b32 s{T+2}, 896, 0")
    e.i(f"v_subrev_u32 v4, s{T+2}, v{V_WO}")
    e.i(f"s_mul_i32 s{T+1}, s{S_W}, 7168")
    e.i(f"s_sub_u32 s{T+1}, s{T+1}, 896")
    e.i(f"s_max_i32 s{T+1}, s{T+1}, 0")
    e.i(f"s_lshl_b32 s{T}, s{S_W}, 10")
    e.i(f"s_add_u32 m0, s{T}, {L_WO}")
    e.i("s_nop 0")
    e.i(f"buffer_load_dwordx4 v4, {rs(R_WO)}, s{T+1} offen lds")
    e.i(f"s_mov_b32 m0, {L_WO + 56*1024}")
    e.i(f"s_mov_b32 s{T+1}, {56*7168 - 896}")
    e.i(f"buffer_load_dwordx4 v{V_WO}, {rs(R_WO)}, s{T+1} offen lds")
    e.i(f"s_lshl_b32 s81, s{S_W}, 10")
    e.i(f"s_add_u32 s81, s81, {L_WO}")
    e.i(f"s_mul_i32 s87, s{S_W}, 7168")
    e.i(f"s_sub_u32 s87, s87, 896")

S_WOM, S_WOS = 81, 87
def wo_next(e):
    e.i(f"s_add_u32 s{S_WOM}, s{S_WOM}, 4096")
    e.i(f"s_add_u32 s{S_WOS}, s{S_WOS}, {4*7168}")
    e.i(f"s_mov_b32 m0, s{S_WOM}")
    e.i("s_nop 0")
    e.i(f"buffer_load_dwordx4 v{V_WO}, {rs(R_WO)}, s{S_WOS} offen lds")

def a2_main(e, cfg):
    T = S_T0
    e.c("==== A2 conv ====")
    e.i(f"s_lshl_b32 s{T}, s2, 1")
    e.i(f"s_bfe_u32 s{T}, s{T}, 0x20004")
    e.i(f"s_lshl_b32 s{T+1}, s{S_CB}, 5")
    e.i(f"s_and_b32 s{T+2}, s{S_W}, 1")
    e.i(f"s_lshl_b32 s{T+2}, s{T+2}, 4")
    e.i(f"s_add_u32 s{T+1}, s{T+1}, s{T+2}")
    e.i(f"s_lshl_b32 s{T+1}, s{T+1}, 2")
    e.i(f"s_add_u32 s{T}, s{T}, s{T+1}")
    e.i(f"v_and_b32 v7, 15, v{V_LANE}")
    e.i(f"v_lshlrev_b32 v7, 2, v7")
    e.i(f"v_add_u32 v7, s{T}, v7")
    poll(e, cfg, FL_A1, 7, "a1")
    stamp(e, cfg, 6)
    e.i(f"s_lshr_b32 s{T}, s{S_W}, 1")
    e.i(f"s_lshl_b32 s{T+1}, s2, 1")
    e.i(f"s_add_u32 s{T+1}, s{T}, s{T+1}")
    e.i(f"s_lshl_b32 s{T+1}, s{T+1}, 12")
    e.i(f"s_and_b32 s{T+2}, s{S_W}, 1")
    e.i(f"s_lshl_b32 s{T+3}, s{T+2}, 11")
    e.i(f"s_add_u32 s{T+1}, s{T+1}, s{T+3}")
    e.i(f"s_add_u32 s{T+1}, s{T+1}, {WS_XT}")
    e.i(f"buffer_load_dwordx4 v[16:19], v{V_L16}, {rs(R_WS)}, s{T+1} offen sc1")
    e.i(f"buffer_load_dwordx4 v[20:23], v{V_L16}, {rs(R_WS)}, s{T+1} offen offset:1024 sc1")
    e.i(f"s_lshr_b32 s{T}, s{S_W}, 1")
    e.i(f"s_and_b32 s{T+2}, s{S_W}, 1")
    e.i(f"s_mul_i32 s{T+1}, s{T}, {X_CH}")
    e.i(f"s_mul_i32 s{T+3}, s{T+2}, {2048+256}")
    e.i(f"s_add_u32 s{T+1}, s{T+1}, s{T+3}")
    e.i(f"s_add_u32 s{T+1}, s{T+1}, {L_X + 512 + 64}")
    e.i(f"v_lshrrev_b32 v3, 4, v{V_LANE}")
    e.i(f"v_lshlrev_b32 v3, 5, v3")
    e.i(f"v_add3_u32 v3, v3, v{V_L16}, s{T+1}")
    e.i(f"v_bfe_u32 v8, v{V_LANE}, 4, 1")
    e.i(f"v_lshrrev_b32 v9, 5, v{V_LANE}")
    e.i(f"v_bfe_u32 v10, v{V_LANE}, 2, 2")
    e.i(f"v_and_b32 v11, 3, v{V_LANE}")
    e.i(f"v_lshlrev_b32 v12, 2, v8")
    e.i(f"v_add_u32 v12, v12, v11")
    e.i(f"v_lshl_add_u32 v13, v9, 3, v12")
    e.i(f"v_add_u32 v13, v13, v10")
    e.i(f"s_mul_i32 s{T+1}, s{T}, {H_CH}")
    e.i(f"s_add_u32 s{T+1}, s{T+1}, {L_H + 64 - 56}")
    e.i(f"v_lshlrev_b32 v13, 3, v13")
    e.i(f"v_add_u32 v{V_HA}, s{T+1}, v13")
    e.i(f"v_sub_u32 v12, v12, v9")
    e.i(f"v_lshlrev_b32 v12, 5, v12")
    e.i(f"v_lshlrev_b32 v10, 2, v10")
    e.i(f"v_sub_u32 v12, v12, v10")
    e.i(f"v_add_u32 v12, 28, v12")
    e.i(f"s_mul_i32 s{T+1}, s{T}, {X_CH}")
    e.i(f"s_add_u32 s{T+1}, s{T+1}, {L_X}")
    for par in range(2):
        for j in range(2):
            d = V_XA + 2*par + j
            e.i(f"v_add_u32 v13, {64*par - 16*j}, v12")
            e.i(f"v_ashrrev_i32 v14, 7, v13")
            e.i(f"v_lshlrev_b32 v14, 5, v14")
            e.i(f"v_lshl_add_u32 v13, v13, 1, v14")
            e.i(f"v_add_u32 v{d}, s{T+1}, v13")
    e.i("s_waitcnt vmcnt(0)")
    e.i(f"ds_write_b128 v3, v[16:19]")
    e.i(f"ds_write_b128 v3, v[20:23] offset:{1024+128}")
    swbar(e)
    stamp(e, cfg, 7)
    e.i(f"s_and_b32 s{T}, s{S_W}, 1")
    e.i(f"s_cmp_eq_u32 s{T}, 0")
    e.i("s_cbranch_scc0 L_conv_setB")
    conv_set(e, [0, 1, 6, 7])
    e.i("s_branch L_conv_post")
    e.label("L_conv_setB")
    conv_set(e, [2, 3, 4, 5])
    e.label("L_conv_post")
    stamp(e, cfg, 8)
    conv_post(e, cfg)

def conv_set(e, tiles):
    nmax = 4 * max(tiles) + 3
    steps = [[(t, T) for t, T in enumerate(tiles) if n <= 4*T + 3] for n in range(nmax + 1)]
    reads = []
    loaded = set()
    need_idx = []
    for n in range(nmax + 1):
        for j in range(2):
            reads.append((("H", n), f"ds_read_b64_tr_b16 {vr(HR+4*(n%8)+2*j,2)}, v{V_HA} offset:{128*n + 32*j}"))
        for t, T in steps[n]:
            v = 4*T - n
            if v in loaded: continue
            loaded.add(v)
            vp = v + 4
            q, par = vp >> 1, vp & 1
            for j in range(2):
                reads.append((("X", v), f"ds_read_b64_tr_b16 {vr(XFR+4*(vp-1)+2*j,2)}, v{V_XA+2*par+j} offset:{288*q}"))
        need_idx.append(len(reads) - 1)
    AHEAD = 14
    issued = 0
    first = {t: True for t in range(4)}
    for n in range(nmax + 1):
        target = min(len(reads), need_idx[n] + 1 + AHEAD)
        while issued < target:
            tag = reads[issued][0]
            if tag[0] == "H" and tag[1] > n + 7: break
            e.i(reads[issued][1]); issued += 1
        assert issued > need_idx[n]
        younger = issued - 1 - need_idx[n]
        e.i(f"s_waitcnt lgkmcnt({min(younger, 15)})")
        for t, T in steps[n]:
            vp = 4*T - n + 4
            acc = vr(CACC + 16*t, 16)
            c = "0" if first[t] else acc
            first[t] = False
            e.i(f"v_mfma_f32_32x32x16_bf16 {acc}, {vr(XFR+4*(vp-1),4)}, {vr(HR+4*(n%8),4)}, {c}")
    for t, T in enumerate(tiles):
        e.i(f"s_mov_b32 s{S_T1+t}, {T}")

def conv_post(e, cfg):
    T = S_T0
    e.i(f"s_mov_b32 s{S63}, 0")
    e.i(f"s_mov_b32 s{S63+1}, 0x80000000")
    e.i(f"s_lshr_b32 s{T}, s{S_W}, 1")
    e.i(f"s_mul_i32 s{T}, s{T}, 144")
    e.i(f"s_add_u32 s{T}, s{T}, {L_CARRY}")
    for t in range(4):
        e.i(f"s_lshl_b32 s{T+1}, s{S_T1+t}, 4")
        e.i(f"s_add_u32 s{T+1}, s{T+1}, s{T}")
        e.i(f"v_mov_b32 v{136+t}, s{T+1}")
    e.i(f"v_mov_b32 v140, s{T}")
    e.i("v_mov_b32 v141, 0")
    e.i("s_nop 1")
    R = lambda t, g, i: CACC + 16*t + 4*g + i
    EX = 128
    for t in range(4):
        e.i(f"v_add_f32_dpp v{EX+t}, v{R(t,3,3)}, v{R(t,3,2)} wave_ror:1 row_mask:0xf bank_mask:0xf")
    e.i("s_nop 0")
    for t in range(4):
        e.i(f"v_add_f32_dpp v{EX+4+t}, v{EX+t}, v{R(t,3,1)} wave_ror:1 row_mask:0xf bank_mask:0xf")
    e.i(f"s_mov_b64 exec, s[{S63}:{S63+1}]")
    for t in range(4):
        e.i(f"ds_write_b32 v{136+t}, v{R(t,3,3)} offset:16")
        e.i(f"ds_write_b32 v{136+t}, v{EX+t} offset:20")
        e.i(f"ds_write_b32 v{136+t}, v{EX+4+t} offset:24")
    e.i("ds_write_b32 v140, v141")
    e.i("ds_write_b32 v140, v141 offset:4")
    e.i("ds_write_b32 v140, v141 offset:8")
    e.i("s_mov_b64 exec, -1")
    swbar(e)
    PU, P1, P2 = 144, 148, 152
    for t in range(4):
        e.i(f"ds_read_b32 v{PU+t}, v{136+t}")
        e.i(f"ds_read_b32 v{P1+t}, v{136+t} offset:4")
        e.i(f"ds_read_b32 v{P2+t}, v{136+t} offset:8")
    e.i(f"s_lshr_b32 s{T}, s{S_W}, 1")
    e.i(f"s_mul_i32 s{T}, s{T}, {X_CH}")
    e.i(f"s_add_u32 s{T}, s{T}, {L_Y}")
    e.i(f"v_lshlrev_b32 v3, 1, v{V_LANE}")
    for t in range(4):
        e.i(f"s_lshl_b32 s{T+1}, s{S_T1+t}, 9")
        e.i(f"s_add_u32 s{T+1}, s{T+1}, s{T}")
        e.i(f"v_add_u32 v{140+t}, s{T+1}, v3")
    e.i("s_waitcnt lgkmcnt(0)")
    SEL = 156
    m63 = f"s[{S63}:{S63+1}]"
    prevU = [PU+t for t in range(4)]
    prev1 = [P1+t for t in range(4)]
    prev2 = [P2+t for t in range(4)]
    for g in range(4):
        cur1 = [160 + 4*(g & 1) + t for t in range(4)]
        cur2 = [168 + 4*(g & 1) + t for t in range(4)]
        for t in range(4):
            e.i(f"v_cndmask_b32 v{SEL+t}, v{R(t,g,3)}, v{prevU[t]}, {m63}")
        for t in range(4):
            e.i(f"v_add_f32_dpp v{cur1[t]}, v{SEL+t}, v{R(t,g,2)} wave_ror:1 row_mask:0xf bank_mask:0xf")
        for t in range(4):
            e.i(f"v_cndmask_b32 v{SEL+t}, v{cur1[t]}, v{prev1[t]}, {m63}")
        for t in range(4):
            e.i(f"v_add_f32_dpp v{cur2[t]}, v{SEL+t}, v{R(t,g,1)} wave_ror:1 row_mask:0xf bank_mask:0xf")
        for t in range(4):
            e.i(f"v_cndmask_b32 v{SEL+t}, v{cur2[t]}, v{prev2[t]}, {m63}")
        for t in range(4):
            e.i(f"v_add_f32_dpp v{R(t,g,0)}, v{SEL+t}, v{R(t,g,0)} wave_ror:1 row_mask:0xf bank_mask:0xf")
        prevU = [R(t,g,3) for t in range(4)]
        prev1 = cur1
        prev2 = cur2
        if g & 1:
            gp = g >> 1
            for t in range(4):
                e.i(f"v_cvt_pk_bf16_f32 v{128+2*t+gp}, v{R(t,g-1,0)}, v{R(t,g,0)}")
            for t in range(4):
                e.i(f"ds_write_b16 v{140+t}, v{128+2*t+gp} offset:{256*gp}")
                e.i(f"ds_write_b16_d16_hi v{140+t}, v{128+2*t+gp} offset:{256*gp+128}")
    e.i(f"s_lshr_b32 s{T+2}, s{S_W}, 1")
    e.i(f"s_lshl_b32 s{T+3}, s2, 1")
    e.i(f"s_add_u32 s{T+3}, s{T+3}, s{T+2}")
    e.i(f"s_lshl_b32 s{T+3}, s{T+3}, 12")
    e.i(f"s_add_u32 s{T+3}, s{T+3}, {WS_YT}")
    for pz in range(2):
        e.i(f"s_lshl_b32 s{T+1}, s{S_T1+2*pz}, 9")
        e.i(f"s_add_u32 s{T+4+pz}, s{T+1}, s{T+3}")
        e.i(f"s_add_u32 s{T+1}, s{T+1}, s{T}")
        e.i(f"v_add_u32 v{144+pz}, s{T+1}, v{V_L16}")
    e.i("s_waitcnt lgkmcnt(0)")
    for pz in range(2):
        e.i(f"ds_read_b128 {vr(160+4*pz,4)}, v{144+pz}")
    e.i("s_waitcnt lgkmcnt(1)")
    e.i(f"buffer_store_dwordx4 {vr(160,4)}, v{V_L16}, {rs(R_WS)}, s{T+4} offen sc1")
    e.i("s_waitcnt lgkmcnt(0)")
    e.i(f"buffer_store_dwordx4 {vr(164,4)}, v{V_L16}, {rs(R_WS)}, s{T+5} offen sc1")

SB = [16, 32]
PB = [48, 56]
OB = 64
QB = 128
def kvbuf(b): return KVB + 16 * (b & 3)

V_KVO = 235
def kv_load(e, b, advance=True):
    if advance:
        e.i(f"s_add_u32 s{S_KV+1}, s{S_KV+1}, 16384")
        e.i(f"s_and_b32 s{S_KV+1}, s{S_KV+1}, 0x3ffff")
    for f in range(4):
        e.i(f"buffer_load_dwordx4 {vr(kvbuf(b)+4*f,4)}, v{V_KVO}, {rs(R_WS)}, s{S_KV+1} offen offset:{1024*f} sc1")

def slot(e, j, s_next, pv, pre=None, loads=None):
    mf = []
    if s_next is not None:
        kb, jn = s_next
        Sx = vr(SB[jn & 1], 16)
        mf.append(f"v_mfma_f32_32x32x16_bf16 {Sx}, {vr(kvbuf(kb),4)}, {vr(QB+8*jn,4)}, 0")
        mf.append(f"v_mfma_f32_32x32x16_bf16 {Sx}, {vr(kvbuf(kb)+4,4)}, {vr(QB+8*jn+4,4)}, {Sx}")
    if pv is not None:
        vb, jp, first = pv
        O = vr(OB + 16*jp, 16)
        P = PB[jp & 1]
        mf.append(f"v_mfma_f32_32x32x16_bf16 {O}, {vr(kvbuf(vb)+8,4)}, {vr(P,4)}, {'0' if first else O}")
        mf.append(f"v_mfma_f32_32x32x16_bf16 {O}, {vr(kvbuf(vb)+12,4)}, {vr(P+4,4)}, {O}")
    groups = []
    if j is not None:
        Sx = SB[j & 1]; P = PB[j & 1]
        for g in range(4):
            gl = [f"v_exp_f32 v{Sx+4*g+i}, v{Sx+4*g+i}" for i in range(4)]
            gl.append(f"v_cvt_pk_bf16_f32 v{P+2*g}, v{Sx+4*g}, v{Sx+4*g+1}")
            gl.append(f"v_cvt_pk_bf16_f32 v{P+2*g+1}, v{Sx+4*g+2}, v{Sx+4*g+3}")
            groups.append(gl)
    if pre:
        for ln in pre: e.i(ln)
    n = max(len(mf), len(groups))
    for k in range(n):
        if k < len(mf): e.i(mf[k])
        if loads is not None and k == 2:
            loads()
        if k < len(groups):
            for ln in groups[k]: e.i(ln)

YL = 24
def b2_main(e, cfg):
    T = S_T0
    e.c("==== B2 attention ====")
    e.i(f"s_lshl_b32 s{T}, s{S_H}, 6")
    e.i(f"s_add_u32 s{T}, s{T}, s{S_W}")
    e.i(f"v_and_b32 v7, 15, v{V_LANE}")
    e.i(f"v_lshlrev_b32 v7, 2, v7")
    e.i(f"v_add_u32 v7, s{T}, v7")
    e.i(f"v_add_u32 v3, {L_Q}, v{V_L16}")
    for j in range(4):
        for f in range(2):
            e.i(f"ds_read_b128 {vr(QB+8*j+4*f,4)}, v3 offset:{2048*j+1024*f}")
    e.i(f"s_lshl_b32 s{S_KV}, s{S_H}, 18")
    e.i(f"s_lshl_b32 s{T}, s{S_W}, 12")
    e.i(f"s_add_u32 s{S_KV}, s{S_KV}, s{T}")
    if WS_KV: e.i(f"s_add_u32 s{S_KV}, s{S_KV}, {WS_KV}")
    e.i(f"v_add_u32 v{V_KVO}, s{S_KV}, v{V_L16}")
    poll(e, cfg, FL_B1, 7, "b1")
    if cfg.nosync: e.i("s_waitcnt vmcnt(0)")
    stamp(e, cfg, 10)
    e.i(f"s_mov_b32 s{S_SLOW}, 0")
    e.label("L_attn_start")
    e.i(f"s_lshl_b32 s{S_KV+1}, s{S_R}, 14")
    kv_load(e, 1); kv_load(e, 2); kv_load(e, 3)
    e.i("s_waitcnt lgkmcnt(0)")
    slot(e, None, (0, 0), None)
    e.i("s_nop 7")
    e.i("s_nop 3")
    slot(e, 0, (0, 1), None)
    slot(e, 1, (0, 2), (0, 0, True))
    slot(e, 2, (0, 3), (0, 1, True))
    slot(e, 3, (1, 0), (0, 2, True), pre=["s_waitcnt vmcnt(8)"])
    slot(e, 0, (1, 1), (0, 3, True))
    e.i(f"s_mov_b32 s{S_IT}, 0")
    e.i(".p2align 3")
    e.label("L_attn_loop")
    if cfg.stamps:
        e.i(f"{'s_memrealtime' if cfg.realtime else 's_memtime'} s[{S_TS}:{S_TS+1}]")
        e.i(f"s_add_u32 m0, s{S_IT}, 40")
        e.i("s_waitcnt lgkmcnt(0)")
        e.i(f"v_writelane_b32 v250, s{S_TS}, m0")
    for k in range(4):
        i = k + 1
        b, bn = i & 3, (i + 1) & 3
        slot(e, 1, (b, 2), (b, 0, False), loads=lambda: kv_load(e, (i + 3) & 3))
        slot(e, 2, (b, 3), (b, 1, False))
        slot(e, 3, (bn, 0), (b, 2, False), pre=["s_waitcnt vmcnt(8)"])
        slot(e, 0, (bn, 1), (b, 3, False))
        if k == 1:
            e.i(f"s_cmp_eq_u32 s{S_IT}, 3")
            e.i("s_cbranch_scc1 L_attn_tail")
    e.i(f"s_add_u32 s{S_IT}, s{S_IT}, 1")
    e.i("s_branch L_attn_loop")
    e.label("L_attn_tail")
    stamp(e, cfg, 44)
    slot(e, 1, (3, 2), (3, 0, False))
    slot(e, 2, (3, 3), (3, 1, False))
    slot(e, 3, None, (3, 2, False))
    e.i("s_nop 1")
    slot(e, None, None, (3, 3, False))
    stamp(e, cfg, 45)
    e.i("s_waitcnt vmcnt(0)")
    stamp(e, cfg, 11)
    e.i(f"s_mov_b32 s{T}, {f2u(2.0**-60)}")
    e.i(f"s_mov_b32 s{T+1}, {f2u(2.0**60)}")
    e.i(f"s_mov_b64 s[{T+2}:{T+3}], -1")
    for j in range(4):
        e.i(f"v_cmp_le_f32 vcc, s{T}, v{OB+16*j}")
        e.i(f"s_and_b64 s[{T+2}:{T+3}], s[{T+2}:{T+3}], vcc")
        e.i(f"v_cmp_ge_f32 vcc, s{T+1}, v{OB+16*j}")
        e.i(f"s_and_b64 s[{T+2}:{T+3}], s[{T+2}:{T+3}], vcc")
    e.i(f"s_cmp_eq_u64 s[{T+2}:{T+3}], -1")
    e.i(f"s_cselect_b32 s{T}, 0, 1")
    e.i(f"v_mov_b32 v3, s{T}")
    e.i(f"s_lshl_b32 s{T+1}, s{S_W}, 2")
    e.i(f"s_add_u32 s{T+1}, s{T+1}, {L_MISC}")
    e.i(f"v_mov_b32 v4, s{T+1}")
    e.i(f"ds_write_b32 v4, v3")
    for w in range(4):
        if w > 0: e.label(f"L_red_w{w}")
        if w < 3:
            e.i(f"s_cmp_lg_u32 s{S_W}, {w}")
            e.i(f"s_cbranch_scc1 L_red_w{w+1}")
        for j in range(4):
            if j == w: continue
            sl = j * 3 + ((w - j - 1) & 3)
            e.i(f"v_add_u32 v3, {L_RED + sl*4096}, v{V_L16}")
            for q4 in range(4):
                e.i(f"ds_write_b128 v3, {vr(OB+16*j+4*q4,4)} offset:{1024*q4}")
        for k in range(16):
            e.i(f"v_mov_b32 v{16+k}, v{OB+16*w+k}")
        if w < 3: e.i("s_branch L_red_done")
    e.label("L_red_done")
    e.i("s_waitcnt lgkmcnt(0)")
    e.i("s_barrier")
    e.i(f"v_mov_b32 v4, {L_MISC}")
    e.i(f"ds_read_b128 v[8:11], v4")
    e.i(f"s_mul_i32 s{T}, s{S_W}, {3*4096}")
    e.i(f"s_add_u32 s{T}, s{T}, {L_RED}")
    e.i(f"v_add_u32 v3, s{T}, v{V_L16}")
    for s_ in range(3):
        for q4 in range(4):
            e.i(f"ds_read_b128 {vr(64+16*s_+4*q4,4)}, v3 offset:{4096*s_+1024*q4}")
    e.i(f"s_lshl_b32 s{T}, s{S_R}, 2")
    e.i(f"s_add_u32 s{T}, s{T}, s{S_W}")
    e.i(f"s_lshl_b32 s{T}, s{T}, 4")
    e.i(f"s_add_u32 s{T}, s{T}, s{S_H}")
    e.i(f"s_lshl_b32 s{T}, s{T}, 11")
    e.i(f"s_add_u32 s{T+4}, s{T}, {WS_OF}")
    e.i("s_waitcnt lgkmcnt(12)")
    e.i("v_or_b32 v8, v8, v9")
    e.i("v_or3_b32 v8, v8, v10, v11")
    e.i("s_nop 0")
    e.i(f"v_readfirstlane_b32 s{T}, v8")
    e.i("s_nop 3")
    e.i(f"s_andn2_b32 s{T}, s{T}, s{S_SLOW}")
    e.i(f"s_cmp_lg_u32 s{T}, 0")
    e.i("s_cbranch_scc1 L_slow")
    for s_ in range(3):
        e.i(f"s_waitcnt lgkmcnt({8-4*s_})")
        for k in range(16):
            e.i(f"v_add_f32 v{16+k}, v{16+k}, v{64+16*s_+k}")
    e.i("v_rcp_f32 v3, v16")
    e.i("s_nop 0")
    for k in range(16):
        if k in (0, 8): continue
        e.i(f"v_mul_f32 v{16+k}, v{16+k}, v3")
    for m in range(8):
        if m in (0, 4):
            e.i(f"v_cvt_pk_bf16_f32 v{32+m}, 0, v{16+2*m+1}")
        else:
            e.i(f"v_cvt_pk_bf16_f32 v{32+m}, v{16+2*m}, v{16+2*m+1}")
    e.i(f"buffer_store_dwordx4 v[32:35], v{V_L16}, {rs(R_WS)}, s{T+4} offen sc1")
    e.i(f"buffer_store_dwordx4 v[36:39], v{V_L16}, {rs(R_WS)}, s{T+4} offen offset:1024 sc1")

def b2_slow(e, cfg):
    T = S_T0
    e.c("==== slow path: true row max ====")
    e.label("L_slow")
    e.i("s_waitcnt vmcnt(0) lgkmcnt(0)")
    M = 48
    for j in range(4): e.i(f"v_mov_b32 v{M+j}, 0xff800000")
    e.i(f"s_mov_b32 s{S_KV+1}, 0")
    e.label("L_slow_loop")
    for f in range(2):
        e.i(f"buffer_load_dwordx4 {vr(KVB+4*f,4)}, v{V_KVO}, {rs(R_WS)}, s{S_KV+1} offen offset:{1024*f} sc1")
    e.i("s_waitcnt vmcnt(0)")
    for j in range(4):
        e.i(f"v_mfma_f32_32x32x16_bf16 v[16:31], {vr(KVB,4)}, {vr(QB+8*j,4)}, 0")
        e.i(f"v_mfma_f32_32x32x16_bf16 v[16:31], {vr(KVB+4,4)}, {vr(QB+8*j+4,4)}, v[16:31]")
        e.i("s_nop 7"); e.i("s_nop 7")
        for k in range(0, 16, 2):
            e.i(f"v_max3_f32 v{M+j}, v{16+k}, v{17+k}, v{M+j}")
        e.i("s_nop 7")
    e.i(f"s_add_u32 s{S_KV+1}, s{S_KV+1}, 16384")
    e.i(f"s_cmp_lt_u32 s{S_KV+1}, {16*16384}")
    e.i("s_cbranch_scc1 L_slow_loop")
    for j in range(4):
        e.i(f"v_mov_b32 v{52+j}, v{M+j}")
    e.i("s_nop 1")
    for j in range(4):
        e.i(f"v_permlane32_swap_b32 v{52+j}, v{M+j}")
    e.i("s_nop 1")
    for j in range(4):
        e.i(f"v_max_f32 v{M+j}, v{52+j}, v{M+j}")
    e.i("s_barrier")
    e.i(f"s_lshl_b32 s{T}, s{S_W}, 10")
    e.i(f"s_add_u32 s{T}, s{T}, {L_RED}")
    e.i(f"v_add_u32 v3, s{T}, v{V_L16}")
    e.i(f"ds_write_b128 v3, {vr(M,4)}")
    e.i("s_waitcnt lgkmcnt(0)")
    e.i("s_barrier")
    e.i(f"v_add_u32 v3, {L_RED}, v{V_L16}")
    for w in range(4):
        e.i(f"ds_read_b128 {vr(16+4*w,4)}, v3 offset:{1024*w}")
    e.i("s_waitcnt lgkmcnt(0)")
    for j in range(4):
        e.i(f"v_max3_f32 v{M+j}, v{16+j}, v{20+j}, v{24+j}")
        e.i(f"v_max_f32 v{M+j}, v{M+j}, v{28+j}")
    e.i(f"s_mov_b32 s{T}, 0xffff")
    for j in range(4):
        e.i(f"v_sub_f32 v16, 0, v{M+j}")
        e.i(f"v_cvt_pk_bf16_f32 v17, v16, v16")
        e.i(f"v_lshlrev_b32 v18, 16, v17")
        e.i(f"v_sub_f32 v16, v16, v18")
        e.i(f"v_cvt_pk_bf16_f32 v19, v16, v16")
        e.i(f"v_lshlrev_b32 v18, 16, v19")
        e.i(f"v_sub_f32 v16, v16, v18")
        e.i(f"v_bfi_b32 v17, s{T}, v17, v19")
        e.i(f"v_cvt_pk_bf16_f32 v18, v16, 0")
        e.i(f"v_cndmask_b32 v{QB+8*j+6}, v{QB+8*j+6}, v17, s[{S_MHH}:{S_MHH+1}]")
        e.i(f"v_cndmask_b32 v{QB+8*j+7}, v{QB+8*j+7}, v18, s[{S_MHH}:{S_MHH+1}]")
    e.i(f"s_mov_b32 s{S_SLOW}, 1")
    e.i(f"s_lshl_b32 s{S_KV+1}, s{S_R}, 14")
    kv_load(e, 0, advance=False)
    e.i("s_waitcnt vmcnt(0)")
    e.i("s_barrier")
    e.i("s_branch L_attn_start")

def a3_main(e, cfg):
    T = S_T0
    e.c("==== A3: out_a = q * y ====")
    a3_qaddr(e, cfg)
    e.i(f"buffer_load_dwordx4 {vr(QPF,4)}, v{V_A3OFF}, {rs(R_Q)}, 0 offen")
    e.i(f"s_mov_b32 s{T+1}, 7168")
    e.i(f"buffer_load_dwordx4 {vr(QPF+4,4)}, v{V_A3OFF}, {rs(R_Q)}, s{T+1} offen")
    e.i(f"s_lshr_b32 s{T}, s{S_RB}, 2")
    e.i(f"s_add_u32 s{T}, s{T}, 2")
    e.i(f"s_and_b32 s{T}, s{T}, 7")
    e.i(f"s_lshr_b32 s{T}, s{T}, 2")
    e.i(f"s_lshl_b32 s{T+1}, s{S_CB}, 6")
    e.i(f"s_lshl_b32 s{T+2}, s{S_W}, 4")
    e.i(f"s_add_u32 s{T+1}, s{T+1}, s{T+2}")
    e.i(f"v_and_b32 v7, 15, v{V_LANE}")
    e.i(f"v_add_u32 v7, s{T+1}, v7")
    e.i(f"v_lshrrev_b32 v8, 1, v7")
    e.i(f"v_and_b32 v7, 1, v7")
    e.i(f"v_lshlrev_b32 v7, 1, v7")
    e.i(f"v_lshl_add_u32 v7, v8, 2, v7")
    e.i(f"v_add_u32 v7, s{T}, v7")
    poll(e, cfg, FL_A2, 7, "a2", tmp=8)
    stamp(e, cfg, 12)
    e.i(f"s_lshl_b32 s{T}, s{S_CB}, 6")
    e.i(f"s_lshl_b32 s{T+1}, s{S_W}, 4")
    e.i(f"s_add_u32 s{T}, s{T}, s{T+1}")
    e.i(f"s_lshl_b32 s{T}, s{T}, 12")
    e.i(f"s_lshl_b32 s{T+1}, s{S_RB}, 7")
    e.i(f"s_add_u32 s{T}, s{T}, s{T+1}")
    e.i(f"s_add_u32 s{T}, s{T}, {WS_YT}")
    e.i(f"s_add_u32 s{T+1}, s{T}, {8*4096}")
    e.i(f"v_lshrrev_b32 v3, 3, v{V_LANE}")
    e.i(f"v_lshlrev_b32 v13, 12, v3")
    e.i(f"v_and_b32 v14, 7, v{V_LANE}")
    e.i(f"v_lshl_add_u32 v13, v14, 4, v13")
    e.i(f"buffer_load_dwordx4 {vr(YL,4)}, v13, {rs(R_WS)}, s{T} offen sc1")
    e.i(f"buffer_load_dwordx4 {vr(YL+4,4)}, v13, {rs(R_WS)}, s{T+1} offen sc1")
    e.i(f"v_mul_u32_u24 v3, 144, v3")
    e.i(f"v_lshl_add_u32 v15, v14, 4, v3")
    e.i(f"s_mul_i32 s{T}, s{S_W}, {16*144}")
    e.i(f"s_add_u32 s{T+1}, s{T}, {L_A3}")
    e.i(f"v_add_u32 v3, s{T+1}, v15")
    e.i(f"s_add_u32 s{T+1}, s{T}, {L_A3R}")
    e.i(f"v_add_u32 v12, s{T+1}, v15")
    e.i(f"v_and_b32 v8, 15, v{V_LANE}")
    e.i(f"v_mul_u32_u24 v8, 144, v8")
    e.i(f"v_and_b32 v9, 0x30, v{V_LANE}")
    e.i(f"v_add3_u32 v8, v8, v9, s{T+1}")
    e.i(f"v_lshrrev_b32 v13, 4, v{V_LANE}")
    e.i(f"v_lshlrev_b32 v13, 3, v13")
    e.i(f"v_bfe_u32 v14, v{V_LANE}, 2, 2")
    e.i(f"v_add_u32 v13, v13, v14")
    e.i(f"v_mul_u32_u24 v13, 144, v13")
    e.i(f"v_and_b32 v14, 3, v{V_LANE}")
    e.i(f"v_lshlrev_b32 v14, 3, v14")
    e.i(f"s_lshl_b32 s{T}, s{S_W}, 5")
    e.i(f"s_add_u32 s{T}, s{T}, {L_A3}")
    e.i(f"v_add3_u32 v13, v13, v14, s{T}")
    e.i("s_waitcnt vmcnt(0)")
    e.i(f"ds_write_b128 v3, {vr(YL,4)}")
    e.i(f"ds_write_b128 v3, {vr(YL+4,4)} offset:{8*144}")
    swbar(e)
    for it in range(2):
        for jj in range(2):
            e.i(f"ds_read_b64_tr_b16 {vr(16+4*it+2*jj,2)}, v13 offset:{(32*it+4*jj)*144}")
    e.i("s_waitcnt lgkmcnt(2)")
    e.i(f"ds_write_b128 v8, v[16:19]")
    e.i("s_waitcnt lgkmcnt(1)")
    e.i(f"ds_write_b128 v8, v[20:23] offset:64")
    e.i("s_waitcnt lgkmcnt(0)")
    e.i(f"ds_read_b128 v[16:19], v12")
    e.i(f"ds_read_b128 v[20:23], v12 offset:{8*144}")
    e.i(f"s_mov_b32 s{T}, 0xffff0000")
    e.i("s_waitcnt lgkmcnt(0)")
    for it in range(2):
        for m in range(4):
            y = 16 + 4*it + m; q = QPF + 4*it + m
            e.i(f"v_lshlrev_b32 v24, 16, v{y}")
            e.i(f"v_and_b32 v25, s{T}, v{y}")
            e.i(f"v_lshlrev_b32 v26, 16, v{q}")
            e.i(f"v_and_b32 v27, s{T}, v{q}")
            e.i(f"v_mul_f32 v24, v24, v26")
            e.i(f"v_mul_f32 v25, v25, v27")
            e.i(f"v_cvt_pk_bf16_f32 v{32+4*it+m}, v24, v25")
    e.i(f"buffer_store_dwordx4 v[32:35], v{V_A3OFF+1}, {rs(R_OUT)}, 0 offen{OUTF[0]}")
    e.i(f"s_mov_b32 s{T}, {8*1792}")
    e.i(f"buffer_store_dwordx4 v[36:39], v{V_A3OFF+1}, {rs(R_OUT)}, s{T} offen{OUTF[0]}")

def b3_main(e, cfg):
    T = S_T0
    e.c("==== B3: out projection ====")
    e.i(f"s_lshr_b32 s{T}, s{S_W}, 1")
    e.i(f"s_lshl_b32 s{T+1}, s{S_RB}, 1")
    e.i(f"s_add_u32 s{T+2}, s{T}, s{T+1}")
    e.i(f"s_and_b32 s{T+3}, s{S_W}, 1")
    e.i(f"s_lshl_b32 s{T+4}, s{T+3}, 9")
    e.i(f"s_add_u32 s{T+4}, s{T+4}, s{T+2}")
    e.i(f"v_and_b32 v7, 7, v{V_LANE}")
    e.i(f"v_lshlrev_b32 v7, 6, v7")
    e.i(f"v_add_u32 v7, s{T+4}, v7")
    poll(e, cfg, FL_B2, 7, "b2")
    stamp(e, cfg, 14)
    e.i(f"s_lshr_b32 s{T}, s{S_W}, 1")
    e.i(f"s_lshl_b32 s{T+1}, s{S_RB}, 1")
    e.i(f"s_add_u32 s{T+2}, s{T}, s{T+1}")
    e.i(f"s_and_b32 s{T+3}, s{S_W}, 1")
    e.i(f"s_lshl_b32 s{T+2}, s{T+2}, 15")
    e.i(f"s_lshl_b32 s{T+4}, s{T+3}, 14")
    e.i(f"s_add_u32 s{T+2}, s{T+2}, s{T+4}")
    e.i(f"s_add_u32 s{T+2}, s{T+2}, {WS_OF}")
    e.i(f"s_lshl_b32 s{T}, s{T}, 15")
    e.i(f"s_add_u32 s{T}, s{T}, s{T+4}")
    e.i(f"s_add_u32 s{T}, s{T}, {L_OF}")
    for u in range(16):
        e.i(f"s_add_u32 m0, s{T}, {1024*u}")
        if u == 0: e.i("s_nop 0")
        e.i(f"buffer_load_dwordx4 v{V_L16}, {rs(R_WS)}, s{T+2} offen sc1 lds")
        if u < 15: e.i(f"s_add_u32 s{T+2}, s{T+2}, 1024")
    e.i(f"v_lshrrev_b32 v8, 5, v{V_LANE}")
    e.i(f"v_mul_u32_u24 v8, 7, v8")
    e.i(f"v_bfe_u32 v9, v{V_LANE}, 2, 2")
    e.i(f"v_add_u32 v8, v8, v9")
    e.i(f"v_bfe_u32 v9, v{V_LANE}, 4, 1")
    e.i(f"v_lshlrev_b32 v9, 5, v9")
    e.i(f"v_and_b32 v10, 3, v{V_LANE}")
    e.i(f"v_lshl_add_u32 v9, v10, 3, v9")
    for f in range(2):
        e.i(f"v_add_u32 v10, {14*f}, v8")
        e.i(f"v_bfe_u32 v11, v10, 1, 1")
        e.i(f"v_xor_b32 v11, s{T+3}, v11")
        e.i(f"v_lshlrev_b32 v11, 6, v11")
        e.i(f"v_lshl_add_u32 v10, v10, 7, v11")
        e.i(f"v_add_u32 v{12+f}, v10, v9")
        if L_WO: e.i(f"v_add_u32 v{12+f}, {L_WO}, v{12+f}")
    e.i(f"s_lshr_b32 s{T}, s{S_W}, 1")
    e.i(f"s_lshl_b32 s{T}, s{T}, 15")
    e.i(f"s_add_u32 s{T}, s{T}, {L_OF}")
    e.i(f"v_add_u32 v15, s{T}, v{V_L16}")
    e.i(f"s_mul_i32 s{T}, s{S_W}, 2560")
    e.i(f"s_add_u32 s{T}, s{T}, {L_OUTB}")
    e.i(f"v_and_b32 v8, 31, v{V_LANE}")
    e.i(f"v_mul_u32_u24 v8, 80, v8")
    e.i(f"v_lshrrev_b32 v9, 5, v{V_LANE}")
    e.i(f"v_lshlrev_b32 v9, 3, v9")
    e.i(f"v_add3_u32 v8, v8, v9, s{T}")
    e.i(f"v_lshrrev_b32 v9, 2, v{V_LANE}")
    e.i(f"v_mul_u32_u24 v10, 80, v9")
    e.i(f"v_and_b32 v11, 3, v{V_LANE}")
    e.i(f"v_lshlrev_b32 v11, 4, v11")
    e.i(f"v_add3_u32 v10, v10, v11, s{T}")
    e.i(f"s_lshl_b32 s{T}, s{S_RB}, 6")
    e.i(f"s_lshr_b32 s{T+2}, s{S_W}, 1")
    e.i(f"s_lshl_b32 s{T+2}, s{T+2}, 5")
    e.i(f"s_add_u32 s{T}, s{T}, s{T+2}")
    e.i(f"s_mul_i32 s{T}, s{T}, 1792")
    e.i(f"s_lshl_b32 s{T+2}, s{S_CB}, 7")
    e.i(f"s_lshl_b32 s{T+3}, s{T+3}, 6")
    e.i(f"s_add_u32 s{T}, s{T}, s{T+2}")
    e.i(f"s_add_u32 s{T}, s{T}, s{T+3}")
    e.i(f"s_add_u32 s{T}, s{T}, 896")
    e.i(f"v_mul_u32_u24 v9, 1792, v9")
    e.i(f"v_add3_u32 v14, v9, v11, s{T}")
    e.i("s_waitcnt vmcnt(0)")
    e.i("s_barrier")
    steps = [(h, f) for h in range(16) for f in range(2)]
    NB = 4
    def rd(k):
        h, f = steps[k]
        b = 32 + 8*(k % NB)
        for jj in range(2):
            e.i(f"ds_read_b64_tr_b16 {vr(b+2*jj,2)}, v{12+f} offset:{(28*h+4*jj)*128}")
        e.i(f"ds_read_b128 {vr(b+4,4)}, v15 offset:{1024*k}")
    for k in range(NB-1): rd(k)
    for k in range(32):
        if k + NB - 1 < 32: rd(k + NB - 1)
        nyl = 3 * min(NB - 1, 31 - k)
        e.i(f"s_waitcnt lgkmcnt({nyl})")
        b = 32 + 8*(k % NB)
        e.i(f"v_mfma_f32_32x32x16_bf16 v[16:31], {vr(b,4)}, {vr(b+4,4)}, {'0' if k == 0 else 'v[16:31]'}")
    e.i("s_nop 7"); e.i("s_nop 7")
    for m in range(8):
        e.i(f"v_cvt_pk_bf16_f32 v{48+m}, v{16+2*m}, v{17+2*m}")
    for g in range(4):
        e.i(f"ds_write_b64 v8, {vr(48+2*g,2)} offset:{16*g}")
    e.i("s_waitcnt lgkmcnt(0)")
    e.i(f"ds_read_b128 v[56:59], v10")
    e.i(f"ds_read_b128 v[60:63], v10 offset:{16*80}")
    e.i(f"s_mov_b32 s{T}, {16*1792}")
    e.i("s_waitcnt lgkmcnt(1)")
    e.i(f"buffer_store_dwordx4 v[56:59], v14, {rs(R_OUT)}, 0 offen{OUTF[0]}")
    e.i("s_waitcnt lgkmcnt(0)")
    e.i(f"buffer_store_dwordx4 v[60:63], v14, {rs(R_OUT)}, s{T} offen{OUTF[0]}")

def dump_stamps(e, cfg, wave_off):
    T = S_T0
    if cfg.stamps:
        e.i(f"s_lshl_b32 s{T}, s2, 3")
        e.i(f"s_add_u32 s{T}, s{T}, s{S_W}")
        if wave_off: e.i(f"s_add_u32 s{T}, s{T}, {wave_off}")
        e.i(f"s_lshl_b32 s{T}, s{T}, 8")
        e.i(f"s_add_u32 s{T}, s{T}, {WS_TS}")
        e.i(f"v_lshlrev_b32 v3, 2, v{V_LANE}")
        e.i(f"buffer_store_dword v{vts()}, v3, {rs(R_WS)}, s{T} offen")

def role_b(e, cfg):
    T = S_T0
    ROLE[0] = "B"
    ids_b(e, cfg)
    addr_b(e, cfg)
    swbar_init(e)
    if cfg.stamps: e.i(f"v_mov_b32 v{vts()}, 0")
    e.i("s_waitcnt lgkmcnt(0)")
    if cfg.stamps: e.i(f"v_writelane_b32 v{vts()}, s{S_TS}, 16")
    e.i("s_barrier")
    e.i("s_setprio 2")
    stamp(e, cfg, 17)
    b1_consts(e)
    if cfg.bdelay: e.i(f"s_sleep {cfg.bdelay}")
    b1_issue(e); b1_issue(e); b1_issue(e)
    nonce_early(e, cfg)
    stamp(e, cfg, 19)
    b1_traddr(e, cfg)
    stamp(e, cfg, 21)
    b1_loop(e, cfg)
    stamp(e, cfg, 3)
    e.i(f"v_mov_b32 v4, {L_CNTRD}")
    sw_arrive(e, addr=4)
    get_nonce(e, cfg)
    b1_epilogue(e, cfg)
    swbar(e)
    e.i("s_waitcnt vmcnt(0)")
    publish(e, cfg, FL_B1, [f"s_lshl_b32 s{T}, s{S_H}, 4", f"s_add_u32 s{T}, s{T}, s{S_R}"])
    e.i("s_setprio 0")
    stamp(e, cfg, 4)
    if cfg.stop_after >= 3:
        b2_main(e, cfg)
        e.i("s_waitcnt vmcnt(0)")
        publish(e, cfg, FL_B2, [f"s_lshl_b32 s{T}, s{S_H}, 4", f"s_add_u32 s{T}, s{T}, s{S_R}"], tmp=4)
        stamp(e, cfg, 12)
    if cfg.stop_after >= 4:
        e.i("s_cmp_ge_u32 s2, 224")
        e.i("s_cbranch_scc1 L_finB")
        b3_main(e, cfg)
        e.label("L_finB")
    stamp(e, cfg, 15)
    dump_stamps(e, cfg, 0)

def role_a(e, cfg):
    T = S_T0
    ROLE[0] = "A"
    e.label("L_roleA")
    e.i("s_setprio 3")
    e.i(f"s_sub_u32 s{S_W}, s{S_W}, 4")
    addr_a(e, cfg)
    swbar_init(e)
    if cfg.stamps: e.i(f"v_mov_b32 v{vts()}, 0")
    e.i("s_waitcnt lgkmcnt(0)")
    if cfg.stamps: e.i(f"v_writelane_b32 v{vts()}, s{S_TS}, 16")
    e.i("s_barrier")
    stamp(e, cfg, 17)
    if cfg.await_b:
        e.i(f"v_mov_b32 v8, {L_CNTB}")
        sw_wait(e, 8, target_imm=4*cfg.await_b, sleep=4)
    stamp(e, cfg, 19)
    a1_loads(e, cfg)
    a2_dload(e, cfg)
    e.i(f"s_or_b32 s{T}, s2, s{S_W}")
    e.i("s_cbranch_scc1 L_nononce")
    e.i(f"s_memrealtime s[{S_NONCE}:{S_NONCE+1}]")
    e.i("s_waitcnt lgkmcnt(0)")
    e.i(f"s_or_b32 s{S_NONCE}, s{S_NONCE}, 1")
    e.i(f"v_mov_b32 v76, s{S_NONCE}")
    e.i(f"v_mov_b32 v77, s{S_NONCE+1}")
    e.i("v_mov_b32 v78, 0")
    e.i("s_mov_b64 exec, 1")
    e.i(f"buffer_store_dwordx2 v[76:77], v78, {rs(R_DBG)}, 0 offen sc1")
    e.i("s_mov_b64 exec, -1")
    e.label("L_nononce")
    a1_compute(e, cfg, 0)
    stamp(e, cfg, 18)
    nonce_early(e, cfg)
    a1_compute_b(e, cfg)
    stamp(e, cfg, 1)
    e.i("s_waitcnt vmcnt(0)")
    get_nonce(e, cfg)
    publish(e, cfg, FL_A1, [f"s_mov_b32 s{T}, s2"], tmp=24)
    e.i("s_setprio 1")
    stamp(e, cfg, 2)
    e.i("s_cmp_ge_u32 s2, 224")
    e.i("s_cbranch_scc1 L_finA")
    h_loads(e, cfg)
    swbar(e)
    e.i("s_waitcnt vmcnt(0)")
    a2_hstage(e, cfg)
    if cfg.stop_after >= 2:
        a2_main(e, cfg)
        stamp(e, cfg, 9)
        e.i("s_waitcnt vmcnt(0)")
        publish(e, cfg, FL_A2, [f"s_mov_b32 s{T}, s2"])
        stamp(e, cfg, 10)
    if cfg.stop_after >= 4:
        wo_addr(e, cfg)
        e.i(f"v_mov_b32 v4, {L_CNTRD}")
        sw_wait(e, 4, target_imm=4, sleep=8)
        wo_first(e, cfg)
        for t in range(13): wo_next(e)
        stamp(e, cfg, 11)
        a3_main(e, cfg)
        e.i("s_waitcnt vmcnt(0)")
    e.label("L_finA")
    stamp(e, cfg, 15)
    dump_stamps(e, cfg, 4)

def build(cfg):
    e = E()
    prologue(e, cfg)
    role_b(e, cfg)
    e.label("L_end")
    e.i("s_endpgm")
    role_a(e, cfg)
    e.i("s_endpgm")
    if cfg.stop_after >= 3:
        ROLE[0] = "B"
        b2_slow(e, cfg)
        e.i("s_endpgm")
    return e

HEADER = f"""; Kernarg layout (96 bytes): A_q A_k A_v A_shift_k A_ssm_k A_ssm_D B_x B_wqkv B_wo out debug ws
; @launch grid=(256,1,1) block=(512,1,1) lds={LDS_SIZE}
.amdgcn_target "amdgcn-amd-amdhsa--gfx950"
.text
.globl {KNAME}
.p2align 8
.type {KNAME},@function
{KNAME}:
"""
FOOTER = f"""
.section .rodata,"a"
.p2align 6
.amdhsa_kernel {KNAME}
  .amdhsa_next_free_vgpr 256
  .amdhsa_next_free_sgpr 102
  .amdhsa_accum_offset 256
  .amdhsa_group_segment_fixed_size 0
  .amdhsa_kernarg_size 96
  .amdhsa_user_sgpr_count 2
  .amdhsa_user_sgpr_kernarg_segment_ptr 1
  .amdhsa_system_sgpr_workgroup_id_x 1
  .amdhsa_float_denorm_mode_32 3
.end_amdhsa_kernel
"""

if __name__ == "__main__":
    import argparse
    ap = argparse.ArgumentParser()
    ap.add_argument("-o", default=f"cdna_kernels/{NAME}.s")
    ap.add_argument("--stop", type=int, default=99)
    ap.add_argument("--stamps", action="store_true")
    ap.add_argument("--nosync", action="store_true")
    ap.add_argument("--realtime", action="store_true")
    ap.add_argument("--noprefetch", action="store_true")
    ap.add_argument("--span", action="store_true")
    ap.add_argument("--skipA", action="store_true")
    ap.add_argument("--bdelay", type=int, default=0)
    ap.add_argument("--awaitb", type=int, default=0)
    ap.add_argument("--outflag", default="")
    ap.add_argument("--xmap", type=int, default=4)
    a = ap.parse_args()
    cfg = Cfg(); cfg.stop_after = a.stop; cfg.stamps = a.stamps; cfg.nosync = a.nosync; cfg.realtime = a.realtime; cfg.prefetch = not a.noprefetch; cfg.span = a.span; cfg.skipA = a.skipA; cfg.bdelay = a.bdelay; cfg.await_b = a.awaitb; cfg.outflag = a.outflag; OUTF[0] = (' ' + a.outflag) if a.outflag else ''; cfg.xmap = a.xmap
    e = build(cfg)
    open(a.o, "w").write(HEADER + e.text() + FOOTER)
    print("wrote", a.o, len(e.lines), "lines")
```

```python
import sys, math, struct

NAME = "concat_heads__ssm_conv_h3__softmax_full_mha__prompt"
KNAME = NAME + "_kernel"

class E:
    def __init__(self):
        self.lines = []
    def c(self, s):
        self.lines.append("    ; " + s)
    def i(self, s):
        self.lines.append("    " + s)
    def label(self, s):
        self.lines.append(s + ":")
    def text(self):
        return "\n".join(self.lines) + "\n"

def vr(a, n=1):
    return f"v{a}" if n == 1 else f"v[{a}:{a+n-1}]"
def ar(a, n=1):
    return f"a{a}" if n == 1 else f"a[{a}:{a+n-1}]"
def rs(r): return f"s[{r}:{r+3}]"

S, D, H, DH = 2048, 448, 16, 28
SZ_SD   = S * D * 2
SZ_SHK  = D * 4 * 2
SZ_WQKV = D * 3 * D * 2
SZ_WO   = D * D * 2
SZ_OUT  = S * 2 * D * 2
WS_KV = 0x000000
WS_XT = 0x400000
WS_YT = 0x600000
WS_OF = 0x800000
WS_FL = 0xA00000
FL_A1, FL_B1, FL_A2, FL_B2 = 0, 0x10000, 0x20000, 0x30000
FL_SH = 6
WS_TS = 0xB00000
WS_SIZE = 0xC00000

L_RING = 0
NSLOT  = 3
SLOT   = 24576
L_WQ   = 73728
L_Q    = 102400
L_WO   = 0
L_RED  = 58368
L_OF   = 58368
LA     = 123904
L_KS   = LA
L_SHK  = LA + 12288
L_KVT  = LA + 16384
L_H    = LA + 25600
H_CH   = 4160
L_X    = LA
X_CH   = 5248
L_CARRY= LA + 10496
L_Y    = L_X
L_A3   = LA + 12288
L_A3R  = LA
L_OUTB = LA
L_MISC = LA + 33920
L_CNTA, L_CNTB, L_CNTRD = L_MISC + 16, L_MISC + 20, L_MISC + 24
LDS_SIZE = LA + 33920 + 64

S_W = 3
R_K, R_V, R_Q, R_SHK, R_SSMK, R_X, R_WQKV, R_WO, R_OUT, R_WS, R_DBG = 4, 8, 12, 16, 20, 24, 28, 32, 36, 40, 44
S_H, S_R, S_CB, S_RB = 48, 49, 50, 51
S_NONCE = 52
S_D2 = 54
S_DP = 62
S_T0 = 56
S_MHH = 64
S_MONE = 66
S63 = 68
S_KV = 70
S_J = 76
S_JJ = 77
S_SLI = 78
S_SLC = 79
S_XB = 80
S_WOI = 81
S_T1 = 88
S_SLOW = 96
S_IT = 97
S_TS = 98
S_BT = 55

QSCALE = (DH ** -0.5) * math.log2(math.e)
def f2u(x): return struct.unpack("<I", struct.pack("<f", x))[0]

class Cfg:
    stop_after = 99
    stamps = False
    nosync = False
    realtime = False
    prefetch = True
    span = False
    skipA = False
    bdelay = 0
    await_b = 0
    tags = False
    outflag = ''
    xmap = 4

ROLE = ["B"]
OUTF = ['']
def vts(): return 250 if ROLE[0] == "B" else 63
def stamp(e, cfg, idx):
    if not cfg.stamps: return
    e.c(f"stamp {idx}")
    e.i(f"{'s_memrealtime' if cfg.realtime else 's_memtime'} s[{S_TS}:{S_TS+1}]")
    e.i("s_waitcnt lgkmcnt(0)")
    e.i(f"v_writelane_b32 v{vts()}, s{S_TS}, {idx}")

def bar_regs():
    return (247, 248, 249) if ROLE[0] == "B" else (60, 61, 62)
BARN = [0]
def swbar_init(e):
    a, one, tmp = bar_regs()
    e.i(f"v_mov_b32 v{a}, {L_CNTB if ROLE[0] == 'B' else L_CNTA}")
    e.i(f"v_mov_b32 v{one}, 1")
    e.i(f"s_mov_b32 s{S_BT}, 0")
def sw_arrive(e, addr=None):
    a, one, tmp = bar_regs()
    e.i("s_mov_b64 exec, 1")
    e.i(f"ds_add_u32 v{addr if addr is not None else a}, v{one}")
    e.i("s_mov_b64 exec, -1")
def sw_wait(e, addr, target_sgpr=None, target_imm=None, sleep=None):
    a, one, tmp = bar_regs()
    BARN[0] += 1
    n = BARN[0]
    e.i(f"s_mov_b32 s{S_IT}, 0x100000")
    e.label(f"L_sw{n}")
    e.i(f"ds_read_b32 v{tmp}, v{addr}")
    e.i("s_waitcnt lgkmcnt(0)")
    e.i(f"v_readfirstlane_b32 s95, v{tmp}")
    e.i(f"s_cmp_ge_u32 s95, {('s%d' % target_sgpr) if target_sgpr is not None else target_imm}")
    e.i(f"s_cbranch_scc1 L_swd{n}")
    if sleep is None: sleep = 1 if ROLE[0] == "A" else 0
    if sleep: e.i(f"s_sleep {sleep}")
    e.i(f"s_sub_u32 s{S_IT}, s{S_IT}, 1")
    e.i(f"s_cbranch_scc0 L_sw{n}")
    e.label(f"L_swd{n}")
def swbar(e):
    a, one, tmp = bar_regs()
    e.i(f"s_add_u32 s{S_BT}, s{S_BT}, 4")
    sw_arrive(e)
    sw_wait(e, a, target_sgpr=S_BT)

V_LANE, V_L16 = 1, 2
V_TS = 250

def prologue(e, cfg):
    e.c("==== prologue ====")
    ptrs = [(R_K, 8), (R_V, 16), (R_SHK, 24), (R_X, 48), (R_WQKV, 56), (R_SSMK, 32), (R_Q, 0), (R_WO, 64), (R_OUT, 72), (R_DBG, 80), (R_WS, 88), (S_DP, 40)]
    for r, off in ptrs:
        e.i(f"s_load_dwordx2 s[{r}:{r+1}], s[0:1], {off}")
    if cfg.span: e.i("s_memrealtime s[100:101]")
    e.i("s_cmp_ge_u32 s2, 256")
    e.i("s_cbranch_scc1 L_end")
    if cfg.stamps:
        e.i(f"s_memrealtime s[{S_TS}:{S_TS+1}]" if cfg.realtime else f"s_memtime s[{S_TS}:{S_TS+1}]")
    e.i(f"v_lshrrev_b32 v3, 6, v0")
    e.i(f"v_and_b32 v{V_LANE}, 63, v0")
    e.i(f"v_readfirstlane_b32 s{S_W}, v3")
    e.i(f"v_lshlrev_b32 v{V_L16}, 4, v{V_LANE}")
    for i in range(4): e.i(f"v_mov_b32 v{4+i}, 0")
    e.i(f"v_mov_b32 v3, {L_MISC + 16}")
    e.i("s_mov_b64 exec, 1")
    e.i("ds_write_b128 v3, v[4:7]")
    e.i("s_mov_b64 exec, -1")
    sizes = {R_K: SZ_SD, R_V: SZ_SD, R_SHK: SZ_SHK, R_SSMK: SZ_SD, R_X: SZ_SD, R_WQKV: SZ_WQKV, R_Q: SZ_SD, R_WO: SZ_WO, R_OUT: SZ_OUT, R_DBG: 256, R_WS: WS_SIZE}
    for r, sz in sizes.items():
        e.i(f"s_mov_b32 s{r+2}, {sz}")
        e.i(f"s_mov_b32 s{r+3}, 0x20000")
    T = S_T0
    e.i(f"s_lshr_b32 s{S_CB}, s2, 5")
    e.i(f"s_min_u32 s{S_CB}, s{S_CB}, 6")
    e.i(f"s_and_b32 s{S_RB}, s2, 31")
    e.i(f"s_cmp_ge_u32 s{S_W}, 4")
    e.i("s_cbranch_scc1 L_roleA")

def ids_b(e, cfg):
    T = S_T0
    hb = {2: 1, 4: 2, 8: 3}[cfg.xmap]
    ng = 16 >> hb
    gb = 4 - hb
    e.i(f"s_and_b32 s{T}, s2, 7")
    e.i(f"s_lshr_b32 s{T+1}, s2, 3")
    e.i(f"s_and_b32 s{S_H}, s{T}, {ng-1}")
    e.i(f"s_lshl_b32 s{S_H}, s{S_H}, {hb}")
    e.i(f"s_and_b32 s{T+2}, s{T+1}, {(1<<hb)-1}")
    e.i(f"s_add_u32 s{S_H}, s{S_H}, s{T+2}")
    e.i(f"s_lshr_b32 s{S_R}, s{T}, {gb}")
    e.i(f"s_lshl_b32 s{S_R}, s{S_R}, {5-hb}")
    e.i(f"s_lshr_b32 s{T+2}, s{T+1}, {hb}")
    e.i(f"s_add_u32 s{S_R}, s{S_R}, s{T+2}")
    e.i(f"s_and_b32 s{S_J}, s{T+1}, {(1<<hb)-1}")
    e.i(f"s_lshl_b32 s{S_J}, s{S_J}, {1 if hb <= 2 else 0}")
    e.i(f"s_lshr_b32 s{T}, s{T+1}, {hb}")
    if hb == 3: e.i(f"s_lshl_b32 s{T}, s{T}, 1")
    e.i(f"s_add_u32 s{S_J}, s{S_J}, s{T}")
    for _ in range(3):
        e.i(f"s_cmp_ge_u32 s{S_J}, 7")
        e.i(f"s_cselect_b32 s{T}, 7, 0")
        e.i(f"s_sub_u32 s{S_J}, s{S_J}, s{T}")

V_KOFF = 4
VA = 48
V_XE, V_XO = 8, 9
V_DMA = 10
V_HOFF = 7
HREG = 116

def addr_a(e, cfg):
    T = S_T0
    e.c("A1 addresses")
    e.i(f"s_lshl_b32 s{T}, s{S_RB}, 6")
    e.i(f"s_lshl_b32 s{T+1}, s{S_W}, 4")
    e.i(f"s_add_u32 s{T}, s{T}, s{T+1}")
    e.i(f"s_mul_i32 s{T}, s{T}, 896")
    e.i(f"s_lshl_b32 s{T+1}, s{S_CB}, 7")
    e.i(f"s_add_u32 s{T}, s{T}, s{T+1}")
    e.i(f"v_lshrrev_b32 v3, 3, v{V_LANE}")
    e.i(f"v_mul_u32_u24 v13, 896, v3")
    e.i(f"v_and_b32 v14, 7, v{V_LANE}")
    e.i(f"v_lshl_add_u32 v15, v14, 4, v13")
    e.i(f"v_add_u32 v{V_KOFF+1}, s{T}, v15")
    e.i(f"v_add_u32 v{V_KOFF+2}, 7168, v{V_KOFF+1}")
    e.i(f"v_subrev_u32 v{V_KOFF}, 7168, v{V_KOFF+1}")
    e.c("h offset")
    e.i(f"s_lshr_b32 s{T}, s{S_W}, 1")
    e.i(f"s_lshl_b32 s{T+1}, s2, 1")
    e.i(f"s_add_u32 s{T}, s{T}, s{T+1}")
    e.i(f"s_lshl_b32 s{T}, s{T}, 12")
    e.i(f"s_and_b32 s{T+1}, s{S_W}, 1")
    e.i(f"s_lshl_b32 s{T+1}, s{T+1}, 11")
    e.i(f"s_add_u32 s{T}, s{T}, s{T+1}")
    e.i(f"v_add_u32 v{V_HOFF}, s{T}, v{V_L16}")

def addr_b(e, cfg):
    T = S_T0
    e.c("B1 x dma offsets: (128r + 32w + (l>>3))*896 + ((l&7) ^ f)*16, f = (l>>4) ^ (4*(t&1))")
    e.i(f"v_lshrrev_b32 v3, 3, v{V_LANE}")
    e.i(f"v_mul_u32_u24 v13, 896, v3")
    e.i(f"v_and_b32 v14, 7, v{V_LANE}")
    e.i(f"s_lshl_b32 s{T}, s{S_R}, 7")
    e.i(f"s_lshl_b32 s{T+1}, s{S_W}, 5")
    e.i(f"s_add_u32 s{T}, s{T}, s{T+1}")
    e.i(f"s_mul_i32 s{T}, s{T}, 896")
    e.i(f"v_lshrrev_b32 v3, 4, v{V_LANE}")
    e.i(f"v_xor_b32 v3, v3, v14")
    e.i(f"v_lshl_add_u32 v15, v3, 4, v13")
    e.i(f"v_add_u32 v{V_XE}, s{T}, v15")
    e.i(f"v_xor_b32 v{V_XO}, 64, v{V_XE}")
    e.c("Wkv dma offsets: row=(l>>3) (+8t), phys half=(l>>2)&1, piece = half ^ ((l>>4)&1), gran = l&3")
    e.i(f"s_mul_i32 s{T}, s{S_H}, 56")
    e.i(f"v_lshrrev_b32 v3, 3, v{V_LANE}")
    e.i(f"v_mul_u32_u24 v{V_DMA}, 2688, v3")
    e.i(f"v_bfe_u32 v13, v{V_LANE}, 2, 1")
    e.i(f"v_bfe_u32 v14, v{V_LANE}, 4, 1")
    e.i(f"v_xor_b32 v13, v13, v14")
    e.i(f"v_and_b32 v3, 3, v{V_LANE}")
    e.i(f"v_mul_u32_u24 v14, 896, v13")
    e.i(f"v_add3_u32 v{V_DMA}, v{V_DMA}, v14, s{T}")
    e.i(f"v_add_u32 v14, 1, v3")
    e.i(f"v_mul_u32_u24 v13, v13, v14")
    e.i(f"v_lshlrev_b32 v14, 3, v3")
    e.i(f"v_sub_u32 v14, v14, v13")
    e.i(f"v_lshl_add_u32 v{V_DMA}, v14, 1, v{V_DMA}")
    e.i(f"v_add_u32 v{V_DMA}, 896, v{V_DMA}")
    e.c("Wq dma offset: row = l>>2, gran = l&3")
    e.i(f"v_lshrrev_b32 v13, 2, v{V_LANE}")
    e.i(f"v_mul_u32_u24 v13, 2688, v13")
    e.i(f"v_lshlrev_b32 v3, 4, v3")
    e.i(f"v_add3_u32 v{V_DMA+1}, v13, v3, s{T}")

def a1_loads(e, cfg):
    T = S_T0
    e.c("A1 loads: k dma x3, shk dma, v x2, h x2")
    e.i(f"s_mul_i32 s{T}, s{S_W}, 3072")
    for t in range(3):
        e.i(f"s_add_u32 m0, s{T}, {L_KS + 1024*t}")
        e.i("s_nop 0")
        e.i(f"buffer_load_dwordx4 v{V_KOFF+t}, {rs(R_K)}, 0 offen lds")
    e.i(f"s_lshl_b32 s{T}, s{S_W}, 10")
    e.i(f"s_add_u32 m0, s{T}, {L_SHK}")
    e.i(f"s_lshl_b32 s{T+1}, s{S_CB}, 9")
    e.i(f"buffer_load_dwordx4 v{V_L16}, {rs(R_SHK)}, s{T+1} offen lds")
    for it in range(2):
        e.i(f"buffer_load_dwordx4 {vr(VA+4*it,4)}, v{V_KOFF+1+it}, {rs(R_V)}, 0 offen")

def h_loads(e, cfg):
    e.i(f"buffer_load_dwordx4 {vr(HREG,4)}, v{V_HOFF}, {rs(R_SSMK)}, 0 offen")
    e.i(f"buffer_load_dwordx4 {vr(HREG+4,4)}, v{V_HOFF}, {rs(R_SSMK)}, 0 offen offset:1024")

V_PF = 24
def l2_prefetch_addr(e, cfg):
    T = S_T0
    e.i(f"s_and_b32 s{T}, s2, 7")
    e.i(f"s_lshr_b32 s{T}, s{T}, 2")
    e.i(f"s_mul_i32 s{T}, s{T}, {1024*896}")
    e.i(f"s_lshr_b32 s{T+1}, s2, 3")
    e.i(f"s_mul_i32 s{T+2}, s{T+1}, 28672")
    e.i(f"s_add_u32 s{T}, s{T}, s{T+2}")
    e.i(f"s_lshl_b32 s{T+2}, s{S_W}, 12")
    e.i(f"s_add_u32 s{T}, s{T}, s{T+2}")
    e.i(f"v_lshlrev_b32 v3, 6, v{V_LANE}")
    e.i(f"v_add_u32 v{V_PF}, s{T}, v3")
    e.i(f"s_lshl_b32 s{T}, s{S_W}, 6")
    e.i(f"v_add_u32 v3, s{T}, v{V_LANE}")
    e.i(f"v_mul_u32_u24 v13, 43691, v3")
    e.i(f"v_lshrrev_b32 v13, 19, v13")
    e.i(f"v_mul_u32_u24 v14, 12, v13")
    e.i(f"v_sub_u32 v3, v3, v14")
    e.i(f"v_lshrrev_b32 v14, 2, v3")
    e.i(f"v_mul_u32_u24 v14, 896, v14")
    e.i(f"v_and_b32 v3, 3, v3")
    e.i(f"v_lshl_add_u32 v14, v3, 6, v14")
    e.i(f"s_mul_i32 s{T}, s{T+1}, 14")
    e.i(f"v_add_u32 v13, s{T}, v13")
    e.i(f"v_mul_u32_u24 v13, 2688, v13")
    e.i(f"s_and_b32 s{T}, s2, 3")
    e.i(f"s_mul_i32 s{T}, s{T}, 224")
    e.i(f"s_and_b32 s{T}, s{T}, 0xffffffc0")
    e.i(f"v_add3_u32 v{V_PF+1}, v13, v14, s{T}")

def l2_prefetch(e, cfg):
    T = S_T0
    e.i(f"buffer_load_dword v244, v{V_PF}, {rs(R_X)}, 0 offen")
    e.i(f"s_mov_b32 s{T}, 16384")
    e.i(f"s_cmp_eq_u32 s{S_W}, 3")
    e.i(f"s_cselect_b32 s{T}, 0, s{T}")
    e.i(f"buffer_load_dword v245, v{V_PF}, {rs(R_X)}, s{T} offen")
    e.i(f"buffer_load_dword v246, v{V_PF+1}, {rs(R_WQKV)}, 0 offen")
N_PF = 3

S_XL, S_WL, S_WS0 = 82, 83, 84
S_SX, S_SW = 85, 86
S_J0 = 80
def b1_consts(e):
    e.i(f"s_lshl_b32 s{S_XL}, s{S_W}, 12")
    e.i(f"s_lshl_b32 s{S_WL}, s{S_W}, 11")
    e.i(f"s_add_u32 s{S_WL}, s{S_WL}, 16384")
    e.i(f"s_mul_i32 s{S_WS0}, s{S_W}, 43008")
    e.i(f"s_mov_b32 s{S_SLI}, {L_RING}")
    e.i(f"s_mov_b32 s{S_J0}, s{S_J}")

def adv_j():
    return [f"s_add_u32 s{S_J}, s{S_J}, 1", f"s_cmp_eq_u32 s{S_J}, 7", f"s_cselect_b32 s{S_J}, 0, s{S_J}"]

def b1_issue_pieces():
    T = S_T0
    p = []
    p.append([f"s_lshl_b32 s{S_SX}, s{S_J}, 7",
              f"s_mul_i32 s{S_SW}, s{S_J}, 172032",
              f"s_add_u32 s{S_SW}, s{S_SW}, s{S_WS0}",
              f"s_add_u32 s{T}, s{S_SLI}, s{S_XL}",
              f"s_add_u32 s{T+1}, s{S_SLI}, s{S_WL}"])
    for t in range(4):
        l = []
        if t == 0: l.append(f"s_mov_b32 m0, s{T}")
        else:
            l.append(f"s_add_u32 m0, s{T}, {1024*t}")
            l.append(f"s_add_u32 s{S_SX}, s{S_SX}, 7168")
        if t == 0: l.append("s_nop 0")
        l.append(f"buffer_load_dwordx4 v{V_XE if t % 2 == 0 else V_XO}, {rs(R_X)}, s{S_SX} offen lds")
        p.append(l)
    for t in range(2):
        l = [f"s_add_u32 m0, s{T+1}, {1024*t}" if t else f"s_mov_b32 m0, s{T+1}"]
        if t: l.append(f"s_add_u32 s{S_SW}, s{S_SW}, {8*2688}")
        else: l.append("s_nop 0")
        l.append(f"buffer_load_dwordx4 v{V_DMA}, {rs(R_WQKV)}, s{S_SW} offen lds")
        if t == 1:
            l += adv_j() + [f"s_add_u32 s{S_SLI}, s{S_SLI}, {SLOT}",
                  f"s_cmp_eq_u32 s{S_SLI}, {NSLOT*SLOT + L_RING}",
                  f"s_cselect_b32 s{S_SLI}, {L_RING}, s{S_SLI}"]
        p.append(l)
    return p

def wq_issue_pieces():
    T = S_T0
    p = []
    for pos in range(7):
        l = []
        if pos == 0: l.append(f"s_mov_b32 s{S_J}, s{S_J0}")
        l += [f"s_mul_i32 s{S_SW}, s{S_J}, 172032",
              f"s_add_u32 s{S_SW}, s{S_SW}, s{S_WS0}",
              f"s_lshl_b32 s{T}, s{S_W}, 10",
              f"s_add_u32 m0, s{T}, {L_WQ + 4096*pos}"]
        l += adv_j()
        l.append(f"buffer_load_dwordx4 v{V_DMA+1}, {rs(R_WQKV)}, s{S_SW} offen lds")
        p.append(l)
    return p

def b1_issue(e):
    for pc in b1_issue_pieces():
        for ln in pc: e.i(ln)

KA, WSH = 16, 124
def a1_compute(e, cfg, nyounger):
    T = S_T0
    e.c("A1 compute")
    e.i(f"s_mul_i32 s{T}, s{S_W}, 3072")
    e.i(f"s_add_u32 s{T}, s{T}, {L_KS}")
    e.i(f"v_add_u32 v3, s{T}, v{V_L16}")
    e.i(f"s_lshl_b32 s{T}, s{S_W}, 10")
    e.i(f"s_add_u32 s{T}, s{T}, {L_SHK}")
    e.i(f"v_and_b32 v14, 7, v{V_LANE}")
    e.i(f"v_lshlrev_b32 v13, 6, v14")
    e.i(f"v_add_u32 v13, s{T}, v13")
    e.i(f"s_waitcnt vmcnt({nyounger})")
    stamp(e, cfg, 20)
    for m in range(4):
        e.i(f"ds_read_b128 {vr(WSH+4*m,4)}, v13 offset:{16*m}")
    for it in range(2):
        for j in range(4):
            e.i(f"ds_read_b128 {vr(KA+16*it+4*j,4)}, v3 offset:{(8+8*it-j)*128}")
    e.i(f"s_mov_b32 s{T}, 0x05040100")
    e.i(f"s_mov_b32 s{T+1}, 0x07060302")
    e.i(f"s_mov_b32 s{T+2}, 0xffff0000")
    TT = 76; OUTR = 108
    for it in range(2):
        e.i(f"s_waitcnt lgkmcnt({4 if it == 0 else 0})")
        for m in range(4):
            k = lambda j: KA + 16*it + 4*j + m
            b = TT + 4*m
            e.i(f"v_perm_b32 v{b+0}, v{k(1)}, v{k(0)}, s{T}")
            e.i(f"v_perm_b32 v{b+1}, v{k(1)}, v{k(0)}, s{T+1}")
            e.i(f"v_perm_b32 v{b+2}, v{k(3)}, v{k(2)}, s{T}")
            e.i(f"v_perm_b32 v{b+3}, v{k(3)}, v{k(2)}, s{T+1}")
        A = TT + 16
        for m in range(4):
            b = TT + 4*m
            e.i(f"v_dot2_f32_bf16 v{A+2*m}, v{b+0}, v{WSH+4*m+0}, 0")
            e.i(f"v_dot2_f32_bf16 v{A+2*m+1}, v{b+1}, v{WSH+4*m+2}, 0")
        U = TT + 24
        for m in range(4):
            e.i(f"v_lshlrev_b32 v{U+2*m}, 16, v{VA+4*it+m}")
            e.i(f"v_and_b32 v{U+2*m+1}, s{T+2}, v{VA+4*it+m}")
        for m in range(4):
            b = TT + 4*m
            e.i(f"v_dot2_f32_bf16 v{A+2*m}, v{b+2}, v{WSH+4*m+1}, v{A+2*m}")
            e.i(f"v_dot2_f32_bf16 v{A+2*m+1}, v{b+3}, v{WSH+4*m+3}, v{A+2*m+1}")
        e.i("s_nop 2")
        for c in range(8):
            e.i(f"v_mul_f32 v{A+c}, v{A+c}, v{U+c}")
        for m in range(4):
            e.i(f"v_cvt_pk_bf16_f32 v{OUTR+4*it+m}, v{A+2*m}, v{A+2*m+1}")
def a1_compute_b(e, cfg):
    T = S_T0
    OUTR = 108
    e.i(f"v_and_b32 v14, 7, v{V_LANE}")
    e.i(f"s_mul_i32 s{T}, s{S_W}, {16*144}")
    e.i(f"s_add_u32 s{T}, s{T}, {L_KVT}")
    e.i(f"v_lshrrev_b32 v13, 3, v{V_LANE}")
    e.i(f"v_mul_u32_u24 v15, 144, v13")
    e.i(f"v_lshl_add_u32 v15, v14, 4, v15")
    e.i(f"v_add_u32 v3, s{T}, v15")
    e.i(f"ds_write_b128 v3, {vr(OUTR,4)}")
    e.i(f"ds_write_b128 v3, {vr(OUTR+4,4)} offset:{8*144}")
    e.i(f"v_lshrrev_b32 v3, 4, v{V_LANE}")
    e.i(f"v_lshlrev_b32 v3, 3, v3")
    e.i(f"v_bfe_u32 v16, v{V_LANE}, 2, 2")
    e.i(f"v_add_u32 v3, v3, v16")
    e.i(f"v_mul_u32_u24 v3, 144, v3")
    e.i(f"v_and_b32 v16, 3, v{V_LANE}")
    e.i(f"v_lshlrev_b32 v16, 3, v16")
    e.i(f"s_lshl_b32 s{T}, s{S_W}, 5")
    e.i(f"s_add_u32 s{T}, s{T}, {L_KVT}")
    e.i(f"v_add3_u32 v3, v3, v16, s{T}")
    e.i(f"s_mul_i32 s{T}, s{S_W}, 3072")
    e.i(f"s_add_u32 s{T}, s{T}, {L_KS}")
    e.i(f"v_and_b32 v16, 15, v{V_LANE}")
    e.i(f"v_mul_u32_u24 v16, 144, v16")
    e.i(f"v_and_b32 v17, 0x30, v{V_LANE}")
    e.i(f"v_add3_u32 v16, v16, v17, s{T}")
    e.i(f"v_add_u32 v17, s{T}, v15")
    e.i(f"v_lshlrev_b32 v18, 12, v13")
    e.i(f"v_lshl_add_u32 v18, v14, 4, v18")
    e.i(f"s_lshl_b32 s{T}, s{S_CB}, 6")
    e.i(f"s_lshl_b32 s{T+1}, s{S_W}, 4")
    e.i(f"s_add_u32 s{T}, s{T}, s{T+1}")
    e.i(f"s_lshl_b32 s{T}, s{T}, 12")
    e.i(f"s_lshl_b32 s{T+1}, s{S_RB}, 7")
    e.i(f"s_add_u32 s{T}, s{T}, s{T+1}")
    e.i(f"s_add_u32 s{T}, s{T}, {WS_XT}")
    e.i(f"s_add_u32 s{T+1}, s{T}, {8*4096}")
    swbar(e)
    for it2 in range(2):
        for jj in range(2):
            e.i(f"ds_read_b64_tr_b16 {vr(76+4*it2+2*jj,2)}, v3 offset:{(32*it2+4*jj)*144}")
    e.i("s_waitcnt lgkmcnt(2)")
    e.i(f"ds_write_b128 v16, {vr(76,4)}")
    e.i("s_waitcnt lgkmcnt(1)")
    e.i(f"ds_write_b128 v16, {vr(80,4)} offset:64")
    e.i("s_waitcnt lgkmcnt(0)")
    e.i(f"ds_read_b128 {vr(84,4)}, v17")
    e.i(f"ds_read_b128 {vr(88,4)}, v17 offset:{8*144}")
    e.i("s_waitcnt lgkmcnt(1)")
    e.i(f"buffer_store_dwordx4 {vr(84,4)}, v18, {rs(R_WS)}, s{T} offen sc1")
    e.i("s_waitcnt lgkmcnt(0)")
    e.i(f"buffer_store_dwordx4 {vr(88,4)}, v18, {rs(R_WS)}, s{T+1} offen sc1")

V_NONCE = 240
def nonce_early(e, cfg):
    e.i(f"v_mov_b32 v{V_NONCE+2}, 0")
    e.i(f"buffer_load_dwordx2 v[{V_NONCE}:{V_NONCE+1}], v{V_NONCE+2}, {rs(R_DBG)}, 0 offen sc1")

def get_nonce(e, cfg):
    e.c("fetch nonce (early load, else poll d_debug)")
    e.i(f"v_readfirstlane_b32 s{S_NONCE}, v{V_NONCE}")
    e.i(f"v_readfirstlane_b32 s{S_NONCE+1}, v{V_NONCE+1}")
    e.i("s_nop 3")
    e.i(f"s_or_b32 s{S_T0}, s{S_NONCE}, s{S_NONCE+1}")
    e.i(f"s_cbranch_scc1 L_nonce_done{ROLE[0]}")
    e.i(f"s_mov_b32 s{S_IT}, 0x40000")
    e.label(f"L_nonce{ROLE[0]}")
    e.i(f"buffer_load_dwordx2 v[{V_NONCE}:{V_NONCE+1}], v{V_NONCE+2}, {rs(R_DBG)}, 0 offen sc1")
    e.i("s_waitcnt vmcnt(0)")
    e.i(f"v_readfirstlane_b32 s{S_NONCE}, v{V_NONCE}")
    e.i(f"v_readfirstlane_b32 s{S_NONCE+1}, v{V_NONCE+1}")
    e.i("s_nop 3")
    e.i(f"s_or_b32 s{S_T0}, s{S_NONCE}, s{S_NONCE+1}")
    e.i(f"s_cbranch_scc1 L_nonce_done{ROLE[0]}")
    e.i(f"s_sub_u32 s{S_IT}, s{S_IT}, 1")
    e.i(f"s_cbranch_scc1 L_nonce_done{ROLE[0]}")
    e.i("s_sleep 2")
    e.i(f"s_branch L_nonce{ROLE[0]}")
    e.label(f"L_nonce_done{ROLE[0]}")

def publish(e, cfg, arr, idx_lines, tmp=4):
    T = S_T0
    for ln in idx_lines: e.i(ln)
    e.i(f"s_lshl_b32 s{T}, s{T}, 2")
    e.i(f"s_add_u32 s{T}, s{T}, s{S_W}")
    e.i(f"s_lshl_b32 s{T}, s{T}, {FL_SH}")
    e.i(f"s_add_u32 s{T}, s{T}, {WS_FL + arr}")
    e.i(f"v_mov_b32 v{tmp}, s{S_NONCE}")
    e.i(f"v_mov_b32 v{tmp+1}, s{S_NONCE+1}")
    e.i(f"v_mov_b32 v{tmp+2}, 0")
    e.i("s_mov_b64 exec, 1")
    e.i(f"buffer_store_dwordx2 v[{tmp}:{tmp+1}], v{tmp+2}, {rs(R_WS)}, s{T} offen sc1")
    e.i("s_mov_b64 exec, -1")

def poll(e, cfg, arr, vidx, tag, tmp=4):
    e.c(f"poll {tag}")
    e.i(f"v_lshlrev_b32 v{vidx}, {FL_SH}, v{vidx}")
    e.i(f"v_add_u32 v{vidx}, {WS_FL + arr}, v{vidx}")
    if cfg.nosync: return
    e.i(f"s_mov_b32 s{S_IT}, 0x40000")
    e.label(f"L_poll_{tag}")
    e.i(f"buffer_load_dwordx2 v[{tmp}:{tmp+1}], v{vidx}, {rs(R_WS)}, 0 offen sc1")
    e.i("s_waitcnt vmcnt(0)")
    e.i(f"v_cmp_ne_u64 vcc, s[{S_NONCE}:{S_NONCE+1}], v[{tmp}:{tmp+1}]")
    e.i(f"s_cbranch_vccz L_poll_done_{tag}")
    e.i(f"s_sub_u32 s{S_IT}, s{S_IT}, 1")
    e.i(f"s_cbranch_scc1 L_poll_done_{tag}")
    e.i("s_sleep 3")
    e.i(f"s_branch L_poll_{tag}")
    e.label(f"L_poll_done_{tag}")

ACCQ, ACCK, ACCV = 224, 128, 144
XK = 16
WF = 176
V_WTR = 208
V_WQ = 220
V_XR = 212
KVB = 160
def b1_traddr(e, cfg):
    T = S_T0
    e.c("B1 lds read addresses")
    e.i(f"v_lshrrev_b32 v3, 5, v{V_LANE}")
    e.i(f"v_lshlrev_b32 v4, 3, v3")
    e.i(f"v_bfe_u32 v13, v{V_LANE}, 2, 2")
    e.i(f"v_add_u32 v4, v4, v13")
    e.i(f"v_bfe_u32 v5, v{V_LANE}, 4, 1")
    e.i(f"v_and_b32 v6, 3, v{V_LANE}")
    e.i(f"v_lshlrev_b32 v14, 6, v4")
    e.i(f"v_lshl_add_u32 v14, v5, 5, v14")
    e.i(f"v_lshl_add_u32 v14, v6, 3, v14")
    e.i(f"v_add_u32 v{V_WQ}, {L_WQ}, v14")
    e.i(f"v_lshlrev_b32 v14, 7, v4")
    e.i(f"v_lshl_add_u32 v14, v5, 5, v14")
    e.i(f"v_add_u32 v14, 16384, v14")
    e.i(f"v_bfe_u32 v15, v13, 1, 1")
    e.i(f"v_lshlrev_b32 v7, 6, v15")
    e.i(f"v_add_u32 v7, v7, v14")
    e.i(f"v_lshl_add_u32 v{V_WTR}, v6, 3, v7")
    e.i(f"v_xor_b32 v15, 1, v15")
    e.i(f"v_lshlrev_b32 v7, 6, v15")
    e.i(f"v_add_u32 v7, v7, v14")
    e.i(f"v_and_b32 v15, 1, v6")
    e.i(f"v_lshl_add_u32 v7, v15, 4, v7")
    e.i(f"v_lshrrev_b32 v15, 1, v6")
    e.i(f"v_lshl_add_u32 v{V_WTR+1}, v15, 3, v7")
    e.i(f"v_and_b32 v13, 31, v{V_LANE}")
    e.i(f"v_bfe_u32 v14, v{V_LANE}, 1, 3")
    e.i(f"v_xor_b32 v14, v14, v3")
    e.i(f"v_lshlrev_b32 v14, 4, v14")
    e.i(f"v_lshl_add_u32 v14, v13, 7, v14")
    e.i(f"s_lshl_b32 s{T}, s{S_W}, 12")
    e.i(f"v_add_u32 v{V_XR}, s{T}, v14")
    for n in range(1, 4):
        e.i(f"v_xor_b32 v{V_XR+n}, {32*n}, v{V_XR}")

def b1_reads(e, p, n):
    s = WF + 8 * (n & 1)
    e.i(f"ds_read_b128 {vr(XK+4*(4*p+n),4)}, v{V_XR+4+n}")
    for j in range(2):
        e.i(f"ds_read_b64_tr_b16 {vr(s+2*j,2)}, v{V_WTR+2} offset:{n*2048 + j*512}")
    for j in range(2):
        e.i(f"ds_read_b64_tr_b16 {vr(s+4+2*j,2)}, v{V_WTR+3} offset:{n*2048 + j*512}")

def b1_mfma(e, p, n):
    s = WF + 8 * (n & 1)
    x = vr(XK+4*(4*p+n), 4)
    first = (p == 0 and n == 0)
    e.i(f"v_mfma_f32_32x32x16_bf16 {vr(ACCK,16)}, {vr(s,4)}, {x}, {'0' if first else vr(ACCK,16)}")
    e.i(f"v_mfma_f32_32x32x16_bf16 {vr(ACCV,16)}, {x}, {vr(s+4,4)}, {'0' if first else vr(ACCV,16)}")

def b1_addr_slot(e):
    for n in range(4):
        e.i(f"v_add_u32 v{V_XR+4+n}, s{S_SLC}, v{V_XR+n}")
    e.i(f"v_add_u32 v{V_WTR+2}, s{S_SLC}, v{V_WTR}")
    e.i(f"v_add_u32 v{V_WTR+3}, s{S_SLC}, v{V_WTR+1}")
    e.i(f"s_add_u32 s{S_SLC}, s{S_SLC}, {SLOT}")
    e.i(f"s_cmp_eq_u32 s{S_SLC}, {NSLOT*SLOT + L_RING}")
    e.i(f"s_cselect_b32 s{S_SLC}, {L_RING}, s{S_SLC}")

def b1_body(e, cfg, p, pcs, wait_next):
    sched = {0: pcs[0:3], 1: pcs[3:5], 2: pcs[5:]}
    for n in range(3):
        b1_reads(e, p, n + 1)
        e.i("s_waitcnt lgkmcnt(5)")
        b1_mfma(e, p, n)
        for pc in sched.get(n, []):
            for ln in pc: e.i(ln)
    e.i("s_waitcnt lgkmcnt(0)")
    if wait_next is not None:
        e.i(f"s_waitcnt vmcnt({wait_next})")
        swbar(e)
        b1_addr_slot(e)
        b1_reads(e, p + 1, 0)
    b1_mfma(e, p, 3)

def b1_loop(e, cfg):
    e.i(f"s_mov_b32 s{S_SLC}, {L_RING}")
    e.i(f"s_waitcnt vmcnt({6 + 1})")
    swbar(e)
    b1_addr_slot(e)
    b1_reads(e, 0, 0)
    waits = [7, 6, 6, 6, 6, 7, None]
    for p in range(7):
        if p <= 4: pcs = b1_issue_pieces()
        elif p == 5: pcs = wq_issue_pieces()
        else: pcs = []
        b1_body(e, cfg, p, pcs, waits[p])
        if p == 3: stamp(e, cfg, 24)

def b1_q(e, cfg):
    NB = 4
    def rd(k):
        p, n = divmod(k, 4)
        b = WF + 4 * (k % NB)
        for j in range(2):
            e.i(f"ds_read_b64_tr_b16 {vr(b+2*j,2)}, v{V_WQ} offset:{p*4096 + n*1024 + j*256}")
    for k in range(NB - 1): rd(k)
    for k in range(28):
        if k + NB - 1 < 28: rd(k + NB - 1)
        e.i(f"s_waitcnt lgkmcnt({2 * min(NB - 1, 27 - k)})")
        b = WF + 4 * (k % NB)
        e.i(f"v_mfma_f32_32x32x16_bf16 {vr(ACCQ,16)}, {vr(b,4)}, {vr(XK+4*k,4)}, {'0' if k == 0 else vr(ACCQ,16)}")

def b1_epilogue_kv(e, cfg):
    T = S_T0
    e.c("B1 epilogue (K, V)")
    e.i(f"s_mov_b32 s{S_MHH}, 0")
    e.i(f"s_mov_b32 s{S_MHH+1}, -1")
    m = (1 << 0) | (1 << 4) | (1 << 16) | (1 << 20)
    e.i(f"s_mov_b32 s{S_MONE}, {m}")
    e.i(f"s_mov_b32 s{S_MONE+1}, {m}")
    e.i(f"v_mov_b32 v14, 0x3f803f80")
    e.i(f"s_lshl_b32 s{T}, s{S_H}, 18")
    e.i(f"s_lshl_b32 s{T+1}, s{S_R}, 2")
    e.i(f"s_add_u32 s{T+1}, s{T+1}, s{S_W}")
    e.i(f"s_lshl_b32 s{T+1}, s{T+1}, 12")
    e.i(f"s_add_u32 s{T}, s{T}, s{T+1}")
    if WS_KV: e.i(f"s_add_u32 s{T}, s{T}, {WS_KV}")
    e.i("s_nop 4")
    for m_ in range(8):
        e.i(f"v_cvt_pk_bf16_f32 v{KVB+m_}, v{ACCK+2*m_}, v{ACCK+2*m_+1}")
    for m_ in (6, 7):
        e.i(f"v_cndmask_b32 v{KVB+m_}, v{KVB+m_}, v14, s[{S_MHH}:{S_MHH+1}]")
    for m_ in range(8):
        e.i(f"v_cvt_pk_bf16_f32 v{KVB+8+m_}, v{ACCV+2*m_}, v{ACCV+2*m_+1}")
    for f in range(2):
        e.i(f"buffer_store_dwordx4 {vr(KVB+4*f,4)}, v{V_L16}, {rs(R_WS)}, s{T} offen offset:{1024*f} sc1")
    for m_ in range(8):
        e.i(f"v_cndmask_b32 v{KVB+8+m_}, v{KVB+8+m_}, v14, s[{S_MONE}:{S_MONE+1}]")
    for f in range(2, 4):
        e.i(f"buffer_store_dwordx4 {vr(KVB+4*f,4)}, v{V_L16}, {rs(R_WS)}, s{T} offen offset:{1024*f} sc1")
    if cfg.tags:
        for i in range(4): e.i(f"v_mov_b32 v{4+i}, 0")
        o_addr(e)
        e.i(f"buffer_store_dwordx4 v[4:7], v{V_L16}, {rs(R_WS)}, s{S_OA} offen sc1")
        e.i(f"buffer_store_dwordx4 v[4:7], v{V_L16}, {rs(R_WS)}, s{S_OA} offen offset:1024 sc1")

S_OA = 75
def o_addr(e):
    T = S_T0
    e.i(f"s_lshl_b32 s{T}, s{S_R}, 2")
    e.i(f"s_add_u32 s{T}, s{T}, s{S_W}")
    e.i(f"s_lshl_b32 s{T}, s{T}, 4")
    e.i(f"s_add_u32 s{T}, s{T}, s{S_H}")
    e.i(f"s_lshl_b32 s{T}, s{T}, 11")
    e.i(f"s_add_u32 s{S_OA}, s{T}, {WS_OF}")

def b1_epilogue_q(e, cfg):
    T = S_T0
    e.i(f"s_mov_b32 s{T+2}, {f2u(QSCALE)}")
    e.i(f"s_lshl_b32 s{T+1}, s{S_W}, 11")
    e.i(f"s_add_u32 s{T+1}, s{T+1}, {L_Q}")
    e.i(f"v_add_u32 v3, s{T+1}, v{V_L16}")
    e.i("s_nop 7")
    e.i("s_nop 1")
    QP = 16
    for i in range(16):
        e.i(f"v_mul_f32 v{ACCQ+i}, s{T+2}, v{ACCQ+i}")
    for m_ in range(8):
        e.i(f"v_cvt_pk_bf16_f32 v{QP+m_}, v{ACCQ+2*m_}, v{ACCQ+2*m_+1}")
    for m_ in (6, 7):
        e.i(f"v_cndmask_b32 v{QP+m_}, v{QP+m_}, 0, s[{S_MHH}:{S_MHH+1}]")
    e.i(f"ds_write_b128 v3, {vr(QP,4)}")
    e.i(f"ds_write_b128 v3, {vr(QP+4,4)} offset:1024")

def a2_dload(e, cfg):
    e.i(f"s_min_u32 s{S_T0}, s2, 223")
    e.i(f"s_lshl_b32 s{S_T0}, s{S_T0}, 2")
    e.i(f"s_load_dword s{S_D2}, s[{S_DP}:{S_DP+1}], s{S_T0}")

def a2_hstage(e, cfg):
    T = S_T0
    e.c("A2: stage h into LDS (with h0 += D), zero pads")
    e.i(f"s_lshr_b32 s{T}, s{S_W}, 1")
    e.i(f"s_lshl_b32 s{T+1}, s{S_D2}, 16")
    e.i(f"s_and_b32 s{T+2}, s{S_D2}, 0xffff0000")
    e.i(f"s_cmp_eq_u32 s{T}, 0")
    e.i(f"s_cselect_b32 s{T+1}, s{T+1}, s{T+2}")
    e.i(f"v_lshlrev_b32 v3, 16, v{HREG}")
    e.i(f"v_add_f32 v3, s{T+1}, v3")
    e.i(f"v_cvt_pk_bf16_f32 v3, v3, v3")
    e.i(f"s_mov_b32 s{T+2}, 0xffff")
    e.i(f"v_bfi_b32 v3, s{T+2}, v3, v{HREG}")
    e.i(f"s_and_b32 s{T+2}, s{S_W}, 1")
    e.i(f"s_xor_b32 s{T+4}, s{T+2}, 1")
    e.i(f"s_mov_b32 s{T+5}, 0")
    e.i(f"v_cndmask_b32 v{HREG}, v{HREG}, v3, s[{T+4}:{T+5}]")
    e.i(f"s_mul_i32 s{T+1}, s{T}, {H_CH}")
    e.i(f"s_add_u32 s{T+1}, s{T+1}, {L_H}")
    e.i(f"v_add_u32 v13, s{T+1}, v{V_L16}")
    e.i(f"s_lshl_b32 s{T+2}, s{T+2}, 11")
    e.i(f"s_add_u32 s{T+2}, s{T+2}, 64")
    e.i(f"v_add_u32 v3, s{T+2}, v13")
    e.i(f"ds_write_b128 v3, {vr(HREG,4)}")
    e.i(f"ds_write_b128 v3, {vr(HREG+4,4)} offset:1024")
    for i in range(4): e.i(f"v_mov_b32 v{76+i}, 0")
    e.i(f"s_mul_i32 s{T+1}, s{T}, {X_CH}")
    e.i(f"s_add_u32 s{T+1}, s{T+1}, {L_X}")
    e.i(f"v_add_u32 v14, s{T+1}, v{V_L16}")
    e.i(f"s_mov_b64 exec, 0xf")
    e.i(f"ds_write_b128 v13, {vr(76,4)}")
    e.i(f"s_mov_b32 exec_lo, -1")
    e.i(f"s_mov_b32 exec_hi, 0xf")
    e.i(f"ds_write_b128 v14, {vr(76,4)}")
    e.i(f"s_mov_b64 exec, -1")

CACC = 64
XFR = 128
HR = 16
V_HA = 48
V_XA = 49
QPF = 40
V_A3OFF = 56
def a3_qaddr(e, cfg):
    T = S_T0
    e.c("A3 addresses: row = 64 rb + 16 w + 8 it + (l>>3), piece l&7")
    e.i(f"s_lshl_b32 s{T}, s{S_RB}, 6")
    e.i(f"s_lshl_b32 s{T+1}, s{S_W}, 4")
    e.i(f"s_add_u32 s{T}, s{T}, s{T+1}")
    e.i(f"s_mul_i32 s{T+1}, s{T}, 896")
    e.i(f"s_mul_i32 s{T+2}, s{T}, 1792")
    e.i(f"s_lshl_b32 s{T+3}, s{S_CB}, 7")
    e.i(f"s_add_u32 s{T+1}, s{T+1}, s{T+3}")
    e.i(f"s_add_u32 s{T+2}, s{T+2}, s{T+3}")
    e.i(f"v_lshrrev_b32 v3, 3, v{V_LANE}")
    e.i(f"v_and_b32 v13, 7, v{V_LANE}")
    e.i(f"v_lshlrev_b32 v13, 4, v13")
    e.i(f"v_mul_u32_u24 v14, 896, v3")
    e.i(f"v_add3_u32 v{V_A3OFF}, v14, v13, s{T+1}")
    e.i(f"v_mul_u32_u24 v14, 1792, v3")
    e.i(f"v_add3_u32 v{V_A3OFF+1}, v14, v13, s{T+2}")

V_WO = 58
def wo_addr(e, cfg):
    T = S_T0
    e.i(f"v_lshrrev_b32 v3, 3, v{V_LANE}")
    e.i(f"v_mul_u32_u24 v3, 896, v3")
    e.i(f"v_bfe_u32 v13, v{V_LANE}, 2, 1")
    e.i(f"v_bfe_u32 v14, v{V_LANE}, 4, 1")
    e.i(f"v_xor_b32 v13, v13, v14")
    e.i(f"v_lshlrev_b32 v13, 6, v13")
    e.i(f"v_and_b32 v14, 3, v{V_LANE}")
    e.i(f"v_lshlrev_b32 v14, 4, v14")
    e.i(f"v_add3_u32 v3, v3, v13, v14")
    e.i(f"s_lshl_b32 s{T}, s{S_CB}, 7")
    e.i(f"v_add_u32 v{V_WO}, s{T}, v3")

def wo_first(e, cfg):
    T = S_T0
    e.i(f"s_cmp_eq_u32 s{S_W}, 0")
    e.i(f"s_cselect_b32 s{T+2}, 896, 0")
    e.i(f"v_subrev_u32 v4, s{T+2}, v{V_WO}")
    e.i(f"s_mul_i32 s{T+1}, s{S_W}, 7168")
    e.i(f"s_sub_u32 s{T+1}, s{T+1}, 896")
    e.i(f"s_max_i32 s{T+1}, s{T+1}, 0")
    e.i(f"s_lshl_b32 s{T}, s{S_W}, 10")
    e.i(f"s_add_u32 m0, s{T}, {L_WO}")
    e.i("s_nop 0")
    e.i(f"buffer_load_dwordx4 v4, {rs(R_WO)}, s{T+1} offen lds")
    e.i(f"s_mov_b32 m0, {L_WO + 56*1024}")
    e.i(f"s_mov_b32 s{T+1}, {56*7168 - 896}")
    e.i(f"buffer_load_dwordx4 v{V_WO}, {rs(R_WO)}, s{T+1} offen lds")
    e.i(f"s_lshl_b32 s81, s{S_W}, 10")
    e.i(f"s_add_u32 s81, s81, {L_WO}")
    e.i(f"s_mul_i32 s87, s{S_W}, 7168")
    e.i(f"s_sub_u32 s87, s87, 896")

S_WOM, S_WOS = 81, 87
def wo_next(e):
    e.i(f"s_add_u32 s{S_WOM}, s{S_WOM}, 4096")
    e.i(f"s_add_u32 s{S_WOS}, s{S_WOS}, {4*7168}")
    e.i(f"s_mov_b32 m0, s{S_WOM}")
    e.i("s_nop 0")
    e.i(f"buffer_load_dwordx4 v{V_WO}, {rs(R_WO)}, s{S_WOS} offen lds")

def a2_main(e, cfg):
    T = S_T0
    e.c("==== A2 conv ====")
    e.i(f"s_lshl_b32 s{T}, s2, 1")
    e.i(f"s_bfe_u32 s{T}, s{T}, 0x20004")
    e.i(f"s_lshl_b32 s{T+1}, s{S_CB}, 5")
    e.i(f"s_and_b32 s{T+2}, s{S_W}, 1")
    e.i(f"s_lshl_b32 s{T+2}, s{T+2}, 4")
    e.i(f"s_add_u32 s{T+1}, s{T+1}, s{T+2}")
    e.i(f"s_lshl_b32 s{T+1}, s{T+1}, 2")
    e.i(f"s_add_u32 s{T}, s{T}, s{T+1}")
    e.i(f"v_and_b32 v7, 15, v{V_LANE}")
    e.i(f"v_lshlrev_b32 v7, 2, v7")
    e.i(f"v_add_u32 v7, s{T}, v7")
    poll(e, cfg, FL_A1, 7, "a1")
    stamp(e, cfg, 6)
    e.i(f"s_lshr_b32 s{T}, s{S_W}, 1")
    e.i(f"s_lshl_b32 s{T+1}, s2, 1")
    e.i(f"s_add_u32 s{T+1}, s{T}, s{T+1}")
    e.i(f"s_lshl_b32 s{T+1}, s{T+1}, 12")
    e.i(f"s_and_b32 s{T+2}, s{S_W}, 1")
    e.i(f"s_lshl_b32 s{T+3}, s{T+2}, 11")
    e.i(f"s_add_u32 s{T+1}, s{T+1}, s{T+3}")
    e.i(f"s_add_u32 s{T+1}, s{T+1}, {WS_XT}")
    e.i(f"buffer_load_dwordx4 v[16:19], v{V_L16}, {rs(R_WS)}, s{T+1} offen sc1")
    e.i(f"buffer_load_dwordx4 v[20:23], v{V_L16}, {rs(R_WS)}, s{T+1} offen offset:1024 sc1")
    e.i(f"s_lshr_b32 s{T}, s{S_W}, 1")
    e.i(f"s_and_b32 s{T+2}, s{S_W}, 1")
    e.i(f"s_mul_i32 s{T+1}, s{T}, {X_CH}")
    e.i(f"s_mul_i32 s{T+3}, s{T+2}, {2048+256}")
    e.i(f"s_add_u32 s{T+1}, s{T+1}, s{T+3}")
    e.i(f"s_add_u32 s{T+1}, s{T+1}, {L_X + 512 + 64}")
    e.i(f"v_lshrrev_b32 v3, 4, v{V_LANE}")
    e.i(f"v_lshlrev_b32 v3, 5, v3")
    e.i(f"v_add3_u32 v3, v3, v{V_L16}, s{T+1}")
    e.i(f"v_bfe_u32 v8, v{V_LANE}, 4, 1")
    e.i(f"v_lshrrev_b32 v9, 5, v{V_LANE}")
    e.i(f"v_bfe_u32 v10, v{V_LANE}, 2, 2")
    e.i(f"v_and_b32 v11, 3, v{V_LANE}")
    e.i(f"v_lshlrev_b32 v12, 2, v8")
    e.i(f"v_add_u32 v12, v12, v11")
    e.i(f"v_lshl_add_u32 v13, v9, 3, v12")
    e.i(f"v_add_u32 v13, v13, v10")
    e.i(f"s_mul_i32 s{T+1}, s{T}, {H_CH}")
    e.i(f"s_add_u32 s{T+1}, s{T+1}, {L_H + 64 - 56}")
    e.i(f"v_lshlrev_b32 v13, 3, v13")
    e.i(f"v_add_u32 v{V_HA}, s{T+1}, v13")
    e.i(f"v_sub_u32 v12, v12, v9")
    e.i(f"v_lshlrev_b32 v12, 5, v12")
    e.i(f"v_lshlrev_b32 v10, 2, v10")
    e.i(f"v_sub_u32 v12, v12, v10")
    e.i(f"v_add_u32 v12, 28, v12")
    e.i(f"s_mul_i32 s{T+1}, s{T}, {X_CH}")
    e.i(f"s_add_u32 s{T+1}, s{T+1}, {L_X}")
    for par in range(2):
        for j in range(2):
            d = V_XA + 2*par + j
            e.i(f"v_add_u32 v13, {64*par - 16*j}, v12")
            e.i(f"v_ashrrev_i32 v14, 7, v13")
            e.i(f"v_lshlrev_b32 v14, 5, v14")
            e.i(f"v_lshl_add_u32 v13, v13, 1, v14")
            e.i(f"v_add_u32 v{d}, s{T+1}, v13")
    e.i("s_waitcnt vmcnt(0)")
    e.i(f"ds_write_b128 v3, v[16:19]")
    e.i(f"ds_write_b128 v3, v[20:23] offset:{1024+128}")
    swbar(e)
    stamp(e, cfg, 7)
    e.i(f"s_and_b32 s{T}, s{S_W}, 1")
    e.i(f"s_cmp_eq_u32 s{T}, 0")
    e.i("s_cbranch_scc0 L_conv_setB")
    conv_set(e, [0, 1, 6, 7])
    e.i("s_branch L_conv_post")
    e.label("L_conv_setB")
    conv_set(e, [2, 3, 4, 5])
    e.label("L_conv_post")
    stamp(e, cfg, 8)
    conv_post(e, cfg)

def conv_set(e, tiles):
    nmax = 4 * max(tiles) + 3
    steps = [[(t, T) for t, T in enumerate(tiles) if n <= 4*T + 3] for n in range(nmax + 1)]
    reads = []
    loaded = set()
    need_idx = []
    for n in range(nmax + 1):
        for j in range(2):
            reads.append((("H", n), f"ds_read_b64_tr_b16 {vr(HR+4*(n%8)+2*j,2)}, v{V_HA} offset:{128*n + 32*j}"))
        for t, T in steps[n]:
            v = 4*T - n
            if v in loaded: continue
            loaded.add(v)
            vp = v + 4
            q, par = vp >> 1, vp & 1
            for j in range(2):
                reads.append((("X", v), f"ds_read_b64_tr_b16 {vr(XFR+4*(vp-1)+2*j,2)}, v{V_XA+2*par+j} offset:{288*q}"))
        need_idx.append(len(reads) - 1)
    AHEAD = 14
    issued = 0
    first = {t: True for t in range(4)}
    for n in range(nmax + 1):
        target = min(len(reads), need_idx[n] + 1 + AHEAD)
        while issued < target:
            tag = reads[issued][0]
            if tag[0] == "H" and tag[1] > n + 7: break
            e.i(reads[issued][1]); issued += 1
        assert issued > need_idx[n]
        younger = issued - 1 - need_idx[n]
        e.i(f"s_waitcnt lgkmcnt({min(younger, 15)})")
        for t, T in steps[n]:
            vp = 4*T - n + 4
            acc = vr(CACC + 16*t, 16)
            c = "0" if first[t] else acc
            first[t] = False
            e.i(f"v_mfma_f32_32x32x16_bf16 {acc}, {vr(XFR+4*(vp-1),4)}, {vr(HR+4*(n%8),4)}, {c}")
    for t, T in enumerate(tiles):
        e.i(f"s_mov_b32 s{S_T1+t}, {T}")

def conv_post(e, cfg):
    T = S_T0
    e.i(f"s_mov_b32 s{S63}, 0")
    e.i(f"s_mov_b32 s{S63+1}, 0x80000000")
    e.i(f"s_lshr_b32 s{T}, s{S_W}, 1")
    e.i(f"s_mul_i32 s{T}, s{T}, 144")
    e.i(f"s_add_u32 s{T}, s{T}, {L_CARRY}")
    for t in range(4):
        e.i(f"s_lshl_b32 s{T+1}, s{S_T1+t}, 4")
        e.i(f"s_add_u32 s{T+1}, s{T+1}, s{T}")
        e.i(f"v_mov_b32 v{136+t}, s{T+1}")
    e.i(f"v_mov_b32 v140, s{T}")
    e.i("v_mov_b32 v141, 0")
    e.i("s_nop 1")
    R = lambda t, g, i: CACC + 16*t + 4*g + i
    EX = 128
    for t in range(4):
        e.i(f"v_add_f32_dpp v{EX+t}, v{R(t,3,3)}, v{R(t,3,2)} wave_ror:1 row_mask:0xf bank_mask:0xf")
    e.i("s_nop 0")
    for t in range(4):
        e.i(f"v_add_f32_dpp v{EX+4+t}, v{EX+t}, v{R(t,3,1)} wave_ror:1 row_mask:0xf bank_mask:0xf")
    e.i(f"s_mov_b64 exec, s[{S63}:{S63+1}]")
    for t in range(4):
        e.i(f"ds_write_b32 v{136+t}, v{R(t,3,3)} offset:16")
        e.i(f"ds_write_b32 v{136+t}, v{EX+t} offset:20")
        e.i(f"ds_write_b32 v{136+t}, v{EX+4+t} offset:24")
    e.i("ds_write_b32 v140, v141")
    e.i("ds_write_b32 v140, v141 offset:4")
    e.i("ds_write_b32 v140, v141 offset:8")
    e.i("s_mov_b64 exec, -1")
    swbar(e)
    PU, P1, P2 = 144, 148, 152
    for t in range(4):
        e.i(f"ds_read_b32 v{PU+t}, v{136+t}")
        e.i(f"ds_read_b32 v{P1+t}, v{136+t} offset:4")
        e.i(f"ds_read_b32 v{P2+t}, v{136+t} offset:8")
    e.i(f"s_lshr_b32 s{T}, s{S_W}, 1")
    e.i(f"s_mul_i32 s{T}, s{T}, {X_CH}")
    e.i(f"s_add_u32 s{T}, s{T}, {L_Y}")
    e.i(f"v_lshlrev_b32 v3, 1, v{V_LANE}")
    for t in range(4):
        e.i(f"s_lshl_b32 s{T+1}, s{S_T1+t}, 9")
        e.i(f"s_add_u32 s{T+1}, s{T+1}, s{T}")
        e.i(f"v_add_u32 v{140+t}, s{T+1}, v3")
    e.i("s_waitcnt lgkmcnt(0)")
    SEL = 156
    m63 = f"s[{S63}:{S63+1}]"
    prevU = [PU+t for t in range(4)]
    prev1 = [P1+t for t in range(4)]
    prev2 = [P2+t for t in range(4)]
    for g in range(4):
        cur1 = [160 + 4*(g & 1) + t for t in range(4)]
        cur2 = [168 + 4*(g & 1) + t for t in range(4)]
        for t in range(4):
            e.i(f"v_cndmask_b32 v{SEL+t}, v{R(t,g,3)}, v{prevU[t]}, {m63}")
        for t in range(4):
            e.i(f"v_add_f32_dpp v{cur1[t]}, v{SEL+t}, v{R(t,g,2)} wave_ror:1 row_mask:0xf bank_mask:0xf")
        for t in range(4):
            e.i(f"v_cndmask_b32 v{SEL+t}, v{cur1[t]}, v{prev1[t]}, {m63}")
        for t in range(4):
            e.i(f"v_add_f32_dpp v{cur2[t]}, v{SEL+t}, v{R(t,g,1)} wave_ror:1 row_mask:0xf bank_mask:0xf")
        for t in range(4):
            e.i(f"v_cndmask_b32 v{SEL+t}, v{cur2[t]}, v{prev2[t]}, {m63}")
        for t in range(4):
            e.i(f"v_add_f32_dpp v{R(t,g,0)}, v{SEL+t}, v{R(t,g,0)} wave_ror:1 row_mask:0xf bank_mask:0xf")
        prevU = [R(t,g,3) for t in range(4)]
        prev1 = cur1
        prev2 = cur2
        if g & 1:
            gp = g >> 1
            for t in range(4):
                e.i(f"v_cvt_pk_bf16_f32 v{128+2*t+gp}, v{R(t,g-1,0)}, v{R(t,g,0)}")
            for t in range(4):
                e.i(f"ds_write_b16 v{140+t}, v{128+2*t+gp} offset:{256*gp}")
                e.i(f"ds_write_b16_d16_hi v{140+t}, v{128+2*t+gp} offset:{256*gp+128}")
    e.i(f"s_lshr_b32 s{T+2}, s{S_W}, 1")
    e.i(f"s_lshl_b32 s{T+3}, s2, 1")
    e.i(f"s_add_u32 s{T+3}, s{T+3}, s{T+2}")
    e.i(f"s_lshl_b32 s{T+3}, s{T+3}, 12")
    e.i(f"s_add_u32 s{T+3}, s{T+3}, {WS_YT}")
    for pz in range(2):
        e.i(f"s_lshl_b32 s{T+1}, s{S_T1+2*pz}, 9")
        e.i(f"s_add_u32 s{T+4+pz}, s{T+1}, s{T+3}")
        e.i(f"s_add_u32 s{T+1}, s{T+1}, s{T}")
        e.i(f"v_add_u32 v{144+pz}, s{T+1}, v{V_L16}")
    e.i("s_waitcnt lgkmcnt(0)")
    for pz in range(2):
        e.i(f"ds_read_b128 {vr(160+4*pz,4)}, v{144+pz}")
    e.i("s_waitcnt lgkmcnt(1)")
    e.i(f"buffer_store_dwordx4 {vr(160,4)}, v{V_L16}, {rs(R_WS)}, s{T+4} offen sc1")
    e.i("s_waitcnt lgkmcnt(0)")
    e.i(f"buffer_store_dwordx4 {vr(164,4)}, v{V_L16}, {rs(R_WS)}, s{T+5} offen sc1")

SB = [16, 32]
PB = [48, 56]
OB = 64
QB = 128
def kvbuf(b): return KVB + 16 * (b & 3)

V_KVO = 235
def kv_load(e, b, advance=True):
    if advance:
        e.i(f"s_add_u32 s{S_KV+1}, s{S_KV+1}, 16384")
        e.i(f"s_and_b32 s{S_KV+1}, s{S_KV+1}, 0x3ffff")
    for f in range(4):
        e.i(f"buffer_load_dwordx4 {vr(kvbuf(b)+4*f,4)}, v{V_KVO}, {rs(R_WS)}, s{S_KV+1} offen offset:{1024*f} sc1")

def slot(e, j, s_next, pv, pre=None, loads=None):
    mf = []
    if s_next is not None:
        kb, jn = s_next
        Sx = vr(SB[jn & 1], 16)
        mf.append(f"v_mfma_f32_32x32x16_bf16 {Sx}, {vr(kvbuf(kb),4)}, {vr(QB+8*jn,4)}, 0")
        mf.append(f"v_mfma_f32_32x32x16_bf16 {Sx}, {vr(kvbuf(kb)+4,4)}, {vr(QB+8*jn+4,4)}, {Sx}")
    if pv is not None:
        vb, jp, first = pv
        O = vr(OB + 16*jp, 16)
        P = PB[jp & 1]
        mf.append(f"v_mfma_f32_32x32x16_bf16 {O}, {vr(kvbuf(vb)+8,4)}, {vr(P,4)}, {'0' if first else O}")
        mf.append(f"v_mfma_f32_32x32x16_bf16 {O}, {vr(kvbuf(vb)+12,4)}, {vr(P+4,4)}, {O}")
    groups = []
    if j is not None:
        Sx = SB[j & 1]; P = PB[j & 1]
        for g in range(4):
            gl = [f"v_exp_f32 v{Sx+4*g+i}, v{Sx+4*g+i}" for i in range(4)]
            gl.append(f"v_cvt_pk_bf16_f32 v{P+2*g}, v{Sx+4*g}, v{Sx+4*g+1}")
            gl.append(f"v_cvt_pk_bf16_f32 v{P+2*g+1}, v{Sx+4*g+2}, v{Sx+4*g+3}")
            groups.append(gl)
    if pre:
        for ln in pre: e.i(ln)
    n = max(len(mf), len(groups))
    for k in range(n):
        if k < len(mf): e.i(mf[k])
        if loads is not None and k == 2:
            loads()
        if k < len(groups):
            for ln in groups[k]: e.i(ln)

YL = 24
def b2_main(e, cfg):
    T = S_T0
    e.c("==== B2 attention ====")
    e.i(f"s_lshl_b32 s{T}, s{S_H}, 6")
    e.i(f"s_add_u32 s{T}, s{T}, s{S_W}")
    e.i(f"v_and_b32 v7, 15, v{V_LANE}")
    e.i(f"v_lshlrev_b32 v7, 2, v7")
    e.i(f"v_add_u32 v7, s{T}, v7")
    e.i(f"v_add_u32 v3, {L_Q}, v{V_L16}")
    for j in range(4):
        for f in range(2):
            e.i(f"ds_read_b128 {vr(QB+8*j+4*f,4)}, v3 offset:{2048*j+1024*f}")
    e.i(f"s_lshl_b32 s{S_KV}, s{S_H}, 18")
    e.i(f"s_lshl_b32 s{T}, s{S_W}, 12")
    e.i(f"s_add_u32 s{S_KV}, s{S_KV}, s{T}")
    if WS_KV: e.i(f"s_add_u32 s{S_KV}, s{S_KV}, {WS_KV}")
    e.i(f"v_add_u32 v{V_KVO}, s{S_KV}, v{V_L16}")
    poll(e, cfg, FL_B1, 7, "b1")
    if cfg.nosync: e.i("s_waitcnt vmcnt(0)")
    stamp(e, cfg, 10)
    e.i(f"s_mov_b32 s{S_SLOW}, 0")
    e.label("L_attn_start")
    e.i(f"s_lshl_b32 s{S_KV+1}, s{S_R}, 14")
    kv_load(e, 1); kv_load(e, 2); kv_load(e, 3)
    e.i("s_waitcnt lgkmcnt(0)")
    slot(e, None, (0, 0), None)
    e.i("s_nop 7")
    e.i("s_nop 3")
    slot(e, 0, (0, 1), None)
    slot(e, 1, (0, 2), (0, 0, True))
    slot(e, 2, (0, 3), (0, 1, True))
    slot(e, 3, (1, 0), (0, 2, True), pre=["s_waitcnt vmcnt(8)"])
    slot(e, 0, (1, 1), (0, 3, True))
    e.i(f"s_mov_b32 s{S_IT}, 0")
    e.i(".p2align 3")
    e.label("L_attn_loop")
    if cfg.stamps:
        e.i(f"{'s_memrealtime' if cfg.realtime else 's_memtime'} s[{S_TS}:{S_TS+1}]")
        e.i(f"s_add_u32 m0, s{S_IT}, 40")
        e.i("s_waitcnt lgkmcnt(0)")
        e.i(f"v_writelane_b32 v250, s{S_TS}, m0")
    for k in range(4):
        i = k + 1
        b, bn = i & 3, (i + 1) & 3
        slot(e, 1, (b, 2), (b, 0, False), loads=lambda: kv_load(e, (i + 3) & 3))
        slot(e, 2, (b, 3), (b, 1, False))
        slot(e, 3, (bn, 0), (b, 2, False), pre=["s_waitcnt vmcnt(8)"])
        slot(e, 0, (bn, 1), (b, 3, False))
        if k == 1:
            e.i(f"s_cmp_eq_u32 s{S_IT}, 3")
            e.i("s_cbranch_scc1 L_attn_tail")
    e.i(f"s_add_u32 s{S_IT}, s{S_IT}, 1")
    e.i("s_branch L_attn_loop")
    e.label("L_attn_tail")
    stamp(e, cfg, 44)
    slot(e, 1, (3, 2), (3, 0, False))
    slot(e, 2, (3, 3), (3, 1, False))
    slot(e, 3, None, (3, 2, False))
    e.i("s_nop 1")
    slot(e, None, None, (3, 3, False))
    stamp(e, cfg, 45)
    e.i("s_waitcnt vmcnt(0)")
    stamp(e, cfg, 11)
    e.i(f"s_mov_b32 s{T}, {f2u(2.0**-60)}")
    e.i(f"s_mov_b32 s{T+1}, {f2u(2.0**60)}")
    e.i(f"s_mov_b64 s[{T+2}:{T+3}], -1")
    for j in range(4):
        e.i(f"v_cmp_le_f32 vcc, s{T}, v{OB+16*j}")
        e.i(f"s_and_b64 s[{T+2}:{T+3}], s[{T+2}:{T+3}], vcc")
        e.i(f"v_cmp_ge_f32 vcc, s{T+1}, v{OB+16*j}")
        e.i(f"s_and_b64 s[{T+2}:{T+3}], s[{T+2}:{T+3}], vcc")
    e.i(f"s_cmp_eq_u64 s[{T+2}:{T+3}], -1")
    e.i(f"s_cselect_b32 s{T}, 0, 1")
    e.i(f"v_mov_b32 v3, s{T}")
    e.i(f"s_lshl_b32 s{T+1}, s{S_W}, 2")
    e.i(f"s_add_u32 s{T+1}, s{T+1}, {L_MISC}")
    e.i(f"v_mov_b32 v4, s{T+1}")
    e.i(f"ds_write_b32 v4, v3")
    for w in range(4):
        if w > 0: e.label(f"L_red_w{w}")
        if w < 3:
            e.i(f"s_cmp_lg_u32 s{S_W}, {w}")
            e.i(f"s_cbranch_scc1 L_red_w{w+1}")
        for j in range(4):
            if j == w: continue
            sl = j * 3 + ((w - j - 1) & 3)
            e.i(f"v_add_u32 v3, {L_RED + sl*4096}, v{V_L16}")
            for q4 in range(4):
                e.i(f"ds_write_b128 v3, {vr(OB+16*j+4*q4,4)} offset:{1024*q4}")
        for k in range(16):
            e.i(f"v_mov_b32 v{16+k}, v{OB+16*w+k}")
        if w < 3: e.i("s_branch L_red_done")
    e.label("L_red_done")
    e.i("s_waitcnt lgkmcnt(0)")
    e.i("s_barrier")
    e.i(f"v_mov_b32 v4, {L_MISC}")
    e.i(f"ds_read_b128 v[8:11], v4")
    e.i(f"s_mul_i32 s{T}, s{S_W}, {3*4096}")
    e.i(f"s_add_u32 s{T}, s{T}, {L_RED}")
    e.i(f"v_add_u32 v3, s{T}, v{V_L16}")
    for s_ in range(3):
        for q4 in range(4):
            e.i(f"ds_read_b128 {vr(64+16*s_+4*q4,4)}, v3 offset:{4096*s_+1024*q4}")
    e.i(f"s_lshl_b32 s{T}, s{S_R}, 2")
    e.i(f"s_add_u32 s{T}, s{T}, s{S_W}")
    e.i(f"s_lshl_b32 s{T}, s{T}, 4")
    e.i(f"s_add_u32 s{T}, s{T}, s{S_H}")
    e.i(f"s_lshl_b32 s{T}, s{T}, 11")
    e.i(f"s_add_u32 s{T+4}, s{T}, {WS_OF}")
    e.i("s_waitcnt lgkmcnt(12)")
    e.i("v_or_b32 v8, v8, v9")
    e.i("v_or3_b32 v8, v8, v10, v11")
    e.i("s_nop 0")
    e.i(f"v_readfirstlane_b32 s{T}, v8")
    e.i("s_nop 3")
    e.i(f"s_andn2_b32 s{T}, s{T}, s{S_SLOW}")
    e.i(f"s_cmp_lg_u32 s{T}, 0")
    e.i("s_cbranch_scc1 L_slow")
    for s_ in range(3):
        e.i(f"s_waitcnt lgkmcnt({8-4*s_})")
        for k in range(16):
            e.i(f"v_add_f32 v{16+k}, v{16+k}, v{64+16*s_+k}")
    e.i("v_rcp_f32 v3, v16")
    e.i("s_nop 0")
    for k in range(16):
        if k in (0, 8): continue
        e.i(f"v_mul_f32 v{16+k}, v{16+k}, v3")
    for m in range(8):
        if m in (0, 4):
            e.i(f"v_cvt_pk_bf16_f32 v{32+m}, 0, v{16+2*m+1}")
        else:
            e.i(f"v_cvt_pk_bf16_f32 v{32+m}, v{16+2*m}, v{16+2*m+1}")
    if cfg.tags:
        e.i("v_or_b32 v32, 0xffff, v32")
        e.i("v_or_b32 v36, 0xffff, v36")
    e.i(f"buffer_store_dwordx4 v[32:35], v{V_L16}, {rs(R_WS)}, s{T+4} offen sc1")
    e.i(f"buffer_store_dwordx4 v[36:39], v{V_L16}, {rs(R_WS)}, s{T+4} offen offset:1024 sc1")
    e.i("s_barrier")

def b2_slow(e, cfg):
    T = S_T0
    e.c("==== slow path: true row max ====")
    e.label("L_slow")
    e.i("s_waitcnt vmcnt(0) lgkmcnt(0)")
    M = 48
    for j in range(4): e.i(f"v_mov_b32 v{M+j}, 0xff800000")
    e.i(f"s_mov_b32 s{S_KV+1}, 0")
    e.label("L_slow_loop")
    for f in range(2):
        e.i(f"buffer_load_dwordx4 {vr(KVB+4*f,4)}, v{V_KVO}, {rs(R_WS)}, s{S_KV+1} offen offset:{1024*f} sc1")
    e.i("s_waitcnt vmcnt(0)")
    for j in range(4):
        e.i(f"v_mfma_f32_32x32x16_bf16 v[16:31], {vr(KVB,4)}, {vr(QB+8*j,4)}, 0")
        e.i(f"v_mfma_f32_32x32x16_bf16 v[16:31], {vr(KVB+4,4)}, {vr(QB+8*j+4,4)}, v[16:31]")
        e.i("s_nop 7"); e.i("s_nop 7")
        for k in range(0, 16, 2):
            e.i(f"v_max3_f32 v{M+j}, v{16+k}, v{17+k}, v{M+j}")
        e.i("s_nop 7")
    e.i(f"s_add_u32 s{S_KV+1}, s{S_KV+1}, 16384")
    e.i(f"s_cmp_lt_u32 s{S_KV+1}, {16*16384}")
    e.i("s_cbranch_scc1 L_slow_loop")
    for j in range(4):
        e.i(f"v_mov_b32 v{52+j}, v{M+j}")
    e.i("s_nop 1")
    for j in range(4):
        e.i(f"v_permlane32_swap_b32 v{52+j}, v{M+j}")
    e.i("s_nop 1")
    for j in range(4):
        e.i(f"v_max_f32 v{M+j}, v{52+j}, v{M+j}")
    e.i("s_barrier")
    e.i(f"s_lshl_b32 s{T}, s{S_W}, 10")
    e.i(f"s_add_u32 s{T}, s{T}, {L_RED}")
    e.i(f"v_add_u32 v3, s{T}, v{V_L16}")
    e.i(f"ds_write_b128 v3, {vr(M,4)}")
    e.i("s_waitcnt lgkmcnt(0)")
    e.i("s_barrier")
    e.i(f"v_add_u32 v3, {L_RED}, v{V_L16}")
    for w in range(4):
        e.i(f"ds_read_b128 {vr(16+4*w,4)}, v3 offset:{1024*w}")
    e.i("s_waitcnt lgkmcnt(0)")
    for j in range(4):
        e.i(f"v_max3_f32 v{M+j}, v{16+j}, v{20+j}, v{24+j}")
        e.i(f"v_max_f32 v{M+j}, v{M+j}, v{28+j}")
    e.i(f"s_mov_b32 s{T}, 0xffff")
    for j in range(4):
        e.i(f"v_sub_f32 v16, 0, v{M+j}")
        e.i(f"v_cvt_pk_bf16_f32 v17, v16, v16")
        e.i(f"v_lshlrev_b32 v18, 16, v17")
        e.i(f"v_sub_f32 v16, v16, v18")
        e.i(f"v_cvt_pk_bf16_f32 v19, v16, v16")
        e.i(f"v_lshlrev_b32 v18, 16, v19")
        e.i(f"v_sub_f32 v16, v16, v18")
        e.i(f"v_bfi_b32 v17, s{T}, v17, v19")
        e.i(f"v_cvt_pk_bf16_f32 v18, v16, 0")
        e.i(f"v_cndmask_b32 v{QB+8*j+6}, v{QB+8*j+6}, v17, s[{S_MHH}:{S_MHH+1}]")
        e.i(f"v_cndmask_b32 v{QB+8*j+7}, v{QB+8*j+7}, v18, s[{S_MHH}:{S_MHH+1}]")
    e.i(f"s_mov_b32 s{S_SLOW}, 1")
    e.i(f"s_lshl_b32 s{S_KV+1}, s{S_R}, 14")
    kv_load(e, 0, advance=False)
    e.i("s_waitcnt vmcnt(0)")
    e.i("s_barrier")
    e.i("s_branch L_attn_start")

def a3_main(e, cfg):
    T = S_T0
    e.c("==== A3: out_a = q * y ====")
    a3_qaddr(e, cfg)
    e.i(f"buffer_load_dwordx4 {vr(QPF,4)}, v{V_A3OFF}, {rs(R_Q)}, 0 offen")
    e.i(f"s_mov_b32 s{T+1}, 7168")
    e.i(f"buffer_load_dwordx4 {vr(QPF+4,4)}, v{V_A3OFF}, {rs(R_Q)}, s{T+1} offen")
    e.i(f"s_lshr_b32 s{T}, s{S_RB}, 2")
    e.i(f"s_add_u32 s{T}, s{T}, 2")
    e.i(f"s_and_b32 s{T}, s{T}, 7")
    e.i(f"s_lshr_b32 s{T}, s{T}, 2")
    e.i(f"s_lshl_b32 s{T+1}, s{S_CB}, 6")
    e.i(f"s_lshl_b32 s{T+2}, s{S_W}, 4")
    e.i(f"s_add_u32 s{T+1}, s{T+1}, s{T+2}")
    e.i(f"v_and_b32 v7, 15, v{V_LANE}")
    e.i(f"v_add_u32 v7, s{T+1}, v7")
    e.i(f"v_lshrrev_b32 v8, 1, v7")
    e.i(f"v_and_b32 v7, 1, v7")
    e.i(f"v_lshlrev_b32 v7, 1, v7")
    e.i(f"v_lshl_add_u32 v7, v8, 2, v7")
    e.i(f"v_add_u32 v7, s{T}, v7")
    poll(e, cfg, FL_A2, 7, "a2", tmp=8)
    stamp(e, cfg, 12)
    e.i(f"s_lshl_b32 s{T}, s{S_CB}, 6")
    e.i(f"s_lshl_b32 s{T+1}, s{S_W}, 4")
    e.i(f"s_add_u32 s{T}, s{T}, s{T+1}")
    e.i(f"s_lshl_b32 s{T}, s{T}, 12")
    e.i(f"s_lshl_b32 s{T+1}, s{S_RB}, 7")
    e.i(f"s_add_u32 s{T}, s{T}, s{T+1}")
    e.i(f"s_add_u32 s{T}, s{T}, {WS_YT}")
    e.i(f"s_add_u32 s{T+1}, s{T}, {8*4096}")
    e.i(f"v_lshrrev_b32 v3, 3, v{V_LANE}")
    e.i(f"v_lshlrev_b32 v13, 12, v3")
    e.i(f"v_and_b32 v14, 7, v{V_LANE}")
    e.i(f"v_lshl_add_u32 v13, v14, 4, v13")
    e.i(f"buffer_load_dwordx4 {vr(YL,4)}, v13, {rs(R_WS)}, s{T} offen sc1")
    e.i(f"buffer_load_dwordx4 {vr(YL+4,4)}, v13, {rs(R_WS)}, s{T+1} offen sc1")
    e.i(f"v_mul_u32_u24 v3, 144, v3")
    e.i(f"v_lshl_add_u32 v15, v14, 4, v3")
    e.i(f"s_mul_i32 s{T}, s{S_W}, {16*144}")
    e.i(f"s_add_u32 s{T+1}, s{T}, {L_A3}")
    e.i(f"v_add_u32 v3, s{T+1}, v15")
    e.i(f"s_add_u32 s{T+1}, s{T}, {L_A3R}")
    e.i(f"v_add_u32 v12, s{T+1}, v15")
    e.i(f"v_and_b32 v8, 15, v{V_LANE}")
    e.i(f"v_mul_u32_u24 v8, 144, v8")
    e.i(f"v_and_b32 v9, 0x30, v{V_LANE}")
    e.i(f"v_add3_u32 v8, v8, v9, s{T+1}")
    e.i(f"v_lshrrev_b32 v13, 4, v{V_LANE}")
    e.i(f"v_lshlrev_b32 v13, 3, v13")
    e.i(f"v_bfe_u32 v14, v{V_LANE}, 2, 2")
    e.i(f"v_add_u32 v13, v13, v14")
    e.i(f"v_mul_u32_u24 v13, 144, v13")
    e.i(f"v_and_b32 v14, 3, v{V_LANE}")
    e.i(f"v_lshlrev_b32 v14, 3, v14")
    e.i(f"s_lshl_b32 s{T}, s{S_W}, 5")
    e.i(f"s_add_u32 s{T}, s{T}, {L_A3}")
    e.i(f"v_add3_u32 v13, v13, v14, s{T}")
    e.i("s_waitcnt vmcnt(0)")
    e.i(f"ds_write_b128 v3, {vr(YL,4)}")
    e.i(f"ds_write_b128 v3, {vr(YL+4,4)} offset:{8*144}")
    swbar(e)
    for it in range(2):
        for jj in range(2):
            e.i(f"ds_read_b64_tr_b16 {vr(16+4*it+2*jj,2)}, v13 offset:{(32*it+4*jj)*144}")
    e.i("s_waitcnt lgkmcnt(2)")
    e.i(f"ds_write_b128 v8, v[16:19]")
    e.i("s_waitcnt lgkmcnt(1)")
    e.i(f"ds_write_b128 v8, v[20:23] offset:64")
    e.i("s_waitcnt lgkmcnt(0)")
    e.i(f"ds_read_b128 v[16:19], v12")
    e.i(f"ds_read_b128 v[20:23], v12 offset:{8*144}")
    e.i(f"s_mov_b32 s{T}, 0xffff0000")
    e.i("s_waitcnt lgkmcnt(0)")
    for it in range(2):
        for m in range(4):
            y = 16 + 4*it + m; q = QPF + 4*it + m
            e.i(f"v_lshlrev_b32 v24, 16, v{y}")
            e.i(f"v_and_b32 v25, s{T}, v{y}")
            e.i(f"v_lshlrev_b32 v26, 16, v{q}")
            e.i(f"v_and_b32 v27, s{T}, v{q}")
            e.i(f"v_mul_f32 v24, v24, v26")
            e.i(f"v_mul_f32 v25, v25, v27")
            e.i(f"v_cvt_pk_bf16_f32 v{32+4*it+m}, v24, v25")
    e.i(f"buffer_store_dwordx4 v[32:35], v{V_A3OFF+1}, {rs(R_OUT)}, 0 offen{OUTF[0]}")
    e.i(f"s_mov_b32 s{T}, {8*1792}")
    e.i(f"buffer_store_dwordx4 v[36:39], v{V_A3OFF+1}, {rs(R_OUT)}, s{T} offen{OUTF[0]}")

def b3_main(e, cfg):
    T = S_T0
    e.c("==== B3: out projection ====")
    e.i(f"s_lshr_b32 s{T}, s{S_W}, 1")
    e.i(f"s_lshl_b32 s{T+1}, s{S_RB}, 1")
    e.i(f"s_add_u32 s{T+2}, s{T}, s{T+1}")
    e.i(f"s_and_b32 s{T+3}, s{S_W}, 1")
    e.i(f"s_lshl_b32 s{T+4}, s{T+3}, 9")
    e.i(f"s_add_u32 s{T+4}, s{T+4}, s{T+2}")
    e.i(f"v_and_b32 v7, 7, v{V_LANE}")
    e.i(f"v_lshlrev_b32 v7, 6, v7")
    e.i(f"v_add_u32 v7, s{T+4}, v7")
    if not cfg.tags:
        poll(e, cfg, FL_B2, 7, "b2")
    else:
        e.i(f"s_lshl_b32 s{T+4}, s{T+2}, 15")
        e.i(f"s_lshl_b32 s{T+5}, s{T+3}, 14")
        e.i(f"s_add_u32 s{T+4}, s{T+4}, s{T+5}")
        e.i(f"s_add_u32 s{T+4}, s{T+4}, {WS_OF + 1024 + 63*16}")
        e.i(f"v_and_b32 v7, 7, v{V_LANE}")
        e.i(f"v_lshlrev_b32 v7, 11, v7")
        e.i(f"s_mov_b32 s{S_IT}, 0x40000")
        e.i(f"s_mov_b32 s{T+5}, 0xffff")
        e.label("L_rep")
        e.i(f"buffer_load_dword v8, v7, {rs(R_WS)}, s{T+4} offen sc1")
        e.i("s_waitcnt vmcnt(0)")
        e.i(f"v_and_b32 v8, s{T+5}, v8")
        e.i(f"v_cmp_ne_u32 vcc, s{T+5}, v8")
        e.i("s_cbranch_vccz L_rep_done")
        e.i(f"s_sub_u32 s{S_IT}, s{S_IT}, 1")
        e.i("s_cbranch_scc1 L_rep_done")
        e.i("s_sleep 2")
        e.i("s_branch L_rep")
        e.label("L_rep_done")
    stamp(e, cfg, 14)
    e.i(f"s_mov_b32 s{S_JJ}, 0x4000")
    e.label("L_odma")
    e.i(f"s_lshr_b32 s{T}, s{S_W}, 1")
    e.i(f"s_lshl_b32 s{T+1}, s{S_RB}, 1")
    e.i(f"s_add_u32 s{T+2}, s{T}, s{T+1}")
    e.i(f"s_and_b32 s{T+3}, s{S_W}, 1")
    e.i(f"s_lshl_b32 s{T+2}, s{T+2}, 15")
    e.i(f"s_lshl_b32 s{T+4}, s{T+3}, 14")
    e.i(f"s_add_u32 s{T+2}, s{T+2}, s{T+4}")
    e.i(f"s_add_u32 s{T+2}, s{T+2}, {WS_OF}")
    e.i(f"s_lshl_b32 s{T}, s{T}, 15")
    e.i(f"s_add_u32 s{T}, s{T}, s{T+4}")
    e.i(f"s_add_u32 s{T}, s{T}, {L_OF}")
    for u in range(16):
        e.i(f"s_add_u32 m0, s{T}, {1024*u}")
        if u == 0: e.i("s_nop 0")
        e.i(f"buffer_load_dwordx4 v{V_L16}, {rs(R_WS)}, s{T+2} offen sc1 lds")
        if u < 15: e.i(f"s_add_u32 s{T+2}, s{T+2}, 1024")
    if cfg.tags:
        e.i(f"v_add_u32 v7, s{T}, v{V_L16}")
        e.i("s_waitcnt vmcnt(0)")
        for u in range(16):
            e.i(f"ds_read_b32 v{32+u}, v7 offset:{1024*u}")
        e.i("s_waitcnt lgkmcnt(8)")
        for u in range(1, 8): e.i(f"v_and_b32 v32, v32, v{32+u}")
        e.i("s_waitcnt lgkmcnt(0)")
        for u in range(8, 16): e.i(f"v_and_b32 v32, v32, v{32+u}")
        e.i(f"s_mov_b32 s{T+5}, 0xffff")
        e.i(f"v_and_b32 v32, s{T+5}, v32")
        e.i(f"v_cmp_ne_u32 vcc, s{T+5}, v32")
        e.i("s_cbranch_vccz L_odma_ok")
        e.i(f"s_sub_u32 s{S_JJ}, s{S_JJ}, 1")
        e.i("s_cbranch_scc0 L_odma")
        e.label("L_odma_ok")
    e.i(f"v_lshrrev_b32 v8, 5, v{V_LANE}")
    e.i(f"v_mul_u32_u24 v8, 7, v8")
    e.i(f"v_bfe_u32 v9, v{V_LANE}, 2, 2")
    e.i(f"v_add_u32 v8, v8, v9")
    e.i(f"v_bfe_u32 v9, v{V_LANE}, 4, 1")
    e.i(f"v_lshlrev_b32 v9, 5, v9")
    e.i(f"v_and_b32 v10, 3, v{V_LANE}")
    e.i(f"v_lshl_add_u32 v9, v10, 3, v9")
    for f in range(2):
        e.i(f"v_add_u32 v10, {14*f}, v8")
        e.i(f"v_bfe_u32 v11, v10, 1, 1")
        e.i(f"v_xor_b32 v11, s{T+3}, v11")
        e.i(f"v_lshlrev_b32 v11, 6, v11")
        e.i(f"v_lshl_add_u32 v10, v10, 7, v11")
        e.i(f"v_add_u32 v{12+f}, v10, v9")
        if L_WO: e.i(f"v_add_u32 v{12+f}, {L_WO}, v{12+f}")
    e.i(f"s_lshr_b32 s{T}, s{S_W}, 1")
    e.i(f"s_lshl_b32 s{T}, s{T}, 15")
    e.i(f"s_add_u32 s{T}, s{T}, {L_OF}")
    e.i(f"v_add_u32 v15, s{T}, v{V_L16}")
    e.i(f"s_mul_i32 s{T}, s{S_W}, 2560")
    e.i(f"s_add_u32 s{T}, s{T}, {L_OUTB}")
    e.i(f"v_and_b32 v8, 31, v{V_LANE}")
    e.i(f"v_mul_u32_u24 v8, 80, v8")
    e.i(f"v_lshrrev_b32 v9, 5, v{V_LANE}")
    e.i(f"v_lshlrev_b32 v9, 3, v9")
    e.i(f"v_add3_u32 v8, v8, v9, s{T}")
    e.i(f"v_lshrrev_b32 v9, 2, v{V_LANE}")
    e.i(f"v_mul_u32_u24 v10, 80, v9")
    e.i(f"v_and_b32 v11, 3, v{V_LANE}")
    e.i(f"v_lshlrev_b32 v11, 4, v11")
    e.i(f"v_add3_u32 v10, v10, v11, s{T}")
    e.i(f"s_lshl_b32 s{T}, s{S_RB}, 6")
    e.i(f"s_lshr_b32 s{T+2}, s{S_W}, 1")
    e.i(f"s_lshl_b32 s{T+2}, s{T+2}, 5")
    e.i(f"s_add_u32 s{T}, s{T}, s{T+2}")
    e.i(f"s_mul_i32 s{T}, s{T}, 1792")
    e.i(f"s_lshl_b32 s{T+2}, s{S_CB}, 7")
    e.i(f"s_lshl_b32 s{T+3}, s{T+3}, 6")
    e.i(f"s_add_u32 s{T}, s{T}, s{T+2}")
    e.i(f"s_add_u32 s{T}, s{T}, s{T+3}")
    e.i(f"s_add_u32 s{T}, s{T}, 896")
    e.i(f"v_mul_u32_u24 v9, 1792, v9")
    e.i(f"v_add3_u32 v14, v9, v11, s{T}")
    e.i("s_waitcnt vmcnt(0)")
    e.i("s_barrier")
    steps = [(h, f) for h in range(16) for f in range(2)]
    NB = 4
    def rd(k):
        h, f = steps[k]
        b = 32 + 8*(k % NB)
        for jj in range(2):
            e.i(f"ds_read_b64_tr_b16 {vr(b+2*jj,2)}, v{12+f} offset:{(28*h+4*jj)*128}")
        e.i(f"ds_read_b128 {vr(b+4,4)}, v15 offset:{1024*k}")
    for k in range(NB-1): rd(k)
    for k in range(32):
        if k + NB - 1 < 32: rd(k + NB - 1)
        nyl = 3 * min(NB - 1, 31 - k)
        e.i(f"s_waitcnt lgkmcnt({nyl})")
        b = 32 + 8*(k % NB)
        if cfg.tags:
            e.i(f"v_and_b32 v{b+4}, 0xffff0000, v{b+4}")
            e.i("s_nop 1")
        e.i(f"v_mfma_f32_32x32x16_bf16 v[16:31], {vr(b,4)}, {vr(b+4,4)}, {'0' if k == 0 else 'v[16:31]'}")
    e.i("s_nop 7"); e.i("s_nop 7")
    for m in range(8):
        e.i(f"v_cvt_pk_bf16_f32 v{48+m}, v{16+2*m}, v{17+2*m}")
    for g in range(4):
        e.i(f"ds_write_b64 v8, {vr(48+2*g,2)} offset:{16*g}")
    e.i("s_waitcnt lgkmcnt(0)")
    e.i(f"ds_read_b128 v[56:59], v10")
    e.i(f"ds_read_b128 v[60:63], v10 offset:{16*80}")
    e.i(f"s_mov_b32 s{T}, {16*1792}")
    e.i("s_waitcnt lgkmcnt(1)")
    e.i(f"buffer_store_dwordx4 v[56:59], v14, {rs(R_OUT)}, 0 offen{OUTF[0]}")
    e.i("s_waitcnt lgkmcnt(0)")
    e.i(f"buffer_store_dwordx4 v[60:63], v14, {rs(R_OUT)}, s{T} offen{OUTF[0]}")

def dump_stamps(e, cfg, wave_off):
    T = S_T0
    if cfg.stamps:
        e.i(f"s_lshl_b32 s{T}, s2, 3")
        e.i(f"s_add_u32 s{T}, s{T}, s{S_W}")
        if wave_off: e.i(f"s_add_u32 s{T}, s{T}, {wave_off}")
        e.i(f"s_lshl_b32 s{T}, s{T}, 8")
        e.i(f"s_add_u32 s{T}, s{T}, {WS_TS}")
        e.i(f"v_lshlrev_b32 v3, 2, v{V_LANE}")
        e.i(f"buffer_store_dword v{vts()}, v3, {rs(R_WS)}, s{T} offen")

def role_b(e, cfg):
    T = S_T0
    ROLE[0] = "B"
    ids_b(e, cfg)
    addr_b(e, cfg)
    swbar_init(e)
    if cfg.stamps: e.i(f"v_mov_b32 v{vts()}, 0")
    e.i("s_waitcnt lgkmcnt(0)")
    if cfg.stamps: e.i(f"v_writelane_b32 v{vts()}, s{S_TS}, 16")
    e.i("s_barrier")
    e.i("s_setprio 2")
    stamp(e, cfg, 17)
    b1_consts(e)
    b1_issue(e); b1_issue(e)
    nonce_early(e, cfg)
    stamp(e, cfg, 19)
    b1_traddr(e, cfg)
    stamp(e, cfg, 21)
    b1_loop(e, cfg)
    stamp(e, cfg, 3)
    e.i(f"v_mov_b32 v4, {L_CNTRD}")
    sw_arrive(e, addr=4)
    get_nonce(e, cfg)
    b1_epilogue_kv(e, cfg)
    stamp(e, cfg, 5)
    e.i(f"s_waitcnt vmcnt({6 if cfg.tags else 4})")
    swbar(e)
    b1_q(e, cfg)
    stamp(e, cfg, 6)
    e.i("s_waitcnt vmcnt(0)")
    publish(e, cfg, FL_B1, [f"s_lshl_b32 s{T}, s{S_H}, 4", f"s_add_u32 s{T}, s{T}, s{S_R}"])
    stamp(e, cfg, 4)
    b1_epilogue_q(e, cfg)
    swbar(e)
    e.i("s_setprio 0")
    stamp(e, cfg, 7)
    if cfg.stop_after >= 3:
        b2_main(e, cfg)
        if not cfg.tags:
            e.i("s_waitcnt vmcnt(0)")
            publish(e, cfg, FL_B2, [f"s_lshl_b32 s{T}, s{S_H}, 4", f"s_add_u32 s{T}, s{T}, s{S_R}"], tmp=4)
        stamp(e, cfg, 12)
    if cfg.stop_after >= 4:
        e.i("s_cmp_ge_u32 s2, 224")
        e.i("s_cbranch_scc1 L_finB")
        b3_main(e, cfg)
        e.label("L_finB")
    stamp(e, cfg, 15)
    dump_stamps(e, cfg, 0)

def role_a(e, cfg):
    T = S_T0
    ROLE[0] = "A"
    e.label("L_roleA")
    e.i("s_setprio 3")
    e.i(f"s_sub_u32 s{S_W}, s{S_W}, 4")
    addr_a(e, cfg)
    swbar_init(e)
    if cfg.stamps: e.i(f"v_mov_b32 v{vts()}, 0")
    e.i("s_waitcnt lgkmcnt(0)")
    if cfg.stamps: e.i(f"v_writelane_b32 v{vts()}, s{S_TS}, 16")
    e.i("s_barrier")
    stamp(e, cfg, 17)
    if cfg.await_b:
        e.i(f"v_mov_b32 v8, {L_CNTB}")
        sw_wait(e, 8, target_imm=4*cfg.await_b, sleep=4)
    stamp(e, cfg, 19)
    a1_loads(e, cfg)
    a2_dload(e, cfg)
    e.i(f"s_or_b32 s{T}, s2, s{S_W}")
    e.i("s_cbranch_scc1 L_nononce")
    e.i(f"s_memrealtime s[{S_NONCE}:{S_NONCE+1}]")
    e.i("s_waitcnt lgkmcnt(0)")
    e.i(f"s_or_b32 s{S_NONCE}, s{S_NONCE}, 1")
    e.i(f"v_mov_b32 v76, s{S_NONCE}")
    e.i(f"v_mov_b32 v77, s{S_NONCE+1}")
    e.i("v_mov_b32 v78, 0")
    e.i("s_mov_b64 exec, 1")
    e.i(f"buffer_store_dwordx2 v[76:77], v78, {rs(R_DBG)}, 0 offen sc1")
    e.i("s_mov_b64 exec, -1")
    e.label("L_nononce")
    a1_compute(e, cfg, 0)
    stamp(e, cfg, 18)
    nonce_early(e, cfg)
    a1_compute_b(e, cfg)
    stamp(e, cfg, 1)
    e.i("s_waitcnt vmcnt(0)")
    get_nonce(e, cfg)
    publish(e, cfg, FL_A1, [f"s_mov_b32 s{T}, s2"], tmp=24)
    e.i("s_setprio 1")
    stamp(e, cfg, 2)
    e.i("s_cmp_ge_u32 s2, 224")
    e.i("s_cbranch_scc1 L_finA")
    h_loads(e, cfg)
    swbar(e)
    e.i("s_waitcnt vmcnt(0)")
    a2_hstage(e, cfg)
    if cfg.stop_after >= 2:
        a2_main(e, cfg)
        stamp(e, cfg, 9)
        e.i("s_waitcnt vmcnt(0)")
        publish(e, cfg, FL_A2, [f"s_mov_b32 s{T}, s2"])
        stamp(e, cfg, 10)
    if cfg.stop_after >= 4:
        wo_addr(e, cfg)
        e.i(f"v_mov_b32 v4, {L_CNTRD}")
        sw_wait(e, 4, target_imm=4, sleep=8)
        wo_first(e, cfg)
        for t in range(13):
            e.i("s_waitcnt vmcnt(1)")
            wo_next(e)
        stamp(e, cfg, 11)
        a3_main(e, cfg)
        if cfg.tags:
            e.i(f"s_lshl_b32 s{T}, s{S_RB}, 1")
            e.i(f"v_bfe_u32 v8, v{V_LANE}, 4, 1")
            e.i(f"v_add_u32 v8, s{T}, v8")
            e.i(f"v_and_b32 v7, 15, v{V_LANE}")
            e.i(f"v_lshl_add_u32 v7, v7, 6, v8")
            poll(e, cfg, FL_B1, 7, "b1c", tmp=8)
        e.i("s_waitcnt vmcnt(0)")
    e.label("L_finA")
    stamp(e, cfg, 15)
    dump_stamps(e, cfg, 4)

def build(cfg):
    e = E()
    prologue(e, cfg)
    role_b(e, cfg)
    e.label("L_end")
    e.i("s_endpgm")
    role_a(e, cfg)
    e.i("s_endpgm")
    if cfg.stop_after >= 3:
        ROLE[0] = "B"
        b2_slow(e, cfg)
        e.i("s_endpgm")
    return e

HEADER = f"""; Kernarg layout (96 bytes): A_q A_k A_v A_shift_k A_ssm_k A_ssm_D B_x B_wqkv B_wo out debug ws
; @launch grid=(256,1,1) block=(512,1,1) lds={LDS_SIZE}
.amdgcn_target "amdgcn-amd-amdhsa--gfx950"
.text
.globl {KNAME}
.p2align 8
.type {KNAME},@function
{KNAME}:
"""
FOOTER = f"""
.section .rodata,"a"
.p2align 6
.amdhsa_kernel {KNAME}
  .amdhsa_next_free_vgpr 256
  .amdhsa_next_free_sgpr 102
  .amdhsa_accum_offset 256
  .amdhsa_group_segment_fixed_size 0
  .amdhsa_kernarg_size 96
  .amdhsa_user_sgpr_count 2
  .amdhsa_user_sgpr_kernarg_segment_ptr 1
  .amdhsa_system_sgpr_workgroup_id_x 1
  .amdhsa_float_denorm_mode_32 3
.end_amdhsa_kernel
"""

if __name__ == "__main__":
    import argparse
    ap = argparse.ArgumentParser()
    ap.add_argument("-o", default=f"cdna_kernels/{NAME}.s")
    ap.add_argument("--stop", type=int, default=99)
    ap.add_argument("--stamps", action="store_true")
    ap.add_argument("--nosync", action="store_true")
    ap.add_argument("--realtime", action="store_true")
    ap.add_argument("--noprefetch", action="store_true")
    ap.add_argument("--span", action="store_true")
    ap.add_argument("--skipA", action="store_true")
    ap.add_argument("--bdelay", type=int, default=0)
    ap.add_argument("--awaitb", type=int, default=0)
    ap.add_argument("--tags", action="store_true")
    ap.add_argument("--outflag", default="")
    ap.add_argument("--xmap", type=int, default=4)
    a = ap.parse_args()
    cfg = Cfg(); cfg.stop_after = a.stop; cfg.stamps = a.stamps; cfg.nosync = a.nosync; cfg.realtime = a.realtime; cfg.prefetch = not a.noprefetch; cfg.span = a.span; cfg.skipA = a.skipA; cfg.bdelay = a.bdelay; cfg.await_b = a.awaitb; cfg.tags = a.tags; cfg.outflag = a.outflag; OUTF[0] = (' ' + a.outflag) if a.outflag else ''; cfg.xmap = a.xmap
    e = build(cfg)
    open(a.o, "w").write(HEADER + e.text() + FOOTER)
    print("wrote", a.o, len(e.lines), "lines")
```

```python
import sys, math, struct

NAME = "concat_heads__ssm_conv_h3__softmax_full_mha__prompt"
KNAME = NAME + "_kernel"

class E:
    def __init__(self):
        self.lines = []
    def c(self, s):
        self.lines.append("    ; " + s)
    def i(self, s):
        self.lines.append("    " + s)
    def label(self, s):
        self.lines.append(s + ":")
    def text(self):
        return "\n".join(self.lines) + "\n"

def vr(a, n=1):
    return f"v{a}" if n == 1 else f"v[{a}:{a+n-1}]"
def ar(a, n=1):
    return f"a{a}" if n == 1 else f"a[{a}:{a+n-1}]"
def rs(r): return f"s[{r}:{r+3}]"

S, D, H, DH = 2048, 448, 16, 28
SZ_SD   = S * D * 2
SZ_SHK  = D * 4 * 2
SZ_WQKV = D * 3 * D * 2
SZ_WO   = D * D * 2
SZ_OUT  = S * 2 * D * 2
WS_KV = 0x000000
WS_XT = 0x400000
WS_YT = 0x600000
WS_OF = 0x800000
WS_FL = 0xA00000
FL_A1, FL_B1, FL_A2, FL_B2 = 0, 0x10000, 0x20000, 0x30000
FL_SH = 6
WS_TS = 0xB00000
WS_SIZE = 0xC00000

L_RING = 0
NSLOT  = 4
SLOT   = 24576
L_WQ   = 98304
L_Q    = 65536
L_WO   = 0
L_RED  = 58368
L_OF   = 58368
LA     = 126976
L_KS   = LA
L_SHK  = LA + 12288
L_KVT  = LA + 16384
L_H    = LA + 25600
H_CH   = 4160
L_X    = LA
X_CH   = 5248
L_CARRY= LA + 10496
L_Y    = L_X
L_A3   = LA + 12288
L_A3R  = LA
L_OUTB = LA
L_MISC = LA + 33920
L_CNTA, L_CNTB, L_CNTRD, L_CNTGO = L_MISC + 16, L_MISC + 20, L_MISC + 24, L_MISC + 28
LDS_SIZE = LA + 33920 + 64

S_W = 3
R_K, R_V, R_Q, R_SHK, R_SSMK, R_X, R_WQKV, R_WO, R_OUT, R_WS, R_DBG = 4, 8, 12, 16, 20, 24, 28, 32, 36, 40, 44
S_H, S_R, S_CB, S_RB = 48, 49, 50, 51
S_NONCE = 52
S_D2 = 54
S_DP = 62
S_T0 = 56
S_MHH = 64
S_MONE = 66
S63 = 68
S_KV = 70
S_J = 76
S_JJ = 77
S_SLI = 78
S_SLC = 79
S_XB = 80
S_WOI = 81
S_T1 = 88
S_SLOW = 96
S_IT = 97
S_TS = 98
S_BT = 55

QSCALE = (DH ** -0.5) * math.log2(math.e)
def f2u(x): return struct.unpack("<I", struct.pack("<f", x))[0]

class Cfg:
    stop_after = 99
    stamps = False
    nosync = False
    realtime = False
    prefetch = True
    span = False
    skipA = False
    bdelay = 0
    await_b = 0
    pad = False
    lalign = 3
    shift4 = False
    hearly = False
    ago = False
    apf = False
    fine = False
    noA = False
    bsleep = 3
    b3pipe = False
    alow = False
    tags = False
    outflag = ''
    xmap = 4

ROLE = ["B"]
OUTF = ['']
def vts(): return 250 if ROLE[0] == "B" else 63
def stamp(e, cfg, idx):
    if not cfg.stamps: return
    e.c(f"stamp {idx}")
    e.i(f"{'s_memrealtime' if cfg.realtime else 's_memtime'} s[{S_TS}:{S_TS+1}]")
    e.i("s_waitcnt lgkmcnt(0)")
    e.i(f"v_writelane_b32 v{vts()}, s{S_TS}, {idx}")

def bar_regs():
    return (247, 248, 249) if ROLE[0] == "B" else (60, 61, 62)
BARN = [0]
def swbar_init(e):
    a, one, tmp = bar_regs()
    e.i(f"v_mov_b32 v{a}, {L_CNTB if ROLE[0] == 'B' else L_CNTA}")
    e.i(f"v_mov_b32 v{one}, 1")
    e.i(f"s_mov_b32 s{S_BT}, 0")
def sw_arrive(e, addr=None):
    a, one, tmp = bar_regs()
    e.i("s_mov_b64 exec, 1")
    e.i(f"ds_add_u32 v{addr if addr is not None else a}, v{one}")
    e.i("s_mov_b64 exec, -1")
def sw_wait(e, addr, target_sgpr=None, target_imm=None, sleep=None):
    a, one, tmp = bar_regs()
    BARN[0] += 1
    n = BARN[0]
    e.i(f"s_mov_b32 s{S_IT}, 0x100000")
    e.label(f"L_sw{n}")
    e.i(f"ds_read_b32 v{tmp}, v{addr}")
    e.i("s_waitcnt lgkmcnt(0)")
    e.i(f"v_readfirstlane_b32 s95, v{tmp}")
    e.i(f"s_cmp_ge_u32 s95, {('s%d' % target_sgpr) if target_sgpr is not None else target_imm}")
    e.i(f"s_cbranch_scc1 L_swd{n}")
    if sleep is None: sleep = 1 if ROLE[0] == "A" else 0
    if sleep: e.i(f"s_sleep {sleep}")
    e.i(f"s_sub_u32 s{S_IT}, s{S_IT}, 1")
    e.i(f"s_cbranch_scc0 L_sw{n}")
    e.label(f"L_swd{n}")
def swbar(e):
    a, one, tmp = bar_regs()
    e.i(f"s_add_u32 s{S_BT}, s{S_BT}, 4")
    sw_arrive(e)
    sw_wait(e, a, target_sgpr=S_BT)

V_LANE, V_L16 = 1, 2
V_TS = 250

def prologue(e, cfg):
    e.c("==== prologue ====")
    ptrs = [(R_K, 8), (R_V, 16), (R_SHK, 24), (R_X, 48), (R_WQKV, 56), (R_SSMK, 32), (R_Q, 0), (R_WO, 64), (R_OUT, 72), (R_DBG, 80), (R_WS, 88), (S_DP, 40)]
    for r, off in ptrs:
        e.i(f"s_load_dwordx2 s[{r}:{r+1}], s[0:1], {off}")
    if cfg.span: e.i("s_memrealtime s[100:101]")
    e.i("s_cmp_ge_u32 s2, 256")
    e.i("s_cbranch_scc1 L_end")
    if cfg.stamps:
        e.i(f"s_memrealtime s[{S_TS}:{S_TS+1}]" if cfg.realtime else f"s_memtime s[{S_TS}:{S_TS+1}]")
    e.i(f"v_lshrrev_b32 v3, 6, v0")
    e.i(f"v_and_b32 v{V_LANE}, 63, v0")
    e.i(f"v_readfirstlane_b32 s{S_W}, v3")
    e.i(f"v_lshlrev_b32 v{V_L16}, 4, v{V_LANE}")
    for i in range(4): e.i(f"v_mov_b32 v{4+i}, 0")
    e.i(f"v_mov_b32 v3, {L_MISC + 16}")
    e.i("s_mov_b64 exec, 1")
    e.i("ds_write_b128 v3, v[4:7]")
    e.i("s_mov_b64 exec, -1")
    sizes = {R_K: SZ_SD, R_V: SZ_SD, R_SHK: SZ_SHK, R_SSMK: SZ_SD, R_X: SZ_SD, R_WQKV: SZ_WQKV, R_Q: SZ_SD, R_WO: SZ_WO, R_OUT: SZ_OUT, R_DBG: 256, R_WS: WS_SIZE}
    for r, sz in sizes.items():
        e.i(f"s_mov_b32 s{r+2}, {sz}")
        e.i(f"s_mov_b32 s{r+3}, 0x20000")
    T = S_T0
    e.i(f"s_lshr_b32 s{S_CB}, s2, 5")
    e.i(f"s_min_u32 s{S_CB}, s{S_CB}, 6")
    e.i(f"s_and_b32 s{S_RB}, s2, 31")
    e.i(f"s_cmp_ge_u32 s{S_W}, 4")
    e.i("s_cbranch_scc1 L_roleA")

def ids_b(e, cfg):
    T = S_T0
    hb = {2: 1, 4: 2, 8: 3}[cfg.xmap]
    ng = 16 >> hb
    gb = 4 - hb
    e.i(f"s_and_b32 s{T}, s2, 7")
    e.i(f"s_lshr_b32 s{T+1}, s2, 3")
    e.i(f"s_and_b32 s{S_H}, s{T}, {ng-1}")
    e.i(f"s_lshl_b32 s{S_H}, s{S_H}, {hb}")
    e.i(f"s_and_b32 s{T+2}, s{T+1}, {(1<<hb)-1}")
    e.i(f"s_add_u32 s{S_H}, s{S_H}, s{T+2}")
    e.i(f"s_lshr_b32 s{S_R}, s{T}, {gb}")
    e.i(f"s_lshl_b32 s{S_R}, s{S_R}, {5-hb}")
    e.i(f"s_lshr_b32 s{T+2}, s{T+1}, {hb}")
    e.i(f"s_add_u32 s{S_R}, s{S_R}, s{T+2}")
    e.i(f"s_and_b32 s{S_J}, s{T+1}, {(1<<hb)-1}")
    e.i(f"s_lshl_b32 s{S_J}, s{S_J}, {1 if hb <= 2 else 0}")
    e.i(f"s_lshr_b32 s{T}, s{T+1}, {hb}")
    if hb == 3: e.i(f"s_lshl_b32 s{T}, s{T}, 1")
    e.i(f"s_add_u32 s{S_J}, s{S_J}, s{T}")
    for _ in range(3):
        e.i(f"s_cmp_ge_u32 s{S_J}, 7")
        e.i(f"s_cselect_b32 s{T}, 7, 0")
        e.i(f"s_sub_u32 s{S_J}, s{S_J}, s{T}")

V_KOFF = 4
VA = 48
V_XE, V_XO = 8, 9
V_DMA = 10
V_HOFF = 7
HREG = 116

def addr_a(e, cfg):
    T = S_T0
    e.c("A1 addresses")
    e.i(f"s_lshl_b32 s{T}, s{S_RB}, 6")
    e.i(f"s_lshl_b32 s{T+1}, s{S_W}, 4")
    e.i(f"s_add_u32 s{T}, s{T}, s{T+1}")
    e.i(f"s_mul_i32 s{T}, s{T}, 896")
    e.i(f"s_lshl_b32 s{T+1}, s{S_CB}, 7")
    e.i(f"s_add_u32 s{T}, s{T}, s{T+1}")
    e.i(f"v_lshrrev_b32 v3, 3, v{V_LANE}")
    e.i(f"v_mul_u32_u24 v13, 896, v3")
    e.i(f"v_and_b32 v14, 7, v{V_LANE}")
    e.i(f"v_lshl_add_u32 v15, v14, 4, v13")
    e.i(f"v_add_u32 v{V_KOFF+1}, s{T}, v15")
    e.i(f"v_add_u32 v{V_KOFF+2}, 7168, v{V_KOFF+1}")
    e.i(f"v_subrev_u32 v{V_KOFF}, 7168, v{V_KOFF+1}")
    e.c("h offset")
    e.i(f"s_lshr_b32 s{T}, s{S_W}, 1")
    e.i(f"s_lshl_b32 s{T+1}, s2, 1")
    e.i(f"s_add_u32 s{T}, s{T}, s{T+1}")
    e.i(f"s_lshl_b32 s{T}, s{T}, 12")
    e.i(f"s_and_b32 s{T+1}, s{S_W}, 1")
    e.i(f"s_lshl_b32 s{T+1}, s{T+1}, 11")
    e.i(f"s_add_u32 s{T}, s{T}, s{T+1}")
    e.i(f"v_add_u32 v{V_HOFF}, s{T}, v{V_L16}")

def addr_b(e, cfg):
    T = S_T0
    e.c("B1 x dma offsets: (128r + 32w + (l>>3))*896 + ((l&7) ^ f)*16, f = (l>>4) ^ (4*(t&1))")
    e.i(f"v_lshrrev_b32 v3, 3, v{V_LANE}")
    e.i(f"v_mul_u32_u24 v13, 896, v3")
    e.i(f"v_and_b32 v14, 7, v{V_LANE}")
    e.i(f"s_lshl_b32 s{T}, s{S_R}, 7")
    e.i(f"s_lshl_b32 s{T+1}, s{S_W}, 5")
    e.i(f"s_add_u32 s{T}, s{T}, s{T+1}")
    e.i(f"s_mul_i32 s{T}, s{T}, 896")
    e.i(f"v_lshrrev_b32 v3, 4, v{V_LANE}")
    e.i(f"v_xor_b32 v3, v3, v14")
    e.i(f"v_lshl_add_u32 v15, v3, 4, v13")
    e.i(f"v_add_u32 v{V_XE}, s{T}, v15")
    e.i(f"v_xor_b32 v{V_XO}, 64, v{V_XE}")
    e.c("Wkv dma offsets: row=(l>>3) (+8t), phys half=(l>>2)&1, piece = half ^ ((l>>4)&1), gran = l&3")
    e.i(f"s_mul_i32 s{T}, s{S_H}, 56")
    e.i(f"v_lshrrev_b32 v3, 3, v{V_LANE}")
    e.i(f"v_mul_u32_u24 v{V_DMA}, 2688, v3")
    e.i(f"v_bfe_u32 v13, v{V_LANE}, 2, 1")
    e.i(f"v_bfe_u32 v14, v{V_LANE}, 4, 1")
    e.i(f"v_xor_b32 v13, v13, v14")
    e.i(f"v_and_b32 v3, 3, v{V_LANE}")
    e.i(f"v_mul_u32_u24 v14, 896, v13")
    e.i(f"v_add3_u32 v{V_DMA}, v{V_DMA}, v14, s{T}")
    e.i(f"v_add_u32 v14, 1, v3")
    e.i(f"v_mul_u32_u24 v13, v13, v14")
    e.i(f"v_lshlrev_b32 v14, 3, v3")
    e.i(f"v_sub_u32 v14, v14, v13")
    e.i(f"v_lshl_add_u32 v{V_DMA}, v14, 1, v{V_DMA}")
    e.i(f"v_add_u32 v{V_DMA}, 896, v{V_DMA}")
    e.c("Wq dma offset: row = l>>2, gran = l&3")
    e.i(f"v_lshrrev_b32 v13, 2, v{V_LANE}")
    e.i(f"v_mul_u32_u24 v13, 2688, v13")
    e.i(f"v_lshlrev_b32 v3, 4, v3")
    e.i(f"v_add3_u32 v{V_DMA+1}, v13, v3, s{T}")

def a1_loads(e, cfg):
    T = S_T0
    e.c("A1 loads: k dma x3, shk dma, v x2, h x2")
    e.i(f"s_mul_i32 s{T}, s{S_W}, 3072")
    for t in range(3):
        e.i(f"s_add_u32 m0, s{T}, {L_KS + 1024*t}")
        e.i("s_nop 0")
        e.i(f"buffer_load_dwordx4 v{V_KOFF+t}, {rs(R_K)}, 0 offen lds")
    e.i(f"s_lshl_b32 s{T}, s{S_W}, 10")
    e.i(f"s_add_u32 m0, s{T}, {L_SHK}")
    e.i(f"s_lshl_b32 s{T+1}, s{S_CB}, 9")
    e.i(f"buffer_load_dwordx4 v{V_L16}, {rs(R_SHK)}, s{T+1} offen lds")
    for it in range(2):
        e.i(f"buffer_load_dwordx4 {vr(VA+4*it,4)}, v{V_KOFF+1+it}, {rs(R_V)}, 0 offen")

def h_loads(e, cfg):
    e.i(f"buffer_load_dwordx4 {vr(HREG,4)}, v{V_HOFF}, {rs(R_SSMK)}, 0 offen")
    e.i(f"buffer_load_dwordx4 {vr(HREG+4,4)}, v{V_HOFF}, {rs(R_SSMK)}, 0 offen offset:1024")

V_PF = 4
def l2_prefetch_addr(e, cfg):
    assert cfg.xmap == 8
    T = S_T0
    e.i(f"s_and_b32 s{T}, s2, 7")
    e.i(f"s_lshr_b32 s{T}, s{T}, 1")
    e.i(f"s_mul_i32 s{T}, s{T}, {512*896}")
    e.i(f"s_lshr_b32 s{T+1}, s2, 3")
    e.i(f"s_mul_i32 s{T+2}, s{T+1}, 14336")
    e.i(f"s_add_u32 s{T}, s{T}, s{T+2}")
    e.i(f"s_lshl_b32 s{T+2}, s{S_W}, 12")
    e.i(f"s_add_u32 s{T}, s{T}, s{T+2}")
    e.i(f"v_lshlrev_b32 v3, 6, v{V_LANE}")
    e.i(f"v_add_u32 v{V_PF}, s{T}, v3")
    e.i(f"s_mul_i32 s{T+1}, s{T+1}, 14")
    e.i(f"s_and_b32 s{T+2}, s2, 1")
    e.i(f"s_mul_i32 s{T+2}, s{T+2}, 448")
    for k, base in ((1, None), (2, 256)):
        if base is None:
            e.i(f"s_lshl_b32 s{T}, s{S_W}, 6")
            e.i(f"v_add_u32 v3, s{T}, v{V_LANE}")
        else:
            e.i(f"v_add_u32 v3, {base}, v{V_LANE}")
        e.i(f"v_mul_u32_u24 v13, 49933, v3")
        e.i(f"v_lshrrev_b32 v13, 20, v13")
        e.i(f"v_mul_u32_u24 v14, 21, v13")
        e.i(f"v_sub_u32 v3, v3, v14")
        e.i(f"v_mul_u32_u24 v14, 37, v3")
        e.i(f"v_lshrrev_b32 v14, 8, v14")
        e.i(f"v_mul_u32_u24 v15, 7, v14")
        e.i(f"v_sub_u32 v3, v3, v15")
        e.i(f"v_mul_u32_u24 v14, 896, v14")
        e.i(f"v_lshl_add_u32 v14, v3, 6, v14")
        e.i(f"v_add_u32 v13, s{T+1}, v13")
        e.i(f"v_mul_u32_u24 v13, 2688, v13")
        e.i(f"v_add3_u32 v{V_PF+k}, v13, v14, s{T+2}")

def l2_prefetch(e, cfg):
    e.i(f"buffer_load_dword v244, v{V_PF}, {rs(R_X)}, 0 offen")
    e.i(f"buffer_load_dword v245, v{V_PF+1}, {rs(R_WQKV)}, 0 offen")
    e.i(f"s_cmp_lg_u32 s{S_W}, 0")
    e.i("s_cbranch_scc1 L_nopf2")
    e.i("s_mov_b32 exec_lo, -1")
    e.i("s_mov_b32 exec_hi, 0x3f")
    e.i(f"buffer_load_dword v246, v{V_PF+2}, {rs(R_WQKV)}, 0 offen")
    e.i("s_mov_b64 exec, -1")
    e.label("L_nopf2")

S_XL, S_WL, S_WS0 = 82, 83, 84
S_SX, S_SW = 85, 86
S_J0 = 80
def b1_consts(e):
    e.i(f"s_lshl_b32 s{S_XL}, s{S_W}, 12")
    e.i(f"s_lshl_b32 s{S_WL}, s{S_W}, 11")
    e.i(f"s_add_u32 s{S_WL}, s{S_WL}, 16384")
    e.i(f"s_mul_i32 s{S_WS0}, s{S_W}, 43008")
    e.i(f"s_mov_b32 s{S_SLI}, {L_RING}")
    e.i(f"s_mov_b32 s{S_J0}, s{S_J}")

def adv_j():
    return [f"s_add_u32 s{S_J}, s{S_J}, 1", f"s_cmp_eq_u32 s{S_J}, 7", f"s_cselect_b32 s{S_J}, 0, s{S_J}"]

def b1_issue_pieces():
    T = S_T0
    p = []
    p.append([f"s_lshl_b32 s{S_SX}, s{S_J}, 7",
              f"s_mul_i32 s{S_SW}, s{S_J}, 172032",
              f"s_add_u32 s{S_SW}, s{S_SW}, s{S_WS0}",
              f"s_add_u32 s{T}, s{S_SLI}, s{S_XL}",
              f"s_add_u32 s{T+1}, s{S_SLI}, s{S_WL}"])
    for t in range(4):
        l = []
        if t == 0: l.append(f"s_mov_b32 m0, s{T}")
        else:
            l.append(f"s_add_u32 m0, s{T}, {1024*t}")
            l.append(f"s_add_u32 s{S_SX}, s{S_SX}, 7168")
        if t == 0: l.append("s_nop 0")
        l.append(f"buffer_load_dwordx4 v{V_XE if t % 2 == 0 else V_XO}, {rs(R_X)}, s{S_SX} offen lds")
        p.append(l)
    for t in range(2):
        l = [f"s_add_u32 m0, s{T+1}, {1024*t}" if t else f"s_mov_b32 m0, s{T+1}"]
        if t: l.append(f"s_add_u32 s{S_SW}, s{S_SW}, {8*2688}")
        else: l.append("s_nop 0")
        l.append(f"buffer_load_dwordx4 v{V_DMA}, {rs(R_WQKV)}, s{S_SW} offen lds")
        if t == 1:
            l += adv_j() + [f"s_add_u32 s{S_SLI}, s{S_SLI}, {SLOT}",
                  f"s_cmp_eq_u32 s{S_SLI}, {NSLOT*SLOT + L_RING}",
                  f"s_cselect_b32 s{S_SLI}, {L_RING}, s{S_SLI}"]
        p.append(l)
    return p

def wq_issue_pieces():
    T = S_T0
    p = []
    for pos in range(7):
        l = []
        if pos == 0: l.append(f"s_mov_b32 s{S_J}, s{S_J0}")
        l += [f"s_mul_i32 s{S_SW}, s{S_J}, 172032",
              f"s_add_u32 s{S_SW}, s{S_SW}, s{S_WS0}",
              f"s_lshl_b32 s{T}, s{S_W}, 10",
              f"s_add_u32 m0, s{T}, {L_WQ + 4096*pos}"]
        l += adv_j()
        l.append(f"buffer_load_dwordx4 v{V_DMA+1}, {rs(R_WQKV)}, s{S_SW} offen lds")
        p.append(l)
    return p

def b1_issue(e):
    for pc in b1_issue_pieces():
        for ln in pc: e.i(ln)

KA, WSH = 16, 124
def a1_compute(e, cfg, nyounger):
    T = S_T0
    e.c("A1 compute")
    e.i(f"s_mul_i32 s{T}, s{S_W}, 3072")
    e.i(f"s_add_u32 s{T}, s{T}, {L_KS}")
    e.i(f"v_add_u32 v3, s{T}, v{V_L16}")
    e.i(f"s_lshl_b32 s{T}, s{S_W}, 10")
    e.i(f"s_add_u32 s{T}, s{T}, {L_SHK}")
    e.i(f"v_and_b32 v14, 7, v{V_LANE}")
    e.i(f"v_lshlrev_b32 v13, 6, v14")
    e.i(f"v_add_u32 v13, s{T}, v13")
    e.i(f"s_waitcnt vmcnt({nyounger})")
    stamp(e, cfg, 20)
    for m in range(4):
        e.i(f"ds_read_b128 {vr(WSH+4*m,4)}, v13 offset:{16*m}")
    for it in range(2):
        for j in range(4):
            e.i(f"ds_read_b128 {vr(KA+16*it+4*j,4)}, v3 offset:{(8+8*it-j)*128}")
    e.i(f"s_mov_b32 s{T}, 0x05040100")
    e.i(f"s_mov_b32 s{T+1}, 0x07060302")
    e.i(f"s_mov_b32 s{T+2}, 0xffff0000")
    TT = 76; OUTR = 108
    for it in range(2):
        e.i(f"s_waitcnt lgkmcnt({4 if it == 0 else 0})")
        for m in range(4):
            k = lambda j: KA + 16*it + 4*j + m
            b = TT + 4*m
            e.i(f"v_perm_b32 v{b+0}, v{k(1)}, v{k(0)}, s{T}")
            e.i(f"v_perm_b32 v{b+1}, v{k(1)}, v{k(0)}, s{T+1}")
            e.i(f"v_perm_b32 v{b+2}, v{k(3)}, v{k(2)}, s{T}")
            e.i(f"v_perm_b32 v{b+3}, v{k(3)}, v{k(2)}, s{T+1}")
        A = TT + 16
        for m in range(4):
            b = TT + 4*m
            e.i(f"v_dot2_f32_bf16 v{A+2*m}, v{b+0}, v{WSH+4*m+0}, 0")
            e.i(f"v_dot2_f32_bf16 v{A+2*m+1}, v{b+1}, v{WSH+4*m+2}, 0")
        U = TT + 24
        for m in range(4):
            e.i(f"v_lshlrev_b32 v{U+2*m}, 16, v{VA+4*it+m}")
            e.i(f"v_and_b32 v{U+2*m+1}, s{T+2}, v{VA+4*it+m}")
        for m in range(4):
            b = TT + 4*m
            e.i(f"v_dot2_f32_bf16 v{A+2*m}, v{b+2}, v{WSH+4*m+1}, v{A+2*m}")
            e.i(f"v_dot2_f32_bf16 v{A+2*m+1}, v{b+3}, v{WSH+4*m+3}, v{A+2*m+1}")
        e.i("s_nop 2")
        for c in range(8):
            e.i(f"v_mul_f32 v{A+c}, v{A+c}, v{U+c}")
        for m in range(4):
            e.i(f"v_cvt_pk_bf16_f32 v{OUTR+4*it+m}, v{A+2*m}, v{A+2*m+1}")
def a1_compute_b(e, cfg):
    T = S_T0
    OUTR = 108
    e.i(f"v_and_b32 v14, 7, v{V_LANE}")
    e.i(f"s_mul_i32 s{T}, s{S_W}, {16*144}")
    e.i(f"s_add_u32 s{T}, s{T}, {L_KVT}")
    e.i(f"v_lshrrev_b32 v13, 3, v{V_LANE}")
    e.i(f"v_mul_u32_u24 v15, 144, v13")
    e.i(f"v_lshl_add_u32 v15, v14, 4, v15")
    e.i(f"v_add_u32 v3, s{T}, v15")
    e.i(f"ds_write_b128 v3, {vr(OUTR,4)}")
    e.i(f"ds_write_b128 v3, {vr(OUTR+4,4)} offset:{8*144}")
    e.i(f"v_lshrrev_b32 v3, 4, v{V_LANE}")
    e.i(f"v_lshlrev_b32 v3, 3, v3")
    e.i(f"v_bfe_u32 v16, v{V_LANE}, 2, 2")
    e.i(f"v_add_u32 v3, v3, v16")
    e.i(f"v_mul_u32_u24 v3, 144, v3")
    e.i(f"v_and_b32 v16, 3, v{V_LANE}")
    e.i(f"v_lshlrev_b32 v16, 3, v16")
    e.i(f"s_lshl_b32 s{T}, s{S_W}, 5")
    e.i(f"s_add_u32 s{T}, s{T}, {L_KVT}")
    e.i(f"v_add3_u32 v3, v3, v16, s{T}")
    e.i(f"s_mul_i32 s{T}, s{S_W}, 3072")
    e.i(f"s_add_u32 s{T}, s{T}, {L_KS}")
    e.i(f"v_and_b32 v16, 15, v{V_LANE}")
    e.i(f"v_mul_u32_u24 v16, 144, v16")
    e.i(f"v_and_b32 v17, 0x30, v{V_LANE}")
    e.i(f"v_add3_u32 v16, v16, v17, s{T}")
    e.i(f"v_add_u32 v17, s{T}, v15")
    e.i(f"v_lshlrev_b32 v18, 12, v13")
    e.i(f"v_lshl_add_u32 v18, v14, 4, v18")
    e.i(f"s_lshl_b32 s{T}, s{S_CB}, 6")
    e.i(f"s_lshl_b32 s{T+1}, s{S_W}, 4")
    e.i(f"s_add_u32 s{T}, s{T}, s{T+1}")
    e.i(f"s_lshl_b32 s{T}, s{T}, 12")
    e.i(f"s_lshl_b32 s{T+1}, s{S_RB}, 7")
    e.i(f"s_add_u32 s{T}, s{T}, s{T+1}")
    e.i(f"s_add_u32 s{T}, s{T}, {WS_XT}")
    e.i(f"s_add_u32 s{T+1}, s{T}, {8*4096}")
    swbar(e)
    for it2 in range(2):
        for jj in range(2):
            e.i(f"ds_read_b64_tr_b16 {vr(76+4*it2+2*jj,2)}, v3 offset:{(32*it2+4*jj)*144}")
    e.i("s_waitcnt lgkmcnt(2)")
    e.i(f"ds_write_b128 v16, {vr(76,4)}")
    e.i("s_waitcnt lgkmcnt(1)")
    e.i(f"ds_write_b128 v16, {vr(80,4)} offset:64")
    e.i("s_waitcnt lgkmcnt(0)")
    e.i(f"ds_read_b128 {vr(84,4)}, v17")
    e.i(f"ds_read_b128 {vr(88,4)}, v17 offset:{8*144}")
    e.i("s_waitcnt lgkmcnt(1)")
    e.i(f"buffer_store_dwordx4 {vr(84,4)}, v18, {rs(R_WS)}, s{T} offen sc1")
    e.i("s_waitcnt lgkmcnt(0)")
    e.i(f"buffer_store_dwordx4 {vr(88,4)}, v18, {rs(R_WS)}, s{T+1} offen sc1")

V_NONCE = 240
def nonce_early(e, cfg):
    e.i(f"v_mov_b32 v{V_NONCE+2}, 0")
    e.i(f"buffer_load_dwordx2 v[{V_NONCE}:{V_NONCE+1}], v{V_NONCE+2}, {rs(R_DBG)}, 0 offen sc1")

def get_nonce(e, cfg):
    e.c("fetch nonce (early load, else poll d_debug)")
    e.i(f"v_readfirstlane_b32 s{S_NONCE}, v{V_NONCE}")
    e.i(f"v_readfirstlane_b32 s{S_NONCE+1}, v{V_NONCE+1}")
    e.i("s_nop 3")
    e.i(f"s_or_b32 s{S_T0}, s{S_NONCE}, s{S_NONCE+1}")
    e.i(f"s_cbranch_scc1 L_nonce_done{ROLE[0]}")
    e.i(f"s_mov_b32 s{S_IT}, 0x40000")
    e.label(f"L_nonce{ROLE[0]}")
    e.i(f"buffer_load_dwordx2 v[{V_NONCE}:{V_NONCE+1}], v{V_NONCE+2}, {rs(R_DBG)}, 0 offen sc1")
    e.i("s_waitcnt vmcnt(0)")
    e.i(f"v_readfirstlane_b32 s{S_NONCE}, v{V_NONCE}")
    e.i(f"v_readfirstlane_b32 s{S_NONCE+1}, v{V_NONCE+1}")
    e.i("s_nop 3")
    e.i(f"s_or_b32 s{S_T0}, s{S_NONCE}, s{S_NONCE+1}")
    e.i(f"s_cbranch_scc1 L_nonce_done{ROLE[0]}")
    e.i(f"s_sub_u32 s{S_IT}, s{S_IT}, 1")
    e.i(f"s_cbranch_scc1 L_nonce_done{ROLE[0]}")
    e.i("s_sleep 2")
    e.i(f"s_branch L_nonce{ROLE[0]}")
    e.label(f"L_nonce_done{ROLE[0]}")

def publish(e, cfg, arr, idx_lines, tmp=4):
    T = S_T0
    for ln in idx_lines: e.i(ln)
    e.i(f"s_lshl_b32 s{T}, s{T}, 2")
    e.i(f"s_add_u32 s{T}, s{T}, s{S_W}")
    e.i(f"s_lshl_b32 s{T}, s{T}, {FL_SH}")
    e.i(f"s_add_u32 s{T}, s{T}, {WS_FL + arr}")
    e.i(f"v_mov_b32 v{tmp}, s{S_NONCE}")
    e.i(f"v_mov_b32 v{tmp+1}, s{S_NONCE+1}")
    e.i(f"v_mov_b32 v{tmp+2}, 0")
    e.i("s_mov_b64 exec, 1")
    e.i(f"buffer_store_dwordx2 v[{tmp}:{tmp+1}], v{tmp+2}, {rs(R_WS)}, s{T} offen sc1")
    e.i("s_mov_b64 exec, -1")

def poll(e, cfg, arr, vidx, tag, tmp=4, sleep=None):
    e.c(f"poll {tag}")
    e.i(f"v_lshlrev_b32 v{vidx}, {FL_SH}, v{vidx}")
    e.i(f"v_add_u32 v{vidx}, {WS_FL + arr}, v{vidx}")
    if cfg.nosync: return
    e.i(f"s_mov_b32 s{S_IT}, 0x40000")
    e.label(f"L_poll_{tag}")
    e.i(f"buffer_load_dwordx2 v[{tmp}:{tmp+1}], v{vidx}, {rs(R_WS)}, 0 offen sc1")
    e.i("s_waitcnt vmcnt(0)")
    e.i(f"v_cmp_ne_u64 vcc, s[{S_NONCE}:{S_NONCE+1}], v[{tmp}:{tmp+1}]")
    e.i(f"s_cbranch_vccz L_poll_done_{tag}")
    e.i(f"s_sub_u32 s{S_IT}, s{S_IT}, 1")
    e.i(f"s_cbranch_scc1 L_poll_done_{tag}")
    e.i(f"s_sleep {sleep if sleep is not None else (cfg.bsleep if ROLE[0] == 'B' else 3)}")
    e.i(f"s_branch L_poll_{tag}")
    e.label(f"L_poll_done_{tag}")

ACCQ, ACCK, ACCV = 224, 128, 144
XK = 16
WF = 176
V_WTR = 208
V_WQ = 220
V_XR = 212
KVB = 160
def b1_traddr(e, cfg):
    T = S_T0
    e.c("B1 lds read addresses")
    e.i(f"v_lshrrev_b32 v3, 5, v{V_LANE}")
    e.i(f"v_lshlrev_b32 v4, 3, v3")
    e.i(f"v_bfe_u32 v13, v{V_LANE}, 2, 2")
    e.i(f"v_add_u32 v4, v4, v13")
    e.i(f"v_bfe_u32 v5, v{V_LANE}, 4, 1")
    e.i(f"v_and_b32 v6, 3, v{V_LANE}")
    e.i(f"v_lshlrev_b32 v14, 6, v4")
    e.i(f"v_lshl_add_u32 v14, v5, 5, v14")
    e.i(f"v_lshl_add_u32 v14, v6, 3, v14")
    e.i(f"v_add_u32 v{V_WQ}, {L_WQ}, v14")
    e.i(f"v_lshlrev_b32 v14, 7, v4")
    e.i(f"v_lshl_add_u32 v14, v5, 5, v14")
    e.i(f"v_add_u32 v14, 16384, v14")
    e.i(f"v_bfe_u32 v15, v13, 1, 1")
    e.i(f"v_lshlrev_b32 v7, 6, v15")
    e.i(f"v_add_u32 v7, v7, v14")
    e.i(f"v_lshl_add_u32 v{V_WTR}, v6, 3, v7")
    e.i(f"v_xor_b32 v15, 1, v15")
    e.i(f"v_lshlrev_b32 v7, 6, v15")
    e.i(f"v_add_u32 v7, v7, v14")
    e.i(f"v_and_b32 v15, 1, v6")
    e.i(f"v_lshl_add_u32 v7, v15, 4, v7")
    e.i(f"v_lshrrev_b32 v15, 1, v6")
    e.i(f"v_lshl_add_u32 v{V_WTR+1}, v15, 3, v7")
    e.i(f"v_and_b32 v13, 31, v{V_LANE}")
    e.i(f"v_bfe_u32 v14, v{V_LANE}, 1, 3")
    e.i(f"v_xor_b32 v14, v14, v3")
    e.i(f"v_lshlrev_b32 v14, 4, v14")
    e.i(f"v_lshl_add_u32 v14, v13, 7, v14")
    e.i(f"s_lshl_b32 s{T}, s{S_W}, 12")
    e.i(f"v_add_u32 v{V_XR}, s{T}, v14")
    for n in range(1, 4):
        e.i(f"v_xor_b32 v{V_XR+n}, {32*n}, v{V_XR}")

def b1_reads(e, p, n):
    s = WF + 8 * (n & 1)
    e.i(f"ds_read_b128 {vr(XK+4*(4*p+n),4)}, v{V_XR+4+n}")
    for j in range(2):
        e.i(f"ds_read_b64_tr_b16 {vr(s+2*j,2)}, v{V_WTR+2} offset:{n*2048 + j*512}")
    for j in range(2):
        e.i(f"ds_read_b64_tr_b16 {vr(s+4+2*j,2)}, v{V_WTR+3} offset:{n*2048 + j*512}")

def b1_mfma(e, p, n):
    s = WF + 8 * (n & 1)
    x = vr(XK+4*(4*p+n), 4)
    first = (p == 0 and n == 0)
    e.i(f"v_mfma_f32_32x32x16_bf16 {vr(ACCK,16)}, {vr(s,4)}, {x}, {'0' if first else vr(ACCK,16)}")
    e.i(f"v_mfma_f32_32x32x16_bf16 {vr(ACCV,16)}, {x}, {vr(s+4,4)}, {'0' if first else vr(ACCV,16)}")

def b1_addr_slot(e):
    for n in range(4):
        e.i(f"v_add_u32 v{V_XR+4+n}, s{S_SLC}, v{V_XR+n}")
    e.i(f"v_add_u32 v{V_WTR+2}, s{S_SLC}, v{V_WTR}")
    e.i(f"v_add_u32 v{V_WTR+3}, s{S_SLC}, v{V_WTR+1}")
    e.i(f"s_add_u32 s{S_SLC}, s{S_SLC}, {SLOT}")
    e.i(f"s_cmp_eq_u32 s{S_SLC}, {NSLOT*SLOT + L_RING}")
    e.i(f"s_cselect_b32 s{S_SLC}, {L_RING}, s{S_SLC}")

def b1_body(e, cfg, p, pcs, wait_next):
    a, one, tmp = bar_regs()
    sched = {0: pcs[0:4], 1: pcs[4:], 2: []}
    for n in range(3):
        if n == 2 and wait_next is not None:
            if cfg.fine: stamp(e, cfg, 32 + p)
            e.i(f"s_waitcnt vmcnt({wait_next})")
            if cfg.fine: stamp(e, cfg, 25 + p)
            e.i(f"s_add_u32 s{S_BT}, s{S_BT}, 4")
            sw_arrive(e)
        b1_reads(e, p, n + 1)
        e.i("s_waitcnt lgkmcnt(5)")
        b1_mfma(e, p, n)
        for pc in sched.get(n, []):
            for ln in pc: e.i(ln)
    if wait_next is not None:
        sw_wait(e, a, target_sgpr=S_BT)
        if cfg.fine: stamp(e, cfg, 52 + p)
        b1_addr_slot(e)
        b1_reads(e, p + 1, 0)
    else:
        e.i("s_waitcnt lgkmcnt(0)")
    b1_mfma(e, p, 3)

def b1_loop(e, cfg):
    e.i(f"s_mov_b32 s{S_SLC}, {L_RING}")
    e.i(f"s_waitcnt vmcnt({6 + 1})")
    swbar(e)
    b1_addr_slot(e)
    b1_reads(e, 0, 0)
    waits = [7, 6, 6, 6, 6, 7, None]
    for p in range(7):
        if p <= 4: pcs = b1_issue_pieces()
        elif p == 5: pcs = wq_issue_pieces()
        else: pcs = []
        b1_body(e, cfg, p, pcs, waits[p])
        if p == 3: stamp(e, cfg, 24)

def b1_q(e, cfg):
    NB = 4
    def rd(k):
        p, n = divmod(k, 4)
        b = WF + 4 * (k % NB)
        for j in range(2):
            e.i(f"ds_read_b64_tr_b16 {vr(b+2*j,2)}, v{V_WQ} offset:{p*4096 + n*1024 + j*256}")
    for k in range(NB - 1): rd(k)
    for k in range(28):
        if k + NB - 1 < 28: rd(k + NB - 1)
        e.i(f"s_waitcnt lgkmcnt({2 * min(NB - 1, 27 - k)})")
        b = WF + 4 * (k % NB)
        e.i(f"v_mfma_f32_32x32x16_bf16 {vr(ACCQ,16)}, {vr(b,4)}, {vr(XK+4*k,4)}, {'0' if k == 0 else vr(ACCQ,16)}")

def b1_epilogue_kv(e, cfg):
    T = S_T0
    e.c("B1 epilogue (K, V)")
    e.i(f"s_mov_b32 s{S_MHH}, 0")
    e.i(f"s_mov_b32 s{S_MHH+1}, -1")
    m = (1 << 0) | (1 << 4) | (1 << 16) | (1 << 20)
    e.i(f"s_mov_b32 s{S_MONE}, {m}")
    e.i(f"s_mov_b32 s{S_MONE+1}, {m}")
    e.i(f"v_mov_b32 v14, 0x3f803f80")
    e.i(f"s_lshl_b32 s{T}, s{S_H}, 18")
    e.i(f"s_lshl_b32 s{T+1}, s{S_R}, 2")
    e.i(f"s_add_u32 s{T+1}, s{T+1}, s{S_W}")
    e.i(f"s_lshl_b32 s{T+1}, s{T+1}, 12")
    e.i(f"s_add_u32 s{T}, s{T}, s{T+1}")
    if WS_KV: e.i(f"s_add_u32 s{T}, s{T}, {WS_KV}")
    e.i("s_nop 4")
    for m_ in range(8):
        e.i(f"v_cvt_pk_bf16_f32 v{KVB+m_}, v{ACCK+2*m_}, v{ACCK+2*m_+1}")
    for m_ in (6, 7):
        e.i(f"v_cndmask_b32 v{KVB+m_}, v{KVB+m_}, v14, s[{S_MHH}:{S_MHH+1}]")
    for m_ in range(8):
        e.i(f"v_cvt_pk_bf16_f32 v{KVB+8+m_}, v{ACCV+2*m_}, v{ACCV+2*m_+1}")
    for f in range(2):
        e.i(f"buffer_store_dwordx4 {vr(KVB+4*f,4)}, v{V_L16}, {rs(R_WS)}, s{T} offen offset:{1024*f} sc1")
    for m_ in range(8):
        e.i(f"v_cndmask_b32 v{KVB+8+m_}, v{KVB+8+m_}, v14, s[{S_MONE}:{S_MONE+1}]")
    for f in range(2, 4):
        e.i(f"buffer_store_dwordx4 {vr(KVB+4*f,4)}, v{V_L16}, {rs(R_WS)}, s{T} offen offset:{1024*f} sc1")
    if cfg.tags:
        for i in range(4): e.i(f"v_mov_b32 v{4+i}, 0")
        o_addr(e)
        e.i(f"buffer_store_dwordx4 v[4:7], v{V_L16}, {rs(R_WS)}, s{S_OA} offen sc1")
        e.i(f"buffer_store_dwordx4 v[4:7], v{V_L16}, {rs(R_WS)}, s{S_OA} offen offset:1024 sc1")

S_OA = 75
def o_addr(e):
    T = S_T0
    e.i(f"s_lshl_b32 s{T}, s{S_R}, 2")
    e.i(f"s_add_u32 s{T}, s{T}, s{S_W}")
    e.i(f"s_lshl_b32 s{T}, s{T}, 4")
    e.i(f"s_add_u32 s{T}, s{T}, s{S_H}")
    e.i(f"s_lshl_b32 s{T}, s{T}, 11")
    e.i(f"s_add_u32 s{S_OA}, s{T}, {WS_OF}")

def b1_epilogue_q(e, cfg):
    T = S_T0
    e.i(f"s_mov_b32 s{T+2}, {f2u(QSCALE)}")
    e.i(f"s_lshl_b32 s{T+1}, s{S_W}, 11")
    e.i(f"s_add_u32 s{T+1}, s{T+1}, {L_Q}")
    e.i(f"v_add_u32 v3, s{T+1}, v{V_L16}")
    e.i("s_nop 7")
    e.i("s_nop 1")
    QP = 16
    for i in range(16):
        e.i(f"v_mul_f32 v{ACCQ+i}, s{T+2}, v{ACCQ+i}")
    for m_ in range(8):
        e.i(f"v_cvt_pk_bf16_f32 v{QP+m_}, v{ACCQ+2*m_}, v{ACCQ+2*m_+1}")
    for m_ in (6, 7):
        e.i(f"v_cndmask_b32 v{QP+m_}, v{QP+m_}, 0, s[{S_MHH}:{S_MHH+1}]")
    e.i(f"ds_write_b128 v3, {vr(QP,4)}")
    e.i(f"ds_write_b128 v3, {vr(QP+4,4)} offset:1024")

def a2_dload(e, cfg):
    e.i(f"s_min_u32 s{S_T0}, s2, 223")
    e.i(f"s_lshl_b32 s{S_T0}, s{S_T0}, 2")
    e.i(f"s_load_dword s{S_D2}, s[{S_DP}:{S_DP+1}], s{S_T0}")

def a2_hstage(e, cfg):
    T = S_T0
    e.c("A2: stage h into LDS (with h0 += D), zero pads")
    e.i(f"s_lshr_b32 s{T}, s{S_W}, 1")
    e.i(f"s_lshl_b32 s{T+1}, s{S_D2}, 16")
    e.i(f"s_and_b32 s{T+2}, s{S_D2}, 0xffff0000")
    e.i(f"s_cmp_eq_u32 s{T}, 0")
    e.i(f"s_cselect_b32 s{T+1}, s{T+1}, s{T+2}")
    e.i(f"v_lshlrev_b32 v3, 16, v{HREG}")
    e.i(f"v_add_f32 v3, s{T+1}, v3")
    e.i(f"v_cvt_pk_bf16_f32 v3, v3, v3")
    e.i(f"s_mov_b32 s{T+2}, 0xffff")
    e.i(f"v_bfi_b32 v3, s{T+2}, v3, v{HREG}")
    e.i(f"s_and_b32 s{T+2}, s{S_W}, 1")
    e.i(f"s_xor_b32 s{T+4}, s{T+2}, 1")
    e.i(f"s_mov_b32 s{T+5}, 0")
    e.i(f"v_cndmask_b32 v{HREG}, v{HREG}, v3, s[{T+4}:{T+5}]")
    e.i(f"s_mul_i32 s{T+1}, s{T}, {H_CH}")
    e.i(f"s_add_u32 s{T+1}, s{T+1}, {L_H}")
    e.i(f"v_add_u32 v13, s{T+1}, v{V_L16}")
    e.i(f"s_lshl_b32 s{T+2}, s{T+2}, 11")
    e.i(f"s_add_u32 s{T+2}, s{T+2}, 64")
    e.i(f"v_add_u32 v3, s{T+2}, v13")
    e.i(f"ds_write_b128 v3, {vr(HREG,4)}")
    e.i(f"ds_write_b128 v3, {vr(HREG+4,4)} offset:1024")
    for i in range(4): e.i(f"v_mov_b32 v{76+i}, 0")
    e.i(f"s_mul_i32 s{T+1}, s{T}, {X_CH}")
    e.i(f"s_add_u32 s{T+1}, s{T+1}, {L_X}")
    e.i(f"v_add_u32 v14, s{T+1}, v{V_L16}")
    e.i(f"s_mov_b64 exec, 0xf")
    e.i(f"ds_write_b128 v13, {vr(76,4)}")
    e.i(f"s_mov_b32 exec_lo, -1")
    e.i(f"s_mov_b32 exec_hi, 0xf")
    e.i(f"ds_write_b128 v14, {vr(76,4)}")
    e.i(f"s_mov_b64 exec, -1")

CACC = 64
XFR = 128
HR = 16
V_HA = 48
V_XA = 49
QPF = 40
V_A3OFF = 56
def a3_qaddr(e, cfg):
    T = S_T0
    e.c("A3 addresses: row = 64 rb + 16 w + 8 it + (l>>3), piece l&7")
    e.i(f"s_lshl_b32 s{T}, s{S_RB}, 6")
    e.i(f"s_lshl_b32 s{T+1}, s{S_W}, 4")
    e.i(f"s_add_u32 s{T}, s{T}, s{T+1}")
    e.i(f"s_mul_i32 s{T+1}, s{T}, 896")
    e.i(f"s_mul_i32 s{T+2}, s{T}, 1792")
    e.i(f"s_lshl_b32 s{T+3}, s{S_CB}, 7")
    e.i(f"s_add_u32 s{T+1}, s{T+1}, s{T+3}")
    e.i(f"s_add_u32 s{T+2}, s{T+2}, s{T+3}")
    e.i(f"v_lshrrev_b32 v3, 3, v{V_LANE}")
    e.i(f"v_and_b32 v13, 7, v{V_LANE}")
    e.i(f"v_lshlrev_b32 v13, 4, v13")
    e.i(f"v_mul_u32_u24 v14, 896, v3")
    e.i(f"v_add3_u32 v{V_A3OFF}, v14, v13, s{T+1}")
    e.i(f"v_mul_u32_u24 v14, 1792, v3")
    e.i(f"v_add3_u32 v{V_A3OFF+1}, v14, v13, s{T+2}")

V_WO = 58
def wo_addr(e, cfg):
    T = S_T0
    e.i(f"v_lshrrev_b32 v3, 3, v{V_LANE}")
    e.i(f"v_mul_u32_u24 v3, 896, v3")
    e.i(f"v_bfe_u32 v13, v{V_LANE}, 2, 1")
    e.i(f"v_bfe_u32 v14, v{V_LANE}, 4, 1")
    e.i(f"v_xor_b32 v13, v13, v14")
    e.i(f"v_lshlrev_b32 v13, 6, v13")
    e.i(f"v_and_b32 v14, 3, v{V_LANE}")
    e.i(f"v_lshlrev_b32 v14, 4, v14")
    e.i(f"v_add3_u32 v3, v3, v13, v14")
    e.i(f"s_lshl_b32 s{T}, s{S_CB}, 7")
    e.i(f"v_add_u32 v{V_WO}, s{T}, v3")

def wo_first(e, cfg):
    T = S_T0
    e.i(f"s_cmp_eq_u32 s{S_W}, 0")
    e.i(f"s_cselect_b32 s{T+2}, 896, 0")
    e.i(f"v_subrev_u32 v4, s{T+2}, v{V_WO}")
    e.i(f"s_mul_i32 s{T+1}, s{S_W}, 7168")
    e.i(f"s_sub_u32 s{T+1}, s{T+1}, 896")
    e.i(f"s_max_i32 s{T+1}, s{T+1}, 0")
    e.i(f"s_lshl_b32 s{T}, s{S_W}, 10")
    e.i(f"s_add_u32 m0, s{T}, {L_WO}")
    e.i("s_nop 0")
    e.i(f"buffer_load_dwordx4 v4, {rs(R_WO)}, s{T+1} offen lds")
    e.i(f"s_mov_b32 m0, {L_WO + 56*1024}")
    e.i(f"s_mov_b32 s{T+1}, {56*7168 - 896}")
    e.i(f"buffer_load_dwordx4 v{V_WO}, {rs(R_WO)}, s{T+1} offen lds")
    e.i(f"s_lshl_b32 s81, s{S_W}, 10")
    e.i(f"s_add_u32 s81, s81, {L_WO}")
    e.i(f"s_mul_i32 s87, s{S_W}, 7168")
    e.i(f"s_sub_u32 s87, s87, 896")

S_WOM, S_WOS = 81, 87
def wo_next(e):
    e.i(f"s_add_u32 s{S_WOM}, s{S_WOM}, 4096")
    e.i(f"s_add_u32 s{S_WOS}, s{S_WOS}, {4*7168}")
    e.i(f"s_mov_b32 m0, s{S_WOM}")
    e.i("s_nop 0")
    e.i(f"buffer_load_dwordx4 v{V_WO}, {rs(R_WO)}, s{S_WOS} offen lds")

def a2_main(e, cfg):
    T = S_T0
    e.c("==== A2 conv ====")
    e.i(f"s_lshl_b32 s{T}, s2, 1")
    e.i(f"s_bfe_u32 s{T}, s{T}, 0x20004")
    e.i(f"s_lshl_b32 s{T+1}, s{S_CB}, 5")
    e.i(f"s_and_b32 s{T+2}, s{S_W}, 1")
    e.i(f"s_lshl_b32 s{T+2}, s{T+2}, 4")
    e.i(f"s_add_u32 s{T+1}, s{T+1}, s{T+2}")
    e.i(f"s_lshl_b32 s{T+1}, s{T+1}, 2")
    e.i(f"s_add_u32 s{T}, s{T}, s{T+1}")
    e.i(f"v_and_b32 v7, 15, v{V_LANE}")
    e.i(f"v_lshlrev_b32 v7, 2, v7")
    e.i(f"v_add_u32 v7, s{T}, v7")
    poll(e, cfg, FL_A1, 7, "a1")
    stamp(e, cfg, 6)
    e.i(f"s_lshr_b32 s{T}, s{S_W}, 1")
    e.i(f"s_lshl_b32 s{T+1}, s2, 1")
    e.i(f"s_add_u32 s{T+1}, s{T}, s{T+1}")
    e.i(f"s_lshl_b32 s{T+1}, s{T+1}, 12")
    e.i(f"s_and_b32 s{T+2}, s{S_W}, 1")
    e.i(f"s_lshl_b32 s{T+3}, s{T+2}, 11")
    e.i(f"s_add_u32 s{T+1}, s{T+1}, s{T+3}")
    e.i(f"s_add_u32 s{T+1}, s{T+1}, {WS_XT}")
    e.i(f"buffer_load_dwordx4 v[16:19], v{V_L16}, {rs(R_WS)}, s{T+1} offen sc1")
    e.i(f"buffer_load_dwordx4 v[20:23], v{V_L16}, {rs(R_WS)}, s{T+1} offen offset:1024 sc1")
    e.i(f"s_lshr_b32 s{T}, s{S_W}, 1")
    e.i(f"s_and_b32 s{T+2}, s{S_W}, 1")
    e.i(f"s_mul_i32 s{T+1}, s{T}, {X_CH}")
    e.i(f"s_mul_i32 s{T+3}, s{T+2}, {2048+256}")
    e.i(f"s_add_u32 s{T+1}, s{T+1}, s{T+3}")
    e.i(f"s_add_u32 s{T+1}, s{T+1}, {L_X + 512 + 64}")
    e.i(f"v_lshrrev_b32 v3, 4, v{V_LANE}")
    e.i(f"v_lshlrev_b32 v3, 5, v3")
    e.i(f"v_add3_u32 v3, v3, v{V_L16}, s{T+1}")
    e.i(f"v_bfe_u32 v8, v{V_LANE}, 4, 1")
    e.i(f"v_lshrrev_b32 v9, 5, v{V_LANE}")
    e.i(f"v_bfe_u32 v10, v{V_LANE}, 2, 2")
    e.i(f"v_and_b32 v11, 3, v{V_LANE}")
    e.i(f"v_lshlrev_b32 v12, 2, v8")
    e.i(f"v_add_u32 v12, v12, v11")
    e.i(f"v_lshl_add_u32 v13, v9, 3, v12")
    e.i(f"v_add_u32 v13, v13, v10")
    e.i(f"s_mul_i32 s{T+1}, s{T}, {H_CH}")
    e.i(f"s_add_u32 s{T+1}, s{T+1}, {L_H + 64 - 56}")
    e.i(f"v_lshlrev_b32 v13, 3, v13")
    e.i(f"v_add_u32 v{V_HA}, s{T+1}, v13")
    e.i(f"v_sub_u32 v12, v12, v9")
    e.i(f"v_lshlrev_b32 v12, 5, v12")
    e.i(f"v_lshlrev_b32 v10, 2, v10")
    e.i(f"v_sub_u32 v12, v12, v10")
    e.i(f"v_add_u32 v12, 28, v12")
    e.i(f"s_mul_i32 s{T+1}, s{T}, {X_CH}")
    e.i(f"s_add_u32 s{T+1}, s{T+1}, {L_X}")
    for par in range(2):
        for j in range(2):
            d = V_XA + 2*par + j
            e.i(f"v_add_u32 v13, {64*par - 16*j}, v12")
            e.i(f"v_ashrrev_i32 v14, 7, v13")
            e.i(f"v_lshlrev_b32 v14, 5, v14")
            e.i(f"v_lshl_add_u32 v13, v13, 1, v14")
            e.i(f"v_add_u32 v{d}, s{T+1}, v13")
    e.i("s_waitcnt vmcnt(0)")
    e.i(f"ds_write_b128 v3, v[16:19]")
    e.i(f"ds_write_b128 v3, v[20:23] offset:{1024+128}")
    swbar(e)
    stamp(e, cfg, 7)
    e.i(f"s_and_b32 s{T}, s{S_W}, 1")
    e.i(f"s_cmp_eq_u32 s{T}, 0")
    e.i("s_cbranch_scc0 L_conv_setB")
    conv_set(e, [0, 1, 6, 7])
    e.i("s_branch L_conv_post")
    e.label("L_conv_setB")
    conv_set(e, [2, 3, 4, 5])
    e.label("L_conv_post")
    stamp(e, cfg, 8)
    conv_post(e, cfg)

def conv_set(e, tiles):
    nmax = 4 * max(tiles) + 3
    steps = [[(t, T) for t, T in enumerate(tiles) if n <= 4*T + 3] for n in range(nmax + 1)]
    reads = []
    loaded = set()
    need_idx = []
    for n in range(nmax + 1):
        for j in range(2):
            reads.append((("H", n), f"ds_read_b64_tr_b16 {vr(HR+4*(n%8)+2*j,2)}, v{V_HA} offset:{128*n + 32*j}"))
        for t, T in steps[n]:
            v = 4*T - n
            if v in loaded: continue
            loaded.add(v)
            vp = v + 4
            q, par = vp >> 1, vp & 1
            for j in range(2):
                reads.append((("X", v), f"ds_read_b64_tr_b16 {vr(XFR+4*(vp-1)+2*j,2)}, v{V_XA+2*par+j} offset:{288*q}"))
        need_idx.append(len(reads) - 1)
    AHEAD = 14
    issued = 0
    first = {t: True for t in range(4)}
    for n in range(nmax + 1):
        target = min(len(reads), need_idx[n] + 1 + AHEAD)
        while issued < target:
            tag = reads[issued][0]
            if tag[0] == "H" and tag[1] > n + 7: break
            e.i(reads[issued][1]); issued += 1
        assert issued > need_idx[n]
        younger = issued - 1 - need_idx[n]
        e.i(f"s_waitcnt lgkmcnt({min(younger, 15)})")
        for t, T in steps[n]:
            vp = 4*T - n + 4
            acc = vr(CACC + 16*t, 16)
            c = "0" if first[t] else acc
            first[t] = False
            e.i(f"v_mfma_f32_32x32x16_bf16 {acc}, {vr(XFR+4*(vp-1),4)}, {vr(HR+4*(n%8),4)}, {c}")
    for t, T in enumerate(tiles):
        e.i(f"s_mov_b32 s{S_T1+t}, {T}")

def conv_post(e, cfg):
    T = S_T0
    e.i(f"s_mov_b32 s{S63}, 0")
    e.i(f"s_mov_b32 s{S63+1}, 0x80000000")
    e.i(f"s_lshr_b32 s{T}, s{S_W}, 1")
    e.i(f"s_mul_i32 s{T}, s{T}, 144")
    e.i(f"s_add_u32 s{T}, s{T}, {L_CARRY}")
    for t in range(4):
        e.i(f"s_lshl_b32 s{T+1}, s{S_T1+t}, 4")
        e.i(f"s_add_u32 s{T+1}, s{T+1}, s{T}")
        e.i(f"v_mov_b32 v{136+t}, s{T+1}")
    e.i(f"v_mov_b32 v140, s{T}")
    e.i("v_mov_b32 v141, 0")
    e.i("s_nop 1")
    R = lambda t, g, i: CACC + 16*t + 4*g + i
    EX = 128
    for t in range(4):
        e.i(f"v_add_f32_dpp v{EX+t}, v{R(t,3,3)}, v{R(t,3,2)} wave_ror:1 row_mask:0xf bank_mask:0xf")
    e.i("s_nop 0")
    for t in range(4):
        e.i(f"v_add_f32_dpp v{EX+4+t}, v{EX+t}, v{R(t,3,1)} wave_ror:1 row_mask:0xf bank_mask:0xf")
    e.i(f"s_mov_b64 exec, s[{S63}:{S63+1}]")
    for t in range(4):
        e.i(f"ds_write_b32 v{136+t}, v{R(t,3,3)} offset:16")
        e.i(f"ds_write_b32 v{136+t}, v{EX+t} offset:20")
        e.i(f"ds_write_b32 v{136+t}, v{EX+4+t} offset:24")
    e.i("ds_write_b32 v140, v141")
    e.i("ds_write_b32 v140, v141 offset:4")
    e.i("ds_write_b32 v140, v141 offset:8")
    e.i("s_mov_b64 exec, -1")
    swbar(e)
    PU, P1, P2 = 144, 148, 152
    for t in range(4):
        e.i(f"ds_read_b32 v{PU+t}, v{136+t}")
        e.i(f"ds_read_b32 v{P1+t}, v{136+t} offset:4")
        e.i(f"ds_read_b32 v{P2+t}, v{136+t} offset:8")
    e.i(f"s_lshr_b32 s{T}, s{S_W}, 1")
    e.i(f"s_mul_i32 s{T}, s{T}, {X_CH}")
    e.i(f"s_add_u32 s{T}, s{T}, {L_Y}")
    e.i(f"v_lshlrev_b32 v3, 1, v{V_LANE}")
    for t in range(4):
        e.i(f"s_lshl_b32 s{T+1}, s{S_T1+t}, 9")
        e.i(f"s_add_u32 s{T+1}, s{T+1}, s{T}")
        e.i(f"v_add_u32 v{140+t}, s{T+1}, v3")
    e.i("s_waitcnt lgkmcnt(0)")
    SEL = 156
    m63 = f"s[{S63}:{S63+1}]"
    prevU = [PU+t for t in range(4)]
    prev1 = [P1+t for t in range(4)]
    prev2 = [P2+t for t in range(4)]
    for g in range(4):
        cur1 = [160 + 4*(g & 1) + t for t in range(4)]
        cur2 = [168 + 4*(g & 1) + t for t in range(4)]
        for t in range(4):
            e.i(f"v_cndmask_b32 v{SEL+t}, v{R(t,g,3)}, v{prevU[t]}, {m63}")
        for t in range(4):
            e.i(f"v_add_f32_dpp v{cur1[t]}, v{SEL+t}, v{R(t,g,2)} wave_ror:1 row_mask:0xf bank_mask:0xf")
        for t in range(4):
            e.i(f"v_cndmask_b32 v{SEL+t}, v{cur1[t]}, v{prev1[t]}, {m63}")
        for t in range(4):
            e.i(f"v_add_f32_dpp v{cur2[t]}, v{SEL+t}, v{R(t,g,1)} wave_ror:1 row_mask:0xf bank_mask:0xf")
        for t in range(4):
            e.i(f"v_cndmask_b32 v{SEL+t}, v{cur2[t]}, v{prev2[t]}, {m63}")
        for t in range(4):
            e.i(f"v_add_f32_dpp v{R(t,g,0)}, v{SEL+t}, v{R(t,g,0)} wave_ror:1 row_mask:0xf bank_mask:0xf")
        prevU = [R(t,g,3) for t in range(4)]
        prev1 = cur1
        prev2 = cur2
        if g & 1:
            gp = g >> 1
            for t in range(4):
                e.i(f"v_cvt_pk_bf16_f32 v{128+2*t+gp}, v{R(t,g-1,0)}, v{R(t,g,0)}")
            for t in range(4):
                e.i(f"ds_write_b16 v{140+t}, v{128+2*t+gp} offset:{256*gp}")
                e.i(f"ds_write_b16_d16_hi v{140+t}, v{128+2*t+gp} offset:{256*gp+128}")
    e.i(f"s_lshr_b32 s{T+2}, s{S_W}, 1")
    e.i(f"s_lshl_b32 s{T+3}, s2, 1")
    e.i(f"s_add_u32 s{T+3}, s{T+3}, s{T+2}")
    e.i(f"s_lshl_b32 s{T+3}, s{T+3}, 12")
    e.i(f"s_add_u32 s{T+3}, s{T+3}, {WS_YT}")
    for pz in range(2):
        e.i(f"s_lshl_b32 s{T+1}, s{S_T1+2*pz}, 9")
        e.i(f"s_add_u32 s{T+4+pz}, s{T+1}, s{T+3}")
        e.i(f"s_add_u32 s{T+1}, s{T+1}, s{T}")
        e.i(f"v_add_u32 v{144+pz}, s{T+1}, v{V_L16}")
    e.i("s_waitcnt lgkmcnt(0)")
    for pz in range(2):
        e.i(f"ds_read_b128 {vr(160+4*pz,4)}, v{144+pz}")
    e.i("s_waitcnt lgkmcnt(1)")
    e.i(f"buffer_store_dwordx4 {vr(160,4)}, v{V_L16}, {rs(R_WS)}, s{T+4} offen sc1")
    e.i("s_waitcnt lgkmcnt(0)")
    e.i(f"buffer_store_dwordx4 {vr(164,4)}, v{V_L16}, {rs(R_WS)}, s{T+5} offen sc1")

SB = [16, 32]
PB = [48, 56]
OB = 64
QB = 128
def kvbuf(b): return KVB + 16 * (b & 3)

V_KVO = 235
def kv_load(e, b, advance=True):
    if advance:
        e.i(f"s_add_u32 s{S_KV+1}, s{S_KV+1}, 16384")
        e.i(f"s_and_b32 s{S_KV+1}, s{S_KV+1}, 0x3ffff")
    for f in range(4):
        e.i(f"buffer_load_dwordx4 {vr(kvbuf(b)+4*f,4)}, v{V_KVO}, {rs(R_WS)}, s{S_KV+1} offen offset:{1024*f} sc1")

def slot(e, j, s_next, pv, pre=None, loads=None):
    mf = []
    if s_next is not None:
        kb, jn = s_next
        Sx = vr(SB[jn & 1], 16)
        mf.append(f"v_mfma_f32_32x32x16_bf16 {Sx}, {vr(kvbuf(kb),4)}, {vr(QB+8*jn,4)}, 0")
        mf.append(f"v_mfma_f32_32x32x16_bf16 {Sx}, {vr(kvbuf(kb)+4,4)}, {vr(QB+8*jn+4,4)}, {Sx}")
    if pv is not None:
        vb, jp, first = pv
        O = vr(OB + 16*jp, 16)
        P = PB[jp & 1]
        mf.append(f"v_mfma_f32_32x32x16_bf16 {O}, {vr(kvbuf(vb)+8,4)}, {vr(P,4)}, {'0' if first else O}")
        mf.append(f"v_mfma_f32_32x32x16_bf16 {O}, {vr(kvbuf(vb)+12,4)}, {vr(P+4,4)}, {O}")
    groups = []
    if j is not None:
        Sx = SB[j & 1]; P = PB[j & 1]
        for g in range(4):
            gl = [f"v_exp_f32 v{Sx+4*g+i}, v{Sx+4*g+i}" for i in range(4)]
            gl.append(f"v_cvt_pk_bf16_f32 v{P+2*g}, v{Sx+4*g}, v{Sx+4*g+1}")
            gl.append(f"v_cvt_pk_bf16_f32 v{P+2*g+1}, v{Sx+4*g+2}, v{Sx+4*g+3}")
            groups.append(gl)
    if pre:
        for ln in pre: e.i(ln)
    n = max(len(mf), len(groups))
    for k in range(n):
        if k < len(mf): e.i(mf[k])
        if loads is not None and k == 2:
            loads()
        if k < len(groups):
            for ln in groups[k]: e.i(ln)

YL = 24
def b2_main(e, cfg):
    T = S_T0
    e.c("==== B2 attention ====")
    e.i(f"s_lshl_b32 s{T}, s{S_H}, 6")
    e.i(f"s_add_u32 s{T}, s{T}, s{S_W}")
    e.i(f"v_and_b32 v7, 15, v{V_LANE}")
    e.i(f"v_lshlrev_b32 v7, 2, v7")
    e.i(f"v_add_u32 v7, s{T}, v7")
    e.i(f"v_add_u32 v3, {L_Q}, v{V_L16}")
    for j in range(4):
        for f in range(2):
            e.i(f"ds_read_b128 {vr(QB+8*j+4*f,4)}, v3 offset:{2048*j+1024*f}")
    e.i(f"s_lshl_b32 s{S_KV}, s{S_H}, 18")
    e.i(f"s_lshl_b32 s{T}, s{S_W}, 12")
    e.i(f"s_add_u32 s{S_KV}, s{S_KV}, s{T}")
    if WS_KV: e.i(f"s_add_u32 s{S_KV}, s{S_KV}, {WS_KV}")
    e.i(f"v_add_u32 v{V_KVO}, s{S_KV}, v{V_L16}")
    poll(e, cfg, FL_B1, 7, "b1")
    if cfg.nosync: e.i("s_waitcnt vmcnt(0)")
    stamp(e, cfg, 10)
    e.i(f"s_mov_b32 s{S_SLOW}, 0")
    e.label("L_attn_start")
    e.i(f"s_lshl_b32 s{S_KV+1}, s{S_R}, 14")
    kv_load(e, 1); kv_load(e, 2); kv_load(e, 3)
    e.i("s_waitcnt lgkmcnt(0)")
    slot(e, None, (0, 0), None)
    e.i("s_nop 7")
    e.i("s_nop 3")
    slot(e, 0, (0, 1), None)
    slot(e, 1, (0, 2), (0, 0, True))
    slot(e, 2, (0, 3), (0, 1, True))
    slot(e, 3, (1, 0), (0, 2, True), pre=["s_waitcnt vmcnt(8)"])
    slot(e, 0, (1, 1), (0, 3, True))
    e.i(f"s_mov_b32 s{S_IT}, 0")
    e.i(f"s_nop 0") if cfg.shift4 else None
    e.i(f".p2align {cfg.lalign}") if not cfg.shift4 else None
    e.label("L_attn_loop")
    if cfg.stamps:
        e.i(f"{'s_memrealtime' if cfg.realtime else 's_memtime'} s[{S_TS}:{S_TS+1}]")
        e.i(f"s_add_u32 m0, s{S_IT}, 40")
        e.i("s_waitcnt lgkmcnt(0)")
        e.i(f"v_writelane_b32 v250, s{S_TS}, m0")
    for k in range(4):
        i = k + 1
        b, bn = i & 3, (i + 1) & 3
        slot(e, 1, (b, 2), (b, 0, False), loads=lambda: kv_load(e, (i + 3) & 3))
        slot(e, 2, (b, 3), (b, 1, False))
        slot(e, 3, (bn, 0), (b, 2, False), pre=["s_waitcnt vmcnt(8)"] + (["s_nop 0"] if cfg.pad else []))
        slot(e, 0, (bn, 1), (b, 3, False))
        if k == 1:
            e.i(f"s_cmp_eq_u32 s{S_IT}, 3")
            e.i("s_cbranch_scc1 L_attn_tail")
    e.i(f"s_add_u32 s{S_IT}, s{S_IT}, 1")
    e.i("s_branch L_attn_loop")
    e.label("L_attn_tail")
    stamp(e, cfg, 44)
    slot(e, 1, (3, 2), (3, 0, False))
    slot(e, 2, (3, 3), (3, 1, False))
    slot(e, 3, None, (3, 2, False))
    e.i("s_nop 1")
    slot(e, None, None, (3, 3, False))
    stamp(e, cfg, 45)
    e.i("s_waitcnt vmcnt(0)")
    stamp(e, cfg, 11)
    e.i(f"s_mov_b32 s{T}, {f2u(2.0**-60)}")
    e.i(f"s_mov_b32 s{T+1}, {f2u(2.0**60)}")
    e.i(f"s_mov_b64 s[{T+2}:{T+3}], -1")
    for j in range(4):
        e.i(f"v_cmp_le_f32 vcc, s{T}, v{OB+16*j}")
        e.i(f"s_and_b64 s[{T+2}:{T+3}], s[{T+2}:{T+3}], vcc")
        e.i(f"v_cmp_ge_f32 vcc, s{T+1}, v{OB+16*j}")
        e.i(f"s_and_b64 s[{T+2}:{T+3}], s[{T+2}:{T+3}], vcc")
    e.i(f"s_cmp_eq_u64 s[{T+2}:{T+3}], -1")
    e.i(f"s_cselect_b32 s{T}, 0, 1")
    e.i(f"v_mov_b32 v3, s{T}")
    e.i(f"s_lshl_b32 s{T+1}, s{S_W}, 2")
    e.i(f"s_add_u32 s{T+1}, s{T+1}, {L_MISC}")
    e.i(f"v_mov_b32 v4, s{T+1}")
    e.i(f"ds_write_b32 v4, v3")
    for w in range(4):
        if w > 0: e.label(f"L_red_w{w}")
        if w < 3:
            e.i(f"s_cmp_lg_u32 s{S_W}, {w}")
            e.i(f"s_cbranch_scc1 L_red_w{w+1}")
        for j in range(4):
            if j == w: continue
            sl = j * 3 + ((w - j - 1) & 3)
            e.i(f"v_add_u32 v3, {L_RED + sl*4096}, v{V_L16}")
            for q4 in range(4):
                e.i(f"ds_write_b128 v3, {vr(OB+16*j+4*q4,4)} offset:{1024*q4}")
        for k in range(16):
            e.i(f"v_mov_b32 v{16+k}, v{OB+16*w+k}")
        if w < 3: e.i("s_branch L_red_done")
    e.label("L_red_done")
    e.i("s_waitcnt lgkmcnt(0)")
    stamp(e, cfg, 50)
    e.i("s_barrier")
    stamp(e, cfg, 51)
    e.i(f"v_mov_b32 v4, {L_MISC}")
    e.i(f"ds_read_b128 v[8:11], v4")
    e.i(f"s_mul_i32 s{T}, s{S_W}, {3*4096}")
    e.i(f"s_add_u32 s{T}, s{T}, {L_RED}")
    e.i(f"v_add_u32 v3, s{T}, v{V_L16}")
    for s_ in range(3):
        for q4 in range(4):
            e.i(f"ds_read_b128 {vr(64+16*s_+4*q4,4)}, v3 offset:{4096*s_+1024*q4}")
    e.i(f"s_lshl_b32 s{T}, s{S_R}, 2")
    e.i(f"s_add_u32 s{T}, s{T}, s{S_W}")
    e.i(f"s_lshl_b32 s{T}, s{T}, 4")
    e.i(f"s_add_u32 s{T}, s{T}, s{S_H}")
    e.i(f"s_lshl_b32 s{T}, s{T}, 11")
    e.i(f"s_add_u32 s{T+4}, s{T}, {WS_OF}")
    e.i("s_waitcnt lgkmcnt(12)")
    e.i("v_or_b32 v8, v8, v9")
    e.i("v_or3_b32 v8, v8, v10, v11")
    e.i("s_nop 0")
    e.i(f"v_readfirstlane_b32 s{T}, v8")
    e.i("s_nop 3")
    e.i(f"s_andn2_b32 s{T}, s{T}, s{S_SLOW}")
    e.i(f"s_cmp_lg_u32 s{T}, 0")
    e.i("s_cbranch_scc1 L_slow")
    for s_ in range(3):
        e.i(f"s_waitcnt lgkmcnt({8-4*s_})")
        for k in range(16):
            e.i(f"v_add_f32 v{16+k}, v{16+k}, v{64+16*s_+k}")
    e.i("v_rcp_f32 v3, v16")
    e.i("s_nop 0")
    for k in range(16):
        if k in (0, 8): continue
        e.i(f"v_mul_f32 v{16+k}, v{16+k}, v3")
    for m in range(8):
        if m in (0, 4):
            e.i(f"v_cvt_pk_bf16_f32 v{32+m}, 0, v{16+2*m+1}")
        else:
            e.i(f"v_cvt_pk_bf16_f32 v{32+m}, v{16+2*m}, v{16+2*m+1}")
    stamp(e, cfg, 52)
    if cfg.tags:
        e.i("v_or_b32 v32, 0xffff, v32")
        e.i("v_or_b32 v36, 0xffff, v36")
    e.i(f"buffer_store_dwordx4 v[32:35], v{V_L16}, {rs(R_WS)}, s{T+4} offen sc1")
    e.i(f"buffer_store_dwordx4 v[36:39], v{V_L16}, {rs(R_WS)}, s{T+4} offen offset:1024 sc1")
    e.i("s_barrier")

def b2_slow(e, cfg):
    T = S_T0
    e.c("==== slow path: true row max ====")
    e.label("L_slow")
    e.i("s_waitcnt vmcnt(0) lgkmcnt(0)")
    M = 48
    for j in range(4): e.i(f"v_mov_b32 v{M+j}, 0xff800000")
    e.i(f"s_mov_b32 s{S_KV+1}, 0")
    e.label("L_slow_loop")
    for f in range(2):
        e.i(f"buffer_load_dwordx4 {vr(KVB+4*f,4)}, v{V_KVO}, {rs(R_WS)}, s{S_KV+1} offen offset:{1024*f} sc1")
    e.i("s_waitcnt vmcnt(0)")
    for j in range(4):
        e.i(f"v_mfma_f32_32x32x16_bf16 v[16:31], {vr(KVB,4)}, {vr(QB+8*j,4)}, 0")
        e.i(f"v_mfma_f32_32x32x16_bf16 v[16:31], {vr(KVB+4,4)}, {vr(QB+8*j+4,4)}, v[16:31]")
        e.i("s_nop 7"); e.i("s_nop 7")
        for k in range(0, 16, 2):
            e.i(f"v_max3_f32 v{M+j}, v{16+k}, v{17+k}, v{M+j}")
        e.i("s_nop 7")
    e.i(f"s_add_u32 s{S_KV+1}, s{S_KV+1}, 16384")
    e.i(f"s_cmp_lt_u32 s{S_KV+1}, {16*16384}")
    e.i("s_cbranch_scc1 L_slow_loop")
    for j in range(4):
        e.i(f"v_mov_b32 v{52+j}, v{M+j}")
    e.i("s_nop 1")
    for j in range(4):
        e.i(f"v_permlane32_swap_b32 v{52+j}, v{M+j}")
    e.i("s_nop 1")
    for j in range(4):
        e.i(f"v_max_f32 v{M+j}, v{52+j}, v{M+j}")
    e.i("s_barrier")
    e.i(f"s_lshl_b32 s{T}, s{S_W}, 10")
    e.i(f"s_add_u32 s{T}, s{T}, {L_RED}")
    e.i(f"v_add_u32 v3, s{T}, v{V_L16}")
    e.i(f"ds_write_b128 v3, {vr(M,4)}")
    e.i("s_waitcnt lgkmcnt(0)")
    e.i("s_barrier")
    e.i(f"v_add_u32 v3, {L_RED}, v{V_L16}")
    for w in range(4):
        e.i(f"ds_read_b128 {vr(16+4*w,4)}, v3 offset:{1024*w}")
    e.i("s_waitcnt lgkmcnt(0)")
    for j in range(4):
        e.i(f"v_max3_f32 v{M+j}, v{16+j}, v{20+j}, v{24+j}")
        e.i(f"v_max_f32 v{M+j}, v{M+j}, v{28+j}")
    e.i(f"s_mov_b32 s{T}, 0xffff")
    for j in range(4):
        e.i(f"v_sub_f32 v16, 0, v{M+j}")
        e.i(f"v_cvt_pk_bf16_f32 v17, v16, v16")
        e.i(f"v_lshlrev_b32 v18, 16, v17")
        e.i(f"v_sub_f32 v16, v16, v18")
        e.i(f"v_cvt_pk_bf16_f32 v19, v16, v16")
        e.i(f"v_lshlrev_b32 v18, 16, v19")
        e.i(f"v_sub_f32 v16, v16, v18")
        e.i(f"v_bfi_b32 v17, s{T}, v17, v19")
        e.i(f"v_cvt_pk_bf16_f32 v18, v16, 0")
        e.i(f"v_cndmask_b32 v{QB+8*j+6}, v{QB+8*j+6}, v17, s[{S_MHH}:{S_MHH+1}]")
        e.i(f"v_cndmask_b32 v{QB+8*j+7}, v{QB+8*j+7}, v18, s[{S_MHH}:{S_MHH+1}]")
    e.i(f"s_mov_b32 s{S_SLOW}, 1")
    e.i(f"s_lshl_b32 s{S_KV+1}, s{S_R}, 14")
    kv_load(e, 0, advance=False)
    e.i("s_waitcnt vmcnt(0)")
    e.i("s_barrier")
    e.i("s_branch L_attn_start")

def a3_main(e, cfg):
    T = S_T0
    e.c("==== A3: out_a = q * y ====")
    a3_qaddr(e, cfg)
    e.i(f"buffer_load_dwordx4 {vr(QPF,4)}, v{V_A3OFF}, {rs(R_Q)}, 0 offen")
    e.i(f"s_mov_b32 s{T+1}, 7168")
    e.i(f"buffer_load_dwordx4 {vr(QPF+4,4)}, v{V_A3OFF}, {rs(R_Q)}, s{T+1} offen")
    e.i(f"s_lshr_b32 s{T}, s{S_RB}, 2")
    e.i(f"s_add_u32 s{T}, s{T}, 2")
    e.i(f"s_and_b32 s{T}, s{T}, 7")
    e.i(f"s_lshr_b32 s{T}, s{T}, 2")
    e.i(f"s_lshl_b32 s{T+1}, s{S_CB}, 6")
    e.i(f"s_lshl_b32 s{T+2}, s{S_W}, 4")
    e.i(f"s_add_u32 s{T+1}, s{T+1}, s{T+2}")
    e.i(f"v_and_b32 v7, 15, v{V_LANE}")
    e.i(f"v_add_u32 v7, s{T+1}, v7")
    e.i(f"v_lshrrev_b32 v8, 1, v7")
    e.i(f"v_and_b32 v7, 1, v7")
    e.i(f"v_lshlrev_b32 v7, 1, v7")
    e.i(f"v_lshl_add_u32 v7, v8, 2, v7")
    e.i(f"v_add_u32 v7, s{T}, v7")
    poll(e, cfg, FL_A2, 7, "a2", tmp=8)
    stamp(e, cfg, 12)
    e.i(f"s_lshl_b32 s{T}, s{S_CB}, 6")
    e.i(f"s_lshl_b32 s{T+1}, s{S_W}, 4")
    e.i(f"s_add_u32 s{T}, s{T}, s{T+1}")
    e.i(f"s_lshl_b32 s{T}, s{T}, 12")
    e.i(f"s_lshl_b32 s{T+1}, s{S_RB}, 7")
    e.i(f"s_add_u32 s{T}, s{T}, s{T+1}")
    e.i(f"s_add_u32 s{T}, s{T}, {WS_YT}")
    e.i(f"s_add_u32 s{T+1}, s{T}, {8*4096}")
    e.i(f"v_lshrrev_b32 v3, 3, v{V_LANE}")
    e.i(f"v_lshlrev_b32 v13, 12, v3")
    e.i(f"v_and_b32 v14, 7, v{V_LANE}")
    e.i(f"v_lshl_add_u32 v13, v14, 4, v13")
    e.i(f"buffer_load_dwordx4 {vr(YL,4)}, v13, {rs(R_WS)}, s{T} offen sc1")
    e.i(f"buffer_load_dwordx4 {vr(YL+4,4)}, v13, {rs(R_WS)}, s{T+1} offen sc1")
    e.i(f"v_mul_u32_u24 v3, 144, v3")
    e.i(f"v_lshl_add_u32 v15, v14, 4, v3")
    e.i(f"s_mul_i32 s{T}, s{S_W}, {16*144}")
    e.i(f"s_add_u32 s{T+1}, s{T}, {L_A3}")
    e.i(f"v_add_u32 v3, s{T+1}, v15")
    e.i(f"s_add_u32 s{T+1}, s{T}, {L_A3R}")
    e.i(f"v_add_u32 v12, s{T+1}, v15")
    e.i(f"v_and_b32 v8, 15, v{V_LANE}")
    e.i(f"v_mul_u32_u24 v8, 144, v8")
    e.i(f"v_and_b32 v9, 0x30, v{V_LANE}")
    e.i(f"v_add3_u32 v8, v8, v9, s{T+1}")
    e.i(f"v_lshrrev_b32 v13, 4, v{V_LANE}")
    e.i(f"v_lshlrev_b32 v13, 3, v13")
    e.i(f"v_bfe_u32 v14, v{V_LANE}, 2, 2")
    e.i(f"v_add_u32 v13, v13, v14")
    e.i(f"v_mul_u32_u24 v13, 144, v13")
    e.i(f"v_and_b32 v14, 3, v{V_LANE}")
    e.i(f"v_lshlrev_b32 v14, 3, v14")
    e.i(f"s_lshl_b32 s{T}, s{S_W}, 5")
    e.i(f"s_add_u32 s{T}, s{T}, {L_A3}")
    e.i(f"v_add3_u32 v13, v13, v14, s{T}")
    e.i("s_waitcnt vmcnt(0)")
    e.i(f"ds_write_b128 v3, {vr(YL,4)}")
    e.i(f"ds_write_b128 v3, {vr(YL+4,4)} offset:{8*144}")
    swbar(e)
    for it in range(2):
        for jj in range(2):
            e.i(f"ds_read_b64_tr_b16 {vr(16+4*it+2*jj,2)}, v13 offset:{(32*it+4*jj)*144}")
    e.i("s_waitcnt lgkmcnt(2)")
    e.i(f"ds_write_b128 v8, v[16:19]")
    e.i("s_waitcnt lgkmcnt(1)")
    e.i(f"ds_write_b128 v8, v[20:23] offset:64")
    e.i("s_waitcnt lgkmcnt(0)")
    e.i(f"ds_read_b128 v[16:19], v12")
    e.i(f"ds_read_b128 v[20:23], v12 offset:{8*144}")
    e.i(f"s_mov_b32 s{T}, 0xffff0000")
    e.i("s_waitcnt lgkmcnt(0)")
    for it in range(2):
        for m in range(4):
            y = 16 + 4*it + m; q = QPF + 4*it + m
            e.i(f"v_lshlrev_b32 v24, 16, v{y}")
            e.i(f"v_and_b32 v25, s{T}, v{y}")
            e.i(f"v_lshlrev_b32 v26, 16, v{q}")
            e.i(f"v_and_b32 v27, s{T}, v{q}")
            e.i(f"v_mul_f32 v24, v24, v26")
            e.i(f"v_mul_f32 v25, v25, v27")
            e.i(f"v_cvt_pk_bf16_f32 v{32+4*it+m}, v24, v25")
    e.i(f"buffer_store_dwordx4 v[32:35], v{V_A3OFF+1}, {rs(R_OUT)}, 0 offen{OUTF[0]}")
    e.i(f"s_mov_b32 s{T}, {8*1792}")
    e.i(f"buffer_store_dwordx4 v[36:39], v{V_A3OFF+1}, {rs(R_OUT)}, s{T} offen{OUTF[0]}")

def b3_addr(e, cfg):
    T = S_T0
    e.c("==== B3: addresses ====")
    e.i(f"s_and_b32 s{T+3}, s{S_W}, 1")
    e.i(f"v_lshrrev_b32 v8, 5, v{V_LANE}")
    e.i(f"v_mul_u32_u24 v8, 7, v8")
    e.i(f"v_bfe_u32 v9, v{V_LANE}, 2, 2")
    e.i(f"v_add_u32 v8, v8, v9")
    e.i(f"v_bfe_u32 v9, v{V_LANE}, 4, 1")
    e.i(f"v_lshlrev_b32 v9, 5, v9")
    e.i(f"v_and_b32 v10, 3, v{V_LANE}")
    e.i(f"v_lshl_add_u32 v9, v10, 3, v9")
    for f in range(2):
        e.i(f"v_add_u32 v10, {14*f}, v8")
        e.i(f"v_bfe_u32 v11, v10, 1, 1")
        e.i(f"v_xor_b32 v11, s{T+3}, v11")
        e.i(f"v_lshlrev_b32 v11, 6, v11")
        e.i(f"v_lshl_add_u32 v10, v10, 7, v11")
        e.i(f"v_add_u32 v{12+f}, v10, v9")
        if L_WO: e.i(f"v_add_u32 v{12+f}, {L_WO}, v{12+f}")
    e.i(f"s_lshr_b32 s{T}, s{S_W}, 1")
    e.i(f"s_lshl_b32 s{T}, s{T}, 15")
    e.i(f"s_add_u32 s{T}, s{T}, {L_OF}")
    e.i(f"v_add_u32 v15, s{T}, v{V_L16}")
    e.i(f"s_mul_i32 s{T}, s{S_W}, 2560")
    e.i(f"s_add_u32 s{T}, s{T}, {L_OUTB}")
    e.i(f"v_and_b32 v8, 31, v{V_LANE}")
    e.i(f"v_mul_u32_u24 v8, 80, v8")
    e.i(f"v_lshrrev_b32 v9, 5, v{V_LANE}")
    e.i(f"v_lshlrev_b32 v9, 3, v9")
    e.i(f"v_add3_u32 v8, v8, v9, s{T}")
    e.i(f"v_lshrrev_b32 v9, 2, v{V_LANE}")
    e.i(f"v_mul_u32_u24 v10, 80, v9")
    e.i(f"v_and_b32 v11, 3, v{V_LANE}")
    e.i(f"v_lshlrev_b32 v11, 4, v11")
    e.i(f"v_add3_u32 v10, v10, v11, s{T}")
    e.i(f"s_lshl_b32 s{T}, s{S_RB}, 6")
    e.i(f"s_lshr_b32 s{T+2}, s{S_W}, 1")
    e.i(f"s_lshl_b32 s{T+2}, s{T+2}, 5")
    e.i(f"s_add_u32 s{T}, s{T}, s{T+2}")
    e.i(f"s_mul_i32 s{T}, s{T}, 1792")
    e.i(f"s_lshl_b32 s{T+2}, s{S_CB}, 7")
    e.i(f"s_lshl_b32 s{T+3}, s{T+3}, 6")
    e.i(f"s_add_u32 s{T}, s{T}, s{T+2}")
    e.i(f"s_add_u32 s{T}, s{T}, s{T+3}")
    e.i(f"s_add_u32 s{T}, s{T}, 896")
    e.i(f"v_mul_u32_u24 v9, 1792, v9")
    e.i(f"v_add3_u32 v14, v9, v11, s{T}")

def b3_main(e, cfg):
    T = S_T0
    e.c("==== B3: out projection ====")
    e.i(f"s_lshr_b32 s{T}, s{S_W}, 1")
    e.i(f"s_lshl_b32 s{T+1}, s{S_RB}, 1")
    e.i(f"s_add_u32 s{T+2}, s{T}, s{T+1}")
    e.i(f"s_and_b32 s{T+3}, s{S_W}, 1")
    e.i(f"s_lshl_b32 s{T+4}, s{T+3}, 9")
    e.i(f"s_add_u32 s{T+4}, s{T+4}, s{T+2}")
    e.i(f"v_and_b32 v7, 7, v{V_LANE}")
    e.i(f"v_lshlrev_b32 v7, 6, v7")
    e.i(f"v_add_u32 v7, s{T+4}, v7")
    if not cfg.tags:
        poll(e, cfg, FL_B2, 7, "b2")
    else:
        e.i(f"s_lshl_b32 s{T+4}, s{T+2}, 15")
        e.i(f"s_lshl_b32 s{T+5}, s{T+3}, 14")
        e.i(f"s_add_u32 s{T+4}, s{T+4}, s{T+5}")
        e.i(f"s_add_u32 s{T+4}, s{T+4}, {WS_OF + 1024 + 63*16}")
        e.i(f"v_and_b32 v7, 7, v{V_LANE}")
        e.i(f"v_lshlrev_b32 v7, 11, v7")
        e.i(f"s_mov_b32 s{S_IT}, 0x40000")
        e.i(f"s_mov_b32 s{T+5}, 0xffff")
        e.label("L_rep")
        e.i(f"buffer_load_dword v8, v7, {rs(R_WS)}, s{T+4} offen sc1")
        e.i("s_waitcnt vmcnt(0)")
        e.i(f"v_and_b32 v8, s{T+5}, v8")
        e.i(f"v_cmp_ne_u32 vcc, s{T+5}, v8")
        e.i("s_cbranch_vccz L_rep_done")
        e.i(f"s_sub_u32 s{S_IT}, s{S_IT}, 1")
        e.i("s_cbranch_scc1 L_rep_done")
        e.i("s_sleep 2")
        e.i("s_branch L_rep")
        e.label("L_rep_done")
    stamp(e, cfg, 14)
    e.i(f"s_mov_b32 s{S_JJ}, 0x4000")
    e.label("L_odma")
    e.i(f"s_lshr_b32 s{T}, s{S_W}, 1")
    e.i(f"s_lshl_b32 s{T+1}, s{S_RB}, 1")
    e.i(f"s_add_u32 s{T+2}, s{T}, s{T+1}")
    e.i(f"s_and_b32 s{T+3}, s{S_W}, 1")
    e.i(f"s_lshl_b32 s{T+2}, s{T+2}, 15")
    e.i(f"s_lshl_b32 s{T+4}, s{T+3}, 14")
    e.i(f"s_add_u32 s{T+2}, s{T+2}, s{T+4}")
    e.i(f"s_add_u32 s{T+2}, s{T+2}, {WS_OF}")
    e.i(f"s_lshl_b32 s{T}, s{T}, 15")
    e.i(f"s_add_u32 s{T}, s{T}, s{T+4}")
    e.i(f"s_add_u32 s{T}, s{T}, {L_OF}")
    for u in range(16):
        e.i(f"s_add_u32 m0, s{T}, {1024*u}")
        if u == 0: e.i("s_nop 0")
        else: e.i(f"s_add_u32 s{T+2}, s{T+2}, 1024")
        e.i(f"buffer_load_dwordx4 v{V_L16}, {rs(R_WS)}, s{T+2} offen sc1 lds")
    if cfg.tags:
        e.i(f"v_add_u32 v7, s{T}, v{V_L16}")
        e.i("s_waitcnt vmcnt(0)")
        for u in range(16):
            e.i(f"ds_read_b32 v{32+u}, v7 offset:{1024*u}")
        e.i("s_waitcnt lgkmcnt(8)")
        for u in range(1, 8): e.i(f"v_and_b32 v32, v32, v{32+u}")
        e.i("s_waitcnt lgkmcnt(0)")
        for u in range(8, 16): e.i(f"v_and_b32 v32, v32, v{32+u}")
        e.i(f"s_mov_b32 s{T+5}, 0xffff")
        e.i(f"v_and_b32 v32, s{T+5}, v32")
        e.i(f"v_cmp_ne_u32 vcc, s{T+5}, v32")
        e.i("s_cbranch_vccz L_odma_ok")
        e.i(f"s_sub_u32 s{S_JJ}, s{S_JJ}, 1")
        e.i("s_cbranch_scc0 L_odma")
        e.label("L_odma_ok")
    if cfg.b3pipe:
        order = [h for h in (0,1,2,3,8,9,10,11)] + [h for h in (4,5,6,7,12,13,14,15)]
    else:
        order = list(range(16))
    steps = [(h, f) for h in order for f in range(2)]
    NB = 4
    def rd(k):
        h, f = steps[k]
        b = 32 + 8*(k % NB)
        for jj in range(2):
            e.i(f"ds_read_b64_tr_b16 {vr(b+2*jj,2)}, v{12+f} offset:{(28*h+4*jj)*128}")
        e.i(f"ds_read_b128 {vr(b+4,4)}, v15 offset:{1024*(2*h+f)}")
    def run(k0, k1):
        for k in range(k0, min(k0 + NB - 1, k1)): rd(k)
        for k in range(k0, k1):
            if k + NB - 1 < k1: rd(k + NB - 1)
            nyl = 3 * min(NB - 1, k1 - 1 - k)
            e.i(f"s_waitcnt lgkmcnt({nyl})")
            b = 32 + 8*(k % NB)
            if cfg.tags:
                e.i(f"v_and_b32 v{b+4}, 0xffff0000, v{b+4}")
                e.i("s_nop 1")
            e.i(f"v_mfma_f32_32x32x16_bf16 v[16:31], {vr(b,4)}, {vr(b+4,4)}, {'0' if k == 0 else 'v[16:31]'}")
    if cfg.b3pipe:
        e.i("s_waitcnt vmcnt(8)")
        e.i("s_barrier")
        run(0, 16)
        e.i("s_waitcnt vmcnt(0)")
        e.i("s_barrier")
        run(16, 32)
    else:
        stamp(e, cfg, 46)
        e.i("s_waitcnt vmcnt(0)")
        stamp(e, cfg, 47)
        e.i("s_barrier")
        stamp(e, cfg, 48)
        run(0, 32)
        stamp(e, cfg, 49)
    e.i("s_nop 7"); e.i("s_nop 7")
    for m in range(8):
        e.i(f"v_cvt_pk_bf16_f32 v{48+m}, v{16+2*m}, v{17+2*m}")
    for g in range(4):
        e.i(f"ds_write_b64 v8, {vr(48+2*g,2)} offset:{16*g}")
    e.i("s_waitcnt lgkmcnt(0)")
    e.i(f"ds_read_b128 v[56:59], v10")
    e.i(f"ds_read_b128 v[60:63], v10 offset:{16*80}")
    e.i(f"s_mov_b32 s{T}, {16*1792}")
    e.i("s_waitcnt lgkmcnt(1)")
    e.i(f"buffer_store_dwordx4 v[56:59], v14, {rs(R_OUT)}, 0 offen{OUTF[0]}")
    e.i("s_waitcnt lgkmcnt(0)")
    e.i(f"buffer_store_dwordx4 v[60:63], v14, {rs(R_OUT)}, s{T} offen{OUTF[0]}")

def dump_stamps(e, cfg, wave_off):
    T = S_T0
    if cfg.stamps:
        e.i(f"s_lshl_b32 s{T}, s2, 3")
        e.i(f"s_add_u32 s{T}, s{T}, s{S_W}")
        if wave_off: e.i(f"s_add_u32 s{T}, s{T}, {wave_off}")
        e.i(f"s_lshl_b32 s{T}, s{T}, 8")
        e.i(f"s_add_u32 s{T}, s{T}, {WS_TS}")
        e.i(f"v_lshlrev_b32 v3, 2, v{V_LANE}")
        e.i(f"buffer_store_dword v{vts()}, v3, {rs(R_WS)}, s{T} offen")

def role_b(e, cfg):
    T = S_T0
    ROLE[0] = "B"
    ids_b(e, cfg)
    addr_b(e, cfg)
    if cfg.prefetch: l2_prefetch_addr(e, cfg)
    swbar_init(e)
    if cfg.stamps: e.i(f"v_mov_b32 v{vts()}, 0")
    e.i("s_waitcnt lgkmcnt(0)")
    if cfg.stamps:
        e.i(f"v_writelane_b32 v{vts()}, s{S_TS}, 16")
        e.i(f"s_getreg_b32 s{S_TS}, hwreg(HW_REG_XCC_ID)")
        e.i(f"v_writelane_b32 v{vts()}, s{S_TS}, 60")
        e.i(f"s_getreg_b32 s{S_TS}, hwreg(HW_REG_HW_ID)")
        e.i(f"v_writelane_b32 v{vts()}, s{S_TS}, 61")
    e.i("s_barrier")
    e.i("s_setprio 2")
    stamp(e, cfg, 17)
    if cfg.prefetch: l2_prefetch(e, cfg)
    b1_consts(e)
    b1_issue(e); b1_issue(e)
    if cfg.ago:
        e.i(f"v_mov_b32 v4, {L_CNTGO}")
        sw_arrive(e, addr=4)
    nonce_early(e, cfg)
    stamp(e, cfg, 19)
    b1_traddr(e, cfg)
    stamp(e, cfg, 21)
    b1_loop(e, cfg)
    stamp(e, cfg, 3)
    e.i(f"v_mov_b32 v4, {L_CNTRD}")
    sw_arrive(e, addr=4)
    get_nonce(e, cfg)
    b1_epilogue_kv(e, cfg)
    stamp(e, cfg, 5)
    e.i(f"s_waitcnt vmcnt({6 if cfg.tags else 4})")
    swbar(e)
    b1_q(e, cfg)
    stamp(e, cfg, 6)
    e.i("s_waitcnt vmcnt(0)")
    publish(e, cfg, FL_B1, [f"s_lshl_b32 s{T}, s{S_H}, 4", f"s_add_u32 s{T}, s{T}, s{S_R}"])
    stamp(e, cfg, 4)
    b1_epilogue_q(e, cfg)
    swbar(e)
    e.i("s_setprio 0")
    stamp(e, cfg, 7)
    if cfg.stop_after >= 3:
        b2_main(e, cfg)
        if cfg.stop_after >= 4: b3_addr(e, cfg)
        if not cfg.tags:
            e.i("s_waitcnt vmcnt(0)")
            publish(e, cfg, FL_B2, [f"s_lshl_b32 s{T}, s{S_H}, 4", f"s_add_u32 s{T}, s{T}, s{S_R}"], tmp=4)
        stamp(e, cfg, 12)
    if cfg.stop_after >= 4:
        e.i("s_cmp_ge_u32 s2, 224")
        e.i("s_cbranch_scc1 L_finB")
        b3_main(e, cfg)
        e.label("L_finB")
    stamp(e, cfg, 15)
    dump_stamps(e, cfg, 0)

def role_a(e, cfg):
    T = S_T0
    ROLE[0] = "A"
    e.label("L_roleA")
    e.i("s_setprio 3")
    e.i(f"s_sub_u32 s{S_W}, s{S_W}, 4")
    addr_a(e, cfg)
    swbar_init(e)
    if cfg.stamps: e.i(f"v_mov_b32 v{vts()}, 0")
    e.i("s_waitcnt lgkmcnt(0)")
    if cfg.stamps: e.i(f"v_writelane_b32 v{vts()}, s{S_TS}, 16")
    e.i("s_barrier")
    stamp(e, cfg, 17)
    if cfg.noA:
        e.i(f"s_or_b32 s{T}, s2, s{S_W}")
        e.i("s_cbranch_scc1 L_noA_end")
        e.i(f"s_memrealtime s[{S_NONCE}:{S_NONCE+1}]")
        e.i("s_waitcnt lgkmcnt(0)")
        e.i(f"s_or_b32 s{S_NONCE}, s{S_NONCE}, 1")
        e.i(f"v_mov_b32 v76, s{S_NONCE}")
        e.i(f"v_mov_b32 v77, s{S_NONCE+1}")
        e.i("v_mov_b32 v78, 0")
        e.i("s_mov_b64 exec, 1")
        e.i(f"buffer_store_dwordx2 v[76:77], v78, {rs(R_DBG)}, 0 offen sc1")
        e.i("s_waitcnt vmcnt(0)")
        e.label("L_noA_end")
        e.i("s_endpgm")
    if cfg.ago:
        e.i(f"v_mov_b32 v8, {L_CNTGO}")
        sw_wait(e, 8, target_imm=4, sleep=2)
    if cfg.apf:
        e.i(f"s_lshl_b32 s{T}, s{S_RB}, 6")
        e.i(f"s_lshl_b32 s{T+1}, s{S_W}, 4")
        e.i(f"s_add_u32 s{T}, s{T}, s{T+1}")
        e.i(f"s_mul_i32 s{T}, s{T}, 896")
        e.i(f"s_lshl_b32 s{T+1}, s{S_CB}, 7")
        e.i(f"s_add_u32 s{T}, s{T}, s{T+1}")
        e.i(f"v_mul_u32_u24 v8, 896, v{V_LANE}")
        e.i(f"v_add_u32 v8, s{T}, v8")
        e.i(f"v_subrev_u32 v9, {3*896}, v8")
        e.i("s_mov_b64 exec, 0x7ffff")
        e.i(f"buffer_load_dword v244, v9, {rs(R_K)}, 0 offen")
        e.i("s_mov_b64 exec, 0xffff")
        e.i(f"buffer_load_dword v245, v8, {rs(R_V)}, 0 offen")
        e.i("s_mov_b64 exec, -1")
    if cfg.await_b:
        e.i(f"v_mov_b32 v8, {L_CNTB}")
        sw_wait(e, 8, target_imm=4*cfg.await_b, sleep=4)
    stamp(e, cfg, 19)
    a1_loads(e, cfg)
    if cfg.hearly: h_loads(e, cfg)
    a2_dload(e, cfg)
    e.i(f"s_or_b32 s{T}, s2, s{S_W}")
    e.i("s_cbranch_scc1 L_nononce")
    e.i(f"s_memrealtime s[{S_NONCE}:{S_NONCE+1}]")
    e.i("s_waitcnt lgkmcnt(0)")
    e.i(f"s_or_b32 s{S_NONCE}, s{S_NONCE}, 1")
    e.i(f"v_mov_b32 v76, s{S_NONCE}")
    e.i(f"v_mov_b32 v77, s{S_NONCE+1}")
    e.i("v_mov_b32 v78, 0")
    e.i("s_mov_b64 exec, 1")
    e.i(f"buffer_store_dwordx2 v[76:77], v78, {rs(R_DBG)}, 0 offen sc1")
    e.i("s_mov_b64 exec, -1")
    e.label("L_nononce")
    a1_compute(e, cfg, 2 if cfg.hearly else 0)
    stamp(e, cfg, 18)
    nonce_early(e, cfg)
    a1_compute_b(e, cfg)
    stamp(e, cfg, 1)
    e.i("s_waitcnt vmcnt(0)")
    get_nonce(e, cfg)
    publish(e, cfg, FL_A1, [f"s_mov_b32 s{T}, s2"], tmp=24)
    e.i("s_setprio 1")
    stamp(e, cfg, 2)
    e.i("s_cmp_ge_u32 s2, 224")
    e.i("s_cbranch_scc1 L_finA")
    if not cfg.hearly: h_loads(e, cfg)
    swbar(e)
    e.i("s_waitcnt vmcnt(0)")
    a2_hstage(e, cfg)
    if cfg.stop_after >= 2:
        a2_main(e, cfg)
        stamp(e, cfg, 9)
        e.i("s_waitcnt vmcnt(0)")
        publish(e, cfg, FL_A2, [f"s_mov_b32 s{T}, s2"])
        if cfg.alow: e.i("s_setprio 0")
        stamp(e, cfg, 10)
    if cfg.stop_after >= 4:
        wo_addr(e, cfg)
        e.i(f"v_mov_b32 v4, {L_CNTRD}")
        sw_wait(e, 4, target_imm=4, sleep=8)
        wo_first(e, cfg)
        for t in range(13):
            e.i("s_waitcnt vmcnt(1)")
            wo_next(e)
        stamp(e, cfg, 11)
        a3_main(e, cfg)
        if cfg.tags:
            e.i(f"s_lshl_b32 s{T}, s{S_RB}, 1")
            e.i(f"v_bfe_u32 v8, v{V_LANE}, 4, 1")
            e.i(f"v_add_u32 v8, s{T}, v8")
            e.i(f"v_and_b32 v7, 15, v{V_LANE}")
            e.i(f"v_lshl_add_u32 v7, v7, 6, v8")
            poll(e, cfg, FL_B1, 7, "b1c", tmp=8)
        e.i("s_waitcnt vmcnt(0)")
    e.label("L_finA")
    stamp(e, cfg, 15)
    dump_stamps(e, cfg, 4)

def build(cfg):
    e = E()
    prologue(e, cfg)
    role_b(e, cfg)
    e.label("L_end")
    e.i("s_endpgm")
    role_a(e, cfg)
    e.i("s_endpgm")
    if cfg.stop_after >= 3:
        ROLE[0] = "B"
        b2_slow(e, cfg)
        e.i("s_endpgm")
    return e

HEADER = f"""; Kernarg layout (96 bytes): A_q A_k A_v A_shift_k A_ssm_k A_ssm_D B_x B_wqkv B_wo out debug ws
; @launch grid=(256,1,1) block=(512,1,1) lds={LDS_SIZE}
.amdgcn_target "amdgcn-amd-amdhsa--gfx950"
.text
.globl {KNAME}
.p2align 8
.type {KNAME},@function
{KNAME}:
"""
FOOTER = f"""
.section .rodata,"a"
.p2align 6
.amdhsa_kernel {KNAME}
  .amdhsa_next_free_vgpr 256
  .amdhsa_next_free_sgpr 102
  .amdhsa_accum_offset 256
  .amdhsa_group_segment_fixed_size 0
  .amdhsa_kernarg_size 96
  .amdhsa_user_sgpr_count 2
  .amdhsa_user_sgpr_kernarg_segment_ptr 1
  .amdhsa_system_sgpr_workgroup_id_x 1
  .amdhsa_float_denorm_mode_32 3
.end_amdhsa_kernel
"""

if __name__ == "__main__":
    import argparse
    ap = argparse.ArgumentParser()
    ap.add_argument("-o", default=f"cdna_kernels/{NAME}.s")
    ap.add_argument("--stop", type=int, default=99)
    ap.add_argument("--stamps", action="store_true")
    ap.add_argument("--nosync", action="store_true")
    ap.add_argument("--realtime", action="store_true")
    ap.add_argument("--noprefetch", action="store_true")
    ap.add_argument("--span", action="store_true")
    ap.add_argument("--skipA", action="store_true")
    ap.add_argument("--bdelay", type=int, default=0)
    ap.add_argument("--awaitb", type=int, default=0)
    ap.add_argument("--pad", action="store_true")
    ap.add_argument("--shift4", action="store_true")
    ap.add_argument("--lalign", type=int, default=3)
    ap.add_argument("--hearly", action="store_true")
    ap.add_argument("--ago", action="store_true")
    ap.add_argument("--apf", action="store_true")
    ap.add_argument("--fine", action="store_true")
    ap.add_argument("--noA", action="store_true")
    ap.add_argument("--bsleep", type=int, default=3)
    ap.add_argument("--b3pipe", action="store_true")
    ap.add_argument("--alow", action="store_true")
    ap.add_argument("--tags", action="store_true")
    ap.add_argument("--outflag", default="")
    ap.add_argument("--xmap", type=int, default=4)
    a = ap.parse_args()
    cfg = Cfg(); cfg.stop_after = a.stop; cfg.stamps = a.stamps; cfg.nosync = a.nosync; cfg.realtime = a.realtime; cfg.prefetch = not a.noprefetch; cfg.span = a.span; cfg.skipA = a.skipA; cfg.bdelay = a.bdelay; cfg.await_b = a.awaitb; cfg.pad = a.pad; cfg.lalign = a.lalign; cfg.shift4 = a.shift4; cfg.hearly = a.hearly; cfg.ago = a.ago; cfg.apf = a.apf; cfg.fine = a.fine; cfg.noA = a.noA; cfg.bsleep = a.bsleep; cfg.b3pipe = a.b3pipe; cfg.alow = a.alow; cfg.tags = a.tags; cfg.outflag = a.outflag; OUTF[0] = (' ' + a.outflag) if a.outflag else ''; cfg.xmap = a.xmap
    e = build(cfg)
    open(a.o, "w").write(HEADER + e.text() + FOOTER)
    print("wrote", a.o, len(e.lines), "lines")
```

```python
import sys, math, struct

NAME = "concat_heads__ssm_conv_h3__softmax_full_mha__prompt"
KNAME = NAME + "_kernel"

class E:
    def __init__(self):
        self.lines = []
    def c(self, s):
        self.lines.append("    ; " + s)
    def i(self, s):
        self.lines.append("    " + s)
    def label(self, s):
        self.lines.append(s + ":")
    def text(self):
        return "\n".join(self.lines) + "\n"

def vr(a, n=1):
    return f"v{a}" if n == 1 else f"v[{a}:{a+n-1}]"
def ar(a, n=1):
    return f"a{a}" if n == 1 else f"a[{a}:{a+n-1}]"
def rs(r): return f"s[{r}:{r+3}]"

S, D, H, DH = 2048, 448, 16, 28
SZ_SD   = S * D * 2
SZ_SHK  = D * 4 * 2
SZ_WQKV = D * 3 * D * 2
SZ_WO   = D * D * 2
SZ_OUT  = S * 2 * D * 2
WS_KV = 0x000000
WS_XT = 0x400000
WS_YT = 0x600000
WS_OF = 0x800000
WS_FL = 0xA00000
FL_A1, FL_B1, FL_A2, FL_B2 = 0, 0x10000, 0x20000, 0x30000
FL_SH = 6
WS_TS = 0xB00000
WS_SIZE = 0xC00000

L_RING = 0
NSLOT  = 4
SLOT   = 24576
L_WQ   = 98304
L_Q    = 65536
L_WO   = 0
L_RED  = 58368
L_OF   = 58368
LA     = 126976
L_KS   = LA
L_SHK  = LA + 12288
L_KVT  = LA + 16384
L_H    = LA + 25600
H_CH   = 4160
L_X    = LA
X_CH   = 5248
L_CARRY= LA + 10496
L_Y    = L_X
L_A3   = LA + 12288
L_A3R  = LA
L_OUTB = LA
L_MISC = LA + 33920
L_CNTA, L_CNTB, L_CNTRD, L_CNTGO = L_MISC + 16, L_MISC + 20, L_MISC + 24, L_MISC + 28
LDS_SIZE = LA + 33920 + 64

S_W = 3
R_K, R_V, R_Q, R_SHK, R_SSMK, R_X, R_WQKV, R_WO, R_OUT, R_WS, R_DBG = 4, 8, 12, 16, 20, 24, 28, 32, 36, 40, 44
S_H, S_R, S_CB, S_RB = 48, 49, 50, 51
S_NONCE = 52
S_D2 = 54
S_DP = 62
S_T0 = 56
S_MHH = 64
S_MONE = 66
S63 = 68
S_KV = 70
S_J = 76
S_JJ = 77
S_SLI = 78
S_SLC = 79
S_XB = 80
S_WOI = 81
S_T1 = 88
S_SLOW = 96
S_IT = 97
S_TS = 98
S_BT = 55

QSCALE = (DH ** -0.5) * math.log2(math.e)
def f2u(x): return struct.unpack("<I", struct.pack("<f", x))[0]

class Cfg:
    stop_after = 99
    stamps = False
    nosync = False
    realtime = False
    prefetch = True
    span = False
    skipA = False
    bdelay = 0
    await_b = 0
    midk = 0
    dynb3 = False
    spf = False
    trim = False
    poll2 = False
    pad = False
    lalign = 3
    shift4 = False
    hearly = False
    ago = False
    apf = False
    fine = False
    noA = False
    bsleep = 3
    b3pipe = False
    alow = False
    tags = False
    outflag = ''
    xmap = 4

ROLE = ["B"]
OUTF = ['']
def vts(): return 250 if ROLE[0] == "B" else 63
def stamp(e, cfg, idx):
    if not cfg.stamps: return
    e.c(f"stamp {idx}")
    e.i(f"{'s_memrealtime' if cfg.realtime else 's_memtime'} s[{S_TS}:{S_TS+1}]")
    e.i("s_waitcnt lgkmcnt(0)")
    e.i(f"v_writelane_b32 v{vts()}, s{S_TS}, {idx}")

def bar_regs():
    return (247, 248, 249) if ROLE[0] == "B" else (60, 61, 62)
BARN = [0]
def swbar_init(e):
    a, one, tmp = bar_regs()
    e.i(f"v_mov_b32 v{a}, {L_CNTB if ROLE[0] == 'B' else L_CNTA}")
    e.i(f"v_mov_b32 v{one}, 1")
    e.i(f"s_mov_b32 s{S_BT}, 0")
def sw_arrive(e, addr=None):
    a, one, tmp = bar_regs()
    e.i("s_mov_b64 exec, 1")
    e.i(f"ds_add_u32 v{addr if addr is not None else a}, v{one}")
    e.i("s_mov_b64 exec, -1")
def sw_wait(e, addr, target_sgpr=None, target_imm=None, sleep=None):
    a, one, tmp = bar_regs()
    BARN[0] += 1
    n = BARN[0]
    e.i(f"s_mov_b32 s{S_IT}, 0x100000")
    e.label(f"L_sw{n}")
    e.i(f"ds_read_b32 v{tmp}, v{addr}")
    e.i("s_waitcnt lgkmcnt(0)")
    e.i(f"v_readfirstlane_b32 s95, v{tmp}")
    e.i(f"s_cmp_ge_u32 s95, {('s%d' % target_sgpr) if target_sgpr is not None else target_imm}")
    e.i(f"s_cbranch_scc1 L_swd{n}")
    if sleep is None: sleep = 1 if ROLE[0] == "A" else 0
    if sleep: e.i(f"s_sleep {sleep}")
    e.i(f"s_sub_u32 s{S_IT}, s{S_IT}, 1")
    e.i(f"s_cbranch_scc0 L_sw{n}")
    e.label(f"L_swd{n}")
def swbar(e):
    a, one, tmp = bar_regs()
    e.i(f"s_add_u32 s{S_BT}, s{S_BT}, 4")
    sw_arrive(e)
    sw_wait(e, a, target_sgpr=S_BT)

V_LANE, V_L16 = 1, 2
V_TS = 250

def prologue(e, cfg):
    e.c("==== prologue ====")
    ptrs = [(R_K, 8), (R_V, 16), (R_SHK, 24), (R_X, 48), (R_WQKV, 56), (R_SSMK, 32), (R_Q, 0), (R_WO, 64), (R_OUT, 72), (R_DBG, 80), (R_WS, 88), (S_DP, 40)]
    for r, off in ptrs:
        e.i(f"s_load_dwordx2 s[{r}:{r+1}], s[0:1], {off}")
    if cfg.span: e.i("s_memrealtime s[100:101]")
    e.i("s_cmp_ge_u32 s2, 256")
    e.i("s_cbranch_scc1 L_end")
    if cfg.stamps:
        e.i(f"s_memrealtime s[{S_TS}:{S_TS+1}]" if cfg.realtime else f"s_memtime s[{S_TS}:{S_TS+1}]")
    e.i(f"v_lshrrev_b32 v3, 6, v0")
    e.i(f"v_and_b32 v{V_LANE}, 63, v0")
    e.i(f"v_readfirstlane_b32 s{S_W}, v3")
    e.i(f"v_lshlrev_b32 v{V_L16}, 4, v{V_LANE}")
    for i in range(4): e.i(f"v_mov_b32 v{4+i}, 0")
    e.i(f"v_mov_b32 v3, {L_MISC + 16}")
    e.i("s_mov_b64 exec, 1")
    e.i("ds_write_b128 v3, v[4:7]")
    e.i("s_mov_b64 exec, -1")
    sizes = {R_K: SZ_SD, R_V: SZ_SD, R_SHK: SZ_SHK, R_SSMK: SZ_SD, R_X: SZ_SD, R_WQKV: SZ_WQKV, R_Q: SZ_SD, R_WO: SZ_WO, R_OUT: SZ_OUT, R_DBG: 256, R_WS: WS_SIZE}
    for r, sz in sizes.items():
        e.i(f"s_mov_b32 s{r+2}, {sz}")
        e.i(f"s_mov_b32 s{r+3}, 0x20000")
    T = S_T0
    e.i(f"s_lshr_b32 s{S_CB}, s2, 5")
    e.i(f"s_min_u32 s{S_CB}, s{S_CB}, 6")
    e.i(f"s_and_b32 s{S_RB}, s2, 31")
    e.i(f"s_cmp_ge_u32 s{S_W}, 4")
    e.i("s_cbranch_scc1 L_roleA")

def ids_b(e, cfg):
    T = S_T0
    hb = {2: 1, 4: 2, 8: 3}[cfg.xmap]
    ng = 16 >> hb
    gb = 4 - hb
    e.i(f"s_and_b32 s{T}, s2, 7")
    e.i(f"s_lshr_b32 s{T+1}, s2, 3")
    e.i(f"s_and_b32 s{S_H}, s{T}, {ng-1}")
    e.i(f"s_lshl_b32 s{S_H}, s{S_H}, {hb}")
    e.i(f"s_and_b32 s{T+2}, s{T+1}, {(1<<hb)-1}")
    e.i(f"s_add_u32 s{S_H}, s{S_H}, s{T+2}")
    e.i(f"s_lshr_b32 s{S_R}, s{T}, {gb}")
    e.i(f"s_lshl_b32 s{S_R}, s{S_R}, {5-hb}")
    e.i(f"s_lshr_b32 s{T+2}, s{T+1}, {hb}")
    e.i(f"s_add_u32 s{S_R}, s{S_R}, s{T+2}")
    e.i(f"s_and_b32 s{S_J}, s{T+1}, {(1<<hb)-1}")
    e.i(f"s_lshl_b32 s{S_J}, s{S_J}, {1 if hb <= 2 else 0}")
    e.i(f"s_lshr_b32 s{T}, s{T+1}, {hb}")
    if hb == 3: e.i(f"s_lshl_b32 s{T}, s{T}, 1")
    e.i(f"s_add_u32 s{S_J}, s{S_J}, s{T}")
    for _ in range(3):
        e.i(f"s_cmp_ge_u32 s{S_J}, 7")
        e.i(f"s_cselect_b32 s{T}, 7, 0")
        e.i(f"s_sub_u32 s{S_J}, s{S_J}, s{T}")

V_KOFF = 4
VA = 48
V_XE, V_XO = 8, 9
V_DMA = 10
V_HOFF = 7
HREG = 116

def addr_a(e, cfg):
    T = S_T0
    e.c("A1 addresses")
    e.i(f"s_lshl_b32 s{T}, s{S_RB}, 6")
    e.i(f"s_lshl_b32 s{T+1}, s{S_W}, 4")
    e.i(f"s_add_u32 s{T}, s{T}, s{T+1}")
    e.i(f"s_mul_i32 s{T}, s{T}, 896")
    e.i(f"s_lshl_b32 s{T+1}, s{S_CB}, 7")
    e.i(f"s_add_u32 s{T}, s{T}, s{T+1}")
    e.i(f"v_lshrrev_b32 v3, 3, v{V_LANE}")
    e.i(f"v_mul_u32_u24 v13, 896, v3")
    e.i(f"v_and_b32 v14, 7, v{V_LANE}")
    e.i(f"v_lshl_add_u32 v15, v14, 4, v13")
    e.i(f"v_add_u32 v{V_KOFF+1}, s{T}, v15")
    e.i(f"v_add_u32 v{V_KOFF+2}, 7168, v{V_KOFF+1}")
    e.i(f"v_subrev_u32 v{V_KOFF}, 7168, v{V_KOFF+1}")
    e.c("h offset")
    e.i(f"s_lshr_b32 s{T}, s{S_W}, 1")
    e.i(f"s_lshl_b32 s{T+1}, s2, 1")
    e.i(f"s_add_u32 s{T}, s{T}, s{T+1}")
    e.i(f"s_lshl_b32 s{T}, s{T}, 12")
    e.i(f"s_and_b32 s{T+1}, s{S_W}, 1")
    e.i(f"s_lshl_b32 s{T+1}, s{T+1}, 11")
    e.i(f"s_add_u32 s{T}, s{T}, s{T+1}")
    e.i(f"v_add_u32 v{V_HOFF}, s{T}, v{V_L16}")

def addr_b(e, cfg):
    T = S_T0
    e.c("B1 x dma offsets: (128r + 32w + (l>>3))*896 + ((l&7) ^ f)*16, f = (l>>4) ^ (4*(t&1))")
    e.i(f"v_lshrrev_b32 v3, 3, v{V_LANE}")
    e.i(f"v_mul_u32_u24 v13, 896, v3")
    e.i(f"v_and_b32 v14, 7, v{V_LANE}")
    e.i(f"s_lshl_b32 s{T}, s{S_R}, 7")
    e.i(f"s_lshl_b32 s{T+1}, s{S_W}, 5")
    e.i(f"s_add_u32 s{T}, s{T}, s{T+1}")
    e.i(f"s_mul_i32 s{T}, s{T}, 896")
    e.i(f"v_lshrrev_b32 v3, 4, v{V_LANE}")
    e.i(f"v_xor_b32 v3, v3, v14")
    e.i(f"v_lshl_add_u32 v15, v3, 4, v13")
    e.i(f"v_add_u32 v{V_XE}, s{T}, v15")
    e.i(f"v_xor_b32 v{V_XO}, 64, v{V_XE}")
    e.c("Wkv dma offsets: row=(l>>3) (+8t), phys half=(l>>2)&1, piece = half ^ ((l>>4)&1), gran = l&3")
    e.i(f"s_mul_i32 s{T}, s{S_H}, 56")
    e.i(f"v_lshrrev_b32 v3, 3, v{V_LANE}")
    e.i(f"v_mul_u32_u24 v{V_DMA}, 2688, v3")
    e.i(f"v_bfe_u32 v13, v{V_LANE}, 2, 1")
    e.i(f"v_bfe_u32 v14, v{V_LANE}, 4, 1")
    e.i(f"v_xor_b32 v13, v13, v14")
    e.i(f"v_and_b32 v3, 3, v{V_LANE}")
    e.i(f"v_mul_u32_u24 v14, 896, v13")
    e.i(f"v_add3_u32 v{V_DMA}, v{V_DMA}, v14, s{T}")
    e.i(f"v_add_u32 v14, 1, v3")
    e.i(f"v_mul_u32_u24 v13, v13, v14")
    e.i(f"v_lshlrev_b32 v14, 3, v3")
    e.i(f"v_sub_u32 v14, v14, v13")
    e.i(f"v_lshl_add_u32 v{V_DMA}, v14, 1, v{V_DMA}")
    e.i(f"v_add_u32 v{V_DMA}, 896, v{V_DMA}")
    e.c("Wq dma offset: row = l>>2, gran = l&3")
    e.i(f"v_lshrrev_b32 v13, 2, v{V_LANE}")
    e.i(f"v_mul_u32_u24 v13, 2688, v13")
    e.i(f"v_lshlrev_b32 v3, 4, v3")
    e.i(f"v_add3_u32 v{V_DMA+1}, v13, v3, s{T}")

def a1_loads(e, cfg):
    T = S_T0
    e.c("A1 loads: k dma x3, shk dma, v x2")
    e.i(f"s_mul_i32 s{T}, s{S_W}, 3072")
    for t in (1, 2, 0):
        e.i(f"s_add_u32 m0, s{T}, {L_KS + 1024*t}")
        if t == 0 and cfg.trim:
            e.i("s_mov_b32 exec_lo, 0")
            e.i("s_mov_b32 exec_hi, 0xffffff00")
        else:
            e.i("s_nop 0")
        e.i(f"buffer_load_dwordx4 v{V_KOFF+t}, {rs(R_K)}, 0 offen lds")
    e.i(f"s_lshl_b32 s{T}, s{S_W}, 10")
    e.i(f"s_add_u32 m0, s{T}, {L_SHK}")
    e.i(f"s_lshl_b32 s{T+1}, s{S_CB}, 9")
    if cfg.trim:
        e.i("s_mov_b32 exec_lo, -1")
        e.i("s_mov_b32 exec_hi, 0")
    e.i(f"buffer_load_dwordx4 v{V_L16}, {rs(R_SHK)}, s{T+1} offen lds")
    if cfg.trim: e.i("s_mov_b64 exec, -1")
    for it in range(2):
        e.i(f"buffer_load_dwordx4 {vr(VA+4*it,4)}, v{V_KOFF+1+it}, {rs(R_V)}, 0 offen")

def h_loads(e, cfg):
    e.i(f"buffer_load_dwordx4 {vr(HREG,4)}, v{V_HOFF}, {rs(R_SSMK)}, 0 offen")
    e.i(f"buffer_load_dwordx4 {vr(HREG+4,4)}, v{V_HOFF}, {rs(R_SSMK)}, 0 offen offset:1024")

V_PF = 4
def l2_prefetch_addr(e, cfg):
    assert cfg.xmap == 8
    T = S_T0
    e.i(f"s_and_b32 s{T}, s2, 7")
    e.i(f"s_lshr_b32 s{T}, s{T}, 1")
    e.i(f"s_mul_i32 s{T}, s{T}, {512*896}")
    e.i(f"s_lshr_b32 s{T+1}, s2, 3")
    e.i(f"s_mul_i32 s{T+2}, s{T+1}, 14336")
    e.i(f"s_add_u32 s{T}, s{T}, s{T+2}")
    e.i(f"s_lshl_b32 s{T+2}, s{S_W}, 12")
    e.i(f"s_add_u32 s{T}, s{T}, s{T+2}")
    e.i(f"v_lshlrev_b32 v3, 6, v{V_LANE}")
    e.i(f"v_add_u32 v{V_PF}, s{T}, v3")
    e.i(f"s_mul_i32 s{T+1}, s{T+1}, 14")
    e.i(f"s_and_b32 s{T+2}, s2, 1")
    e.i(f"s_mul_i32 s{T+2}, s{T+2}, 448")
    for k, base in ((1, None), (2, 256)):
        if base is None:
            e.i(f"s_lshl_b32 s{T}, s{S_W}, 6")
            e.i(f"v_add_u32 v3, s{T}, v{V_LANE}")
        else:
            e.i(f"v_add_u32 v3, {base}, v{V_LANE}")
        e.i(f"v_mul_u32_u24 v13, 49933, v3")
        e.i(f"v_lshrrev_b32 v13, 20, v13")
        e.i(f"v_mul_u32_u24 v14, 21, v13")
        e.i(f"v_sub_u32 v3, v3, v14")
        e.i(f"v_mul_u32_u24 v14, 37, v3")
        e.i(f"v_lshrrev_b32 v14, 8, v14")
        e.i(f"v_mul_u32_u24 v15, 7, v14")
        e.i(f"v_sub_u32 v3, v3, v15")
        e.i(f"v_mul_u32_u24 v14, 896, v14")
        e.i(f"v_lshl_add_u32 v14, v3, 6, v14")
        e.i(f"v_add_u32 v13, s{T+1}, v13")
        e.i(f"v_mul_u32_u24 v13, 2688, v13")
        e.i(f"v_add3_u32 v{V_PF+k}, v13, v14, s{T+2}")

def l2_prefetch(e, cfg):
    e.i(f"buffer_load_dword v244, v{V_PF}, {rs(R_X)}, 0 offen")
    e.i(f"buffer_load_dword v245, v{V_PF+1}, {rs(R_WQKV)}, 0 offen")
    e.i(f"s_cmp_lg_u32 s{S_W}, 0")
    e.i("s_cbranch_scc1 L_nopf2")
    e.i("s_mov_b32 exec_lo, -1")
    e.i("s_mov_b32 exec_hi, 0x3f")
    e.i(f"buffer_load_dword v246, v{V_PF+2}, {rs(R_WQKV)}, 0 offen")
    e.i("s_mov_b64 exec, -1")
    e.label("L_nopf2")

S_XL, S_WL, S_WS0 = 82, 83, 84
S_SX, S_SW = 85, 86
S_J0 = 80
def b1_consts(e):
    e.i(f"s_lshl_b32 s{S_XL}, s{S_W}, 12")
    e.i(f"s_lshl_b32 s{S_WL}, s{S_W}, 11")
    e.i(f"s_add_u32 s{S_WL}, s{S_WL}, 16384")
    e.i(f"s_mul_i32 s{S_WS0}, s{S_W}, 43008")
    e.i(f"s_mov_b32 s{S_SLI}, {L_RING}")
    e.i(f"s_mov_b32 s{S_J0}, s{S_J}")

def adv_j():
    return [f"s_add_u32 s{S_J}, s{S_J}, 1", f"s_cmp_eq_u32 s{S_J}, 7", f"s_cselect_b32 s{S_J}, 0, s{S_J}"]

def b1_issue_pieces():
    T = S_T0
    p = []
    p.append([f"s_lshl_b32 s{S_SX}, s{S_J}, 7",
              f"s_mul_i32 s{S_SW}, s{S_J}, 172032",
              f"s_add_u32 s{S_SW}, s{S_SW}, s{S_WS0}",
              f"s_add_u32 s{T}, s{S_SLI}, s{S_XL}",
              f"s_add_u32 s{T+1}, s{S_SLI}, s{S_WL}"])
    for t in range(4):
        l = []
        if t == 0: l.append(f"s_mov_b32 m0, s{T}")
        else:
            l.append(f"s_add_u32 m0, s{T}, {1024*t}")
            l.append(f"s_add_u32 s{S_SX}, s{S_SX}, 7168")
        if t == 0: l.append("s_nop 0")
        l.append(f"buffer_load_dwordx4 v{V_XE if t % 2 == 0 else V_XO}, {rs(R_X)}, s{S_SX} offen lds")
        p.append(l)
    for t in range(2):
        l = [f"s_add_u32 m0, s{T+1}, {1024*t}" if t else f"s_mov_b32 m0, s{T+1}"]
        if t: l.append(f"s_add_u32 s{S_SW}, s{S_SW}, {8*2688}")
        else: l.append("s_nop 0")
        l.append(f"buffer_load_dwordx4 v{V_DMA}, {rs(R_WQKV)}, s{S_SW} offen lds")
        if t == 1:
            l += adv_j() + [f"s_add_u32 s{S_SLI}, s{S_SLI}, {SLOT}",
                  f"s_cmp_eq_u32 s{S_SLI}, {NSLOT*SLOT + L_RING}",
                  f"s_cselect_b32 s{S_SLI}, {L_RING}, s{S_SLI}"]
        p.append(l)
    return p

def wq_issue_pieces():
    T = S_T0
    p = []
    for pos in range(7):
        l = []
        if pos == 0: l.append(f"s_mov_b32 s{S_J}, s{S_J0}")
        l += [f"s_mul_i32 s{S_SW}, s{S_J}, 172032",
              f"s_add_u32 s{S_SW}, s{S_SW}, s{S_WS0}",
              f"s_lshl_b32 s{T}, s{S_W}, 10",
              f"s_add_u32 m0, s{T}, {L_WQ + 4096*pos}"]
        l += adv_j()
        l.append(f"buffer_load_dwordx4 v{V_DMA+1}, {rs(R_WQKV)}, s{S_SW} offen lds")
        p.append(l)
    return p

def b1_issue(e):
    for pc in b1_issue_pieces():
        for ln in pc: e.i(ln)

KA, WSH = 16, 124
def a1_compute(e, cfg, nyounger):
    T = S_T0
    e.c("A1 compute")
    e.i(f"s_mul_i32 s{T}, s{S_W}, 3072")
    e.i(f"s_add_u32 s{T}, s{T}, {L_KS}")
    e.i(f"v_add_u32 v3, s{T}, v{V_L16}")
    e.i(f"s_lshl_b32 s{T}, s{S_W}, 10")
    e.i(f"s_add_u32 s{T}, s{T}, {L_SHK}")
    e.i(f"v_and_b32 v14, 7, v{V_LANE}")
    e.i(f"v_lshlrev_b32 v13, 6, v14")
    e.i(f"v_add_u32 v13, s{T}, v13")
    e.i(f"s_waitcnt vmcnt({nyounger})")
    stamp(e, cfg, 20)
    for m in range(4):
        e.i(f"ds_read_b128 {vr(WSH+4*m,4)}, v13 offset:{16*m}")
    for it in range(2):
        for j in range(4):
            e.i(f"ds_read_b128 {vr(KA+16*it+4*j,4)}, v3 offset:{(8+8*it-j)*128}")
    e.i(f"s_mov_b32 s{T}, 0x05040100")
    e.i(f"s_mov_b32 s{T+1}, 0x07060302")
    e.i(f"s_mov_b32 s{T+2}, 0xffff0000")
    TT = 76; OUTR = 108
    for it in range(2):
        e.i(f"s_waitcnt lgkmcnt({4 if it == 0 else 0})")
        for m in range(4):
            k = lambda j: KA + 16*it + 4*j + m
            b = TT + 4*m
            e.i(f"v_perm_b32 v{b+0}, v{k(1)}, v{k(0)}, s{T}")
            e.i(f"v_perm_b32 v{b+1}, v{k(1)}, v{k(0)}, s{T+1}")
            e.i(f"v_perm_b32 v{b+2}, v{k(3)}, v{k(2)}, s{T}")
            e.i(f"v_perm_b32 v{b+3}, v{k(3)}, v{k(2)}, s{T+1}")
        A = TT + 16
        for m in range(4):
            b = TT + 4*m
            e.i(f"v_dot2_f32_bf16 v{A+2*m}, v{b+0}, v{WSH+4*m+0}, 0")
            e.i(f"v_dot2_f32_bf16 v{A+2*m+1}, v{b+1}, v{WSH+4*m+2}, 0")
        U = TT + 24
        for m in range(4):
            e.i(f"v_lshlrev_b32 v{U+2*m}, 16, v{VA+4*it+m}")
            e.i(f"v_and_b32 v{U+2*m+1}, s{T+2}, v{VA+4*it+m}")
        for m in range(4):
            b = TT + 4*m
            e.i(f"v_dot2_f32_bf16 v{A+2*m}, v{b+2}, v{WSH+4*m+1}, v{A+2*m}")
            e.i(f"v_dot2_f32_bf16 v{A+2*m+1}, v{b+3}, v{WSH+4*m+3}, v{A+2*m+1}")
        e.i("s_nop 2")
        for c in range(8):
            e.i(f"v_mul_f32 v{A+c}, v{A+c}, v{U+c}")
        for m in range(4):
            e.i(f"v_cvt_pk_bf16_f32 v{OUTR+4*it+m}, v{A+2*m}, v{A+2*m+1}")
def a1_compute_b(e, cfg):
    T = S_T0
    OUTR = 108
    e.i(f"v_and_b32 v14, 7, v{V_LANE}")
    e.i(f"s_mul_i32 s{T}, s{S_W}, {16*144}")
    e.i(f"s_add_u32 s{T}, s{T}, {L_KVT}")
    e.i(f"v_lshrrev_b32 v13, 3, v{V_LANE}")
    e.i(f"v_mul_u32_u24 v15, 144, v13")
    e.i(f"v_lshl_add_u32 v15, v14, 4, v15")
    e.i(f"v_add_u32 v3, s{T}, v15")
    e.i(f"ds_write_b128 v3, {vr(OUTR,4)}")
    e.i(f"ds_write_b128 v3, {vr(OUTR+4,4)} offset:{8*144}")
    e.i(f"v_lshrrev_b32 v3, 4, v{V_LANE}")
    e.i(f"v_lshlrev_b32 v3, 3, v3")
    e.i(f"v_bfe_u32 v16, v{V_LANE}, 2, 2")
    e.i(f"v_add_u32 v3, v3, v16")
    e.i(f"v_mul_u32_u24 v3, 144, v3")
    e.i(f"v_and_b32 v16, 3, v{V_LANE}")
    e.i(f"v_lshlrev_b32 v16, 3, v16")
    e.i(f"s_lshl_b32 s{T}, s{S_W}, 5")
    e.i(f"s_add_u32 s{T}, s{T}, {L_KVT}")
    e.i(f"v_add3_u32 v3, v3, v16, s{T}")
    e.i(f"s_mul_i32 s{T}, s{S_W}, 3072")
    e.i(f"s_add_u32 s{T}, s{T}, {L_KS}")
    e.i(f"v_and_b32 v16, 15, v{V_LANE}")
    e.i(f"v_mul_u32_u24 v16, 144, v16")
    e.i(f"v_and_b32 v17, 0x30, v{V_LANE}")
    e.i(f"v_add3_u32 v16, v16, v17, s{T}")
    e.i(f"v_add_u32 v17, s{T}, v15")
    e.i(f"v_lshlrev_b32 v18, 12, v13")
    e.i(f"v_lshl_add_u32 v18, v14, 4, v18")
    e.i(f"s_lshl_b32 s{T}, s{S_CB}, 6")
    e.i(f"s_lshl_b32 s{T+1}, s{S_W}, 4")
    e.i(f"s_add_u32 s{T}, s{T}, s{T+1}")
    e.i(f"s_lshl_b32 s{T}, s{T}, 12")
    e.i(f"s_lshl_b32 s{T+1}, s{S_RB}, 7")
    e.i(f"s_add_u32 s{T}, s{T}, s{T+1}")
    e.i(f"s_add_u32 s{T}, s{T}, {WS_XT}")
    e.i(f"s_add_u32 s{T+1}, s{T}, {8*4096}")
    swbar(e)
    for it2 in range(2):
        for jj in range(2):
            e.i(f"ds_read_b64_tr_b16 {vr(76+4*it2+2*jj,2)}, v3 offset:{(32*it2+4*jj)*144}")
    e.i("s_waitcnt lgkmcnt(2)")
    e.i(f"ds_write_b128 v16, {vr(76,4)}")
    e.i("s_waitcnt lgkmcnt(1)")
    e.i(f"ds_write_b128 v16, {vr(80,4)} offset:64")
    e.i("s_waitcnt lgkmcnt(0)")
    e.i(f"ds_read_b128 {vr(84,4)}, v17")
    e.i(f"ds_read_b128 {vr(88,4)}, v17 offset:{8*144}")
    e.i("s_waitcnt lgkmcnt(1)")
    e.i(f"buffer_store_dwordx4 {vr(84,4)}, v18, {rs(R_WS)}, s{T} offen sc1")
    e.i("s_waitcnt lgkmcnt(0)")
    e.i(f"buffer_store_dwordx4 {vr(88,4)}, v18, {rs(R_WS)}, s{T+1} offen sc1")

V_NONCE = 240
def nonce_early(e, cfg):
    e.i(f"v_mov_b32 v{V_NONCE+2}, 0")
    e.i(f"buffer_load_dwordx2 v[{V_NONCE}:{V_NONCE+1}], v{V_NONCE+2}, {rs(R_DBG)}, 0 offen sc1")

def get_nonce(e, cfg):
    e.c("fetch nonce (early load, else poll d_debug)")
    e.i(f"v_readfirstlane_b32 s{S_NONCE}, v{V_NONCE}")
    e.i(f"v_readfirstlane_b32 s{S_NONCE+1}, v{V_NONCE+1}")
    e.i("s_nop 3")
    e.i(f"s_or_b32 s{S_T0}, s{S_NONCE}, s{S_NONCE+1}")
    e.i(f"s_cbranch_scc1 L_nonce_done{ROLE[0]}")
    e.i(f"s_mov_b32 s{S_IT}, 0x40000")
    e.label(f"L_nonce{ROLE[0]}")
    e.i(f"buffer_load_dwordx2 v[{V_NONCE}:{V_NONCE+1}], v{V_NONCE+2}, {rs(R_DBG)}, 0 offen sc1")
    e.i("s_waitcnt vmcnt(0)")
    e.i(f"v_readfirstlane_b32 s{S_NONCE}, v{V_NONCE}")
    e.i(f"v_readfirstlane_b32 s{S_NONCE+1}, v{V_NONCE+1}")
    e.i("s_nop 3")
    e.i(f"s_or_b32 s{S_T0}, s{S_NONCE}, s{S_NONCE+1}")
    e.i(f"s_cbranch_scc1 L_nonce_done{ROLE[0]}")
    e.i(f"s_sub_u32 s{S_IT}, s{S_IT}, 1")
    e.i(f"s_cbranch_scc1 L_nonce_done{ROLE[0]}")
    e.i("s_sleep 2")
    e.i(f"s_branch L_nonce{ROLE[0]}")
    e.label(f"L_nonce_done{ROLE[0]}")

def publish(e, cfg, arr, idx_lines, tmp=4):
    T = S_T0
    for ln in idx_lines: e.i(ln)
    e.i(f"s_lshl_b32 s{T}, s{T}, 2")
    e.i(f"s_add_u32 s{T}, s{T}, s{S_W}")
    e.i(f"s_lshl_b32 s{T}, s{T}, {FL_SH}")
    e.i(f"s_add_u32 s{T}, s{T}, {WS_FL + arr}")
    e.i(f"v_mov_b32 v{tmp}, s{S_NONCE}")
    e.i(f"v_mov_b32 v{tmp+1}, s{S_NONCE+1}")
    e.i(f"v_mov_b32 v{tmp+2}, 0")
    e.i("s_mov_b64 exec, 1")
    e.i(f"buffer_store_dwordx2 v[{tmp}:{tmp+1}], v{tmp+2}, {rs(R_WS)}, s{T} offen sc1")
    e.i("s_mov_b64 exec, -1")

def poll(e, cfg, arr, vidx, tag, tmp=4, sleep=None, tmp2=244):
    e.c(f"poll {tag}")
    e.i(f"v_lshlrev_b32 v{vidx}, {FL_SH}, v{vidx}")
    e.i(f"v_add_u32 v{vidx}, {WS_FL + arr}, v{vidx}")
    if cfg.nosync: return
    e.i(f"s_mov_b32 s{S_IT}, 0x40000")
    if cfg.poll2 and ROLE[0] == "B":
        e.i(f"buffer_load_dwordx2 v[{tmp}:{tmp+1}], v{vidx}, {rs(R_WS)}, 0 offen sc1")
        e.label(f"L_poll_{tag}")
        e.i(f"s_sleep 1")
        e.i(f"buffer_load_dwordx2 v[{tmp2}:{tmp2+1}], v{vidx}, {rs(R_WS)}, 0 offen sc1")
        e.i("s_waitcnt vmcnt(1)")
        e.i(f"v_cmp_ne_u64 vcc, s[{S_NONCE}:{S_NONCE+1}], v[{tmp}:{tmp+1}]")
        e.i(f"s_cbranch_vccz L_poll_done_{tag}")
        e.i(f"s_sleep 1")
        e.i(f"buffer_load_dwordx2 v[{tmp}:{tmp+1}], v{vidx}, {rs(R_WS)}, 0 offen sc1")
        e.i("s_waitcnt vmcnt(1)")
        e.i(f"v_cmp_ne_u64 vcc, s[{S_NONCE}:{S_NONCE+1}], v[{tmp2}:{tmp2+1}]")
        e.i(f"s_cbranch_vccz L_poll_done_{tag}")
        e.i(f"s_sub_u32 s{S_IT}, s{S_IT}, 1")
        e.i(f"s_cbranch_scc0 L_poll_{tag}")
    else:
        e.label(f"L_poll_{tag}")
        e.i(f"buffer_load_dwordx2 v[{tmp}:{tmp+1}], v{vidx}, {rs(R_WS)}, 0 offen sc1")
        e.i("s_waitcnt vmcnt(0)")
        e.i(f"v_cmp_ne_u64 vcc, s[{S_NONCE}:{S_NONCE+1}], v[{tmp}:{tmp+1}]")
        e.i(f"s_cbranch_vccz L_poll_done_{tag}")
        e.i(f"s_sub_u32 s{S_IT}, s{S_IT}, 1")
        e.i(f"s_cbranch_scc1 L_poll_done_{tag}")
        e.i(f"s_sleep {sleep if sleep is not None else (cfg.bsleep if ROLE[0] == 'B' else 3)}")
        e.i(f"s_branch L_poll_{tag}")
    e.label(f"L_poll_done_{tag}")

ACCQ, ACCK, ACCV = 224, 128, 144
XK = 16
WF = 176
V_WTR = 208
V_WQ = 220
V_XR = 212
KVB = 160
def b1_traddr(e, cfg):
    T = S_T0
    e.c("B1 lds read addresses")
    e.i(f"v_lshrrev_b32 v3, 5, v{V_LANE}")
    e.i(f"v_lshlrev_b32 v4, 3, v3")
    e.i(f"v_bfe_u32 v13, v{V_LANE}, 2, 2")
    e.i(f"v_add_u32 v4, v4, v13")
    e.i(f"v_bfe_u32 v5, v{V_LANE}, 4, 1")
    e.i(f"v_and_b32 v6, 3, v{V_LANE}")
    e.i(f"v_lshlrev_b32 v14, 6, v4")
    e.i(f"v_lshl_add_u32 v14, v5, 5, v14")
    e.i(f"v_lshl_add_u32 v14, v6, 3, v14")
    e.i(f"v_add_u32 v{V_WQ}, {L_WQ}, v14")
    e.i(f"v_lshlrev_b32 v14, 7, v4")
    e.i(f"v_lshl_add_u32 v14, v5, 5, v14")
    e.i(f"v_add_u32 v14, 16384, v14")
    e.i(f"v_bfe_u32 v15, v13, 1, 1")
    e.i(f"v_lshlrev_b32 v7, 6, v15")
    e.i(f"v_add_u32 v7, v7, v14")
    e.i(f"v_lshl_add_u32 v{V_WTR}, v6, 3, v7")
    e.i(f"v_xor_b32 v15, 1, v15")
    e.i(f"v_lshlrev_b32 v7, 6, v15")
    e.i(f"v_add_u32 v7, v7, v14")
    e.i(f"v_and_b32 v15, 1, v6")
    e.i(f"v_lshl_add_u32 v7, v15, 4, v7")
    e.i(f"v_lshrrev_b32 v15, 1, v6")
    e.i(f"v_lshl_add_u32 v{V_WTR+1}, v15, 3, v7")
    e.i(f"v_and_b32 v13, 31, v{V_LANE}")
    e.i(f"v_bfe_u32 v14, v{V_LANE}, 1, 3")
    e.i(f"v_xor_b32 v14, v14, v3")
    e.i(f"v_lshlrev_b32 v14, 4, v14")
    e.i(f"v_lshl_add_u32 v14, v13, 7, v14")
    e.i(f"s_lshl_b32 s{T}, s{S_W}, 12")
    e.i(f"v_add_u32 v{V_XR}, s{T}, v14")
    for n in range(1, 4):
        e.i(f"v_xor_b32 v{V_XR+n}, {32*n}, v{V_XR}")

def b1_reads(e, p, n):
    s = WF + 8 * (n & 1)
    e.i(f"ds_read_b128 {vr(XK+4*(4*p+n),4)}, v{V_XR+4+n}")
    for j in range(2):
        e.i(f"ds_read_b64_tr_b16 {vr(s+2*j,2)}, v{V_WTR+2} offset:{n*2048 + j*512}")
    for j in range(2):
        e.i(f"ds_read_b64_tr_b16 {vr(s+4+2*j,2)}, v{V_WTR+3} offset:{n*2048 + j*512}")

def b1_mfma(e, p, n):
    s = WF + 8 * (n & 1)
    x = vr(XK+4*(4*p+n), 4)
    first = (p == 0 and n == 0)
    e.i(f"v_mfma_f32_32x32x16_bf16 {vr(ACCK,16)}, {vr(s,4)}, {x}, {'0' if first else vr(ACCK,16)}")
    e.i(f"v_mfma_f32_32x32x16_bf16 {vr(ACCV,16)}, {x}, {vr(s+4,4)}, {'0' if first else vr(ACCV,16)}")

def b1_addr_slot(e):
    for n in range(4):
        e.i(f"v_add_u32 v{V_XR+4+n}, s{S_SLC}, v{V_XR+n}")
    e.i(f"v_add_u32 v{V_WTR+2}, s{S_SLC}, v{V_WTR}")
    e.i(f"v_add_u32 v{V_WTR+3}, s{S_SLC}, v{V_WTR+1}")
    e.i(f"s_add_u32 s{S_SLC}, s{S_SLC}, {SLOT}")
    e.i(f"s_cmp_eq_u32 s{S_SLC}, {NSLOT*SLOT + L_RING}")
    e.i(f"s_cselect_b32 s{S_SLC}, {L_RING}, s{S_SLC}")

def b1_body(e, cfg, p, pcs, wait_next):
    a, one, tmp = bar_regs()
    sched = {0: pcs[0:4], 1: pcs[4:], 2: []}
    for n in range(3):
        if n == 2 and wait_next is not None:
            if cfg.fine: stamp(e, cfg, 32 + p)
            e.i(f"s_waitcnt vmcnt({wait_next})")
            if cfg.fine: stamp(e, cfg, 25 + p)
            e.i(f"s_add_u32 s{S_BT}, s{S_BT}, 4")
            sw_arrive(e)
        b1_reads(e, p, n + 1)
        e.i("s_waitcnt lgkmcnt(5)")
        b1_mfma(e, p, n)
        for pc in sched.get(n, []):
            for ln in pc: e.i(ln)
    if wait_next is not None:
        sw_wait(e, a, target_sgpr=S_BT)
        if cfg.fine: stamp(e, cfg, 52 + p)
        b1_addr_slot(e)
        b1_reads(e, p + 1, 0)
    else:
        e.i("s_waitcnt lgkmcnt(0)")
    b1_mfma(e, p, 3)

def b1_loop(e, cfg):
    e.i(f"s_mov_b32 s{S_SLC}, {L_RING}")
    e.i(f"s_waitcnt vmcnt({6 + 1})")
    swbar(e)
    b1_addr_slot(e)
    b1_reads(e, 0, 0)
    waits = [7, 6, 6, 6, 6, 7, None]
    for p in range(7):
        if p <= 4: pcs = b1_issue_pieces()
        elif p == 5: pcs = wq_issue_pieces()
        else: pcs = []
        b1_body(e, cfg, p, pcs, waits[p])
        if p == 3: stamp(e, cfg, 24)

def b1_q(e, cfg, mid=None, midk=16):
    NB = 4
    def rd(k):
        p, n = divmod(k, 4)
        b = WF + 4 * (k % NB)
        for j in range(2):
            e.i(f"ds_read_b64_tr_b16 {vr(b+2*j,2)}, v{V_WQ} offset:{p*4096 + n*1024 + j*256}")
    for k in range(NB - 1): rd(k)
    for k in range(28):
        if k + NB - 1 < 28: rd(k + NB - 1)
        e.i(f"s_waitcnt lgkmcnt({2 * min(NB - 1, 27 - k)})")
        b = WF + 4 * (k % NB)
        e.i(f"v_mfma_f32_32x32x16_bf16 {vr(ACCQ,16)}, {vr(b,4)}, {vr(XK+4*k,4)}, {'0' if k == 0 else vr(ACCQ,16)}")
        if mid is not None and k == midk: mid()

def b1_epilogue_kv(e, cfg):
    T = S_T0
    e.c("B1 epilogue (K, V)")
    e.i(f"s_mov_b32 s{S_MHH}, 0")
    e.i(f"s_mov_b32 s{S_MHH+1}, -1")
    m = (1 << 0) | (1 << 4) | (1 << 16) | (1 << 20)
    e.i(f"s_mov_b32 s{S_MONE}, {m}")
    e.i(f"s_mov_b32 s{S_MONE+1}, {m}")
    e.i(f"v_mov_b32 v14, 0x3f803f80")
    e.i(f"s_lshl_b32 s{T}, s{S_H}, 18")
    e.i(f"s_lshl_b32 s{T+1}, s{S_R}, 2")
    e.i(f"s_add_u32 s{T+1}, s{T+1}, s{S_W}")
    e.i(f"s_lshl_b32 s{T+1}, s{T+1}, 12")
    e.i(f"s_add_u32 s{T}, s{T}, s{T+1}")
    if WS_KV: e.i(f"s_add_u32 s{T}, s{T}, {WS_KV}")
    e.i("s_nop 4")
    for m_ in range(8):
        e.i(f"v_cvt_pk_bf16_f32 v{KVB+m_}, v{ACCK+2*m_}, v{ACCK+2*m_+1}")
    for m_ in (6, 7):
        e.i(f"v_cndmask_b32 v{KVB+m_}, v{KVB+m_}, v14, s[{S_MHH}:{S_MHH+1}]")
    for m_ in range(8):
        e.i(f"v_cvt_pk_bf16_f32 v{KVB+8+m_}, v{ACCV+2*m_}, v{ACCV+2*m_+1}")
    for f in range(2):
        e.i(f"buffer_store_dwordx4 {vr(KVB+4*f,4)}, v{V_L16}, {rs(R_WS)}, s{T} offen offset:{1024*f} sc1")
    for m_ in range(8):
        e.i(f"v_cndmask_b32 v{KVB+8+m_}, v{KVB+8+m_}, v14, s[{S_MONE}:{S_MONE+1}]")
    for f in range(2, 4):
        e.i(f"buffer_store_dwordx4 {vr(KVB+4*f,4)}, v{V_L16}, {rs(R_WS)}, s{T} offen offset:{1024*f} sc1")
    if cfg.tags:
        for i in range(4): e.i(f"v_mov_b32 v{4+i}, 0")
        o_addr(e)
        e.i(f"buffer_store_dwordx4 v[4:7], v{V_L16}, {rs(R_WS)}, s{S_OA} offen sc1")
        e.i(f"buffer_store_dwordx4 v[4:7], v{V_L16}, {rs(R_WS)}, s{S_OA} offen offset:1024 sc1")

S_OA = 75
def o_addr(e):
    T = S_T0
    e.i(f"s_lshl_b32 s{T}, s{S_R}, 2")
    e.i(f"s_add_u32 s{T}, s{T}, s{S_W}")
    e.i(f"s_lshl_b32 s{T}, s{T}, 4")
    e.i(f"s_add_u32 s{T}, s{T}, s{S_H}")
    e.i(f"s_lshl_b32 s{T}, s{T}, 11")
    e.i(f"s_add_u32 s{S_OA}, s{T}, {WS_OF}")

def b1_epilogue_q(e, cfg):
    T = S_T0
    e.i(f"s_mov_b32 s{T+2}, {f2u(QSCALE)}")
    e.i(f"s_lshl_b32 s{T+1}, s{S_W}, 11")
    e.i(f"s_add_u32 s{T+1}, s{T+1}, {L_Q}")
    e.i(f"v_add_u32 v3, s{T+1}, v{V_L16}")
    e.i("s_nop 7")
    e.i("s_nop 1")
    QP = 16
    for i in range(16):
        e.i(f"v_mul_f32 v{ACCQ+i}, s{T+2}, v{ACCQ+i}")
    for m_ in range(8):
        e.i(f"v_cvt_pk_bf16_f32 v{QP+m_}, v{ACCQ+2*m_}, v{ACCQ+2*m_+1}")
    for m_ in (6, 7):
        e.i(f"v_cndmask_b32 v{QP+m_}, v{QP+m_}, 0, s[{S_MHH}:{S_MHH+1}]")
    e.i(f"ds_write_b128 v3, {vr(QP,4)}")
    e.i(f"ds_write_b128 v3, {vr(QP+4,4)} offset:1024")

def a2_dload(e, cfg):
    e.i(f"s_min_u32 s{S_T0}, s2, 223")
    e.i(f"s_lshl_b32 s{S_T0}, s{S_T0}, 2")
    e.i(f"s_load_dword s{S_D2}, s[{S_DP}:{S_DP+1}], s{S_T0}")

def a2_hstage(e, cfg):
    T = S_T0
    e.c("A2: stage h into LDS (with h0 += D), zero pads")
    e.i(f"s_lshr_b32 s{T}, s{S_W}, 1")
    e.i(f"s_lshl_b32 s{T+1}, s{S_D2}, 16")
    e.i(f"s_and_b32 s{T+2}, s{S_D2}, 0xffff0000")
    e.i(f"s_cmp_eq_u32 s{T}, 0")
    e.i(f"s_cselect_b32 s{T+1}, s{T+1}, s{T+2}")
    e.i(f"v_lshlrev_b32 v3, 16, v{HREG}")
    e.i(f"v_add_f32 v3, s{T+1}, v3")
    e.i(f"v_cvt_pk_bf16_f32 v3, v3, v3")
    e.i(f"s_mov_b32 s{T+2}, 0xffff")
    e.i(f"v_bfi_b32 v3, s{T+2}, v3, v{HREG}")
    e.i(f"s_and_b32 s{T+2}, s{S_W}, 1")
    e.i(f"s_xor_b32 s{T+4}, s{T+2}, 1")
    e.i(f"s_mov_b32 s{T+5}, 0")
    e.i(f"v_cndmask_b32 v{HREG}, v{HREG}, v3, s[{T+4}:{T+5}]")
    e.i(f"s_mul_i32 s{T+1}, s{T}, {H_CH}")
    e.i(f"s_add_u32 s{T+1}, s{T+1}, {L_H}")
    e.i(f"v_add_u32 v13, s{T+1}, v{V_L16}")
    e.i(f"s_lshl_b32 s{T+2}, s{T+2}, 11")
    e.i(f"s_add_u32 s{T+2}, s{T+2}, 64")
    e.i(f"v_add_u32 v3, s{T+2}, v13")
    e.i(f"ds_write_b128 v3, {vr(HREG,4)}")
    e.i(f"ds_write_b128 v3, {vr(HREG+4,4)} offset:1024")
    for i in range(4): e.i(f"v_mov_b32 v{76+i}, 0")
    e.i(f"s_mul_i32 s{T+1}, s{T}, {X_CH}")
    e.i(f"s_add_u32 s{T+1}, s{T+1}, {L_X}")
    e.i(f"v_add_u32 v14, s{T+1}, v{V_L16}")
    e.i(f"s_mov_b64 exec, 0xf")
    e.i(f"ds_write_b128 v13, {vr(76,4)}")
    e.i(f"s_mov_b32 exec_lo, -1")
    e.i(f"s_mov_b32 exec_hi, 0xf")
    e.i(f"ds_write_b128 v14, {vr(76,4)}")
    e.i(f"s_mov_b64 exec, -1")

CACC = 64
XFR = 128
HR = 16
V_HA = 48
V_XA = 49
QPF = 40
V_A3OFF = 56
def a3_qaddr(e, cfg):
    T = S_T0
    e.c("A3 addresses: row = 64 rb + 16 w + 8 it + (l>>3), piece l&7")
    e.i(f"s_lshl_b32 s{T}, s{S_RB}, 6")
    e.i(f"s_lshl_b32 s{T+1}, s{S_W}, 4")
    e.i(f"s_add_u32 s{T}, s{T}, s{T+1}")
    e.i(f"s_mul_i32 s{T+1}, s{T}, 896")
    e.i(f"s_mul_i32 s{T+2}, s{T}, 1792")
    e.i(f"s_lshl_b32 s{T+3}, s{S_CB}, 7")
    e.i(f"s_add_u32 s{T+1}, s{T+1}, s{T+3}")
    e.i(f"s_add_u32 s{T+2}, s{T+2}, s{T+3}")
    e.i(f"v_lshrrev_b32 v3, 3, v{V_LANE}")
    e.i(f"v_and_b32 v13, 7, v{V_LANE}")
    e.i(f"v_lshlrev_b32 v13, 4, v13")
    e.i(f"v_mul_u32_u24 v14, 896, v3")
    e.i(f"v_add3_u32 v{V_A3OFF}, v14, v13, s{T+1}")
    e.i(f"v_mul_u32_u24 v14, 1792, v3")
    e.i(f"v_add3_u32 v{V_A3OFF+1}, v14, v13, s{T+2}")

V_WO = 58
def wo_addr(e, cfg):
    T = S_T0
    e.i(f"v_lshrrev_b32 v3, 3, v{V_LANE}")
    e.i(f"v_mul_u32_u24 v3, 896, v3")
    e.i(f"v_bfe_u32 v13, v{V_LANE}, 2, 1")
    e.i(f"v_bfe_u32 v14, v{V_LANE}, 4, 1")
    e.i(f"v_xor_b32 v13, v13, v14")
    e.i(f"v_lshlrev_b32 v13, 6, v13")
    e.i(f"v_and_b32 v14, 3, v{V_LANE}")
    e.i(f"v_lshlrev_b32 v14, 4, v14")
    e.i(f"v_add3_u32 v3, v3, v13, v14")
    e.i(f"s_lshl_b32 s{T}, s{S_CB}, 7")
    e.i(f"v_add_u32 v{V_WO}, s{T}, v3")

def wo_first(e, cfg):
    T = S_T0
    e.i(f"s_cmp_eq_u32 s{S_W}, 0")
    e.i(f"s_cselect_b32 s{T+2}, 896, 0")
    e.i(f"v_subrev_u32 v4, s{T+2}, v{V_WO}")
    e.i(f"s_mul_i32 s{T+1}, s{S_W}, 7168")
    e.i(f"s_sub_u32 s{T+1}, s{T+1}, 896")
    e.i(f"s_max_i32 s{T+1}, s{T+1}, 0")
    e.i(f"s_lshl_b32 s{T}, s{S_W}, 10")
    e.i(f"s_add_u32 m0, s{T}, {L_WO}")
    e.i("s_nop 0")
    e.i(f"buffer_load_dwordx4 v4, {rs(R_WO)}, s{T+1} offen lds")
    e.i(f"s_mov_b32 m0, {L_WO + 56*1024}")
    e.i(f"s_mov_b32 s{T+1}, {56*7168 - 896}")
    e.i(f"buffer_load_dwordx4 v{V_WO}, {rs(R_WO)}, s{T+1} offen lds")
    e.i(f"s_lshl_b32 s81, s{S_W}, 10")
    e.i(f"s_add_u32 s81, s81, {L_WO}")
    e.i(f"s_mul_i32 s87, s{S_W}, 7168")
    e.i(f"s_sub_u32 s87, s87, 896")

S_WOM, S_WOS = 81, 87
def wo_next(e):
    e.i(f"s_add_u32 s{S_WOM}, s{S_WOM}, 4096")
    e.i(f"s_add_u32 s{S_WOS}, s{S_WOS}, {4*7168}")
    e.i(f"s_mov_b32 m0, s{S_WOM}")
    e.i("s_nop 0")
    e.i(f"buffer_load_dwordx4 v{V_WO}, {rs(R_WO)}, s{S_WOS} offen lds")

def a2_main(e, cfg):
    T = S_T0
    e.c("==== A2 conv ====")
    e.i(f"s_lshl_b32 s{T}, s2, 1")
    e.i(f"s_bfe_u32 s{T}, s{T}, 0x20004")
    e.i(f"s_lshl_b32 s{T+1}, s{S_CB}, 5")
    e.i(f"s_and_b32 s{T+2}, s{S_W}, 1")
    e.i(f"s_lshl_b32 s{T+2}, s{T+2}, 4")
    e.i(f"s_add_u32 s{T+1}, s{T+1}, s{T+2}")
    e.i(f"s_lshl_b32 s{T+1}, s{T+1}, 2")
    e.i(f"s_add_u32 s{T}, s{T}, s{T+1}")
    e.i(f"v_and_b32 v7, 15, v{V_LANE}")
    e.i(f"v_lshlrev_b32 v7, 2, v7")
    e.i(f"v_add_u32 v7, s{T}, v7")
    poll(e, cfg, FL_A1, 7, "a1")
    stamp(e, cfg, 6)
    e.i(f"s_lshr_b32 s{T}, s{S_W}, 1")
    e.i(f"s_lshl_b32 s{T+1}, s2, 1")
    e.i(f"s_add_u32 s{T+1}, s{T}, s{T+1}")
    e.i(f"s_lshl_b32 s{T+1}, s{T+1}, 12")
    e.i(f"s_and_b32 s{T+2}, s{S_W}, 1")
    e.i(f"s_lshl_b32 s{T+3}, s{T+2}, 11")
    e.i(f"s_add_u32 s{T+1}, s{T+1}, s{T+3}")
    e.i(f"s_add_u32 s{T+1}, s{T+1}, {WS_XT}")
    e.i(f"buffer_load_dwordx4 v[16:19], v{V_L16}, {rs(R_WS)}, s{T+1} offen sc1")
    e.i(f"buffer_load_dwordx4 v[20:23], v{V_L16}, {rs(R_WS)}, s{T+1} offen offset:1024 sc1")
    e.i(f"s_lshr_b32 s{T}, s{S_W}, 1")
    e.i(f"s_and_b32 s{T+2}, s{S_W}, 1")
    e.i(f"s_mul_i32 s{T+1}, s{T}, {X_CH}")
    e.i(f"s_mul_i32 s{T+3}, s{T+2}, {2048+256}")
    e.i(f"s_add_u32 s{T+1}, s{T+1}, s{T+3}")
    e.i(f"s_add_u32 s{T+1}, s{T+1}, {L_X + 512 + 64}")
    e.i(f"v_lshrrev_b32 v3, 4, v{V_LANE}")
    e.i(f"v_lshlrev_b32 v3, 5, v3")
    e.i(f"v_add3_u32 v3, v3, v{V_L16}, s{T+1}")
    e.i(f"v_bfe_u32 v8, v{V_LANE}, 4, 1")
    e.i(f"v_lshrrev_b32 v9, 5, v{V_LANE}")
    e.i(f"v_bfe_u32 v10, v{V_LANE}, 2, 2")
    e.i(f"v_and_b32 v11, 3, v{V_LANE}")
    e.i(f"v_lshlrev_b32 v12, 2, v8")
    e.i(f"v_add_u32 v12, v12, v11")
    e.i(f"v_lshl_add_u32 v13, v9, 3, v12")
    e.i(f"v_add_u32 v13, v13, v10")
    e.i(f"s_mul_i32 s{T+1}, s{T}, {H_CH}")
    e.i(f"s_add_u32 s{T+1}, s{T+1}, {L_H + 64 - 56}")
    e.i(f"v_lshlrev_b32 v13, 3, v13")
    e.i(f"v_add_u32 v{V_HA}, s{T+1}, v13")
    e.i(f"v_sub_u32 v12, v12, v9")
    e.i(f"v_lshlrev_b32 v12, 5, v12")
    e.i(f"v_lshlrev_b32 v10, 2, v10")
    e.i(f"v_sub_u32 v12, v12, v10")
    e.i(f"v_add_u32 v12, 28, v12")
    e.i(f"s_mul_i32 s{T+1}, s{T}, {X_CH}")
    e.i(f"s_add_u32 s{T+1}, s{T+1}, {L_X}")
    for par in range(2):
        for j in range(2):
            d = V_XA + 2*par + j
            e.i(f"v_add_u32 v13, {64*par - 16*j}, v12")
            e.i(f"v_ashrrev_i32 v14, 7, v13")
            e.i(f"v_lshlrev_b32 v14, 5, v14")
            e.i(f"v_lshl_add_u32 v13, v13, 1, v14")
            e.i(f"v_add_u32 v{d}, s{T+1}, v13")
    e.i("s_waitcnt vmcnt(0)")
    e.i(f"ds_write_b128 v3, v[16:19]")
    e.i(f"ds_write_b128 v3, v[20:23] offset:{1024+128}")
    swbar(e)
    stamp(e, cfg, 7)
    e.i(f"s_and_b32 s{T}, s{S_W}, 1")
    e.i(f"s_cmp_eq_u32 s{T}, 0")
    e.i("s_cbranch_scc0 L_conv_setB")
    conv_set(e, [0, 1, 6, 7])
    e.i("s_branch L_conv_post")
    e.label("L_conv_setB")
    conv_set(e, [2, 3, 4, 5])
    e.label("L_conv_post")
    stamp(e, cfg, 8)
    conv_post(e, cfg)

def conv_set(e, tiles):
    nmax = 4 * max(tiles) + 3
    steps = [[(t, T) for t, T in enumerate(tiles) if n <= 4*T + 3] for n in range(nmax + 1)]
    reads = []
    loaded = set()
    need_idx = []
    for n in range(nmax + 1):
        for j in range(2):
            reads.append((("H", n), f"ds_read_b64_tr_b16 {vr(HR+4*(n%8)+2*j,2)}, v{V_HA} offset:{128*n + 32*j}"))
        for t, T in steps[n]:
            v = 4*T - n
            if v in loaded: continue
            loaded.add(v)
            vp = v + 4
            q, par = vp >> 1, vp & 1
            for j in range(2):
                reads.append((("X", v), f"ds_read_b64_tr_b16 {vr(XFR+4*(vp-1)+2*j,2)}, v{V_XA+2*par+j} offset:{288*q}"))
        need_idx.append(len(reads) - 1)
    AHEAD = 14
    issued = 0
    first = {t: True for t in range(4)}
    for n in range(nmax + 1):
        target = min(len(reads), need_idx[n] + 1 + AHEAD)
        while issued < target:
            tag = reads[issued][0]
            if tag[0] == "H" and tag[1] > n + 7: break
            e.i(reads[issued][1]); issued += 1
        assert issued > need_idx[n]
        younger = issued - 1 - need_idx[n]
        e.i(f"s_waitcnt lgkmcnt({min(younger, 15)})")
        for t, T in steps[n]:
            vp = 4*T - n + 4
            acc = vr(CACC + 16*t, 16)
            c = "0" if first[t] else acc
            first[t] = False
            e.i(f"v_mfma_f32_32x32x16_bf16 {acc}, {vr(XFR+4*(vp-1),4)}, {vr(HR+4*(n%8),4)}, {c}")
    for t, T in enumerate(tiles):
        e.i(f"s_mov_b32 s{S_T1+t}, {T}")

def conv_post(e, cfg):
    T = S_T0
    e.i(f"s_mov_b32 s{S63}, 0")
    e.i(f"s_mov_b32 s{S63+1}, 0x80000000")
    e.i(f"s_lshr_b32 s{T}, s{S_W}, 1")
    e.i(f"s_mul_i32 s{T}, s{T}, 144")
    e.i(f"s_add_u32 s{T}, s{T}, {L_CARRY}")
    for t in range(4):
        e.i(f"s_lshl_b32 s{T+1}, s{S_T1+t}, 4")
        e.i(f"s_add_u32 s{T+1}, s{T+1}, s{T}")
        e.i(f"v_mov_b32 v{136+t}, s{T+1}")
    e.i(f"v_mov_b32 v140, s{T}")
    e.i("v_mov_b32 v141, 0")
    e.i("s_nop 1")
    R = lambda t, g, i: CACC + 16*t + 4*g + i
    EX = 128
    for t in range(4):
        e.i(f"v_add_f32_dpp v{EX+t}, v{R(t,3,3)}, v{R(t,3,2)} wave_ror:1 row_mask:0xf bank_mask:0xf")
    e.i("s_nop 0")
    for t in range(4):
        e.i(f"v_add_f32_dpp v{EX+4+t}, v{EX+t}, v{R(t,3,1)} wave_ror:1 row_mask:0xf bank_mask:0xf")
    e.i(f"s_mov_b64 exec, s[{S63}:{S63+1}]")
    for t in range(4):
        e.i(f"ds_write_b32 v{136+t}, v{R(t,3,3)} offset:16")
        e.i(f"ds_write_b32 v{136+t}, v{EX+t} offset:20")
        e.i(f"ds_write_b32 v{136+t}, v{EX+4+t} offset:24")
    e.i("ds_write_b32 v140, v141")
    e.i("ds_write_b32 v140, v141 offset:4")
    e.i("ds_write_b32 v140, v141 offset:8")
    e.i("s_mov_b64 exec, -1")
    swbar(e)
    PU, P1, P2 = 144, 148, 152
    for t in range(4):
        e.i(f"ds_read_b32 v{PU+t}, v{136+t}")
        e.i(f"ds_read_b32 v{P1+t}, v{136+t} offset:4")
        e.i(f"ds_read_b32 v{P2+t}, v{136+t} offset:8")
    e.i(f"s_lshr_b32 s{T}, s{S_W}, 1")
    e.i(f"s_mul_i32 s{T}, s{T}, {X_CH}")
    e.i(f"s_add_u32 s{T}, s{T}, {L_Y}")
    e.i(f"v_lshlrev_b32 v3, 1, v{V_LANE}")
    for t in range(4):
        e.i(f"s_lshl_b32 s{T+1}, s{S_T1+t}, 9")
        e.i(f"s_add_u32 s{T+1}, s{T+1}, s{T}")
        e.i(f"v_add_u32 v{140+t}, s{T+1}, v3")
    e.i("s_waitcnt lgkmcnt(0)")
    SEL = 156
    m63 = f"s[{S63}:{S63+1}]"
    prevU = [PU+t for t in range(4)]
    prev1 = [P1+t for t in range(4)]
    prev2 = [P2+t for t in range(4)]
    for g in range(4):
        cur1 = [160 + 4*(g & 1) + t for t in range(4)]
        cur2 = [168 + 4*(g & 1) + t for t in range(4)]
        for t in range(4):
            e.i(f"v_cndmask_b32 v{SEL+t}, v{R(t,g,3)}, v{prevU[t]}, {m63}")
        for t in range(4):
            e.i(f"v_add_f32_dpp v{cur1[t]}, v{SEL+t}, v{R(t,g,2)} wave_ror:1 row_mask:0xf bank_mask:0xf")
        for t in range(4):
            e.i(f"v_cndmask_b32 v{SEL+t}, v{cur1[t]}, v{prev1[t]}, {m63}")
        for t in range(4):
            e.i(f"v_add_f32_dpp v{cur2[t]}, v{SEL+t}, v{R(t,g,1)} wave_ror:1 row_mask:0xf bank_mask:0xf")
        for t in range(4):
            e.i(f"v_cndmask_b32 v{SEL+t}, v{cur2[t]}, v{prev2[t]}, {m63}")
        for t in range(4):
            e.i(f"v_add_f32_dpp v{R(t,g,0)}, v{SEL+t}, v{R(t,g,0)} wave_ror:1 row_mask:0xf bank_mask:0xf")
        prevU = [R(t,g,3) for t in range(4)]
        prev1 = cur1
        prev2 = cur2
        if g & 1:
            gp = g >> 1
            for t in range(4):
                e.i(f"v_cvt_pk_bf16_f32 v{128+2*t+gp}, v{R(t,g-1,0)}, v{R(t,g,0)}")
            for t in range(4):
                e.i(f"ds_write_b16 v{140+t}, v{128+2*t+gp} offset:{256*gp}")
                e.i(f"ds_write_b16_d16_hi v{140+t}, v{128+2*t+gp} offset:{256*gp+128}")
    e.i(f"s_lshr_b32 s{T+2}, s{S_W}, 1")
    e.i(f"s_lshl_b32 s{T+3}, s2, 1")
    e.i(f"s_add_u32 s{T+3}, s{T+3}, s{T+2}")
    e.i(f"s_lshl_b32 s{T+3}, s{T+3}, 12")
    e.i(f"s_add_u32 s{T+3}, s{T+3}, {WS_YT}")
    for pz in range(2):
        e.i(f"s_lshl_b32 s{T+1}, s{S_T1+2*pz}, 9")
        e.i(f"s_add_u32 s{T+4+pz}, s{T+1}, s{T+3}")
        e.i(f"s_add_u32 s{T+1}, s{T+1}, s{T}")
        e.i(f"v_add_u32 v{144+pz}, s{T+1}, v{V_L16}")
    e.i("s_waitcnt lgkmcnt(0)")
    for pz in range(2):
        e.i(f"ds_read_b128 {vr(160+4*pz,4)}, v{144+pz}")
    e.i("s_waitcnt lgkmcnt(1)")
    e.i(f"buffer_store_dwordx4 {vr(160,4)}, v{V_L16}, {rs(R_WS)}, s{T+4} offen sc1")
    e.i("s_waitcnt lgkmcnt(0)")
    e.i(f"buffer_store_dwordx4 {vr(164,4)}, v{V_L16}, {rs(R_WS)}, s{T+5} offen sc1")

SB = [16, 32]
PB = [48, 56]
OB = 64
QB = 128
def kvbuf(b): return KVB + 16 * (b & 3)

V_KVO = 235
def kv_load(e, b, advance=True):
    if advance:
        e.i(f"s_add_u32 s{S_KV+1}, s{S_KV+1}, 16384")
        e.i(f"s_and_b32 s{S_KV+1}, s{S_KV+1}, 0x3ffff")
    for f in range(4):
        e.i(f"buffer_load_dwordx4 {vr(kvbuf(b)+4*f,4)}, v{V_KVO}, {rs(R_WS)}, s{S_KV+1} offen offset:{1024*f} sc1")

def slot(e, j, s_next, pv, pre=None, loads=None):
    mf = []
    if s_next is not None:
        kb, jn = s_next
        Sx = vr(SB[jn & 1], 16)
        mf.append(f"v_mfma_f32_32x32x16_bf16 {Sx}, {vr(kvbuf(kb),4)}, {vr(QB+8*jn,4)}, 0")
        mf.append(f"v_mfma_f32_32x32x16_bf16 {Sx}, {vr(kvbuf(kb)+4,4)}, {vr(QB+8*jn+4,4)}, {Sx}")
    if pv is not None:
        vb, jp, first = pv
        O = vr(OB + 16*jp, 16)
        P = PB[jp & 1]
        mf.append(f"v_mfma_f32_32x32x16_bf16 {O}, {vr(kvbuf(vb)+8,4)}, {vr(P,4)}, {'0' if first else O}")
        mf.append(f"v_mfma_f32_32x32x16_bf16 {O}, {vr(kvbuf(vb)+12,4)}, {vr(P+4,4)}, {O}")
    groups = []
    if j is not None:
        Sx = SB[j & 1]; P = PB[j & 1]
        for g in range(4):
            gl = [f"v_exp_f32 v{Sx+4*g+i}, v{Sx+4*g+i}" for i in range(4)]
            gl.append(f"v_cvt_pk_bf16_f32 v{P+2*g}, v{Sx+4*g}, v{Sx+4*g+1}")
            gl.append(f"v_cvt_pk_bf16_f32 v{P+2*g+1}, v{Sx+4*g+2}, v{Sx+4*g+3}")
            groups.append(gl)
    if pre:
        for ln in pre: e.i(ln)
    n = max(len(mf), len(groups))
    for k in range(n):
        if k < len(mf): e.i(mf[k])
        if loads is not None and k == 2:
            loads()
        if k < len(groups):
            for ln in groups[k]: e.i(ln)

YL = 24
def b2_main(e, cfg):
    T = S_T0
    e.c("==== B2 attention ====")
    e.i(f"s_lshl_b32 s{T}, s{S_H}, 6")
    e.i(f"s_add_u32 s{T}, s{T}, s{S_W}")
    e.i(f"v_and_b32 v7, 15, v{V_LANE}")
    e.i(f"v_lshlrev_b32 v7, 2, v7")
    e.i(f"v_add_u32 v7, s{T}, v7")
    e.i(f"v_add_u32 v3, {L_Q}, v{V_L16}")
    for j in range(4):
        for f in range(2):
            e.i(f"ds_read_b128 {vr(QB+8*j+4*f,4)}, v3 offset:{2048*j+1024*f}")
    e.i(f"s_lshl_b32 s{S_KV}, s{S_H}, 18")
    e.i(f"s_lshl_b32 s{T}, s{S_W}, 12")
    e.i(f"s_add_u32 s{S_KV}, s{S_KV}, s{T}")
    if WS_KV: e.i(f"s_add_u32 s{S_KV}, s{S_KV}, {WS_KV}")
    e.i(f"v_add_u32 v{V_KVO}, s{S_KV}, v{V_L16}")
    poll(e, cfg, FL_B1, 7, "b1")
    if cfg.nosync: e.i("s_waitcnt vmcnt(0)")
    stamp(e, cfg, 10)
    e.i(f"s_mov_b32 s{S_SLOW}, 0")
    e.label("L_attn_start")
    e.i(f"s_lshl_b32 s{S_KV+1}, s{S_R}, 14")
    kv_load(e, 1); kv_load(e, 2); kv_load(e, 3)
    e.i("s_waitcnt lgkmcnt(0)")
    slot(e, None, (0, 0), None)
    e.i("s_nop 7")
    e.i("s_nop 3")
    slot(e, 0, (0, 1), None)
    slot(e, 1, (0, 2), (0, 0, True))
    slot(e, 2, (0, 3), (0, 1, True))
    slot(e, 3, (1, 0), (0, 2, True), pre=["s_waitcnt vmcnt(8)"])
    slot(e, 0, (1, 1), (0, 3, True))
    e.i(f"s_mov_b32 s{S_IT}, 0")
    e.i(f"s_nop 0") if cfg.shift4 else None
    e.i(f".p2align {cfg.lalign}") if not cfg.shift4 else None
    e.label("L_attn_loop")
    if cfg.stamps:
        e.i(f"{'s_memrealtime' if cfg.realtime else 's_memtime'} s[{S_TS}:{S_TS+1}]")
        e.i(f"s_add_u32 m0, s{S_IT}, 40")
        e.i("s_waitcnt lgkmcnt(0)")
        e.i(f"v_writelane_b32 v250, s{S_TS}, m0")
    for k in range(4):
        i = k + 1
        b, bn = i & 3, (i + 1) & 3
        slot(e, 1, (b, 2), (b, 0, False), loads=lambda: kv_load(e, (i + 3) & 3))
        slot(e, 2, (b, 3), (b, 1, False))
        slot(e, 3, (bn, 0), (b, 2, False), pre=["s_waitcnt vmcnt(8)"] + (["s_nop 0"] if cfg.pad else []))
        slot(e, 0, (bn, 1), (b, 3, False))
        if k == 1:
            e.i(f"s_cmp_eq_u32 s{S_IT}, 3")
            e.i("s_cbranch_scc1 L_attn_tail")
    e.i(f"s_add_u32 s{S_IT}, s{S_IT}, 1")
    e.i("s_branch L_attn_loop")
    e.label("L_attn_tail")
    stamp(e, cfg, 44)
    slot(e, 1, (3, 2), (3, 0, False))
    slot(e, 2, (3, 3), (3, 1, False))
    slot(e, 3, None, (3, 2, False))
    e.i("s_nop 1")
    slot(e, None, None, (3, 3, False))
    stamp(e, cfg, 45)
    e.i("s_waitcnt vmcnt(0)")
    stamp(e, cfg, 11)
    e.i(f"s_mov_b32 s{T}, {f2u(2.0**-60)}")
    e.i(f"s_mov_b32 s{T+1}, {f2u(2.0**60)}")
    e.i(f"s_mov_b64 s[{T+2}:{T+3}], -1")
    for j in range(4):
        e.i(f"v_cmp_le_f32 vcc, s{T}, v{OB+16*j}")
        e.i(f"s_and_b64 s[{T+2}:{T+3}], s[{T+2}:{T+3}], vcc")
        e.i(f"v_cmp_ge_f32 vcc, s{T+1}, v{OB+16*j}")
        e.i(f"s_and_b64 s[{T+2}:{T+3}], s[{T+2}:{T+3}], vcc")
    e.i(f"s_cmp_eq_u64 s[{T+2}:{T+3}], -1")
    e.i(f"s_cselect_b32 s{T}, 0, 1")
    e.i(f"v_mov_b32 v3, s{T}")
    e.i(f"s_lshl_b32 s{T+1}, s{S_W}, 2")
    e.i(f"s_add_u32 s{T+1}, s{T+1}, {L_MISC}")
    e.i(f"v_mov_b32 v4, s{T+1}")
    e.i(f"ds_write_b32 v4, v3")
    for w in range(4):
        if w > 0: e.label(f"L_red_w{w}")
        if w < 3:
            e.i(f"s_cmp_lg_u32 s{S_W}, {w}")
            e.i(f"s_cbranch_scc1 L_red_w{w+1}")
        for j in range(4):
            if j == w: continue
            sl = j * 3 + ((w - j - 1) & 3)
            e.i(f"v_add_u32 v3, {L_RED + sl*4096}, v{V_L16}")
            for q4 in range(4):
                e.i(f"ds_write_b128 v3, {vr(OB+16*j+4*q4,4)} offset:{1024*q4}")
        for k in range(16):
            e.i(f"v_mov_b32 v{16+k}, v{OB+16*w+k}")
        if w < 3: e.i("s_branch L_red_done")
    e.label("L_red_done")
    e.i("s_waitcnt lgkmcnt(0)")
    stamp(e, cfg, 50)
    e.i("s_barrier")
    stamp(e, cfg, 51)
    e.i(f"v_mov_b32 v4, {L_MISC}")
    e.i(f"ds_read_b128 v[8:11], v4")
    e.i(f"s_mul_i32 s{T}, s{S_W}, {3*4096}")
    e.i(f"s_add_u32 s{T}, s{T}, {L_RED}")
    e.i(f"v_add_u32 v3, s{T}, v{V_L16}")
    for s_ in range(3):
        for q4 in range(4):
            e.i(f"ds_read_b128 {vr(64+16*s_+4*q4,4)}, v3 offset:{4096*s_+1024*q4}")
    e.i(f"s_lshl_b32 s{T}, s{S_R}, 2")
    e.i(f"s_add_u32 s{T}, s{T}, s{S_W}")
    e.i(f"s_lshl_b32 s{T}, s{T}, 4")
    e.i(f"s_add_u32 s{T}, s{T}, s{S_H}")
    e.i(f"s_lshl_b32 s{T}, s{T}, 11")
    e.i(f"s_add_u32 s{T+4}, s{T}, {WS_OF}")
    e.i("s_waitcnt lgkmcnt(12)")
    e.i("v_or_b32 v8, v8, v9")
    e.i("v_or3_b32 v8, v8, v10, v11")
    e.i("s_nop 0")
    e.i(f"v_readfirstlane_b32 s{T}, v8")
    e.i("s_nop 3")
    e.i(f"s_andn2_b32 s{T}, s{T}, s{S_SLOW}")
    e.i(f"s_cmp_lg_u32 s{T}, 0")
    e.i("s_cbranch_scc1 L_slow")
    for s_ in range(3):
        e.i(f"s_waitcnt lgkmcnt({8-4*s_})")
        for k in range(16):
            e.i(f"v_add_f32 v{16+k}, v{16+k}, v{64+16*s_+k}")
    e.i("v_rcp_f32 v3, v16")
    e.i("s_nop 0")
    for k in range(16):
        if k in (0, 8): continue
        e.i(f"v_mul_f32 v{16+k}, v{16+k}, v3")
    for m in range(8):
        if m in (0, 4):
            e.i(f"v_cvt_pk_bf16_f32 v{32+m}, 0, v{16+2*m+1}")
        else:
            e.i(f"v_cvt_pk_bf16_f32 v{32+m}, v{16+2*m}, v{16+2*m+1}")
    stamp(e, cfg, 52)
    if cfg.tags:
        e.i("v_or_b32 v32, 0xffff, v32")
        e.i("v_or_b32 v36, 0xffff, v36")
    e.i(f"buffer_store_dwordx4 v[32:35], v{V_L16}, {rs(R_WS)}, s{T+4} offen sc1")
    e.i(f"buffer_store_dwordx4 v[36:39], v{V_L16}, {rs(R_WS)}, s{T+4} offen offset:1024 sc1")
    e.i("s_barrier")

def b2_slow(e, cfg):
    T = S_T0
    e.c("==== slow path: true row max ====")
    e.label("L_slow")
    e.i("s_waitcnt vmcnt(0) lgkmcnt(0)")
    M = 48
    for j in range(4): e.i(f"v_mov_b32 v{M+j}, 0xff800000")
    e.i(f"s_mov_b32 s{S_KV+1}, 0")
    e.label("L_slow_loop")
    for f in range(2):
        e.i(f"buffer_load_dwordx4 {vr(KVB+4*f,4)}, v{V_KVO}, {rs(R_WS)}, s{S_KV+1} offen offset:{1024*f} sc1")
    e.i("s_waitcnt vmcnt(0)")
    for j in range(4):
        e.i(f"v_mfma_f32_32x32x16_bf16 v[16:31], {vr(KVB,4)}, {vr(QB+8*j,4)}, 0")
        e.i(f"v_mfma_f32_32x32x16_bf16 v[16:31], {vr(KVB+4,4)}, {vr(QB+8*j+4,4)}, v[16:31]")
        e.i("s_nop 7"); e.i("s_nop 7")
        for k in range(0, 16, 2):
            e.i(f"v_max3_f32 v{M+j}, v{16+k}, v{17+k}, v{M+j}")
        e.i("s_nop 7")
    e.i(f"s_add_u32 s{S_KV+1}, s{S_KV+1}, 16384")
    e.i(f"s_cmp_lt_u32 s{S_KV+1}, {16*16384}")
    e.i("s_cbranch_scc1 L_slow_loop")
    for j in range(4):
        e.i(f"v_mov_b32 v{52+j}, v{M+j}")
    e.i("s_nop 1")
    for j in range(4):
        e.i(f"v_permlane32_swap_b32 v{52+j}, v{M+j}")
    e.i("s_nop 1")
    for j in range(4):
        e.i(f"v_max_f32 v{M+j}, v{52+j}, v{M+j}")
    e.i("s_barrier")
    e.i(f"s_lshl_b32 s{T}, s{S_W}, 10")
    e.i(f"s_add_u32 s{T}, s{T}, {L_RED}")
    e.i(f"v_add_u32 v3, s{T}, v{V_L16}")
    e.i(f"ds_write_b128 v3, {vr(M,4)}")
    e.i("s_waitcnt lgkmcnt(0)")
    e.i("s_barrier")
    e.i(f"v_add_u32 v3, {L_RED}, v{V_L16}")
    for w in range(4):
        e.i(f"ds_read_b128 {vr(16+4*w,4)}, v3 offset:{1024*w}")
    e.i("s_waitcnt lgkmcnt(0)")
    for j in range(4):
        e.i(f"v_max3_f32 v{M+j}, v{16+j}, v{20+j}, v{24+j}")
        e.i(f"v_max_f32 v{M+j}, v{M+j}, v{28+j}")
    e.i(f"s_mov_b32 s{T}, 0xffff")
    for j in range(4):
        e.i(f"v_sub_f32 v16, 0, v{M+j}")
        e.i(f"v_cvt_pk_bf16_f32 v17, v16, v16")
        e.i(f"v_lshlrev_b32 v18, 16, v17")
        e.i(f"v_sub_f32 v16, v16, v18")
        e.i(f"v_cvt_pk_bf16_f32 v19, v16, v16")
        e.i(f"v_lshlrev_b32 v18, 16, v19")
        e.i(f"v_sub_f32 v16, v16, v18")
        e.i(f"v_bfi_b32 v17, s{T}, v17, v19")
        e.i(f"v_cvt_pk_bf16_f32 v18, v16, 0")
        e.i(f"v_cndmask_b32 v{QB+8*j+6}, v{QB+8*j+6}, v17, s[{S_MHH}:{S_MHH+1}]")
        e.i(f"v_cndmask_b32 v{QB+8*j+7}, v{QB+8*j+7}, v18, s[{S_MHH}:{S_MHH+1}]")
    e.i(f"s_mov_b32 s{S_SLOW}, 1")
    e.i(f"s_lshl_b32 s{S_KV+1}, s{S_R}, 14")
    kv_load(e, 0, advance=False)
    e.i("s_waitcnt vmcnt(0)")
    e.i("s_barrier")
    e.i("s_branch L_attn_start")

def a3_main(e, cfg):
    T = S_T0
    e.c("==== A3: out_a = q * y ====")
    a3_qaddr(e, cfg)
    e.i(f"buffer_load_dwordx4 {vr(QPF,4)}, v{V_A3OFF}, {rs(R_Q)}, 0 offen")
    e.i(f"s_mov_b32 s{T+1}, 7168")
    e.i(f"buffer_load_dwordx4 {vr(QPF+4,4)}, v{V_A3OFF}, {rs(R_Q)}, s{T+1} offen")
    e.i(f"s_lshr_b32 s{T}, s{S_RB}, 2")
    e.i(f"s_add_u32 s{T}, s{T}, 2")
    e.i(f"s_and_b32 s{T}, s{T}, 7")
    e.i(f"s_lshr_b32 s{T}, s{T}, 2")
    e.i(f"s_lshl_b32 s{T+1}, s{S_CB}, 6")
    e.i(f"s_lshl_b32 s{T+2}, s{S_W}, 4")
    e.i(f"s_add_u32 s{T+1}, s{T+1}, s{T+2}")
    e.i(f"v_and_b32 v7, 15, v{V_LANE}")
    e.i(f"v_add_u32 v7, s{T+1}, v7")
    e.i(f"v_lshrrev_b32 v8, 1, v7")
    e.i(f"v_and_b32 v7, 1, v7")
    e.i(f"v_lshlrev_b32 v7, 1, v7")
    e.i(f"v_lshl_add_u32 v7, v8, 2, v7")
    e.i(f"v_add_u32 v7, s{T}, v7")
    poll(e, cfg, FL_A2, 7, "a2", tmp=8)
    stamp(e, cfg, 12)
    e.i(f"s_lshl_b32 s{T}, s{S_CB}, 6")
    e.i(f"s_lshl_b32 s{T+1}, s{S_W}, 4")
    e.i(f"s_add_u32 s{T}, s{T}, s{T+1}")
    e.i(f"s_lshl_b32 s{T}, s{T}, 12")
    e.i(f"s_lshl_b32 s{T+1}, s{S_RB}, 7")
    e.i(f"s_add_u32 s{T}, s{T}, s{T+1}")
    e.i(f"s_add_u32 s{T}, s{T}, {WS_YT}")
    e.i(f"s_add_u32 s{T+1}, s{T}, {8*4096}")
    e.i(f"v_lshrrev_b32 v3, 3, v{V_LANE}")
    e.i(f"v_lshlrev_b32 v13, 12, v3")
    e.i(f"v_and_b32 v14, 7, v{V_LANE}")
    e.i(f"v_lshl_add_u32 v13, v14, 4, v13")
    e.i(f"buffer_load_dwordx4 {vr(YL,4)}, v13, {rs(R_WS)}, s{T} offen sc1")
    e.i(f"buffer_load_dwordx4 {vr(YL+4,4)}, v13, {rs(R_WS)}, s{T+1} offen sc1")
    e.i(f"v_mul_u32_u24 v3, 144, v3")
    e.i(f"v_lshl_add_u32 v15, v14, 4, v3")
    e.i(f"s_mul_i32 s{T}, s{S_W}, {16*144}")
    e.i(f"s_add_u32 s{T+1}, s{T}, {L_A3}")
    e.i(f"v_add_u32 v3, s{T+1}, v15")
    e.i(f"s_add_u32 s{T+1}, s{T}, {L_A3R}")
    e.i(f"v_add_u32 v12, s{T+1}, v15")
    e.i(f"v_and_b32 v8, 15, v{V_LANE}")
    e.i(f"v_mul_u32_u24 v8, 144, v8")
    e.i(f"v_and_b32 v9, 0x30, v{V_LANE}")
    e.i(f"v_add3_u32 v8, v8, v9, s{T+1}")
    e.i(f"v_lshrrev_b32 v13, 4, v{V_LANE}")
    e.i(f"v_lshlrev_b32 v13, 3, v13")
    e.i(f"v_bfe_u32 v14, v{V_LANE}, 2, 2")
    e.i(f"v_add_u32 v13, v13, v14")
    e.i(f"v_mul_u32_u24 v13, 144, v13")
    e.i(f"v_and_b32 v14, 3, v{V_LANE}")
    e.i(f"v_lshlrev_b32 v14, 3, v14")
    e.i(f"s_lshl_b32 s{T}, s{S_W}, 5")
    e.i(f"s_add_u32 s{T}, s{T}, {L_A3}")
    e.i(f"v_add3_u32 v13, v13, v14, s{T}")
    e.i("s_waitcnt vmcnt(0)")
    e.i(f"ds_write_b128 v3, {vr(YL,4)}")
    e.i(f"ds_write_b128 v3, {vr(YL+4,4)} offset:{8*144}")
    swbar(e)
    for it in range(2):
        for jj in range(2):
            e.i(f"ds_read_b64_tr_b16 {vr(16+4*it+2*jj,2)}, v13 offset:{(32*it+4*jj)*144}")
    e.i("s_waitcnt lgkmcnt(2)")
    e.i(f"ds_write_b128 v8, v[16:19]")
    e.i("s_waitcnt lgkmcnt(1)")
    e.i(f"ds_write_b128 v8, v[20:23] offset:64")
    e.i("s_waitcnt lgkmcnt(0)")
    e.i(f"ds_read_b128 v[16:19], v12")
    e.i(f"ds_read_b128 v[20:23], v12 offset:{8*144}")
    e.i(f"s_mov_b32 s{T}, 0xffff0000")
    e.i("s_waitcnt lgkmcnt(0)")
    for it in range(2):
        for m in range(4):
            y = 16 + 4*it + m; q = QPF + 4*it + m
            e.i(f"v_lshlrev_b32 v24, 16, v{y}")
            e.i(f"v_and_b32 v25, s{T}, v{y}")
            e.i(f"v_lshlrev_b32 v26, 16, v{q}")
            e.i(f"v_and_b32 v27, s{T}, v{q}")
            e.i(f"v_mul_f32 v24, v24, v26")
            e.i(f"v_mul_f32 v25, v25, v27")
            e.i(f"v_cvt_pk_bf16_f32 v{32+4*it+m}, v24, v25")
    e.i(f"buffer_store_dwordx4 v[32:35], v{V_A3OFF+1}, {rs(R_OUT)}, 0 offen{OUTF[0]}")
    e.i(f"s_mov_b32 s{T}, {8*1792}")
    e.i(f"buffer_store_dwordx4 v[36:39], v{V_A3OFF+1}, {rs(R_OUT)}, s{T} offen{OUTF[0]}")

def b3_addr(e, cfg):
    T = S_T0
    e.c("==== B3: addresses ====")
    e.i(f"s_and_b32 s{T+3}, s{S_W}, 1")
    e.i(f"v_lshrrev_b32 v8, 5, v{V_LANE}")
    e.i(f"v_mul_u32_u24 v8, 7, v8")
    e.i(f"v_bfe_u32 v9, v{V_LANE}, 2, 2")
    e.i(f"v_add_u32 v8, v8, v9")
    e.i(f"v_bfe_u32 v9, v{V_LANE}, 4, 1")
    e.i(f"v_lshlrev_b32 v9, 5, v9")
    e.i(f"v_and_b32 v10, 3, v{V_LANE}")
    e.i(f"v_lshl_add_u32 v9, v10, 3, v9")
    for f in range(2):
        e.i(f"v_add_u32 v10, {14*f}, v8")
        e.i(f"v_bfe_u32 v11, v10, 1, 1")
        e.i(f"v_xor_b32 v11, s{T+3}, v11")
        e.i(f"v_lshlrev_b32 v11, 6, v11")
        e.i(f"v_lshl_add_u32 v10, v10, 7, v11")
        e.i(f"v_add_u32 v{12+f}, v10, v9")
        if L_WO: e.i(f"v_add_u32 v{12+f}, {L_WO}, v{12+f}")
    e.i(f"s_lshr_b32 s{T}, s{S_W}, 1")
    e.i(f"s_lshl_b32 s{T}, s{T}, 15")
    e.i(f"s_add_u32 s{T}, s{T}, {L_OF}")
    e.i(f"v_add_u32 v15, s{T}, v{V_L16}")
    e.i(f"s_mul_i32 s{T}, s{S_W}, 2560")
    e.i(f"s_add_u32 s{T}, s{T}, {L_OUTB}")
    e.i(f"v_and_b32 v8, 31, v{V_LANE}")
    e.i(f"v_mul_u32_u24 v8, 80, v8")
    e.i(f"v_lshrrev_b32 v9, 5, v{V_LANE}")
    e.i(f"v_lshlrev_b32 v9, 3, v9")
    e.i(f"v_add3_u32 v8, v8, v9, s{T}")
    e.i(f"v_lshrrev_b32 v9, 2, v{V_LANE}")
    e.i(f"v_mul_u32_u24 v10, 80, v9")
    e.i(f"v_and_b32 v11, 3, v{V_LANE}")
    e.i(f"v_lshlrev_b32 v11, 4, v11")
    e.i(f"v_add3_u32 v10, v10, v11, s{T}")
    e.i(f"s_lshl_b32 s{T}, s{S_RB}, 6")
    e.i(f"s_lshr_b32 s{T+2}, s{S_W}, 1")
    e.i(f"s_lshl_b32 s{T+2}, s{T+2}, 5")
    e.i(f"s_add_u32 s{T}, s{T}, s{T+2}")
    e.i(f"s_mul_i32 s{T}, s{T}, 1792")
    e.i(f"s_lshl_b32 s{T+2}, s{S_CB}, 7")
    e.i(f"s_lshl_b32 s{T+3}, s{T+3}, 6")
    e.i(f"s_add_u32 s{T}, s{T}, s{T+2}")
    e.i(f"s_add_u32 s{T}, s{T}, s{T+3}")
    e.i(f"s_add_u32 s{T}, s{T}, 896")
    e.i(f"v_mul_u32_u24 v9, 1792, v9")
    e.i(f"v_add3_u32 v14, v9, v11, s{T}")

def b3_load_static(e, cfg):
    T = S_T0
    if not cfg.tags:
        poll(e, cfg, FL_B2, 7, "b2")
    else:
        e.i(f"s_lshl_b32 s{T+4}, s{T+2}, 15")
        e.i(f"s_lshl_b32 s{T+5}, s{T+3}, 14")
        e.i(f"s_add_u32 s{T+4}, s{T+4}, s{T+5}")
        e.i(f"s_add_u32 s{T+4}, s{T+4}, {WS_OF + 1024 + 63*16}")
        e.i(f"v_and_b32 v7, 7, v{V_LANE}")
        e.i(f"v_lshlrev_b32 v7, 11, v7")
        e.i(f"s_mov_b32 s{S_IT}, 0x40000")
        e.i(f"s_mov_b32 s{T+5}, 0xffff")
        e.label("L_rep")
        e.i(f"buffer_load_dword v8, v7, {rs(R_WS)}, s{T+4} offen sc1")
        e.i("s_waitcnt vmcnt(0)")
        e.i(f"v_and_b32 v8, s{T+5}, v8")
        e.i(f"v_cmp_ne_u32 vcc, s{T+5}, v8")
        e.i("s_cbranch_vccz L_rep_done")
        e.i(f"s_sub_u32 s{S_IT}, s{S_IT}, 1")
        e.i("s_cbranch_scc1 L_rep_done")
        e.i("s_sleep 2")
        e.i("s_branch L_rep")
        e.label("L_rep_done")
    stamp(e, cfg, 14)
    e.i(f"s_mov_b32 s{S_JJ}, 0x4000")
    e.label("L_odma")
    e.i(f"s_lshr_b32 s{T}, s{S_W}, 1")
    e.i(f"s_lshl_b32 s{T+1}, s{S_RB}, 1")
    e.i(f"s_add_u32 s{T+2}, s{T}, s{T+1}")
    e.i(f"s_and_b32 s{T+3}, s{S_W}, 1")
    e.i(f"s_lshl_b32 s{T+2}, s{T+2}, 15")
    e.i(f"s_lshl_b32 s{T+4}, s{T+3}, 14")
    e.i(f"s_add_u32 s{T+2}, s{T+2}, s{T+4}")
    e.i(f"s_add_u32 s{T+2}, s{T+2}, {WS_OF}")
    e.i(f"s_lshl_b32 s{T}, s{T}, 15")
    e.i(f"s_add_u32 s{T}, s{T}, s{T+4}")
    e.i(f"s_add_u32 s{T}, s{T}, {L_OF}")
    for u in range(16):
        e.i(f"s_add_u32 m0, s{T}, {1024*u}")
        if u == 0: e.i("s_nop 0")
        else: e.i(f"s_add_u32 s{T+2}, s{T+2}, 1024")
        e.i(f"buffer_load_dwordx4 v{V_L16}, {rs(R_WS)}, s{T+2} offen sc1 lds")
    if cfg.tags:
        e.i(f"v_add_u32 v7, s{T}, v{V_L16}")
        e.i("s_waitcnt vmcnt(0)")
        for u in range(16):
            e.i(f"ds_read_b32 v{32+u}, v7 offset:{1024*u}")
        e.i("s_waitcnt lgkmcnt(8)")
        for u in range(1, 8): e.i(f"v_and_b32 v32, v32, v{32+u}")
        e.i("s_waitcnt lgkmcnt(0)")
        for u in range(8, 16): e.i(f"v_and_b32 v32, v32, v{32+u}")
        e.i(f"s_mov_b32 s{T+5}, 0xffff")
        e.i(f"v_and_b32 v32, s{T+5}, v32")
        e.i(f"v_cmp_ne_u32 vcc, s{T+5}, v32")
        e.i("s_cbranch_vccz L_odma_ok")
        e.i(f"s_sub_u32 s{S_JJ}, s{S_JJ}, 1")
        e.i("s_cbranch_scc0 L_odma")
        e.label("L_odma_ok")

def b3_main(e, cfg):
    T = S_T0
    e.c("==== B3: out projection ====")
    e.i(f"s_lshr_b32 s{T}, s{S_W}, 1")
    e.i(f"s_lshl_b32 s{T+1}, s{S_RB}, 1")
    e.i(f"s_add_u32 s{T+2}, s{T}, s{T+1}")
    e.i(f"s_and_b32 s{T+3}, s{S_W}, 1")
    e.i(f"s_lshl_b32 s{T+4}, s{T+3}, 9")
    e.i(f"s_add_u32 s{T+4}, s{T+4}, s{T+2}")
    e.i(f"v_and_b32 v7, 7, v{V_LANE}")
    e.i(f"v_lshlrev_b32 v7, 6, v7")
    e.i(f"v_add_u32 v7, s{T+4}, v7")
    if cfg.dynb3:
        e.i(f"v_lshlrev_b32 v7, {FL_SH}, v7")
        e.i(f"v_add_u32 v7, {WS_FL + FL_B2}, v7")
        e.i(f"s_lshl_b32 s{T+2}, s{T+2}, 15")
        e.i(f"s_lshl_b32 s{T+4}, s{T+3}, 14")
        e.i(f"s_add_u32 s{T+2}, s{T+2}, s{T+4}")
        e.i(f"s_add_u32 s{T+2}, s{T+2}, {WS_OF}")
        e.i(f"s_lshr_b32 s{T}, s{S_W}, 1")
        e.i(f"s_lshl_b32 s{T}, s{T}, 15")
        e.i(f"s_add_u32 s{T}, s{T}, s{T+4}")
        e.i(f"s_add_u32 s{T}, s{T}, {L_OF}")
        e.i(f"s_mov_b32 s{S_JJ}, 0xff")
        e.i(f"s_mov_b32 s{S_IT}, 0x40000")
        e.label("L_dyn_poll")
        e.i(f"buffer_load_dwordx2 v[4:5], v7, {rs(R_WS)}, 0 offen sc1")
        e.i("s_waitcnt vmcnt(0)")
        e.i(f"v_cmp_eq_u64 vcc, s[{S_NONCE}:{S_NONCE+1}], v[4:5]")
        e.i(f"s_sub_u32 s{S_IT}, s{S_IT}, 1")
        e.i(f"s_cselect_b32 s{T+1}, -1, vcc_lo")
        e.i(f"s_and_b32 s{T+1}, s{T+1}, s{S_JJ}")
        e.i("s_cbranch_scc0 L_dyn_none")
        e.label("L_dyn_issue")
        e.i(f"s_ff1_i32_b32 s{T+4}, s{T+1}")
        e.i(f"s_bitset0_b32 s{T+1}, s{T+4}")
        e.i(f"s_bitset0_b32 s{S_JJ}, s{T+4}")
        e.i(f"s_lshl_b32 s{T+4}, s{T+4}, 11")
        e.i(f"s_add_u32 m0, s{T}, s{T+4}")
        e.i(f"s_add_u32 s{T+5}, s{T+2}, s{T+4}")
        e.i(f"buffer_load_dwordx4 v{V_L16}, {rs(R_WS)}, s{T+5} offen sc1 lds")
        e.i(f"s_add_u32 m0, m0, 1024")
        e.i(f"s_add_u32 s{T+5}, s{T+5}, 1024")
        e.i(f"buffer_load_dwordx4 v{V_L16}, {rs(R_WS)}, s{T+5} offen sc1 lds")
        e.i(f"s_cmp_lg_u32 s{T+1}, 0")
        e.i("s_cbranch_scc1 L_dyn_issue")
        e.i(f"s_cmp_eq_u32 s{S_JJ}, 0")
        e.i("s_cbranch_scc1 L_dyn_done")
        e.label("L_dyn_none")
        e.i("s_sleep 1")
        e.i("s_branch L_dyn_poll")
        e.label("L_dyn_done")
        stamp(e, cfg, 14)
    else:
        b3_load_static(e, cfg)
    if cfg.b3pipe:
        order = [h for h in (0,1,2,3,8,9,10,11)] + [h for h in (4,5,6,7,12,13,14,15)]
    else:
        order = list(range(16))
    steps = [(h, f) for h in order for f in range(2)]
    NB = 4
    def rd(k):
        h, f = steps[k]
        b = 32 + 8*(k % NB)
        for jj in range(2):
            e.i(f"ds_read_b64_tr_b16 {vr(b+2*jj,2)}, v{12+f} offset:{(28*h+4*jj)*128}")
        e.i(f"ds_read_b128 {vr(b+4,4)}, v15 offset:{1024*(2*h+f)}")
    def run(k0, k1):
        for k in range(k0, min(k0 + NB - 1, k1)): rd(k)
        for k in range(k0, k1):
            if k + NB - 1 < k1: rd(k + NB - 1)
            nyl = 3 * min(NB - 1, k1 - 1 - k)
            e.i(f"s_waitcnt lgkmcnt({nyl})")
            b = 32 + 8*(k % NB)
            if cfg.tags:
                e.i(f"v_and_b32 v{b+4}, 0xffff0000, v{b+4}")
                e.i("s_nop 1")
            e.i(f"v_mfma_f32_32x32x16_bf16 v[16:31], {vr(b,4)}, {vr(b+4,4)}, {'0' if k == 0 else 'v[16:31]'}")
    if cfg.b3pipe:
        e.i("s_waitcnt vmcnt(8)")
        e.i("s_barrier")
        run(0, 16)
        e.i("s_waitcnt vmcnt(0)")
        e.i("s_barrier")
        run(16, 32)
    else:
        stamp(e, cfg, 46)
        e.i("s_waitcnt vmcnt(0)")
        stamp(e, cfg, 47)
        e.i("s_barrier")
        stamp(e, cfg, 48)
        run(0, 32)
        stamp(e, cfg, 49)
    e.i("s_nop 7"); e.i("s_nop 7")
    for m in range(8):
        e.i(f"v_cvt_pk_bf16_f32 v{48+m}, v{16+2*m}, v{17+2*m}")
    for g in range(4):
        e.i(f"ds_write_b64 v8, {vr(48+2*g,2)} offset:{16*g}")
    e.i("s_waitcnt lgkmcnt(0)")
    e.i(f"ds_read_b128 v[56:59], v10")
    e.i(f"ds_read_b128 v[60:63], v10 offset:{16*80}")
    e.i(f"s_mov_b32 s{T}, {16*1792}")
    e.i("s_waitcnt lgkmcnt(1)")
    e.i(f"buffer_store_dwordx4 v[56:59], v14, {rs(R_OUT)}, 0 offen{OUTF[0]}")
    e.i("s_waitcnt lgkmcnt(0)")
    e.i(f"buffer_store_dwordx4 v[60:63], v14, {rs(R_OUT)}, s{T} offen{OUTF[0]}")

def dump_stamps(e, cfg, wave_off):
    T = S_T0
    if cfg.stamps:
        e.i(f"s_lshl_b32 s{T}, s2, 3")
        e.i(f"s_add_u32 s{T}, s{T}, s{S_W}")
        if wave_off: e.i(f"s_add_u32 s{T}, s{T}, {wave_off}")
        e.i(f"s_lshl_b32 s{T}, s{T}, 8")
        e.i(f"s_add_u32 s{T}, s{T}, {WS_TS}")
        e.i(f"v_lshlrev_b32 v3, 2, v{V_LANE}")
        e.i(f"buffer_store_dword v{vts()}, v3, {rs(R_WS)}, s{T} offen")

def scalar_prefetch(e, cfg, wave_off):
    T = S_T0
    e.i(f"s_lshl_b32 s{T}, s{S_RB}, 6")
    e.i(f"s_lshl_b32 s{T+1}, s{S_W}, 3")
    e.i(f"s_add_u32 s{T}, s{T}, s{T+1}")
    if wave_off: e.i(f"s_add_u32 s{T}, s{T}, {8*wave_off}")
    e.i(f"s_mul_i32 s{T}, s{T}, 896")
    e.i(f"s_lshl_b32 s{T+1}, s{S_CB}, 7")
    e.i(f"s_add_u32 s{T}, s{T}, s{T+1}")
    e.i(f"s_add_u32 s88, s{R_K}, s{T}")
    e.i(f"s_addc_u32 s89, s{R_K+1}, 0")
    e.i(f"s_add_u32 s90, s{R_V}, s{T}")
    e.i(f"s_addc_u32 s91, s{R_V+1}, 0")
    for i in range(8):
        e.i(f"s_load_dword s92, s[88:89], {896*i}")
    for i in range(7):
        e.i(f"s_load_dword s93, s[90:91], {896*i}")

def role_b(e, cfg):
    T = S_T0
    ROLE[0] = "B"
    ids_b(e, cfg)
    addr_b(e, cfg)
    if cfg.prefetch: l2_prefetch_addr(e, cfg)
    swbar_init(e)
    if cfg.stamps: e.i(f"v_mov_b32 v{vts()}, 0")
    e.i("s_waitcnt lgkmcnt(0)")
    if cfg.stamps:
        e.i(f"v_writelane_b32 v{vts()}, s{S_TS}, 16")
        e.i(f"s_getreg_b32 s{S_TS}, hwreg(HW_REG_XCC_ID)")
        e.i(f"v_writelane_b32 v{vts()}, s{S_TS}, 60")
        e.i(f"s_getreg_b32 s{S_TS}, hwreg(HW_REG_HW_ID)")
        e.i(f"v_writelane_b32 v{vts()}, s{S_TS}, 61")
    e.i("s_barrier")
    e.i("s_setprio 2")
    if cfg.spf: scalar_prefetch(e, cfg, 0)
    stamp(e, cfg, 17) if not cfg.spf else None
    if cfg.prefetch: l2_prefetch(e, cfg)
    b1_consts(e)
    b1_issue(e); b1_issue(e)
    if cfg.ago:
        e.i(f"v_mov_b32 v4, {L_CNTGO}")
        sw_arrive(e, addr=4)
    nonce_early(e, cfg)
    stamp(e, cfg, 19)
    b1_traddr(e, cfg)
    stamp(e, cfg, 21)
    b1_loop(e, cfg)
    stamp(e, cfg, 3)
    e.i(f"v_mov_b32 v4, {L_CNTRD}")
    sw_arrive(e, addr=4)
    get_nonce(e, cfg)
    b1_epilogue_kv(e, cfg)
    stamp(e, cfg, 5)
    e.i(f"s_waitcnt vmcnt({6 if cfg.tags else 4})")
    swbar(e)
    def pub():
        e.i("s_waitcnt vmcnt(0)")
        publish(e, cfg, FL_B1, [f"s_lshl_b32 s{T}, s{S_H}, 4", f"s_add_u32 s{T}, s{T}, s{S_R}"])
    if cfg.midk:
        b1_q(e, cfg, mid=pub, midk=cfg.midk)
    else:
        b1_q(e, cfg)
        pub()
    stamp(e, cfg, 4)
    b1_epilogue_q(e, cfg)
    swbar(e)
    e.i("s_setprio 0")
    stamp(e, cfg, 7)
    if cfg.stop_after >= 3:
        b2_main(e, cfg)
        if cfg.stop_after >= 4: b3_addr(e, cfg)
        if not cfg.tags:
            e.i("s_waitcnt vmcnt(0)")
            publish(e, cfg, FL_B2, [f"s_lshl_b32 s{T}, s{S_H}, 4", f"s_add_u32 s{T}, s{T}, s{S_R}"], tmp=4)
        stamp(e, cfg, 12)
    if cfg.stop_after >= 4:
        e.i("s_cmp_ge_u32 s2, 224")
        e.i("s_cbranch_scc1 L_finB")
        b3_main(e, cfg)
        e.label("L_finB")
    stamp(e, cfg, 15)
    dump_stamps(e, cfg, 0)

def role_a(e, cfg):
    T = S_T0
    ROLE[0] = "A"
    e.label("L_roleA")
    e.i("s_setprio 3")
    e.i(f"s_sub_u32 s{S_W}, s{S_W}, 4")
    addr_a(e, cfg)
    swbar_init(e)
    if cfg.stamps: e.i(f"v_mov_b32 v{vts()}, 0")
    e.i("s_waitcnt lgkmcnt(0)")
    if cfg.stamps: e.i(f"v_writelane_b32 v{vts()}, s{S_TS}, 16")
    e.i("s_barrier")
    if cfg.spf: scalar_prefetch(e, cfg, 4)
    stamp(e, cfg, 17) if not cfg.spf else None
    if cfg.noA:
        e.i(f"s_or_b32 s{T}, s2, s{S_W}")
        e.i("s_cbranch_scc1 L_noA_end")
        e.i(f"s_memrealtime s[{S_NONCE}:{S_NONCE+1}]")
        e.i("s_waitcnt lgkmcnt(0)")
        e.i(f"s_or_b32 s{S_NONCE}, s{S_NONCE}, 1")
        e.i(f"v_mov_b32 v76, s{S_NONCE}")
        e.i(f"v_mov_b32 v77, s{S_NONCE+1}")
        e.i("v_mov_b32 v78, 0")
        e.i("s_mov_b64 exec, 1")
        e.i(f"buffer_store_dwordx2 v[76:77], v78, {rs(R_DBG)}, 0 offen sc1")
        e.i("s_waitcnt vmcnt(0)")
        e.label("L_noA_end")
        e.i("s_endpgm")
    if cfg.ago:
        e.i(f"v_mov_b32 v8, {L_CNTGO}")
        sw_wait(e, 8, target_imm=4, sleep=2)
    if cfg.apf:
        e.i(f"s_lshl_b32 s{T}, s{S_RB}, 6")
        e.i(f"s_lshl_b32 s{T+1}, s{S_W}, 4")
        e.i(f"s_add_u32 s{T}, s{T}, s{T+1}")
        e.i(f"s_mul_i32 s{T}, s{T}, 896")
        e.i(f"s_lshl_b32 s{T+1}, s{S_CB}, 7")
        e.i(f"s_add_u32 s{T}, s{T}, s{T+1}")
        e.i(f"v_mul_u32_u24 v8, 896, v{V_LANE}")
        e.i(f"v_add_u32 v8, s{T}, v8")
        e.i(f"v_subrev_u32 v9, {3*896}, v8")
        e.i("s_mov_b64 exec, 0x7ffff")
        e.i(f"buffer_load_dword v244, v9, {rs(R_K)}, 0 offen")
        e.i("s_mov_b64 exec, 0xffff")
        e.i(f"buffer_load_dword v245, v8, {rs(R_V)}, 0 offen")
        e.i("s_mov_b64 exec, -1")
    if cfg.await_b:
        e.i(f"v_mov_b32 v8, {L_CNTB}")
        sw_wait(e, 8, target_imm=4*cfg.await_b, sleep=4)
    stamp(e, cfg, 19)
    a1_loads(e, cfg)
    if cfg.hearly: h_loads(e, cfg)
    a2_dload(e, cfg)
    e.i(f"s_or_b32 s{T}, s2, s{S_W}")
    e.i("s_cbranch_scc1 L_nononce")
    e.i(f"s_memrealtime s[{S_NONCE}:{S_NONCE+1}]")
    e.i("s_waitcnt lgkmcnt(0)")
    e.i(f"s_or_b32 s{S_NONCE}, s{S_NONCE}, 1")
    e.i(f"v_mov_b32 v76, s{S_NONCE}")
    e.i(f"v_mov_b32 v77, s{S_NONCE+1}")
    e.i("v_mov_b32 v78, 0")
    e.i("s_mov_b64 exec, 1")
    e.i(f"buffer_store_dwordx2 v[76:77], v78, {rs(R_DBG)}, 0 offen sc1")
    e.i("s_mov_b64 exec, -1")
    e.label("L_nononce")
    a1_compute(e, cfg, 2 if cfg.hearly else 0)
    stamp(e, cfg, 18)
    nonce_early(e, cfg)
    a1_compute_b(e, cfg)
    stamp(e, cfg, 1)
    e.i("s_waitcnt vmcnt(0)")
    get_nonce(e, cfg)
    publish(e, cfg, FL_A1, [f"s_mov_b32 s{T}, s2"], tmp=24)
    e.i("s_setprio 1")
    stamp(e, cfg, 2)
    e.i("s_cmp_ge_u32 s2, 224")
    e.i("s_cbranch_scc1 L_finA")
    if not cfg.hearly: h_loads(e, cfg)
    swbar(e)
    e.i("s_waitcnt vmcnt(0)")
    a2_hstage(e, cfg)
    if cfg.stop_after >= 2:
        a2_main(e, cfg)
        stamp(e, cfg, 9)
        e.i("s_waitcnt vmcnt(0)")
        publish(e, cfg, FL_A2, [f"s_mov_b32 s{T}, s2"])
        if cfg.alow: e.i("s_setprio 0")
        stamp(e, cfg, 10)
    if cfg.stop_after >= 4:
        wo_addr(e, cfg)
        e.i(f"v_mov_b32 v4, {L_CNTRD}")
        sw_wait(e, 4, target_imm=4, sleep=8)
        wo_first(e, cfg)
        for t in range(13):
            e.i("s_waitcnt vmcnt(1)")
            wo_next(e)
        stamp(e, cfg, 11)
        a3_main(e, cfg)
        if cfg.tags:
            e.i(f"s_lshl_b32 s{T}, s{S_RB}, 1")
            e.i(f"v_bfe_u32 v8, v{V_LANE}, 4, 1")
            e.i(f"v_add_u32 v8, s{T}, v8")
            e.i(f"v_and_b32 v7, 15, v{V_LANE}")
            e.i(f"v_lshl_add_u32 v7, v7, 6, v8")
            poll(e, cfg, FL_B1, 7, "b1c", tmp=8)
        e.i("s_waitcnt vmcnt(0)")
    e.label("L_finA")
    stamp(e, cfg, 15)
    dump_stamps(e, cfg, 4)

def build(cfg):
    e = E()
    prologue(e, cfg)
    role_b(e, cfg)
    e.label("L_end")
    e.i("s_endpgm")
    role_a(e, cfg)
    e.i("s_endpgm")
    if cfg.stop_after >= 3:
        ROLE[0] = "B"
        b2_slow(e, cfg)
        e.i("s_endpgm")
    return e

HEADER = f"""; Kernarg layout (96 bytes): A_q A_k A_v A_shift_k A_ssm_k A_ssm_D B_x B_wqkv B_wo out debug ws
; @launch grid=(256,1,1) block=(512,1,1) lds={LDS_SIZE}
.amdgcn_target "amdgcn-amd-amdhsa--gfx950"
.text
.globl {KNAME}
.p2align 8
.type {KNAME},@function
{KNAME}:
"""
FOOTER = f"""
.section .rodata,"a"
.p2align 6
.amdhsa_kernel {KNAME}
  .amdhsa_next_free_vgpr 256
  .amdhsa_next_free_sgpr 102
  .amdhsa_accum_offset 256
  .amdhsa_group_segment_fixed_size 0
  .amdhsa_kernarg_size 96
  .amdhsa_user_sgpr_count 2
  .amdhsa_user_sgpr_kernarg_segment_ptr 1
  .amdhsa_system_sgpr_workgroup_id_x 1
  .amdhsa_float_denorm_mode_32 3
.end_amdhsa_kernel
"""

if __name__ == "__main__":
    import argparse
    ap = argparse.ArgumentParser()
    ap.add_argument("-o", default=f"cdna_kernels/{NAME}.s")
    ap.add_argument("--stop", type=int, default=99)
    ap.add_argument("--stamps", action="store_true")
    ap.add_argument("--nosync", action="store_true")
    ap.add_argument("--realtime", action="store_true")
    ap.add_argument("--noprefetch", action="store_true")
    ap.add_argument("--span", action="store_true")
    ap.add_argument("--skipA", action="store_true")
    ap.add_argument("--bdelay", type=int, default=0)
    ap.add_argument("--awaitb", type=int, default=0)
    ap.add_argument("--midk", type=int, default=0)
    ap.add_argument("--dynb3", action="store_true")
    ap.add_argument("--spf", action="store_true")
    ap.add_argument("--trim", action="store_true")
    ap.add_argument("--poll2", action="store_true")
    ap.add_argument("--pad", action="store_true")
    ap.add_argument("--shift4", action="store_true")
    ap.add_argument("--lalign", type=int, default=3)
    ap.add_argument("--hearly", action="store_true")
    ap.add_argument("--ago", action="store_true")
    ap.add_argument("--apf", action="store_true")
    ap.add_argument("--fine", action="store_true")
    ap.add_argument("--noA", action="store_true")
    ap.add_argument("--bsleep", type=int, default=3)
    ap.add_argument("--b3pipe", action="store_true")
    ap.add_argument("--alow", action="store_true")
    ap.add_argument("--tags", action="store_true")
    ap.add_argument("--outflag", default="")
    ap.add_argument("--xmap", type=int, default=4)
    a = ap.parse_args()
    cfg = Cfg(); cfg.stop_after = a.stop; cfg.stamps = a.stamps; cfg.nosync = a.nosync; cfg.realtime = a.realtime; cfg.prefetch = not a.noprefetch; cfg.span = a.span; cfg.skipA = a.skipA; cfg.bdelay = a.bdelay; cfg.await_b = a.awaitb; cfg.midk = a.midk; cfg.dynb3 = a.dynb3; cfg.spf = a.spf; cfg.trim = a.trim; cfg.poll2 = a.poll2; cfg.pad = a.pad; cfg.lalign = a.lalign; cfg.shift4 = a.shift4; cfg.hearly = a.hearly; cfg.ago = a.ago; cfg.apf = a.apf; cfg.fine = a.fine; cfg.noA = a.noA; cfg.bsleep = a.bsleep; cfg.b3pipe = a.b3pipe; cfg.alow = a.alow; cfg.tags = a.tags; cfg.outflag = a.outflag; OUTF[0] = (' ' + a.outflag) if a.outflag else ''; cfg.xmap = a.xmap
    e = build(cfg)
    open(a.o, "w").write(HEADER + e.text() + FOOTER)
    print("wrote", a.o, len(e.lines), "lines")
```

```python
import sys, math, struct

NAME = "concat_heads__ssm_conv_h3__softmax_full_mha__prompt"
KNAME = NAME + "_kernel"

class E:
    def __init__(self):
        self.lines = []
    def c(self, s):
        self.lines.append("    ; " + s)
    def i(self, s):
        self.lines.append("    " + s)
    def label(self, s):
        self.lines.append(s + ":")
    def text(self):
        return "\n".join(self.lines) + "\n"

def vr(a, n=1):
    return f"v{a}" if n == 1 else f"v[{a}:{a+n-1}]"
def ar(a, n=1):
    return f"a{a}" if n == 1 else f"a[{a}:{a+n-1}]"
def rs(r): return f"s[{r}:{r+3}]"

S, D, H, DH = 2048, 448, 16, 28
SZ_SD   = S * D * 2
SZ_SHK  = D * 4 * 2
SZ_WQKV = D * 3 * D * 2
SZ_WO   = D * D * 2
SZ_OUT  = S * 2 * D * 2
WS_KV = 0x000000
WS_XT = 0x400000
WS_YT = 0x600000
WS_OF = 0x800000
WS_FL = 0xA00000
FL_A1, FL_B1, FL_A2, FL_B2 = 0, 0x10000, 0x20000, 0x30000
FL_SH = 6
WS_TS = 0xB00000
WS_SIZE = 0xC00000

L_RING = 0
NSLOT  = 4
SLOT   = 24576
L_WQ   = 98304
L_Q    = 65536
L_WO   = 0
L_RED  = 58368
L_OF   = 58368
LA     = 126976
L_KS   = LA
L_SHK  = LA + 12288
L_KVT  = LA + 16384
L_H    = LA + 25600
H_CH   = 4160
L_X    = LA
X_CH   = 5248
L_CARRY= LA + 10496
L_Y    = L_X
L_A3   = LA + 12288
L_A3R  = LA
L_OUTB = LA
L_MISC = LA + 33920
L_CNTA, L_CNTB, L_CNTRD, L_CNTGO = L_MISC + 16, L_MISC + 20, L_MISC + 24, L_MISC + 28
LDS_SIZE = LA + 33920 + 64

S_W = 3
R_K, R_V, R_Q, R_SHK, R_SSMK, R_X, R_WQKV, R_WO, R_OUT, R_WS, R_DBG = 4, 8, 12, 16, 20, 24, 28, 32, 36, 40, 44
S_H, S_R, S_CB, S_RB = 48, 49, 50, 51
S_NONCE = 52
S_D2 = 54
S_DP = 62
S_T0 = 56
S_MHH = 64
S_MONE = 66
S63 = 68
S_KV = 70
S_J = 76
S_JJ = 77
S_SLI = 78
S_SLC = 79
S_XB = 80
S_WOI = 81
S_T1 = 88
S_SLOW = 96
S_IT = 97
S_TS = 98
S_BT = 55

QSCALE = (DH ** -0.5) * math.log2(math.e)
def f2u(x): return struct.unpack("<I", struct.pack("<f", x))[0]

class Cfg:
    stop_after = 99
    stamps = False
    nosync = False
    realtime = False
    prefetch = True
    span = False
    skipA = False
    bdelay = 0
    await_b = 0
    aprio1 = False
    a3late = False
    midk = 0
    dynb3 = False
    spf = False
    trim = False
    poll2 = False
    pad = False
    lalign = 3
    shift4 = False
    hearly = False
    ago = False
    apf = False
    fine = False
    noA = False
    bsleep = 3
    b3pipe = False
    alow = False
    tags = False
    outflag = ''
    xmap = 4

ROLE = ["B"]
OUTF = ['']
NTF = ['']
NTX = ['']
NTW = ['']
NTO = ['']
def vts(): return 250 if ROLE[0] == "B" else 63
def stamp(e, cfg, idx):
    if not cfg.stamps: return
    e.c(f"stamp {idx}")
    e.i(f"{'s_memrealtime' if cfg.realtime else 's_memtime'} s[{S_TS}:{S_TS+1}]")
    e.i("s_waitcnt lgkmcnt(0)")
    e.i(f"v_writelane_b32 v{vts()}, s{S_TS}, {idx}")

def bar_regs():
    return (247, 248, 249) if ROLE[0] == "B" else (60, 61, 62)
BARN = [0]
def swbar_init(e):
    a, one, tmp = bar_regs()
    e.i(f"v_mov_b32 v{a}, {L_CNTB if ROLE[0] == 'B' else L_CNTA}")
    e.i(f"v_mov_b32 v{one}, 1")
    e.i(f"s_mov_b32 s{S_BT}, 0")
def sw_arrive(e, addr=None):
    a, one, tmp = bar_regs()
    e.i("s_mov_b64 exec, 1")
    e.i(f"ds_add_u32 v{addr if addr is not None else a}, v{one}")
    e.i("s_mov_b64 exec, -1")
def sw_wait(e, addr, target_sgpr=None, target_imm=None, sleep=None):
    a, one, tmp = bar_regs()
    BARN[0] += 1
    n = BARN[0]
    e.i(f"s_mov_b32 s{S_IT}, 0x100000")
    e.label(f"L_sw{n}")
    e.i(f"ds_read_b32 v{tmp}, v{addr}")
    e.i("s_waitcnt lgkmcnt(0)")
    e.i(f"v_readfirstlane_b32 s95, v{tmp}")
    e.i(f"s_cmp_ge_u32 s95, {('s%d' % target_sgpr) if target_sgpr is not None else target_imm}")
    e.i(f"s_cbranch_scc1 L_swd{n}")
    if sleep is None: sleep = 1 if ROLE[0] == "A" else 0
    if sleep: e.i(f"s_sleep {sleep}")
    e.i(f"s_sub_u32 s{S_IT}, s{S_IT}, 1")
    e.i(f"s_cbranch_scc0 L_sw{n}")
    e.label(f"L_swd{n}")
def swbar(e):
    a, one, tmp = bar_regs()
    e.i(f"s_add_u32 s{S_BT}, s{S_BT}, 4")
    sw_arrive(e)
    sw_wait(e, a, target_sgpr=S_BT)

V_LANE, V_L16 = 1, 2
V_TS = 250

def prologue(e, cfg):
    e.c("==== prologue ====")
    ptrs = [(R_K, 8), (R_V, 16), (R_SHK, 24), (R_X, 48), (R_WQKV, 56), (R_SSMK, 32), (R_Q, 0), (R_WO, 64), (R_OUT, 72), (R_DBG, 80), (R_WS, 88), (S_DP, 40)]
    for r, off in ptrs:
        e.i(f"s_load_dwordx2 s[{r}:{r+1}], s[0:1], {off}")
    if cfg.span: e.i("s_memrealtime s[100:101]")
    e.i("s_cmp_ge_u32 s2, 256")
    e.i("s_cbranch_scc1 L_end")
    if cfg.stamps:
        e.i(f"s_memrealtime s[{S_TS}:{S_TS+1}]" if cfg.realtime else f"s_memtime s[{S_TS}:{S_TS+1}]")
    e.i(f"v_lshrrev_b32 v3, 6, v0")
    e.i(f"v_and_b32 v{V_LANE}, 63, v0")
    e.i(f"v_readfirstlane_b32 s{S_W}, v3")
    e.i(f"v_lshlrev_b32 v{V_L16}, 4, v{V_LANE}")
    for i in range(4): e.i(f"v_mov_b32 v{4+i}, 0")
    e.i(f"v_mov_b32 v3, {L_MISC + 16}")
    e.i("s_mov_b64 exec, 1")
    e.i("ds_write_b128 v3, v[4:7]")
    e.i("s_mov_b64 exec, -1")
    sizes = {R_K: SZ_SD, R_V: SZ_SD, R_SHK: SZ_SHK, R_SSMK: SZ_SD, R_X: SZ_SD, R_WQKV: SZ_WQKV, R_Q: SZ_SD, R_WO: SZ_WO, R_OUT: SZ_OUT, R_DBG: 256, R_WS: WS_SIZE}
    for r, sz in sizes.items():
        e.i(f"s_mov_b32 s{r+2}, {sz}")
        e.i(f"s_mov_b32 s{r+3}, 0x20000")
    T = S_T0
    e.i(f"s_lshr_b32 s{S_CB}, s2, 5")
    e.i(f"s_min_u32 s{S_CB}, s{S_CB}, 6")
    e.i(f"s_and_b32 s{S_RB}, s2, 31")
    e.i(f"s_cmp_ge_u32 s{S_W}, 4")
    e.i("s_cbranch_scc1 L_roleA")

def ids_b(e, cfg):
    T = S_T0
    hb = {2: 1, 4: 2, 8: 3}[cfg.xmap]
    ng = 16 >> hb
    gb = 4 - hb
    e.i(f"s_and_b32 s{T}, s2, 7")
    e.i(f"s_lshr_b32 s{T+1}, s2, 3")
    e.i(f"s_and_b32 s{S_H}, s{T}, {ng-1}")
    e.i(f"s_lshl_b32 s{S_H}, s{S_H}, {hb}")
    e.i(f"s_and_b32 s{T+2}, s{T+1}, {(1<<hb)-1}")
    e.i(f"s_add_u32 s{S_H}, s{S_H}, s{T+2}")
    e.i(f"s_lshr_b32 s{S_R}, s{T}, {gb}")
    e.i(f"s_lshl_b32 s{S_R}, s{S_R}, {5-hb}")
    e.i(f"s_lshr_b32 s{T+2}, s{T+1}, {hb}")
    e.i(f"s_add_u32 s{S_R}, s{S_R}, s{T+2}")
    e.i(f"s_and_b32 s{S_J}, s{T+1}, {(1<<hb)-1}")
    e.i(f"s_lshl_b32 s{S_J}, s{S_J}, {1 if hb <= 2 else 0}")
    e.i(f"s_lshr_b32 s{T}, s{T+1}, {hb}")
    if hb == 3: e.i(f"s_lshl_b32 s{T}, s{T}, 1")
    e.i(f"s_add_u32 s{S_J}, s{S_J}, s{T}")
    for _ in range(3):
        e.i(f"s_cmp_ge_u32 s{S_J}, 7")
        e.i(f"s_cselect_b32 s{T}, 7, 0")
        e.i(f"s_sub_u32 s{S_J}, s{S_J}, s{T}")

V_KOFF = 4
VA = 48
V_XE, V_XO = 8, 9
V_DMA = 10
V_HOFF = 7
HREG = 116

def addr_a(e, cfg):
    T = S_T0
    e.c("A1 addresses")
    e.i(f"s_lshl_b32 s{T}, s{S_RB}, 6")
    e.i(f"s_lshl_b32 s{T+1}, s{S_W}, 4")
    e.i(f"s_add_u32 s{T}, s{T}, s{T+1}")
    e.i(f"s_mul_i32 s{T}, s{T}, 896")
    e.i(f"s_lshl_b32 s{T+1}, s{S_CB}, 7")
    e.i(f"s_add_u32 s{T}, s{T}, s{T+1}")
    e.i(f"v_lshrrev_b32 v3, 3, v{V_LANE}")
    e.i(f"v_mul_u32_u24 v13, 896, v3")
    e.i(f"v_and_b32 v14, 7, v{V_LANE}")
    e.i(f"v_lshl_add_u32 v15, v14, 4, v13")
    e.i(f"v_add_u32 v{V_KOFF+1}, s{T}, v15")
    e.i(f"v_add_u32 v{V_KOFF+2}, 7168, v{V_KOFF+1}")
    e.i(f"v_subrev_u32 v{V_KOFF}, 7168, v{V_KOFF+1}")
    e.c("h offset")
    e.i(f"s_lshr_b32 s{T}, s{S_W}, 1")
    e.i(f"s_lshl_b32 s{T+1}, s2, 1")
    e.i(f"s_add_u32 s{T}, s{T}, s{T+1}")
    e.i(f"s_lshl_b32 s{T}, s{T}, 12")
    e.i(f"s_and_b32 s{T+1}, s{S_W}, 1")
    e.i(f"s_lshl_b32 s{T+1}, s{T+1}, 11")
    e.i(f"s_add_u32 s{T}, s{T}, s{T+1}")
    e.i(f"v_add_u32 v{V_HOFF}, s{T}, v{V_L16}")

def addr_b(e, cfg):
    T = S_T0
    e.c("B1 x dma offsets: (128r + 32w + (l>>3))*896 + ((l&7) ^ f)*16, f = (l>>4) ^ (4*(t&1))")
    e.i(f"v_lshrrev_b32 v3, 3, v{V_LANE}")
    e.i(f"v_mul_u32_u24 v13, 896, v3")
    e.i(f"v_and_b32 v14, 7, v{V_LANE}")
    e.i(f"s_lshl_b32 s{T}, s{S_R}, 7")
    e.i(f"s_lshl_b32 s{T+1}, s{S_W}, 5")
    e.i(f"s_add_u32 s{T}, s{T}, s{T+1}")
    e.i(f"s_mul_i32 s{T}, s{T}, 896")
    e.i(f"v_lshrrev_b32 v3, 4, v{V_LANE}")
    e.i(f"v_xor_b32 v3, v3, v14")
    e.i(f"v_lshl_add_u32 v15, v3, 4, v13")
    e.i(f"v_add_u32 v{V_XE}, s{T}, v15")
    e.i(f"v_xor_b32 v{V_XO}, 64, v{V_XE}")
    e.c("Wkv dma offsets: row=(l>>3) (+8t), phys half=(l>>2)&1, piece = half ^ ((l>>4)&1), gran = l&3")
    e.i(f"s_mul_i32 s{T}, s{S_H}, 56")
    e.i(f"v_lshrrev_b32 v3, 3, v{V_LANE}")
    e.i(f"v_mul_u32_u24 v{V_DMA}, 2688, v3")
    e.i(f"v_bfe_u32 v13, v{V_LANE}, 2, 1")
    e.i(f"v_bfe_u32 v14, v{V_LANE}, 4, 1")
    e.i(f"v_xor_b32 v13, v13, v14")
    e.i(f"v_and_b32 v3, 3, v{V_LANE}")
    e.i(f"v_mul_u32_u24 v14, 896, v13")
    e.i(f"v_add3_u32 v{V_DMA}, v{V_DMA}, v14, s{T}")
    e.i(f"v_add_u32 v14, 1, v3")
    e.i(f"v_mul_u32_u24 v13, v13, v14")
    e.i(f"v_lshlrev_b32 v14, 3, v3")
    e.i(f"v_sub_u32 v14, v14, v13")
    e.i(f"v_lshl_add_u32 v{V_DMA}, v14, 1, v{V_DMA}")
    e.i(f"v_add_u32 v{V_DMA}, 896, v{V_DMA}")
    e.c("Wq dma offset: row = l>>2, gran = l&3")
    e.i(f"v_lshrrev_b32 v13, 2, v{V_LANE}")
    e.i(f"v_mul_u32_u24 v13, 2688, v13")
    e.i(f"v_lshlrev_b32 v3, 4, v3")
    e.i(f"v_add3_u32 v{V_DMA+1}, v13, v3, s{T}")

def a1_loads(e, cfg):
    T = S_T0
    e.c("A1 loads: k dma x3, shk dma, v x2")
    e.i(f"s_mul_i32 s{T}, s{S_W}, 3072")
    for t in (1, 2, 0):
        e.i(f"s_add_u32 m0, s{T}, {L_KS + 1024*t}")
        if t == 0 and cfg.trim:
            e.i("s_mov_b32 exec_lo, 0")
            e.i("s_mov_b32 exec_hi, 0xffffff00")
        else:
            e.i("s_nop 0")
        e.i(f"buffer_load_dwordx4 v{V_KOFF+t}, {rs(R_K)}, 0 offen{NTF[0]} lds")
    e.i(f"s_lshl_b32 s{T}, s{S_W}, 10")
    e.i(f"s_add_u32 m0, s{T}, {L_SHK}")
    e.i(f"s_lshl_b32 s{T+1}, s{S_CB}, 9")
    if cfg.trim:
        e.i("s_mov_b32 exec_lo, -1")
        e.i("s_mov_b32 exec_hi, 0")
    e.i(f"buffer_load_dwordx4 v{V_L16}, {rs(R_SHK)}, s{T+1} offen{NTF[0]} lds")
    if cfg.trim: e.i("s_mov_b64 exec, -1")
    for it in range(2):
        e.i(f"buffer_load_dwordx4 {vr(VA+4*it,4)}, v{V_KOFF+1+it}, {rs(R_V)}, 0 offen{NTF[0]}")

def h_loads(e, cfg):
    e.i(f"buffer_load_dwordx4 {vr(HREG,4)}, v{V_HOFF}, {rs(R_SSMK)}, 0 offen{NTF[0]}")
    e.i(f"buffer_load_dwordx4 {vr(HREG+4,4)}, v{V_HOFF}, {rs(R_SSMK)}, 0 offen offset:1024{NTF[0]}")

V_PF = 4
def l2_prefetch_addr(e, cfg):
    assert cfg.xmap == 8
    T = S_T0
    e.i(f"s_and_b32 s{T}, s2, 7")
    e.i(f"s_lshr_b32 s{T}, s{T}, 1")
    e.i(f"s_mul_i32 s{T}, s{T}, {512*896}")
    e.i(f"s_lshr_b32 s{T+1}, s2, 3")
    e.i(f"s_mul_i32 s{T+2}, s{T+1}, 14336")
    e.i(f"s_add_u32 s{T}, s{T}, s{T+2}")
    e.i(f"s_lshl_b32 s{T+2}, s{S_W}, 12")
    e.i(f"s_add_u32 s{T}, s{T}, s{T+2}")
    e.i(f"v_lshlrev_b32 v3, 6, v{V_LANE}")
    e.i(f"v_add_u32 v{V_PF}, s{T}, v3")
    e.i(f"s_mul_i32 s{T+1}, s{T+1}, 14")
    e.i(f"s_and_b32 s{T+2}, s2, 1")
    e.i(f"s_mul_i32 s{T+2}, s{T+2}, 448")
    for k, base in ((1, None), (2, 256)):
        if base is None:
            e.i(f"s_lshl_b32 s{T}, s{S_W}, 6")
            e.i(f"v_add_u32 v3, s{T}, v{V_LANE}")
        else:
            e.i(f"v_add_u32 v3, {base}, v{V_LANE}")
        e.i(f"v_mul_u32_u24 v13, 49933, v3")
        e.i(f"v_lshrrev_b32 v13, 20, v13")
        e.i(f"v_mul_u32_u24 v14, 21, v13")
        e.i(f"v_sub_u32 v3, v3, v14")
        e.i(f"v_mul_u32_u24 v14, 37, v3")
        e.i(f"v_lshrrev_b32 v14, 8, v14")
        e.i(f"v_mul_u32_u24 v15, 7, v14")
        e.i(f"v_sub_u32 v3, v3, v15")
        e.i(f"v_mul_u32_u24 v14, 896, v14")
        e.i(f"v_lshl_add_u32 v14, v3, 6, v14")
        e.i(f"v_add_u32 v13, s{T+1}, v13")
        e.i(f"v_mul_u32_u24 v13, 2688, v13")
        e.i(f"v_add3_u32 v{V_PF+k}, v13, v14, s{T+2}")

def l2_prefetch(e, cfg):
    e.i(f"buffer_load_dword v244, v{V_PF}, {rs(R_X)}, 0 offen")
    e.i(f"buffer_load_dword v245, v{V_PF+1}, {rs(R_WQKV)}, 0 offen")
    e.i(f"s_cmp_lg_u32 s{S_W}, 0")
    e.i("s_cbranch_scc1 L_nopf2")
    e.i("s_mov_b32 exec_lo, -1")
    e.i("s_mov_b32 exec_hi, 0x3f")
    e.i(f"buffer_load_dword v246, v{V_PF+2}, {rs(R_WQKV)}, 0 offen")
    e.i("s_mov_b64 exec, -1")
    e.label("L_nopf2")

S_XL, S_WL, S_WS0 = 82, 83, 84
S_SX, S_SW = 85, 86
S_J0 = 80
def b1_consts(e):
    e.i(f"s_lshl_b32 s{S_XL}, s{S_W}, 12")
    e.i(f"s_lshl_b32 s{S_WL}, s{S_W}, 11")
    e.i(f"s_add_u32 s{S_WL}, s{S_WL}, 16384")
    e.i(f"s_mul_i32 s{S_WS0}, s{S_W}, 43008")
    e.i(f"s_mov_b32 s{S_SLI}, {L_RING}")
    e.i(f"s_mov_b32 s{S_J0}, s{S_J}")

def adv_j():
    return [f"s_add_u32 s{S_J}, s{S_J}, 1", f"s_cmp_eq_u32 s{S_J}, 7", f"s_cselect_b32 s{S_J}, 0, s{S_J}"]

def b1_issue_pieces():
    T = S_T0
    p = []
    p.append([f"s_lshl_b32 s{S_SX}, s{S_J}, 7",
              f"s_mul_i32 s{S_SW}, s{S_J}, 172032",
              f"s_add_u32 s{S_SW}, s{S_SW}, s{S_WS0}",
              f"s_add_u32 s{T}, s{S_SLI}, s{S_XL}",
              f"s_add_u32 s{T+1}, s{S_SLI}, s{S_WL}"])
    for t in range(4):
        l = []
        if t == 0: l.append(f"s_mov_b32 m0, s{T}")
        else:
            l.append(f"s_add_u32 m0, s{T}, {1024*t}")
            l.append(f"s_add_u32 s{S_SX}, s{S_SX}, 7168")
        if t == 0: l.append("s_nop 0")
        l.append(f"buffer_load_dwordx4 v{V_XE if t % 2 == 0 else V_XO}, {rs(R_X)}, s{S_SX} offen{NTX[0]} lds")
        p.append(l)
    for t in range(2):
        l = [f"s_add_u32 m0, s{T+1}, {1024*t}" if t else f"s_mov_b32 m0, s{T+1}"]
        if t: l.append(f"s_add_u32 s{S_SW}, s{S_SW}, {8*2688}")
        else: l.append("s_nop 0")
        l.append(f"buffer_load_dwordx4 v{V_DMA}, {rs(R_WQKV)}, s{S_SW} offen{NTW[0]} lds")
        if t == 1:
            l += adv_j() + [f"s_add_u32 s{S_SLI}, s{S_SLI}, {SLOT}",
                  f"s_cmp_eq_u32 s{S_SLI}, {NSLOT*SLOT + L_RING}",
                  f"s_cselect_b32 s{S_SLI}, {L_RING}, s{S_SLI}"]
        p.append(l)
    return p

def wq_issue_pieces():
    T = S_T0
    p = []
    for pos in range(7):
        l = []
        if pos == 0: l.append(f"s_mov_b32 s{S_J}, s{S_J0}")
        l += [f"s_mul_i32 s{S_SW}, s{S_J}, 172032",
              f"s_add_u32 s{S_SW}, s{S_SW}, s{S_WS0}",
              f"s_lshl_b32 s{T}, s{S_W}, 10",
              f"s_add_u32 m0, s{T}, {L_WQ + 4096*pos}"]
        l += adv_j()
        l.append(f"buffer_load_dwordx4 v{V_DMA+1}, {rs(R_WQKV)}, s{S_SW} offen{NTW[0]} lds")
        p.append(l)
    return p

def b1_issue(e):
    for pc in b1_issue_pieces():
        for ln in pc: e.i(ln)

KA, WSH = 16, 124
def a1_compute(e, cfg, nyounger):
    T = S_T0
    e.c("A1 compute")
    e.i(f"s_mul_i32 s{T}, s{S_W}, 3072")
    e.i(f"s_add_u32 s{T}, s{T}, {L_KS}")
    e.i(f"v_add_u32 v3, s{T}, v{V_L16}")
    e.i(f"s_lshl_b32 s{T}, s{S_W}, 10")
    e.i(f"s_add_u32 s{T}, s{T}, {L_SHK}")
    e.i(f"v_and_b32 v14, 7, v{V_LANE}")
    e.i(f"v_lshlrev_b32 v13, 6, v14")
    e.i(f"v_add_u32 v13, s{T}, v13")
    e.i(f"s_waitcnt vmcnt({nyounger})")
    stamp(e, cfg, 20)
    for m in range(4):
        e.i(f"ds_read_b128 {vr(WSH+4*m,4)}, v13 offset:{16*m}")
    for it in range(2):
        for j in range(4):
            e.i(f"ds_read_b128 {vr(KA+16*it+4*j,4)}, v3 offset:{(8+8*it-j)*128}")
    e.i(f"s_mov_b32 s{T}, 0x05040100")
    e.i(f"s_mov_b32 s{T+1}, 0x07060302")
    e.i(f"s_mov_b32 s{T+2}, 0xffff0000")
    TT = 76; OUTR = 108
    for it in range(2):
        e.i(f"s_waitcnt lgkmcnt({4 if it == 0 else 0})")
        for m in range(4):
            k = lambda j: KA + 16*it + 4*j + m
            b = TT + 4*m
            e.i(f"v_perm_b32 v{b+0}, v{k(1)}, v{k(0)}, s{T}")
            e.i(f"v_perm_b32 v{b+1}, v{k(1)}, v{k(0)}, s{T+1}")
            e.i(f"v_perm_b32 v{b+2}, v{k(3)}, v{k(2)}, s{T}")
            e.i(f"v_perm_b32 v{b+3}, v{k(3)}, v{k(2)}, s{T+1}")
        A = TT + 16
        for m in range(4):
            b = TT + 4*m
            e.i(f"v_dot2_f32_bf16 v{A+2*m}, v{b+0}, v{WSH+4*m+0}, 0")
            e.i(f"v_dot2_f32_bf16 v{A+2*m+1}, v{b+1}, v{WSH+4*m+2}, 0")
        U = TT + 24
        for m in range(4):
            e.i(f"v_lshlrev_b32 v{U+2*m}, 16, v{VA+4*it+m}")
            e.i(f"v_and_b32 v{U+2*m+1}, s{T+2}, v{VA+4*it+m}")
        for m in range(4):
            b = TT + 4*m
            e.i(f"v_dot2_f32_bf16 v{A+2*m}, v{b+2}, v{WSH+4*m+1}, v{A+2*m}")
            e.i(f"v_dot2_f32_bf16 v{A+2*m+1}, v{b+3}, v{WSH+4*m+3}, v{A+2*m+1}")
        e.i("s_nop 2")
        for c in range(8):
            e.i(f"v_mul_f32 v{A+c}, v{A+c}, v{U+c}")
        for m in range(4):
            e.i(f"v_cvt_pk_bf16_f32 v{OUTR+4*it+m}, v{A+2*m}, v{A+2*m+1}")
A1_W, A1_TR, A1_RW, A1_RR, A1_G = 140, 141, 142, 143, 144
def a1_addr2(e, cfg):
    T = S_T0
    e.i(f"v_and_b32 v14, 7, v{V_LANE}")
    e.i(f"s_mul_i32 s{T}, s{S_W}, {16*144}")
    e.i(f"s_add_u32 s{T}, s{T}, {L_KVT}")
    e.i(f"v_lshrrev_b32 v13, 3, v{V_LANE}")
    e.i(f"v_mul_u32_u24 v15, 144, v13")
    e.i(f"v_lshl_add_u32 v15, v14, 4, v15")
    e.i(f"v_add_u32 v{A1_W}, s{T}, v15")
    e.i(f"v_lshrrev_b32 v3, 4, v{V_LANE}")
    e.i(f"v_lshlrev_b32 v3, 3, v3")
    e.i(f"v_bfe_u32 v16, v{V_LANE}, 2, 2")
    e.i(f"v_add_u32 v3, v3, v16")
    e.i(f"v_mul_u32_u24 v3, 144, v3")
    e.i(f"v_and_b32 v16, 3, v{V_LANE}")
    e.i(f"v_lshlrev_b32 v16, 3, v16")
    e.i(f"s_lshl_b32 s{T}, s{S_W}, 5")
    e.i(f"s_add_u32 s{T}, s{T}, {L_KVT}")
    e.i(f"v_add3_u32 v{A1_TR}, v3, v16, s{T}")
    e.i(f"s_mul_i32 s{T}, s{S_W}, 3072")
    e.i(f"s_add_u32 s{T}, s{T}, {L_KS}")
    e.i(f"v_and_b32 v16, 15, v{V_LANE}")
    e.i(f"v_mul_u32_u24 v16, 144, v16")
    e.i(f"v_and_b32 v17, 0x30, v{V_LANE}")
    e.i(f"v_add3_u32 v{A1_RW}, v16, v17, s{T}")
    e.i(f"v_add_u32 v{A1_RR}, s{T}, v15")
    e.i(f"v_lshlrev_b32 v18, 12, v13")
    e.i(f"v_lshl_add_u32 v{A1_G}, v14, 4, v18")
    e.i(f"s_lshl_b32 s{T}, s{S_CB}, 6")
    e.i(f"s_lshl_b32 s{T+1}, s{S_W}, 4")
    e.i(f"s_add_u32 s{T}, s{T}, s{T+1}")
    e.i(f"s_lshl_b32 s{T}, s{T}, 12")
    e.i(f"s_lshl_b32 s{T+1}, s{S_RB}, 7")
    e.i(f"s_add_u32 s{T}, s{T}, s{T+1}")
    e.i(f"s_add_u32 s{S_T1}, s{T}, {WS_XT}")
    e.i(f"s_add_u32 s{S_T1+1}, s{S_T1}, {8*4096}")

def a1_compute_b(e, cfg):
    OUTR = 108
    e.i(f"ds_write_b128 v{A1_W}, {vr(OUTR,4)}")
    e.i(f"ds_write_b128 v{A1_W}, {vr(OUTR+4,4)} offset:{8*144}")
    swbar(e)
    for it2 in range(2):
        for jj in range(2):
            e.i(f"ds_read_b64_tr_b16 {vr(76+4*it2+2*jj,2)}, v{A1_TR} offset:{(32*it2+4*jj)*144}")
    e.i("s_waitcnt lgkmcnt(2)")
    e.i(f"ds_write_b128 v{A1_RW}, {vr(76,4)}")
    e.i("s_waitcnt lgkmcnt(1)")
    e.i(f"ds_write_b128 v{A1_RW}, {vr(80,4)} offset:64")
    e.i("s_waitcnt lgkmcnt(0)")
    e.i(f"ds_read_b128 {vr(84,4)}, v{A1_RR}")
    e.i(f"ds_read_b128 {vr(88,4)}, v{A1_RR} offset:{8*144}")
    e.i("s_waitcnt lgkmcnt(1)")
    e.i(f"buffer_store_dwordx4 {vr(84,4)}, v{A1_G}, {rs(R_WS)}, s{S_T1} offen sc1")
    e.i("s_waitcnt lgkmcnt(0)")
    e.i(f"buffer_store_dwordx4 {vr(88,4)}, v{A1_G}, {rs(R_WS)}, s{S_T1+1} offen sc1")

V_NONCE = 240
def nonce_early(e, cfg):
    e.i(f"v_mov_b32 v{V_NONCE+2}, 0")
    e.i(f"buffer_load_dwordx2 v[{V_NONCE}:{V_NONCE+1}], v{V_NONCE+2}, {rs(R_DBG)}, 0 offen sc1")

def get_nonce(e, cfg):
    e.c("fetch nonce (early load, else poll d_debug)")
    e.i(f"v_readfirstlane_b32 s{S_NONCE}, v{V_NONCE}")
    e.i(f"v_readfirstlane_b32 s{S_NONCE+1}, v{V_NONCE+1}")
    e.i("s_nop 3")
    e.i(f"s_or_b32 s{S_T0}, s{S_NONCE}, s{S_NONCE+1}")
    e.i(f"s_cbranch_scc1 L_nonce_done{ROLE[0]}")
    e.i(f"s_mov_b32 s{S_IT}, 0x40000")
    e.label(f"L_nonce{ROLE[0]}")
    e.i(f"buffer_load_dwordx2 v[{V_NONCE}:{V_NONCE+1}], v{V_NONCE+2}, {rs(R_DBG)}, 0 offen sc1")
    e.i("s_waitcnt vmcnt(0)")
    e.i(f"v_readfirstlane_b32 s{S_NONCE}, v{V_NONCE}")
    e.i(f"v_readfirstlane_b32 s{S_NONCE+1}, v{V_NONCE+1}")
    e.i("s_nop 3")
    e.i(f"s_or_b32 s{S_T0}, s{S_NONCE}, s{S_NONCE+1}")
    e.i(f"s_cbranch_scc1 L_nonce_done{ROLE[0]}")
    e.i(f"s_sub_u32 s{S_IT}, s{S_IT}, 1")
    e.i(f"s_cbranch_scc1 L_nonce_done{ROLE[0]}")
    e.i("s_sleep 2")
    e.i(f"s_branch L_nonce{ROLE[0]}")
    e.label(f"L_nonce_done{ROLE[0]}")

def publish(e, cfg, arr, idx_lines, tmp=4):
    T = S_T0
    for ln in idx_lines: e.i(ln)
    e.i(f"s_lshl_b32 s{T}, s{T}, 2")
    e.i(f"s_add_u32 s{T}, s{T}, s{S_W}")
    e.i(f"s_lshl_b32 s{T}, s{T}, {FL_SH}")
    e.i(f"s_add_u32 s{T}, s{T}, {WS_FL + arr}")
    e.i(f"v_mov_b32 v{tmp}, s{S_NONCE}")
    e.i(f"v_mov_b32 v{tmp+1}, s{S_NONCE+1}")
    e.i(f"v_mov_b32 v{tmp+2}, 0")
    e.i("s_mov_b64 exec, 1")
    e.i(f"buffer_store_dwordx2 v[{tmp}:{tmp+1}], v{tmp+2}, {rs(R_WS)}, s{T} offen sc1")
    e.i("s_mov_b64 exec, -1")

def poll(e, cfg, arr, vidx, tag, tmp=4, sleep=None, tmp2=244):
    e.c(f"poll {tag}")
    e.i(f"v_lshlrev_b32 v{vidx}, {FL_SH}, v{vidx}")
    e.i(f"v_add_u32 v{vidx}, {WS_FL + arr}, v{vidx}")
    if cfg.nosync: return
    e.i(f"s_mov_b32 s{S_IT}, 0x40000")
    if cfg.poll2 and ROLE[0] == "B":
        e.i(f"buffer_load_dwordx2 v[{tmp}:{tmp+1}], v{vidx}, {rs(R_WS)}, 0 offen sc1")
        e.label(f"L_poll_{tag}")
        e.i(f"s_sleep 1")
        e.i(f"buffer_load_dwordx2 v[{tmp2}:{tmp2+1}], v{vidx}, {rs(R_WS)}, 0 offen sc1")
        e.i("s_waitcnt vmcnt(1)")
        e.i(f"v_cmp_ne_u64 vcc, s[{S_NONCE}:{S_NONCE+1}], v[{tmp}:{tmp+1}]")
        e.i(f"s_cbranch_vccz L_poll_done_{tag}")
        e.i(f"s_sleep 1")
        e.i(f"buffer_load_dwordx2 v[{tmp}:{tmp+1}], v{vidx}, {rs(R_WS)}, 0 offen sc1")
        e.i("s_waitcnt vmcnt(1)")
        e.i(f"v_cmp_ne_u64 vcc, s[{S_NONCE}:{S_NONCE+1}], v[{tmp2}:{tmp2+1}]")
        e.i(f"s_cbranch_vccz L_poll_done_{tag}")
        e.i(f"s_sub_u32 s{S_IT}, s{S_IT}, 1")
        e.i(f"s_cbranch_scc0 L_poll_{tag}")
    else:
        e.label(f"L_poll_{tag}")
        e.i(f"buffer_load_dwordx2 v[{tmp}:{tmp+1}], v{vidx}, {rs(R_WS)}, 0 offen sc1")
        e.i("s_waitcnt vmcnt(0)")
        e.i(f"v_cmp_ne_u64 vcc, s[{S_NONCE}:{S_NONCE+1}], v[{tmp}:{tmp+1}]")
        e.i(f"s_cbranch_vccz L_poll_done_{tag}")
        e.i(f"s_sub_u32 s{S_IT}, s{S_IT}, 1")
        e.i(f"s_cbranch_scc1 L_poll_done_{tag}")
        e.i(f"s_sleep {sleep if sleep is not None else (cfg.bsleep if ROLE[0] == 'B' else 3)}")
        e.i(f"s_branch L_poll_{tag}")
    e.label(f"L_poll_done_{tag}")

ACCQ, ACCK, ACCV = 224, 128, 144
XK = 16
WF = 176
V_WTR = 208
V_WQ = 220
V_XR = 212
KVB = 160
def b1_traddr(e, cfg):
    T = S_T0
    e.c("B1 lds read addresses")
    e.i(f"v_lshrrev_b32 v3, 5, v{V_LANE}")
    e.i(f"v_lshlrev_b32 v4, 3, v3")
    e.i(f"v_bfe_u32 v13, v{V_LANE}, 2, 2")
    e.i(f"v_add_u32 v4, v4, v13")
    e.i(f"v_bfe_u32 v5, v{V_LANE}, 4, 1")
    e.i(f"v_and_b32 v6, 3, v{V_LANE}")
    e.i(f"v_lshlrev_b32 v14, 6, v4")
    e.i(f"v_lshl_add_u32 v14, v5, 5, v14")
    e.i(f"v_lshl_add_u32 v14, v6, 3, v14")
    e.i(f"v_add_u32 v{V_WQ}, {L_WQ}, v14")
    e.i(f"v_lshlrev_b32 v14, 7, v4")
    e.i(f"v_lshl_add_u32 v14, v5, 5, v14")
    e.i(f"v_add_u32 v14, 16384, v14")
    e.i(f"v_bfe_u32 v15, v13, 1, 1")
    e.i(f"v_lshlrev_b32 v7, 6, v15")
    e.i(f"v_add_u32 v7, v7, v14")
    e.i(f"v_lshl_add_u32 v{V_WTR}, v6, 3, v7")
    e.i(f"v_xor_b32 v15, 1, v15")
    e.i(f"v_lshlrev_b32 v7, 6, v15")
    e.i(f"v_add_u32 v7, v7, v14")
    e.i(f"v_and_b32 v15, 1, v6")
    e.i(f"v_lshl_add_u32 v7, v15, 4, v7")
    e.i(f"v_lshrrev_b32 v15, 1, v6")
    e.i(f"v_lshl_add_u32 v{V_WTR+1}, v15, 3, v7")
    e.i(f"v_and_b32 v13, 31, v{V_LANE}")
    e.i(f"v_bfe_u32 v14, v{V_LANE}, 1, 3")
    e.i(f"v_xor_b32 v14, v14, v3")
    e.i(f"v_lshlrev_b32 v14, 4, v14")
    e.i(f"v_lshl_add_u32 v14, v13, 7, v14")
    e.i(f"s_lshl_b32 s{T}, s{S_W}, 12")
    e.i(f"v_add_u32 v{V_XR}, s{T}, v14")
    for n in range(1, 4):
        e.i(f"v_xor_b32 v{V_XR+n}, {32*n}, v{V_XR}")

def b1_reads(e, p, n):
    s = WF + 8 * (n & 1)
    e.i(f"ds_read_b128 {vr(XK+4*(4*p+n),4)}, v{V_XR+4+n}")
    for j in range(2):
        e.i(f"ds_read_b64_tr_b16 {vr(s+2*j,2)}, v{V_WTR+2} offset:{n*2048 + j*512}")
    for j in range(2):
        e.i(f"ds_read_b64_tr_b16 {vr(s+4+2*j,2)}, v{V_WTR+3} offset:{n*2048 + j*512}")

def b1_mfma(e, p, n):
    s = WF + 8 * (n & 1)
    x = vr(XK+4*(4*p+n), 4)
    first = (p == 0 and n == 0)
    e.i(f"v_mfma_f32_32x32x16_bf16 {vr(ACCK,16)}, {vr(s,4)}, {x}, {'0' if first else vr(ACCK,16)}")
    e.i(f"v_mfma_f32_32x32x16_bf16 {vr(ACCV,16)}, {x}, {vr(s+4,4)}, {'0' if first else vr(ACCV,16)}")

def b1_addr_slot(e):
    for n in range(4):
        e.i(f"v_add_u32 v{V_XR+4+n}, s{S_SLC}, v{V_XR+n}")
    e.i(f"v_add_u32 v{V_WTR+2}, s{S_SLC}, v{V_WTR}")
    e.i(f"v_add_u32 v{V_WTR+3}, s{S_SLC}, v{V_WTR+1}")
    e.i(f"s_add_u32 s{S_SLC}, s{S_SLC}, {SLOT}")
    e.i(f"s_cmp_eq_u32 s{S_SLC}, {NSLOT*SLOT + L_RING}")
    e.i(f"s_cselect_b32 s{S_SLC}, {L_RING}, s{S_SLC}")

def b1_body(e, cfg, p, pcs, wait_next):
    a, one, tmp = bar_regs()
    sched = {0: pcs[0:4], 1: pcs[4:], 2: []}
    for n in range(3):
        if n == 2 and wait_next is not None:
            if cfg.fine: stamp(e, cfg, 32 + p)
            e.i(f"s_waitcnt vmcnt({wait_next})")
            if cfg.fine: stamp(e, cfg, 25 + p)
            e.i(f"s_add_u32 s{S_BT}, s{S_BT}, 4")
            sw_arrive(e)
        b1_reads(e, p, n + 1)
        e.i("s_waitcnt lgkmcnt(5)")
        b1_mfma(e, p, n)
        for pc in sched.get(n, []):
            for ln in pc: e.i(ln)
    if wait_next is not None:
        sw_wait(e, a, target_sgpr=S_BT)
        if cfg.fine: stamp(e, cfg, 52 + p)
        b1_addr_slot(e)
        b1_reads(e, p + 1, 0)
    else:
        e.i("s_waitcnt lgkmcnt(0)")
    b1_mfma(e, p, 3)

def b1_loop(e, cfg):
    e.i(f"s_mov_b32 s{S_SLC}, {L_RING}")
    e.i(f"s_waitcnt vmcnt({6 + 1})")
    swbar(e)
    b1_addr_slot(e)
    b1_reads(e, 0, 0)
    waits = [7, 6, 6, 6, 6, 7, None]
    for p in range(7):
        if p <= 4: pcs = b1_issue_pieces()
        elif p == 5: pcs = wq_issue_pieces()
        else: pcs = []
        b1_body(e, cfg, p, pcs, waits[p])
        if p == 3: stamp(e, cfg, 24)

def b1_q(e, cfg, mid=None, midk=16):
    NB = 4
    def rd(k):
        p, n = divmod(k, 4)
        b = WF + 4 * (k % NB)
        for j in range(2):
            e.i(f"ds_read_b64_tr_b16 {vr(b+2*j,2)}, v{V_WQ} offset:{p*4096 + n*1024 + j*256}")
    for k in range(NB - 1): rd(k)
    for k in range(28):
        if k + NB - 1 < 28: rd(k + NB - 1)
        e.i(f"s_waitcnt lgkmcnt({2 * min(NB - 1, 27 - k)})")
        b = WF + 4 * (k % NB)
        e.i(f"v_mfma_f32_32x32x16_bf16 {vr(ACCQ,16)}, {vr(b,4)}, {vr(XK+4*k,4)}, {'0' if k == 0 else vr(ACCQ,16)}")
        if mid is not None and k == midk: mid()

def b1_epilogue_kv(e, cfg):
    T = S_T0
    e.c("B1 epilogue (K, V)")
    e.i(f"s_mov_b32 s{S_MHH}, 0")
    e.i(f"s_mov_b32 s{S_MHH+1}, -1")
    m = (1 << 0) | (1 << 4) | (1 << 16) | (1 << 20)
    e.i(f"s_mov_b32 s{S_MONE}, {m}")
    e.i(f"s_mov_b32 s{S_MONE+1}, {m}")
    e.i(f"v_mov_b32 v14, 0x3f803f80")
    e.i(f"s_lshl_b32 s{T}, s{S_H}, 18")
    e.i(f"s_lshl_b32 s{T+1}, s{S_R}, 2")
    e.i(f"s_add_u32 s{T+1}, s{T+1}, s{S_W}")
    e.i(f"s_lshl_b32 s{T+1}, s{T+1}, 12")
    e.i(f"s_add_u32 s{T}, s{T}, s{T+1}")
    if WS_KV: e.i(f"s_add_u32 s{T}, s{T}, {WS_KV}")
    e.i("s_nop 4")
    for m_ in range(8):
        e.i(f"v_cvt_pk_bf16_f32 v{KVB+m_}, v{ACCK+2*m_}, v{ACCK+2*m_+1}")
    for m_ in (6, 7):
        e.i(f"v_cndmask_b32 v{KVB+m_}, v{KVB+m_}, v14, s[{S_MHH}:{S_MHH+1}]")
    for m_ in range(8):
        e.i(f"v_cvt_pk_bf16_f32 v{KVB+8+m_}, v{ACCV+2*m_}, v{ACCV+2*m_+1}")
    for f in range(2):
        e.i(f"buffer_store_dwordx4 {vr(KVB+4*f,4)}, v{V_L16}, {rs(R_WS)}, s{T} offen offset:{1024*f} sc1")
    for m_ in range(8):
        e.i(f"v_cndmask_b32 v{KVB+8+m_}, v{KVB+8+m_}, v14, s[{S_MONE}:{S_MONE+1}]")
    for f in range(2, 4):
        e.i(f"buffer_store_dwordx4 {vr(KVB+4*f,4)}, v{V_L16}, {rs(R_WS)}, s{T} offen offset:{1024*f} sc1")
    if cfg.tags:
        for i in range(4): e.i(f"v_mov_b32 v{4+i}, 0")
        o_addr(e)
        e.i(f"buffer_store_dwordx4 v[4:7], v{V_L16}, {rs(R_WS)}, s{S_OA} offen sc1")
        e.i(f"buffer_store_dwordx4 v[4:7], v{V_L16}, {rs(R_WS)}, s{S_OA} offen offset:1024 sc1")

S_OA = 75
def o_addr(e):
    T = S_T0
    e.i(f"s_lshl_b32 s{T}, s{S_R}, 2")
    e.i(f"s_add_u32 s{T}, s{T}, s{S_W}")
    e.i(f"s_lshl_b32 s{T}, s{T}, 4")
    e.i(f"s_add_u32 s{T}, s{T}, s{S_H}")
    e.i(f"s_lshl_b32 s{T}, s{T}, 11")
    e.i(f"s_add_u32 s{S_OA}, s{T}, {WS_OF}")

def b1_epilogue_q(e, cfg):
    T = S_T0
    e.i(f"s_mov_b32 s{T+2}, {f2u(QSCALE)}")
    e.i(f"s_lshl_b32 s{T+1}, s{S_W}, 11")
    e.i(f"s_add_u32 s{T+1}, s{T+1}, {L_Q}")
    e.i(f"v_add_u32 v3, s{T+1}, v{V_L16}")
    e.i("s_nop 7")
    e.i("s_nop 1")
    QP = 16
    for i in range(16):
        e.i(f"v_mul_f32 v{ACCQ+i}, s{T+2}, v{ACCQ+i}")
    for m_ in range(8):
        e.i(f"v_cvt_pk_bf16_f32 v{QP+m_}, v{ACCQ+2*m_}, v{ACCQ+2*m_+1}")
    for m_ in (6, 7):
        e.i(f"v_cndmask_b32 v{QP+m_}, v{QP+m_}, 0, s[{S_MHH}:{S_MHH+1}]")
    e.i(f"ds_write_b128 v3, {vr(QP,4)}")
    e.i(f"ds_write_b128 v3, {vr(QP+4,4)} offset:1024")

def a2_dload(e, cfg):
    e.i(f"s_min_u32 s{S_T0}, s2, 223")
    e.i(f"s_lshl_b32 s{S_T0}, s{S_T0}, 2")
    e.i(f"s_load_dword s{S_D2}, s[{S_DP}:{S_DP+1}], s{S_T0}")

def a2_hstage(e, cfg):
    T = S_T0
    e.c("A2: stage h into LDS (with h0 += D), zero pads")
    e.i(f"s_lshr_b32 s{T}, s{S_W}, 1")
    e.i(f"s_lshl_b32 s{T+1}, s{S_D2}, 16")
    e.i(f"s_and_b32 s{T+2}, s{S_D2}, 0xffff0000")
    e.i(f"s_cmp_eq_u32 s{T}, 0")
    e.i(f"s_cselect_b32 s{T+1}, s{T+1}, s{T+2}")
    e.i(f"v_lshlrev_b32 v3, 16, v{HREG}")
    e.i(f"v_add_f32 v3, s{T+1}, v3")
    e.i(f"v_cvt_pk_bf16_f32 v3, v3, v3")
    e.i(f"s_mov_b32 s{T+2}, 0xffff")
    e.i(f"v_bfi_b32 v3, s{T+2}, v3, v{HREG}")
    e.i(f"s_and_b32 s{T+2}, s{S_W}, 1")
    e.i(f"s_xor_b32 s{T+4}, s{T+2}, 1")
    e.i(f"s_mov_b32 s{T+5}, 0")
    e.i(f"v_cndmask_b32 v{HREG}, v{HREG}, v3, s[{T+4}:{T+5}]")
    e.i(f"s_mul_i32 s{T+1}, s{T}, {H_CH}")
    e.i(f"s_add_u32 s{T+1}, s{T+1}, {L_H}")
    e.i(f"v_add_u32 v13, s{T+1}, v{V_L16}")
    e.i(f"s_lshl_b32 s{T+2}, s{T+2}, 11")
    e.i(f"s_add_u32 s{T+2}, s{T+2}, 64")
    e.i(f"v_add_u32 v3, s{T+2}, v13")
    e.i(f"ds_write_b128 v3, {vr(HREG,4)}")
    e.i(f"ds_write_b128 v3, {vr(HREG+4,4)} offset:1024")
    for i in range(4): e.i(f"v_mov_b32 v{76+i}, 0")
    e.i(f"s_mul_i32 s{T+1}, s{T}, {X_CH}")
    e.i(f"s_add_u32 s{T+1}, s{T+1}, {L_X}")
    e.i(f"v_add_u32 v14, s{T+1}, v{V_L16}")
    e.i(f"s_mov_b64 exec, 0xf")
    e.i(f"ds_write_b128 v13, {vr(76,4)}")
    e.i(f"s_mov_b32 exec_lo, -1")
    e.i(f"s_mov_b32 exec_hi, 0xf")
    e.i(f"ds_write_b128 v14, {vr(76,4)}")
    e.i(f"s_mov_b64 exec, -1")

CACC = 64
XFR = 128
HR = 16
V_HA = 48
V_XA = 49
QPF = 40
V_A3OFF = 56
def a3_qaddr(e, cfg):
    T = S_T0
    e.c("A3 addresses: row = 64 rb + 16 w + 8 it + (l>>3), piece l&7")
    e.i(f"s_lshl_b32 s{T}, s{S_RB}, 6")
    e.i(f"s_lshl_b32 s{T+1}, s{S_W}, 4")
    e.i(f"s_add_u32 s{T}, s{T}, s{T+1}")
    e.i(f"s_mul_i32 s{T+1}, s{T}, 896")
    e.i(f"s_mul_i32 s{T+2}, s{T}, 1792")
    e.i(f"s_lshl_b32 s{T+3}, s{S_CB}, 7")
    e.i(f"s_add_u32 s{T+1}, s{T+1}, s{T+3}")
    e.i(f"s_add_u32 s{T+2}, s{T+2}, s{T+3}")
    e.i(f"v_lshrrev_b32 v3, 3, v{V_LANE}")
    e.i(f"v_and_b32 v13, 7, v{V_LANE}")
    e.i(f"v_lshlrev_b32 v13, 4, v13")
    e.i(f"v_mul_u32_u24 v14, 896, v3")
    e.i(f"v_add3_u32 v{V_A3OFF}, v14, v13, s{T+1}")
    e.i(f"v_mul_u32_u24 v14, 1792, v3")
    e.i(f"v_add3_u32 v{V_A3OFF+1}, v14, v13, s{T+2}")

V_WO = 58
def wo_addr(e, cfg):
    T = S_T0
    e.i(f"v_lshrrev_b32 v3, 3, v{V_LANE}")
    e.i(f"v_mul_u32_u24 v3, 896, v3")
    e.i(f"v_bfe_u32 v13, v{V_LANE}, 2, 1")
    e.i(f"v_bfe_u32 v14, v{V_LANE}, 4, 1")
    e.i(f"v_xor_b32 v13, v13, v14")
    e.i(f"v_lshlrev_b32 v13, 6, v13")
    e.i(f"v_and_b32 v14, 3, v{V_LANE}")
    e.i(f"v_lshlrev_b32 v14, 4, v14")
    e.i(f"v_add3_u32 v3, v3, v13, v14")
    e.i(f"s_lshl_b32 s{T}, s{S_CB}, 7")
    e.i(f"v_add_u32 v{V_WO}, s{T}, v3")

def wo_first(e, cfg):
    T = S_T0
    e.i(f"s_cmp_eq_u32 s{S_W}, 0")
    e.i(f"s_cselect_b32 s{T+2}, 896, 0")
    e.i(f"v_subrev_u32 v4, s{T+2}, v{V_WO}")
    e.i(f"s_mul_i32 s{T+1}, s{S_W}, 7168")
    e.i(f"s_sub_u32 s{T+1}, s{T+1}, 896")
    e.i(f"s_max_i32 s{T+1}, s{T+1}, 0")
    e.i(f"s_lshl_b32 s{T}, s{S_W}, 10")
    e.i(f"s_add_u32 m0, s{T}, {L_WO}")
    e.i("s_nop 0")
    e.i(f"buffer_load_dwordx4 v4, {rs(R_WO)}, s{T+1} offen{NTO[0]} lds")
    e.i(f"s_mov_b32 m0, {L_WO + 56*1024}")
    e.i(f"s_mov_b32 s{T+1}, {56*7168 - 896}")
    e.i(f"buffer_load_dwordx4 v{V_WO}, {rs(R_WO)}, s{T+1} offen{NTO[0]} lds")
    e.i(f"s_lshl_b32 s81, s{S_W}, 10")
    e.i(f"s_add_u32 s81, s81, {L_WO}")
    e.i(f"s_mul_i32 s87, s{S_W}, 7168")
    e.i(f"s_sub_u32 s87, s87, 896")

S_WOM, S_WOS = 81, 87
def wo_next(e):
    e.i(f"s_add_u32 s{S_WOM}, s{S_WOM}, 4096")
    e.i(f"s_add_u32 s{S_WOS}, s{S_WOS}, {4*7168}")
    e.i(f"s_mov_b32 m0, s{S_WOM}")
    e.i("s_nop 0")
    e.i(f"buffer_load_dwordx4 v{V_WO}, {rs(R_WO)}, s{S_WOS} offen{NTO[0]} lds")

def a2_main(e, cfg):
    T = S_T0
    e.c("==== A2 conv ====")
    e.i(f"s_lshr_b32 s{T}, s{S_W}, 1")
    e.i(f"s_and_b32 s{T+2}, s{S_W}, 1")
    e.i(f"s_mul_i32 s{T+1}, s{T}, {X_CH}")
    e.i(f"s_mul_i32 s{T+3}, s{T+2}, {2048+256}")
    e.i(f"s_add_u32 s{T+1}, s{T+1}, s{T+3}")
    e.i(f"s_add_u32 s{T+1}, s{T+1}, {L_X + 512 + 64}")
    e.i(f"v_lshrrev_b32 v3, 4, v{V_LANE}")
    e.i(f"v_lshlrev_b32 v3, 5, v3")
    e.i(f"v_add3_u32 v53, v3, v{V_L16}, s{T+1}")
    e.i(f"v_bfe_u32 v8, v{V_LANE}, 4, 1")
    e.i(f"v_lshrrev_b32 v9, 5, v{V_LANE}")
    e.i(f"v_bfe_u32 v10, v{V_LANE}, 2, 2")
    e.i(f"v_and_b32 v11, 3, v{V_LANE}")
    e.i(f"v_lshlrev_b32 v12, 2, v8")
    e.i(f"v_add_u32 v12, v12, v11")
    e.i(f"v_lshl_add_u32 v13, v9, 3, v12")
    e.i(f"v_add_u32 v13, v13, v10")
    e.i(f"s_mul_i32 s{T+1}, s{T}, {H_CH}")
    e.i(f"s_add_u32 s{T+1}, s{T+1}, {L_H + 64 - 56}")
    e.i(f"v_lshlrev_b32 v13, 3, v13")
    e.i(f"v_add_u32 v{V_HA}, s{T+1}, v13")
    e.i(f"v_sub_u32 v12, v12, v9")
    e.i(f"v_lshlrev_b32 v12, 5, v12")
    e.i(f"v_lshlrev_b32 v10, 2, v10")
    e.i(f"v_sub_u32 v12, v12, v10")
    e.i(f"v_add_u32 v12, 28, v12")
    e.i(f"s_mul_i32 s{T+1}, s{T}, {X_CH}")
    e.i(f"s_add_u32 s{T+1}, s{T+1}, {L_X}")
    for par in range(2):
        for j in range(2):
            d = V_XA + 2*par + j
            e.i(f"v_add_u32 v13, {64*par - 16*j}, v12")
            e.i(f"v_ashrrev_i32 v14, 7, v13")
            e.i(f"v_lshlrev_b32 v14, 5, v14")
            e.i(f"v_lshl_add_u32 v13, v13, 1, v14")
            e.i(f"v_add_u32 v{d}, s{T+1}, v13")
    e.i(f"s_lshl_b32 s{T}, s2, 1")
    e.i(f"s_bfe_u32 s{T}, s{T}, 0x20004")
    e.i(f"s_lshl_b32 s{T+1}, s{S_CB}, 5")
    e.i(f"s_and_b32 s{T+2}, s{S_W}, 1")
    e.i(f"s_lshl_b32 s{T+2}, s{T+2}, 4")
    e.i(f"s_add_u32 s{T+1}, s{T+1}, s{T+2}")
    e.i(f"s_lshl_b32 s{T+1}, s{T+1}, 2")
    e.i(f"s_add_u32 s{T}, s{T}, s{T+1}")
    e.i(f"v_and_b32 v7, 15, v{V_LANE}")
    e.i(f"v_lshlrev_b32 v7, 2, v7")
    e.i(f"v_add_u32 v7, s{T}, v7")
    poll(e, cfg, FL_A1, 7, "a1")
    stamp(e, cfg, 6)
    e.i(f"s_lshr_b32 s{T}, s{S_W}, 1")
    e.i(f"s_lshl_b32 s{T+1}, s2, 1")
    e.i(f"s_add_u32 s{T+1}, s{T}, s{T+1}")
    e.i(f"s_lshl_b32 s{T+1}, s{T+1}, 12")
    e.i(f"s_and_b32 s{T+2}, s{S_W}, 1")
    e.i(f"s_lshl_b32 s{T+3}, s{T+2}, 11")
    e.i(f"s_add_u32 s{T+1}, s{T+1}, s{T+3}")
    e.i(f"s_add_u32 s{T+1}, s{T+1}, {WS_XT}")
    e.i(f"buffer_load_dwordx4 v[16:19], v{V_L16}, {rs(R_WS)}, s{T+1} offen sc1")
    e.i(f"buffer_load_dwordx4 v[20:23], v{V_L16}, {rs(R_WS)}, s{T+1} offen offset:1024 sc1")
    e.i("s_waitcnt vmcnt(0)")
    e.i(f"ds_write_b128 v53, v[16:19]")
    e.i(f"ds_write_b128 v53, v[20:23] offset:{1024+128}")
    swbar(e)
    stamp(e, cfg, 7)
    e.i(f"s_and_b32 s{T}, s{S_W}, 1")
    e.i(f"s_cmp_eq_u32 s{T}, 0")
    e.i("s_cbranch_scc0 L_conv_setB")
    conv_set(e, [0, 1, 6, 7])
    e.i("s_branch L_conv_post")
    e.label("L_conv_setB")
    conv_set(e, [2, 3, 4, 5])
    e.label("L_conv_post")
    stamp(e, cfg, 8)
    conv_post(e, cfg)

def conv_set(e, tiles):
    nmax = 4 * max(tiles) + 3
    steps = [[(t, T) for t, T in enumerate(tiles) if n <= 4*T + 3] for n in range(nmax + 1)]
    reads = []
    loaded = set()
    need_idx = []
    for n in range(nmax + 1):
        for j in range(2):
            reads.append((("H", n), f"ds_read_b64_tr_b16 {vr(HR+4*(n%8)+2*j,2)}, v{V_HA} offset:{128*n + 32*j}"))
        for t, T in steps[n]:
            v = 4*T - n
            if v in loaded: continue
            loaded.add(v)
            vp = v + 4
            q, par = vp >> 1, vp & 1
            for j in range(2):
                reads.append((("X", v), f"ds_read_b64_tr_b16 {vr(XFR+4*(vp-1)+2*j,2)}, v{V_XA+2*par+j} offset:{288*q}"))
        need_idx.append(len(reads) - 1)
    AHEAD = 14
    issued = 0
    first = {t: True for t in range(4)}
    for n in range(nmax + 1):
        target = min(len(reads), need_idx[n] + 1 + AHEAD)
        while issued < target:
            tag = reads[issued][0]
            if tag[0] == "H" and tag[1] > n + 7: break
            e.i(reads[issued][1]); issued += 1
        assert issued > need_idx[n]
        younger = issued - 1 - need_idx[n]
        e.i(f"s_waitcnt lgkmcnt({min(younger, 15)})")
        for t, T in steps[n]:
            vp = 4*T - n + 4
            acc = vr(CACC + 16*t, 16)
            c = "0" if first[t] else acc
            first[t] = False
            e.i(f"v_mfma_f32_32x32x16_bf16 {acc}, {vr(XFR+4*(vp-1),4)}, {vr(HR+4*(n%8),4)}, {c}")
    for t, T in enumerate(tiles):
        e.i(f"s_mov_b32 s{S_T1+t}, {T}")

def conv_post(e, cfg):
    T = S_T0
    e.i(f"s_mov_b32 s{S63}, 0")
    e.i(f"s_mov_b32 s{S63+1}, 0x80000000")
    e.i(f"s_lshr_b32 s{T}, s{S_W}, 1")
    e.i(f"s_mul_i32 s{T}, s{T}, 144")
    e.i(f"s_add_u32 s{T}, s{T}, {L_CARRY}")
    for t in range(4):
        e.i(f"s_lshl_b32 s{T+1}, s{S_T1+t}, 4")
        e.i(f"s_add_u32 s{T+1}, s{T+1}, s{T}")
        e.i(f"v_mov_b32 v{136+t}, s{T+1}")
    e.i(f"v_mov_b32 v140, s{T}")
    e.i("v_mov_b32 v141, 0")
    e.i("s_nop 1")
    R = lambda t, g, i: CACC + 16*t + 4*g + i
    EX = 128
    for t in range(4):
        e.i(f"v_add_f32_dpp v{EX+t}, v{R(t,3,3)}, v{R(t,3,2)} wave_ror:1 row_mask:0xf bank_mask:0xf")
    e.i("s_nop 0")
    for t in range(4):
        e.i(f"v_add_f32_dpp v{EX+4+t}, v{EX+t}, v{R(t,3,1)} wave_ror:1 row_mask:0xf bank_mask:0xf")
    e.i(f"s_mov_b64 exec, s[{S63}:{S63+1}]")
    for t in range(4):
        e.i(f"ds_write_b32 v{136+t}, v{R(t,3,3)} offset:16")
        e.i(f"ds_write_b32 v{136+t}, v{EX+t} offset:20")
        e.i(f"ds_write_b32 v{136+t}, v{EX+4+t} offset:24")
    e.i("ds_write_b32 v140, v141")
    e.i("ds_write_b32 v140, v141 offset:4")
    e.i("ds_write_b32 v140, v141 offset:8")
    e.i("s_mov_b64 exec, -1")
    swbar(e)
    PU, P1, P2 = 144, 148, 152
    for t in range(4):
        e.i(f"ds_read_b32 v{PU+t}, v{136+t}")
        e.i(f"ds_read_b32 v{P1+t}, v{136+t} offset:4")
        e.i(f"ds_read_b32 v{P2+t}, v{136+t} offset:8")
    e.i(f"s_lshr_b32 s{T}, s{S_W}, 1")
    e.i(f"s_mul_i32 s{T}, s{T}, {X_CH}")
    e.i(f"s_add_u32 s{T}, s{T}, {L_Y}")
    e.i(f"v_lshlrev_b32 v3, 1, v{V_LANE}")
    for t in range(4):
        e.i(f"s_lshl_b32 s{T+1}, s{S_T1+t}, 9")
        e.i(f"s_add_u32 s{T+1}, s{T+1}, s{T}")
        e.i(f"v_add_u32 v{140+t}, s{T+1}, v3")
    e.i("s_waitcnt lgkmcnt(0)")
    SEL = 156
    m63 = f"s[{S63}:{S63+1}]"
    prevU = [PU+t for t in range(4)]
    prev1 = [P1+t for t in range(4)]
    prev2 = [P2+t for t in range(4)]
    for g in range(4):
        cur1 = [160 + 4*(g & 1) + t for t in range(4)]
        cur2 = [168 + 4*(g & 1) + t for t in range(4)]
        for t in range(4):
            e.i(f"v_cndmask_b32 v{SEL+t}, v{R(t,g,3)}, v{prevU[t]}, {m63}")
        for t in range(4):
            e.i(f"v_add_f32_dpp v{cur1[t]}, v{SEL+t}, v{R(t,g,2)} wave_ror:1 row_mask:0xf bank_mask:0xf")
        for t in range(4):
            e.i(f"v_cndmask_b32 v{SEL+t}, v{cur1[t]}, v{prev1[t]}, {m63}")
        for t in range(4):
            e.i(f"v_add_f32_dpp v{cur2[t]}, v{SEL+t}, v{R(t,g,1)} wave_ror:1 row_mask:0xf bank_mask:0xf")
        for t in range(4):
            e.i(f"v_cndmask_b32 v{SEL+t}, v{cur2[t]}, v{prev2[t]}, {m63}")
        for t in range(4):
            e.i(f"v_add_f32_dpp v{R(t,g,0)}, v{SEL+t}, v{R(t,g,0)} wave_ror:1 row_mask:0xf bank_mask:0xf")
        prevU = [R(t,g,3) for t in range(4)]
        prev1 = cur1
        prev2 = cur2
        if g & 1:
            gp = g >> 1
            for t in range(4):
                e.i(f"v_cvt_pk_bf16_f32 v{128+2*t+gp}, v{R(t,g-1,0)}, v{R(t,g,0)}")
            for t in range(4):
                e.i(f"ds_write_b16 v{140+t}, v{128+2*t+gp} offset:{256*gp}")
                e.i(f"ds_write_b16_d16_hi v{140+t}, v{128+2*t+gp} offset:{256*gp+128}")
    e.i(f"s_lshr_b32 s{T+2}, s{S_W}, 1")
    e.i(f"s_lshl_b32 s{T+3}, s2, 1")
    e.i(f"s_add_u32 s{T+3}, s{T+3}, s{T+2}")
    e.i(f"s_lshl_b32 s{T+3}, s{T+3}, 12")
    e.i(f"s_add_u32 s{T+3}, s{T+3}, {WS_YT}")
    for pz in range(2):
        e.i(f"s_lshl_b32 s{T+1}, s{S_T1+2*pz}, 9")
        e.i(f"s_add_u32 s{T+4+pz}, s{T+1}, s{T+3}")
        e.i(f"s_add_u32 s{T+1}, s{T+1}, s{T}")
        e.i(f"v_add_u32 v{144+pz}, s{T+1}, v{V_L16}")
    e.i("s_waitcnt lgkmcnt(0)")
    for pz in range(2):
        e.i(f"ds_read_b128 {vr(160+4*pz,4)}, v{144+pz}")
    e.i("s_waitcnt lgkmcnt(1)")
    e.i(f"buffer_store_dwordx4 {vr(160,4)}, v{V_L16}, {rs(R_WS)}, s{T+4} offen sc1")
    e.i("s_waitcnt lgkmcnt(0)")
    e.i(f"buffer_store_dwordx4 {vr(164,4)}, v{V_L16}, {rs(R_WS)}, s{T+5} offen sc1")

SB = [16, 32]
PB = [48, 56]
OB = 64
QB = 128
def kvbuf(b): return KVB + 16 * (b & 3)

V_KVO = 235
def kv_load(e, b, advance=True):
    if advance:
        e.i(f"s_add_u32 s{S_KV+1}, s{S_KV+1}, 16384")
        e.i(f"s_and_b32 s{S_KV+1}, s{S_KV+1}, 0x3ffff")
    for f in range(4):
        e.i(f"buffer_load_dwordx4 {vr(kvbuf(b)+4*f,4)}, v{V_KVO}, {rs(R_WS)}, s{S_KV+1} offen offset:{1024*f} sc1")

def slot(e, j, s_next, pv, pre=None, loads=None):
    mf = []
    if s_next is not None:
        kb, jn = s_next
        Sx = vr(SB[jn & 1], 16)
        mf.append(f"v_mfma_f32_32x32x16_bf16 {Sx}, {vr(kvbuf(kb),4)}, {vr(QB+8*jn,4)}, 0")
        mf.append(f"v_mfma_f32_32x32x16_bf16 {Sx}, {vr(kvbuf(kb)+4,4)}, {vr(QB+8*jn+4,4)}, {Sx}")
    if pv is not None:
        vb, jp, first = pv
        O = vr(OB + 16*jp, 16)
        P = PB[jp & 1]
        mf.append(f"v_mfma_f32_32x32x16_bf16 {O}, {vr(kvbuf(vb)+8,4)}, {vr(P,4)}, {'0' if first else O}")
        mf.append(f"v_mfma_f32_32x32x16_bf16 {O}, {vr(kvbuf(vb)+12,4)}, {vr(P+4,4)}, {O}")
    groups = []
    if j is not None:
        Sx = SB[j & 1]; P = PB[j & 1]
        for g in range(4):
            gl = [f"v_exp_f32 v{Sx+4*g+i}, v{Sx+4*g+i}" for i in range(4)]
            gl.append(f"v_cvt_pk_bf16_f32 v{P+2*g}, v{Sx+4*g}, v{Sx+4*g+1}")
            gl.append(f"v_cvt_pk_bf16_f32 v{P+2*g+1}, v{Sx+4*g+2}, v{Sx+4*g+3}")
            groups.append(gl)
    if pre:
        for ln in pre: e.i(ln)
    n = max(len(mf), len(groups))
    for k in range(n):
        if k < len(mf): e.i(mf[k])
        if loads is not None and k == 2:
            loads()
        if k < len(groups):
            for ln in groups[k]: e.i(ln)

YL = 24
def b2_main(e, cfg):
    T = S_T0
    e.c("==== B2 attention ====")
    e.i(f"s_lshl_b32 s{T}, s{S_H}, 6")
    e.i(f"s_add_u32 s{T}, s{T}, s{S_W}")
    e.i(f"v_and_b32 v7, 15, v{V_LANE}")
    e.i(f"v_lshlrev_b32 v7, 2, v7")
    e.i(f"v_add_u32 v7, s{T}, v7")
    e.i(f"v_add_u32 v3, {L_Q}, v{V_L16}")
    for j in range(4):
        for f in range(2):
            e.i(f"ds_read_b128 {vr(QB+8*j+4*f,4)}, v3 offset:{2048*j+1024*f}")
    e.i(f"s_lshl_b32 s{S_KV}, s{S_H}, 18")
    e.i(f"s_lshl_b32 s{T}, s{S_W}, 12")
    e.i(f"s_add_u32 s{S_KV}, s{S_KV}, s{T}")
    if WS_KV: e.i(f"s_add_u32 s{S_KV}, s{S_KV}, {WS_KV}")
    e.i(f"v_add_u32 v{V_KVO}, s{S_KV}, v{V_L16}")
    poll(e, cfg, FL_B1, 7, "b1")
    if cfg.nosync: e.i("s_waitcnt vmcnt(0)")
    stamp(e, cfg, 10)
    e.i(f"s_mov_b32 s{S_SLOW}, 0")
    e.label("L_attn_start")
    e.i(f"s_lshl_b32 s{S_KV+1}, s{S_R}, 14")
    kv_load(e, 1); kv_load(e, 2); kv_load(e, 3)
    e.i("s_waitcnt lgkmcnt(0)")
    slot(e, None, (0, 0), None)
    e.i("s_nop 7")
    e.i("s_nop 3")
    slot(e, 0, (0, 1), None)
    slot(e, 1, (0, 2), (0, 0, True))
    slot(e, 2, (0, 3), (0, 1, True))
    slot(e, 3, (1, 0), (0, 2, True), pre=["s_waitcnt vmcnt(8)"])
    slot(e, 0, (1, 1), (0, 3, True))
    e.i(f"s_mov_b32 s{S_IT}, 0")
    e.i(f"s_nop 0") if cfg.shift4 else None
    e.i(f".p2align {cfg.lalign}") if not cfg.shift4 else None
    e.label("L_attn_loop")
    if cfg.stamps:
        e.i(f"{'s_memrealtime' if cfg.realtime else 's_memtime'} s[{S_TS}:{S_TS+1}]")
        e.i(f"s_add_u32 m0, s{S_IT}, 40")
        e.i("s_waitcnt lgkmcnt(0)")
        e.i(f"v_writelane_b32 v250, s{S_TS}, m0")
    for k in range(4):
        i = k + 1
        b, bn = i & 3, (i + 1) & 3
        slot(e, 1, (b, 2), (b, 0, False), loads=lambda: kv_load(e, (i + 3) & 3))
        slot(e, 2, (b, 3), (b, 1, False))
        slot(e, 3, (bn, 0), (b, 2, False), pre=["s_waitcnt vmcnt(8)"] + (["s_nop 0"] if cfg.pad else []))
        slot(e, 0, (bn, 1), (b, 3, False))
        if k == 1:
            e.i(f"s_cmp_eq_u32 s{S_IT}, 3")
            e.i("s_cbranch_scc1 L_attn_tail")
    e.i(f"s_add_u32 s{S_IT}, s{S_IT}, 1")
    e.i("s_branch L_attn_loop")
    e.label("L_attn_tail")
    stamp(e, cfg, 44)
    slot(e, 1, (3, 2), (3, 0, False))
    slot(e, 2, (3, 3), (3, 1, False))
    slot(e, 3, None, (3, 2, False))
    e.i("s_nop 1")
    slot(e, None, None, (3, 3, False))
    stamp(e, cfg, 45)
    e.i("s_waitcnt vmcnt(0)")
    if cfg.a3late:
        e.i(f"v_mov_b32 v4, {L_CNTRD}")
        sw_arrive(e, addr=4)
    stamp(e, cfg, 11)
    e.i(f"s_mov_b32 s{T}, {f2u(2.0**-40)}")
    e.i(f"s_mov_b32 s{T+1}, {f2u(2.0**40)}")
    e.i(f"s_mov_b64 s[{T+2}:{T+3}], -1")
    for j in range(4):
        e.i(f"v_cmp_le_f32 vcc, s{T}, v{OB+16*j}")
        e.i(f"s_and_b64 s[{T+2}:{T+3}], s[{T+2}:{T+3}], vcc")
        e.i(f"v_cmp_ge_f32 vcc, s{T+1}, v{OB+16*j}")
        e.i(f"s_and_b64 s[{T+2}:{T+3}], s[{T+2}:{T+3}], vcc")
    e.i(f"s_cmp_eq_u64 s[{T+2}:{T+3}], -1")
    e.i(f"s_cselect_b32 s{T}, 0, 1")
    e.i(f"v_mov_b32 v3, s{T}")
    e.i(f"s_lshl_b32 s{T+1}, s{S_W}, 2")
    e.i(f"s_add_u32 s{T+1}, s{T+1}, {L_MISC}")
    e.i(f"v_mov_b32 v4, s{T+1}")
    e.i(f"ds_write_b32 v4, v3")
    for w in range(4):
        if w > 0: e.label(f"L_red_w{w}")
        if w < 3:
            e.i(f"s_cmp_lg_u32 s{S_W}, {w}")
            e.i(f"s_cbranch_scc1 L_red_w{w+1}")
        for j in range(4):
            if j == w: continue
            sl = j * 3 + ((w - j - 1) & 3)
            e.i(f"v_add_u32 v3, {L_RED + sl*4096}, v{V_L16}")
            for q4 in range(4):
                e.i(f"ds_write_b128 v3, {vr(OB+16*j+4*q4,4)} offset:{1024*q4}")
        for k in range(16):
            e.i(f"v_mov_b32 v{16+k}, v{OB+16*w+k}")
        if w < 3: e.i("s_branch L_red_done")
    e.label("L_red_done")
    e.i("s_waitcnt lgkmcnt(0)")
    stamp(e, cfg, 50)
    e.i("s_barrier")
    stamp(e, cfg, 51)
    e.i(f"v_mov_b32 v4, {L_MISC}")
    e.i(f"ds_read_b128 v[8:11], v4")
    e.i(f"s_mul_i32 s{T}, s{S_W}, {3*4096}")
    e.i(f"s_add_u32 s{T}, s{T}, {L_RED}")
    e.i(f"v_add_u32 v3, s{T}, v{V_L16}")
    for s_ in range(3):
        for q4 in range(4):
            e.i(f"ds_read_b128 {vr(64+16*s_+4*q4,4)}, v3 offset:{4096*s_+1024*q4}")
    e.i(f"s_lshl_b32 s{T}, s{S_R}, 2")
    e.i(f"s_add_u32 s{T}, s{T}, s{S_W}")
    e.i(f"s_lshl_b32 s{T}, s{T}, 4")
    e.i(f"s_add_u32 s{T}, s{T}, s{S_H}")
    e.i(f"s_lshl_b32 s{T}, s{T}, 11")
    e.i(f"s_add_u32 s{T+4}, s{T}, {WS_OF}")
    e.i("s_waitcnt lgkmcnt(12)")
    e.i("v_or_b32 v8, v8, v9")
    e.i("v_or3_b32 v8, v8, v10, v11")
    e.i("s_nop 0")
    e.i(f"v_readfirstlane_b32 s{T}, v8")
    e.i("s_nop 3")
    e.i(f"s_andn2_b32 s{T}, s{T}, s{S_SLOW}")
    e.i(f"s_cmp_lg_u32 s{T}, 0")
    e.i("s_cbranch_scc1 L_slow")
    for s_ in range(3):
        e.i(f"s_waitcnt lgkmcnt({8-4*s_})")
        for k in range(16):
            e.i(f"v_add_f32 v{16+k}, v{16+k}, v{64+16*s_+k}")
    e.i("v_rcp_f32 v3, v16")
    e.i("s_nop 0")
    for k in range(16):
        if k in (0, 8): continue
        e.i(f"v_mul_f32 v{16+k}, v{16+k}, v3")
    for m in range(8):
        if m in (0, 4):
            e.i(f"v_cvt_pk_bf16_f32 v{32+m}, 0, v{16+2*m+1}")
        else:
            e.i(f"v_cvt_pk_bf16_f32 v{32+m}, v{16+2*m}, v{16+2*m+1}")
    stamp(e, cfg, 52)
    if cfg.tags:
        e.i("v_or_b32 v32, 0xffff, v32")
        e.i("v_or_b32 v36, 0xffff, v36")
    e.i(f"buffer_store_dwordx4 v[32:35], v{V_L16}, {rs(R_WS)}, s{T+4} offen sc1")
    e.i(f"buffer_store_dwordx4 v[36:39], v{V_L16}, {rs(R_WS)}, s{T+4} offen offset:1024 sc1")
    e.i("s_barrier")

def b2_slow(e, cfg):
    T = S_T0
    e.c("==== slow path: true row max ====")
    e.label("L_slow")
    e.i("s_waitcnt vmcnt(0) lgkmcnt(0)")
    M = 48
    for j in range(4): e.i(f"v_mov_b32 v{M+j}, 0xff800000")
    e.i(f"s_mov_b32 s{S_KV+1}, 0")
    e.label("L_slow_loop")
    for f in range(2):
        e.i(f"buffer_load_dwordx4 {vr(KVB+4*f,4)}, v{V_KVO}, {rs(R_WS)}, s{S_KV+1} offen offset:{1024*f} sc1")
    e.i("s_waitcnt vmcnt(0)")
    for j in range(4):
        e.i(f"v_mfma_f32_32x32x16_bf16 v[16:31], {vr(KVB,4)}, {vr(QB+8*j,4)}, 0")
        e.i(f"v_mfma_f32_32x32x16_bf16 v[16:31], {vr(KVB+4,4)}, {vr(QB+8*j+4,4)}, v[16:31]")
        e.i("s_nop 7"); e.i("s_nop 7")
        for k in range(0, 16, 2):
            e.i(f"v_max3_f32 v{M+j}, v{16+k}, v{17+k}, v{M+j}")
        e.i("s_nop 7")
    e.i(f"s_add_u32 s{S_KV+1}, s{S_KV+1}, 16384")
    e.i(f"s_cmp_lt_u32 s{S_KV+1}, {16*16384}")
    e.i("s_cbranch_scc1 L_slow_loop")
    for j in range(4):
        e.i(f"v_mov_b32 v{52+j}, v{M+j}")
    e.i("s_nop 1")
    for j in range(4):
        e.i(f"v_permlane32_swap_b32 v{52+j}, v{M+j}")
    e.i("s_nop 1")
    for j in range(4):
        e.i(f"v_max_f32 v{M+j}, v{52+j}, v{M+j}")
    e.i("s_barrier")
    e.i(f"s_lshl_b32 s{T}, s{S_W}, 10")
    e.i(f"s_add_u32 s{T}, s{T}, {L_RED}")
    e.i(f"v_add_u32 v3, s{T}, v{V_L16}")
    e.i(f"ds_write_b128 v3, {vr(M,4)}")
    e.i("s_waitcnt lgkmcnt(0)")
    e.i("s_barrier")
    e.i(f"v_add_u32 v3, {L_RED}, v{V_L16}")
    for w in range(4):
        e.i(f"ds_read_b128 {vr(16+4*w,4)}, v3 offset:{1024*w}")
    e.i("s_waitcnt lgkmcnt(0)")
    for j in range(4):
        e.i(f"v_max3_f32 v{M+j}, v{16+j}, v{20+j}, v{24+j}")
        e.i(f"v_max_f32 v{M+j}, v{M+j}, v{28+j}")
    e.i(f"s_mov_b32 s{T}, 0xffff")
    for j in range(4):
        e.i(f"v_sub_f32 v16, 0, v{M+j}")
        e.i(f"v_cvt_pk_bf16_f32 v17, v16, v16")
        e.i(f"v_lshlrev_b32 v18, 16, v17")
        e.i(f"v_sub_f32 v16, v16, v18")
        e.i(f"v_cvt_pk_bf16_f32 v19, v16, v16")
        e.i(f"v_lshlrev_b32 v18, 16, v19")
        e.i(f"v_sub_f32 v16, v16, v18")
        e.i(f"v_bfi_b32 v17, s{T}, v17, v19")
        e.i(f"v_cvt_pk_bf16_f32 v18, v16, 0")
        e.i(f"v_cndmask_b32 v{QB+8*j+6}, v{QB+8*j+6}, v17, s[{S_MHH}:{S_MHH+1}]")
        e.i(f"v_cndmask_b32 v{QB+8*j+7}, v{QB+8*j+7}, v18, s[{S_MHH}:{S_MHH+1}]")
    e.i(f"s_mov_b32 s{S_SLOW}, 1")
    e.i(f"s_lshl_b32 s{S_KV+1}, s{S_R}, 14")
    kv_load(e, 0, advance=False)
    e.i("s_waitcnt vmcnt(0)")
    e.i("s_barrier")
    e.i("s_branch L_attn_start")

def a3_main(e, cfg):
    T = S_T0
    e.c("==== A3: out_a = q * y ====")
    a3_qaddr(e, cfg)
    e.i(f"buffer_load_dwordx4 {vr(QPF,4)}, v{V_A3OFF}, {rs(R_Q)}, 0 offen{NTF[0]}")
    e.i(f"s_mov_b32 s{T+1}, 7168")
    e.i(f"buffer_load_dwordx4 {vr(QPF+4,4)}, v{V_A3OFF}, {rs(R_Q)}, s{T+1} offen{NTF[0]}")
    e.i(f"s_lshr_b32 s{T}, s{S_RB}, 2")
    e.i(f"s_add_u32 s{T}, s{T}, 2")
    e.i(f"s_and_b32 s{T}, s{T}, 7")
    e.i(f"s_lshr_b32 s{T}, s{T}, 2")
    e.i(f"s_lshl_b32 s{T+1}, s{S_CB}, 6")
    e.i(f"s_lshl_b32 s{T+2}, s{S_W}, 4")
    e.i(f"s_add_u32 s{T+1}, s{T+1}, s{T+2}")
    e.i(f"v_and_b32 v7, 15, v{V_LANE}")
    e.i(f"v_add_u32 v7, s{T+1}, v7")
    e.i(f"v_lshrrev_b32 v8, 1, v7")
    e.i(f"v_and_b32 v7, 1, v7")
    e.i(f"v_lshlrev_b32 v7, 1, v7")
    e.i(f"v_lshl_add_u32 v7, v8, 2, v7")
    e.i(f"v_add_u32 v7, s{T}, v7")
    poll(e, cfg, FL_A2, 7, "a2", tmp=8)
    stamp(e, cfg, 12)
    e.i(f"s_lshl_b32 s{T}, s{S_CB}, 6")
    e.i(f"s_lshl_b32 s{T+1}, s{S_W}, 4")
    e.i(f"s_add_u32 s{T}, s{T}, s{T+1}")
    e.i(f"s_lshl_b32 s{T}, s{T}, 12")
    e.i(f"s_lshl_b32 s{T+1}, s{S_RB}, 7")
    e.i(f"s_add_u32 s{T}, s{T}, s{T+1}")
    e.i(f"s_add_u32 s{T}, s{T}, {WS_YT}")
    e.i(f"s_add_u32 s{T+1}, s{T}, {8*4096}")
    e.i(f"v_lshrrev_b32 v3, 3, v{V_LANE}")
    e.i(f"v_lshlrev_b32 v13, 12, v3")
    e.i(f"v_and_b32 v14, 7, v{V_LANE}")
    e.i(f"v_lshl_add_u32 v13, v14, 4, v13")
    e.i(f"buffer_load_dwordx4 {vr(YL,4)}, v13, {rs(R_WS)}, s{T} offen sc1")
    e.i(f"buffer_load_dwordx4 {vr(YL+4,4)}, v13, {rs(R_WS)}, s{T+1} offen sc1")
    e.i(f"v_mul_u32_u24 v3, 144, v3")
    e.i(f"v_lshl_add_u32 v15, v14, 4, v3")
    e.i(f"s_mul_i32 s{T}, s{S_W}, {16*144}")
    e.i(f"s_add_u32 s{T+1}, s{T}, {L_A3}")
    e.i(f"v_add_u32 v3, s{T+1}, v15")
    e.i(f"s_add_u32 s{T+1}, s{T}, {L_A3R}")
    e.i(f"v_add_u32 v12, s{T+1}, v15")
    e.i(f"v_and_b32 v8, 15, v{V_LANE}")
    e.i(f"v_mul_u32_u24 v8, 144, v8")
    e.i(f"v_and_b32 v9, 0x30, v{V_LANE}")
    e.i(f"v_add3_u32 v8, v8, v9, s{T+1}")
    e.i(f"v_lshrrev_b32 v13, 4, v{V_LANE}")
    e.i(f"v_lshlrev_b32 v13, 3, v13")
    e.i(f"v_bfe_u32 v14, v{V_LANE}, 2, 2")
    e.i(f"v_add_u32 v13, v13, v14")
    e.i(f"v_mul_u32_u24 v13, 144, v13")
    e.i(f"v_and_b32 v14, 3, v{V_LANE}")
    e.i(f"v_lshlrev_b32 v14, 3, v14")
    e.i(f"s_lshl_b32 s{T}, s{S_W}, 5")
    e.i(f"s_add_u32 s{T}, s{T}, {L_A3}")
    e.i(f"v_add3_u32 v13, v13, v14, s{T}")
    e.i("s_waitcnt vmcnt(0)")
    e.i(f"ds_write_b128 v3, {vr(YL,4)}")
    e.i(f"ds_write_b128 v3, {vr(YL+4,4)} offset:{8*144}")
    swbar(e)
    for it in range(2):
        for jj in range(2):
            e.i(f"ds_read_b64_tr_b16 {vr(16+4*it+2*jj,2)}, v13 offset:{(32*it+4*jj)*144}")
    e.i("s_waitcnt lgkmcnt(2)")
    e.i(f"ds_write_b128 v8, v[16:19]")
    e.i("s_waitcnt lgkmcnt(1)")
    e.i(f"ds_write_b128 v8, v[20:23] offset:64")
    e.i("s_waitcnt lgkmcnt(0)")
    e.i(f"ds_read_b128 v[16:19], v12")
    e.i(f"ds_read_b128 v[20:23], v12 offset:{8*144}")
    if cfg.a3late:
        e.i(f"v_mov_b32 v4, {L_CNTRD}")
        sw_wait(e, 4, target_imm=8, sleep=6)
    e.i(f"s_mov_b32 s{T}, 0xffff0000")
    e.i("s_waitcnt lgkmcnt(0)")
    for it in range(2):
        for m in range(4):
            y = 16 + 4*it + m; q = QPF + 4*it + m
            e.i(f"v_lshlrev_b32 v24, 16, v{y}")
            e.i(f"v_and_b32 v25, s{T}, v{y}")
            e.i(f"v_lshlrev_b32 v26, 16, v{q}")
            e.i(f"v_and_b32 v27, s{T}, v{q}")
            e.i(f"v_mul_f32 v24, v24, v26")
            e.i(f"v_mul_f32 v25, v25, v27")
            e.i(f"v_cvt_pk_bf16_f32 v{32+4*it+m}, v24, v25")
    e.i(f"buffer_store_dwordx4 v[32:35], v{V_A3OFF+1}, {rs(R_OUT)}, 0 offen{OUTF[0]}")
    e.i(f"s_mov_b32 s{T}, {8*1792}")
    e.i(f"buffer_store_dwordx4 v[36:39], v{V_A3OFF+1}, {rs(R_OUT)}, s{T} offen{OUTF[0]}")

def b3_addr(e, cfg):
    T = S_T0
    e.c("==== B3: addresses ====")
    e.i(f"s_and_b32 s{T+3}, s{S_W}, 1")
    e.i(f"v_lshrrev_b32 v8, 5, v{V_LANE}")
    e.i(f"v_mul_u32_u24 v8, 7, v8")
    e.i(f"v_bfe_u32 v9, v{V_LANE}, 2, 2")
    e.i(f"v_add_u32 v8, v8, v9")
    e.i(f"v_bfe_u32 v9, v{V_LANE}, 4, 1")
    e.i(f"v_lshlrev_b32 v9, 5, v9")
    e.i(f"v_and_b32 v10, 3, v{V_LANE}")
    e.i(f"v_lshl_add_u32 v9, v10, 3, v9")
    for f in range(2):
        e.i(f"v_add_u32 v10, {14*f}, v8")
        e.i(f"v_bfe_u32 v11, v10, 1, 1")
        e.i(f"v_xor_b32 v11, s{T+3}, v11")
        e.i(f"v_lshlrev_b32 v11, 6, v11")
        e.i(f"v_lshl_add_u32 v10, v10, 7, v11")
        e.i(f"v_add_u32 v{12+f}, v10, v9")
        if L_WO: e.i(f"v_add_u32 v{12+f}, {L_WO}, v{12+f}")
    e.i(f"s_lshr_b32 s{T}, s{S_W}, 1")
    e.i(f"s_lshl_b32 s{T}, s{T}, 15")
    e.i(f"s_add_u32 s{T}, s{T}, {L_OF}")
    e.i(f"v_add_u32 v15, s{T}, v{V_L16}")
    e.i(f"s_mul_i32 s{T}, s{S_W}, 2560")
    e.i(f"s_add_u32 s{T}, s{T}, {L_OUTB}")
    e.i(f"v_and_b32 v8, 31, v{V_LANE}")
    e.i(f"v_mul_u32_u24 v8, 80, v8")
    e.i(f"v_lshrrev_b32 v9, 5, v{V_LANE}")
    e.i(f"v_lshlrev_b32 v9, 3, v9")
    e.i(f"v_add3_u32 v8, v8, v9, s{T}")
    e.i(f"v_lshrrev_b32 v9, 2, v{V_LANE}")
    e.i(f"v_mul_u32_u24 v10, 80, v9")
    e.i(f"v_and_b32 v11, 3, v{V_LANE}")
    e.i(f"v_lshlrev_b32 v11, 4, v11")
    e.i(f"v_add3_u32 v10, v10, v11, s{T}")
    e.i(f"s_lshl_b32 s{T}, s{S_RB}, 6")
    e.i(f"s_lshr_b32 s{T+2}, s{S_W}, 1")
    e.i(f"s_lshl_b32 s{T+2}, s{T+2}, 5")
    e.i(f"s_add_u32 s{T}, s{T}, s{T+2}")
    e.i(f"s_mul_i32 s{T}, s{T}, 1792")
    e.i(f"s_lshl_b32 s{T+2}, s{S_CB}, 7")
    e.i(f"s_lshl_b32 s{T+3}, s{T+3}, 6")
    e.i(f"s_add_u32 s{T}, s{T}, s{T+2}")
    e.i(f"s_add_u32 s{T}, s{T}, s{T+3}")
    e.i(f"s_add_u32 s{T}, s{T}, 896")
    e.i(f"v_mul_u32_u24 v9, 1792, v9")
    e.i(f"v_add3_u32 v14, v9, v11, s{T}")

def b3_load_static(e, cfg):
    T = S_T0
    if not cfg.tags:
        poll(e, cfg, FL_B2, 7, "b2")
    else:
        e.i(f"s_lshl_b32 s{T+4}, s{T+2}, 15")
        e.i(f"s_lshl_b32 s{T+5}, s{T+3}, 14")
        e.i(f"s_add_u32 s{T+4}, s{T+4}, s{T+5}")
        e.i(f"s_add_u32 s{T+4}, s{T+4}, {WS_OF + 1024 + 63*16}")
        e.i(f"v_and_b32 v7, 7, v{V_LANE}")
        e.i(f"v_lshlrev_b32 v7, 11, v7")
        e.i(f"s_mov_b32 s{S_IT}, 0x40000")
        e.i(f"s_mov_b32 s{T+5}, 0xffff")
        e.label("L_rep")
        e.i(f"buffer_load_dword v8, v7, {rs(R_WS)}, s{T+4} offen sc1")
        e.i("s_waitcnt vmcnt(0)")
        e.i(f"v_and_b32 v8, s{T+5}, v8")
        e.i(f"v_cmp_ne_u32 vcc, s{T+5}, v8")
        e.i("s_cbranch_vccz L_rep_done")
        e.i(f"s_sub_u32 s{S_IT}, s{S_IT}, 1")
        e.i("s_cbranch_scc1 L_rep_done")
        e.i("s_sleep 2")
        e.i("s_branch L_rep")
        e.label("L_rep_done")
    stamp(e, cfg, 14)
    e.i(f"s_mov_b32 s{S_JJ}, 0x4000")
    e.label("L_odma")
    e.i(f"s_lshr_b32 s{T}, s{S_W}, 1")
    e.i(f"s_lshl_b32 s{T+1}, s{S_RB}, 1")
    e.i(f"s_add_u32 s{T+2}, s{T}, s{T+1}")
    e.i(f"s_and_b32 s{T+3}, s{S_W}, 1")
    e.i(f"s_lshl_b32 s{T+2}, s{T+2}, 15")
    e.i(f"s_lshl_b32 s{T+4}, s{T+3}, 14")
    e.i(f"s_add_u32 s{T+2}, s{T+2}, s{T+4}")
    e.i(f"s_add_u32 s{T+2}, s{T+2}, {WS_OF}")
    e.i(f"s_lshl_b32 s{T}, s{T}, 15")
    e.i(f"s_add_u32 s{T}, s{T}, s{T+4}")
    e.i(f"s_add_u32 s{T}, s{T}, {L_OF}")
    for u in range(16):
        e.i(f"s_add_u32 m0, s{T}, {1024*u}")
        if u == 0: e.i("s_nop 0")
        else: e.i(f"s_add_u32 s{T+2}, s{T+2}, 1024")
        e.i(f"buffer_load_dwordx4 v{V_L16}, {rs(R_WS)}, s{T+2} offen sc1 lds")
    if cfg.tags:
        e.i(f"v_add_u32 v7, s{T}, v{V_L16}")
        e.i("s_waitcnt vmcnt(0)")
        for u in range(16):
            e.i(f"ds_read_b32 v{32+u}, v7 offset:{1024*u}")
        e.i("s_waitcnt lgkmcnt(8)")
        for u in range(1, 8): e.i(f"v_and_b32 v32, v32, v{32+u}")
        e.i("s_waitcnt lgkmcnt(0)")
        for u in range(8, 16): e.i(f"v_and_b32 v32, v32, v{32+u}")
        e.i(f"s_mov_b32 s{T+5}, 0xffff")
        e.i(f"v_and_b32 v32, s{T+5}, v32")
        e.i(f"v_cmp_ne_u32 vcc, s{T+5}, v32")
        e.i("s_cbranch_vccz L_odma_ok")
        e.i(f"s_sub_u32 s{S_JJ}, s{S_JJ}, 1")
        e.i("s_cbranch_scc0 L_odma")
        e.label("L_odma_ok")

def b3_main(e, cfg):
    T = S_T0
    e.c("==== B3: out projection ====")
    e.i(f"s_lshr_b32 s{T}, s{S_W}, 1")
    e.i(f"s_lshl_b32 s{T+1}, s{S_RB}, 1")
    e.i(f"s_add_u32 s{T+2}, s{T}, s{T+1}")
    e.i(f"s_and_b32 s{T+3}, s{S_W}, 1")
    e.i(f"s_lshl_b32 s{T+4}, s{T+3}, 9")
    e.i(f"s_add_u32 s{T+4}, s{T+4}, s{T+2}")
    e.i(f"v_and_b32 v7, 7, v{V_LANE}")
    e.i(f"v_lshlrev_b32 v7, 6, v7")
    e.i(f"v_add_u32 v7, s{T+4}, v7")
    if cfg.dynb3:
        e.i(f"v_lshlrev_b32 v7, {FL_SH}, v7")
        e.i(f"v_add_u32 v7, {WS_FL + FL_B2}, v7")
        e.i(f"s_lshl_b32 s{T+2}, s{T+2}, 15")
        e.i(f"s_lshl_b32 s{T+4}, s{T+3}, 14")
        e.i(f"s_add_u32 s{T+2}, s{T+2}, s{T+4}")
        e.i(f"s_add_u32 s{T+2}, s{T+2}, {WS_OF}")
        e.i(f"s_lshr_b32 s{T}, s{S_W}, 1")
        e.i(f"s_lshl_b32 s{T}, s{T}, 15")
        e.i(f"s_add_u32 s{T}, s{T}, s{T+4}")
        e.i(f"s_add_u32 s{T}, s{T}, {L_OF}")
        e.i(f"s_mov_b32 s{S_JJ}, 0xff")
        e.i(f"s_mov_b32 s{S_IT}, 0x40000")
        e.label("L_dyn_poll")
        e.i(f"buffer_load_dwordx2 v[4:5], v7, {rs(R_WS)}, 0 offen sc1")
        e.i("s_waitcnt vmcnt(0)")
        e.i(f"v_cmp_eq_u64 vcc, s[{S_NONCE}:{S_NONCE+1}], v[4:5]")
        e.i(f"s_sub_u32 s{S_IT}, s{S_IT}, 1")
        e.i(f"s_cselect_b32 s{T+1}, -1, vcc_lo")
        e.i(f"s_and_b32 s{T+1}, s{T+1}, s{S_JJ}")
        e.i("s_cbranch_scc0 L_dyn_none")
        e.label("L_dyn_issue")
        e.i(f"s_ff1_i32_b32 s{T+4}, s{T+1}")
        e.i(f"s_bitset0_b32 s{T+1}, s{T+4}")
        e.i(f"s_bitset0_b32 s{S_JJ}, s{T+4}")
        e.i(f"s_lshl_b32 s{T+4}, s{T+4}, 11")
        e.i(f"s_add_u32 m0, s{T}, s{T+4}")
        e.i(f"s_add_u32 s{T+5}, s{T+2}, s{T+4}")
        e.i(f"buffer_load_dwordx4 v{V_L16}, {rs(R_WS)}, s{T+5} offen sc1 lds")
        e.i(f"s_add_u32 m0, m0, 1024")
        e.i(f"s_add_u32 s{T+5}, s{T+5}, 1024")
        e.i(f"buffer_load_dwordx4 v{V_L16}, {rs(R_WS)}, s{T+5} offen sc1 lds")
        e.i(f"s_cmp_lg_u32 s{T+1}, 0")
        e.i("s_cbranch_scc1 L_dyn_issue")
        e.i(f"s_cmp_eq_u32 s{S_JJ}, 0")
        e.i("s_cbranch_scc1 L_dyn_done")
        e.label("L_dyn_none")
        e.i("s_sleep 1")
        e.i("s_branch L_dyn_poll")
        e.label("L_dyn_done")
        stamp(e, cfg, 14)
    else:
        b3_load_static(e, cfg)
    if cfg.b3pipe:
        order = [h for h in (0,1,2,3,8,9,10,11)] + [h for h in (4,5,6,7,12,13,14,15)]
    else:
        order = list(range(16))
    steps = [(h, f) for h in order for f in range(2)]
    NB = 4
    def rd(k):
        h, f = steps[k]
        b = 32 + 8*(k % NB)
        for jj in range(2):
            e.i(f"ds_read_b64_tr_b16 {vr(b+2*jj,2)}, v{12+f} offset:{(28*h+4*jj)*128}")
        e.i(f"ds_read_b128 {vr(b+4,4)}, v15 offset:{1024*(2*h+f)}")
    def run(k0, k1):
        for k in range(k0, min(k0 + NB - 1, k1)): rd(k)
        for k in range(k0, k1):
            if k + NB - 1 < k1: rd(k + NB - 1)
            nyl = 3 * min(NB - 1, k1 - 1 - k)
            e.i(f"s_waitcnt lgkmcnt({nyl})")
            b = 32 + 8*(k % NB)
            if cfg.tags:
                e.i(f"v_and_b32 v{b+4}, 0xffff0000, v{b+4}")
                e.i("s_nop 1")
            e.i(f"v_mfma_f32_32x32x16_bf16 v[16:31], {vr(b,4)}, {vr(b+4,4)}, {'0' if k == 0 else 'v[16:31]'}")
    if cfg.b3pipe:
        e.i("s_waitcnt vmcnt(8)")
        e.i("s_barrier")
        run(0, 16)
        e.i("s_waitcnt vmcnt(0)")
        e.i("s_barrier")
        run(16, 32)
    else:
        stamp(e, cfg, 46)
        e.i("s_waitcnt vmcnt(0)")
        stamp(e, cfg, 47)
        e.i("s_barrier")
        stamp(e, cfg, 48)
        run(0, 32)
        stamp(e, cfg, 49)
    e.i("s_nop 7"); e.i("s_nop 7")
    for m in range(8):
        e.i(f"v_cvt_pk_bf16_f32 v{48+m}, v{16+2*m}, v{17+2*m}")
    for g in range(4):
        e.i(f"ds_write_b64 v8, {vr(48+2*g,2)} offset:{16*g}")
    e.i("s_waitcnt lgkmcnt(0)")
    e.i(f"ds_read_b128 v[56:59], v10")
    e.i(f"ds_read_b128 v[60:63], v10 offset:{16*80}")
    e.i(f"s_mov_b32 s{T}, {16*1792}")
    e.i("s_waitcnt lgkmcnt(1)")
    e.i(f"buffer_store_dwordx4 v[56:59], v14, {rs(R_OUT)}, 0 offen{OUTF[0]}")
    e.i("s_waitcnt lgkmcnt(0)")
    e.i(f"buffer_store_dwordx4 v[60:63], v14, {rs(R_OUT)}, s{T} offen{OUTF[0]}")

def dump_stamps(e, cfg, wave_off):
    T = S_T0
    if cfg.stamps:
        e.i(f"s_lshl_b32 s{T}, s2, 3")
        e.i(f"s_add_u32 s{T}, s{T}, s{S_W}")
        if wave_off: e.i(f"s_add_u32 s{T}, s{T}, {wave_off}")
        e.i(f"s_lshl_b32 s{T}, s{T}, 8")
        e.i(f"s_add_u32 s{T}, s{T}, {WS_TS}")
        e.i(f"v_lshlrev_b32 v3, 2, v{V_LANE}")
        e.i(f"buffer_store_dword v{vts()}, v3, {rs(R_WS)}, s{T} offen")

def scalar_prefetch(e, cfg, wave_off):
    T = S_T0
    e.i(f"s_lshl_b32 s{T}, s{S_RB}, 6")
    e.i(f"s_lshl_b32 s{T+1}, s{S_W}, 3")
    e.i(f"s_add_u32 s{T}, s{T}, s{T+1}")
    if wave_off: e.i(f"s_add_u32 s{T}, s{T}, {8*wave_off}")
    e.i(f"s_mul_i32 s{T}, s{T}, 896")
    e.i(f"s_lshl_b32 s{T+1}, s{S_CB}, 7")
    e.i(f"s_add_u32 s{T}, s{T}, s{T+1}")
    e.i(f"s_add_u32 s88, s{R_K}, s{T}")
    e.i(f"s_addc_u32 s89, s{R_K+1}, 0")
    e.i(f"s_add_u32 s90, s{R_V}, s{T}")
    e.i(f"s_addc_u32 s91, s{R_V+1}, 0")
    for i in range(8):
        e.i(f"s_load_dword s92, s[88:89], {896*i}")
    for i in range(7):
        e.i(f"s_load_dword s93, s[90:91], {896*i}")

def role_b(e, cfg):
    T = S_T0
    ROLE[0] = "B"
    ids_b(e, cfg)
    addr_b(e, cfg)
    if cfg.prefetch: l2_prefetch_addr(e, cfg)
    swbar_init(e)
    if cfg.stamps: e.i(f"v_mov_b32 v{vts()}, 0")
    e.i("s_waitcnt lgkmcnt(0)")
    if cfg.stamps:
        e.i(f"v_writelane_b32 v{vts()}, s{S_TS}, 16")
        e.i(f"s_getreg_b32 s{S_TS}, hwreg(HW_REG_XCC_ID)")
        e.i(f"v_writelane_b32 v{vts()}, s{S_TS}, 60")
        e.i(f"s_getreg_b32 s{S_TS}, hwreg(HW_REG_HW_ID)")
        e.i(f"v_writelane_b32 v{vts()}, s{S_TS}, 61")
    e.i("s_barrier")
    e.i("s_setprio 2")
    if cfg.spf: scalar_prefetch(e, cfg, 0)
    stamp(e, cfg, 17) if not cfg.spf else None
    if cfg.prefetch: l2_prefetch(e, cfg)
    b1_consts(e)
    b1_issue(e); b1_issue(e)
    if cfg.ago:
        e.i(f"v_mov_b32 v4, {L_CNTGO}")
        sw_arrive(e, addr=4)
    nonce_early(e, cfg)
    stamp(e, cfg, 19)
    b1_traddr(e, cfg)
    stamp(e, cfg, 21)
    b1_loop(e, cfg)
    stamp(e, cfg, 3)
    e.i(f"v_mov_b32 v4, {L_CNTRD}")
    sw_arrive(e, addr=4)
    get_nonce(e, cfg)
    b1_epilogue_kv(e, cfg)
    stamp(e, cfg, 5)
    e.i(f"s_waitcnt vmcnt({6 if cfg.tags else 4})")
    swbar(e)
    def pub():
        e.i("s_waitcnt vmcnt(0)")
        publish(e, cfg, FL_B1, [f"s_lshl_b32 s{T}, s{S_H}, 4", f"s_add_u32 s{T}, s{T}, s{S_R}"])
    if cfg.midk:
        b1_q(e, cfg, mid=pub, midk=cfg.midk)
    else:
        b1_q(e, cfg)
        pub()
    stamp(e, cfg, 4)
    b1_epilogue_q(e, cfg)
    swbar(e)
    e.i("s_setprio 0")
    stamp(e, cfg, 7)
    if cfg.stop_after >= 3:
        b2_main(e, cfg)
        if cfg.stop_after >= 4: b3_addr(e, cfg)
        if not cfg.tags:
            e.i("s_waitcnt vmcnt(0)")
            publish(e, cfg, FL_B2, [f"s_lshl_b32 s{T}, s{S_H}, 4", f"s_add_u32 s{T}, s{T}, s{S_R}"], tmp=4)
        stamp(e, cfg, 12)
    if cfg.stop_after >= 4:
        e.i("s_cmp_ge_u32 s2, 224")
        e.i("s_cbranch_scc1 L_finB")
        b3_main(e, cfg)
        e.label("L_finB")
    stamp(e, cfg, 15)
    dump_stamps(e, cfg, 0)

def role_a(e, cfg):
    T = S_T0
    ROLE[0] = "A"
    e.label("L_roleA")
    e.i("s_setprio 3")
    e.i(f"s_sub_u32 s{S_W}, s{S_W}, 4")
    addr_a(e, cfg)
    swbar_init(e)
    if cfg.stamps: e.i(f"v_mov_b32 v{vts()}, 0")
    e.i("s_waitcnt lgkmcnt(0)")
    if cfg.stamps: e.i(f"v_writelane_b32 v{vts()}, s{S_TS}, 16")
    e.i("s_barrier")
    if cfg.spf: scalar_prefetch(e, cfg, 4)
    stamp(e, cfg, 17) if not cfg.spf else None
    if cfg.noA:
        e.i(f"s_or_b32 s{T}, s2, s{S_W}")
        e.i("s_cbranch_scc1 L_noA_end")
        e.i(f"s_memrealtime s[{S_NONCE}:{S_NONCE+1}]")
        e.i("s_waitcnt lgkmcnt(0)")
        e.i(f"s_or_b32 s{S_NONCE}, s{S_NONCE}, 1")
        e.i(f"v_mov_b32 v76, s{S_NONCE}")
        e.i(f"v_mov_b32 v77, s{S_NONCE+1}")
        e.i("v_mov_b32 v78, 0")
        e.i("s_mov_b64 exec, 1")
        e.i(f"buffer_store_dwordx2 v[76:77], v78, {rs(R_DBG)}, 0 offen sc1")
        e.i("s_waitcnt vmcnt(0)")
        e.label("L_noA_end")
        e.i("s_endpgm")
    if cfg.ago:
        e.i(f"v_mov_b32 v8, {L_CNTGO}")
        sw_wait(e, 8, target_imm=4, sleep=2)
    if cfg.apf:
        e.i(f"s_lshl_b32 s{T}, s{S_RB}, 6")
        e.i(f"s_lshl_b32 s{T+1}, s{S_W}, 4")
        e.i(f"s_add_u32 s{T}, s{T}, s{T+1}")
        e.i(f"s_mul_i32 s{T}, s{T}, 896")
        e.i(f"s_lshl_b32 s{T+1}, s{S_CB}, 7")
        e.i(f"s_add_u32 s{T}, s{T}, s{T+1}")
        e.i(f"v_mul_u32_u24 v8, 896, v{V_LANE}")
        e.i(f"v_add_u32 v8, s{T}, v8")
        e.i(f"v_subrev_u32 v9, {3*896}, v8")
        e.i("s_mov_b64 exec, 0x7ffff")
        e.i(f"buffer_load_dword v244, v9, {rs(R_K)}, 0 offen")
        e.i("s_mov_b64 exec, 0xffff")
        e.i(f"buffer_load_dword v245, v8, {rs(R_V)}, 0 offen")
        e.i("s_mov_b64 exec, -1")
    if cfg.await_b:
        e.i(f"v_mov_b32 v8, {L_CNTB}")
        sw_wait(e, 8, target_imm=4*cfg.await_b, sleep=4)
    stamp(e, cfg, 19)
    a1_loads(e, cfg)
    if cfg.hearly: h_loads(e, cfg)
    a2_dload(e, cfg)
    if cfg.aprio1: e.i("s_setprio 1")
    e.i(f"s_or_b32 s{T}, s2, s{S_W}")
    e.i("s_cbranch_scc1 L_nononce")
    e.i(f"s_memrealtime s[{S_NONCE}:{S_NONCE+1}]")
    e.i("s_waitcnt lgkmcnt(0)")
    e.i(f"s_or_b32 s{S_NONCE}, s{S_NONCE}, 1")
    e.i(f"v_mov_b32 v76, s{S_NONCE}")
    e.i(f"v_mov_b32 v77, s{S_NONCE+1}")
    e.i("v_mov_b32 v78, 0")
    e.i("s_mov_b64 exec, 1")
    e.i(f"buffer_store_dwordx2 v[76:77], v78, {rs(R_DBG)}, 0 offen sc1")
    e.i("s_mov_b64 exec, -1")
    e.label("L_nononce")
    a1_addr2(e, cfg)
    a1_compute(e, cfg, 2 if cfg.hearly else 0)
    stamp(e, cfg, 18)
    nonce_early(e, cfg)
    a1_compute_b(e, cfg)
    stamp(e, cfg, 1)
    e.i("s_waitcnt vmcnt(0)")
    get_nonce(e, cfg)
    publish(e, cfg, FL_A1, [f"s_mov_b32 s{T}, s2"], tmp=24)
    e.i("s_setprio 1")
    stamp(e, cfg, 2)
    e.i("s_cmp_ge_u32 s2, 224")
    e.i("s_cbranch_scc1 L_finA")
    if not cfg.hearly: h_loads(e, cfg)
    swbar(e)
    e.i("s_waitcnt vmcnt(0)")
    a2_hstage(e, cfg)
    if cfg.stop_after >= 2:
        a2_main(e, cfg)
        stamp(e, cfg, 9)
        e.i("s_waitcnt vmcnt(0)")
        publish(e, cfg, FL_A2, [f"s_mov_b32 s{T}, s2"])
        if cfg.alow: e.i("s_setprio 0")
        stamp(e, cfg, 10)
    if cfg.stop_after >= 4:
        wo_addr(e, cfg)
        e.i(f"v_mov_b32 v4, {L_CNTRD}")
        sw_wait(e, 4, target_imm=4, sleep=8)
        wo_first(e, cfg)
        for t in range(13):
            e.i("s_waitcnt vmcnt(1)")
            wo_next(e)
        stamp(e, cfg, 11)
        a3_main(e, cfg)
        if cfg.tags:
            e.i(f"s_lshl_b32 s{T}, s{S_RB}, 1")
            e.i(f"v_bfe_u32 v8, v{V_LANE}, 4, 1")
            e.i(f"v_add_u32 v8, s{T}, v8")
            e.i(f"v_and_b32 v7, 15, v{V_LANE}")
            e.i(f"v_lshl_add_u32 v7, v7, 6, v8")
            poll(e, cfg, FL_B1, 7, "b1c", tmp=8)
        e.i("s_waitcnt vmcnt(0)")
    e.label("L_finA")
    stamp(e, cfg, 15)
    dump_stamps(e, cfg, 4)

def build(cfg):
    e = E()
    prologue(e, cfg)
    role_b(e, cfg)
    e.label("L_end")
    e.i("s_endpgm")
    role_a(e, cfg)
    e.i("s_endpgm")
    if cfg.stop_after >= 3:
        ROLE[0] = "B"
        b2_slow(e, cfg)
        e.i("s_endpgm")
    return e

HEADER = f"""; concat( q * (longconv(kshift*v) + D*kv) , MHA(x) @ wo )  --  one persistent launch, 256 workgroups (one per CU), 8 waves each.
; @launch grid=(256,1,1) block=(512,1,1) lds={LDS_SIZE}
.amdgcn_target "amdgcn-amd-amdhsa--gfx950"
.text
.globl {KNAME}
.p2align 8
.type {KNAME},@function
{KNAME}:
"""
FOOTER = f"""
.section .rodata,"a"
.p2align 6
.amdhsa_kernel {KNAME}
  .amdhsa_next_free_vgpr 256
  .amdhsa_next_free_sgpr 102
  .amdhsa_accum_offset 256
  .amdhsa_group_segment_fixed_size 0
  .amdhsa_kernarg_size 96
  .amdhsa_user_sgpr_count 2
  .amdhsa_user_sgpr_kernarg_segment_ptr 1
  .amdhsa_system_sgpr_workgroup_id_x 1
  .amdhsa_float_denorm_mode_32 3
.end_amdhsa_kernel
"""

if __name__ == "__main__":
    import argparse
    ap = argparse.ArgumentParser()
    ap.add_argument("-o", default=f"cdna_kernels/{NAME}.s")
    ap.add_argument("--stop", type=int, default=99)
    ap.add_argument("--stamps", action="store_true")
    ap.add_argument("--nosync", action="store_true")
    ap.add_argument("--realtime", action="store_true")
    ap.add_argument("--noprefetch", action="store_true")
    ap.add_argument("--span", action="store_true")
    ap.add_argument("--skipA", action="store_true")
    ap.add_argument("--bdelay", type=int, default=0)
    ap.add_argument("--awaitb", type=int, default=0)
    ap.add_argument("--nt", action="store_true")
    ap.add_argument("--ntx", action="store_true")
    ap.add_argument("--ntw", action="store_true")
    ap.add_argument("--nto", action="store_true")
    ap.add_argument("--aprio1", action="store_true")
    ap.add_argument("--a3late", action="store_true")
    ap.add_argument("--midk", type=int, default=0)
    ap.add_argument("--dynb3", action="store_true")
    ap.add_argument("--spf", action="store_true")
    ap.add_argument("--trim", action="store_true")
    ap.add_argument("--poll2", action="store_true")
    ap.add_argument("--pad", action="store_true")
    ap.add_argument("--shift4", action="store_true")
    ap.add_argument("--lalign", type=int, default=3)
    ap.add_argument("--hearly", action="store_true")
    ap.add_argument("--ago", action="store_true")
    ap.add_argument("--apf", action="store_true")
    ap.add_argument("--fine", action="store_true")
    ap.add_argument("--noA", action="store_true")
    ap.add_argument("--bsleep", type=int, default=3)
    ap.add_argument("--b3pipe", action="store_true")
    ap.add_argument("--alow", action="store_true")
    ap.add_argument("--tags", action="store_true")
    ap.add_argument("--outflag", default="")
    ap.add_argument("--xmap", type=int, default=4)
    a = ap.parse_args()
    cfg = Cfg(); cfg.stop_after = a.stop; cfg.stamps = a.stamps; cfg.nosync = a.nosync; cfg.realtime = a.realtime; cfg.prefetch = not a.noprefetch; cfg.span = a.span; cfg.skipA = a.skipA; cfg.bdelay = a.bdelay; cfg.await_b = a.awaitb; NTF[0] = ' nt' if a.nt else ''; NTX[0] = ' nt' if a.ntx else ''; NTW[0] = ' nt' if a.ntw else ''; NTO[0] = ' nt' if a.nto else ''; cfg.aprio1 = a.aprio1; cfg.a3late = a.a3late; cfg.midk = a.midk; cfg.dynb3 = a.dynb3; cfg.spf = a.spf; cfg.trim = a.trim; cfg.poll2 = a.poll2; cfg.pad = a.pad; cfg.lalign = a.lalign; cfg.shift4 = a.shift4; cfg.hearly = a.hearly; cfg.ago = a.ago; cfg.apf = a.apf; cfg.fine = a.fine; cfg.noA = a.noA; cfg.bsleep = a.bsleep; cfg.b3pipe = a.b3pipe; cfg.alow = a.alow; cfg.tags = a.tags; cfg.outflag = a.outflag; OUTF[0] = (' ' + a.outflag) if a.outflag else ''; cfg.xmap = a.xmap
    e = build(cfg)
    open(a.o, "w").write(HEADER + e.text() + FOOTER)
    print("wrote", a.o, len(e.lines), "lines")
```

```python
import sys, math, struct

NAME = "concat_heads__ssm_conv_h3__softmax_full_mha__prompt"
KNAME = NAME + "_kernel"

class E:
    def __init__(self):
        self.lines = []
    def c(self, s):
        self.lines.append("    ; " + s)
    def i(self, s):
        self.lines.append("    " + s)
    def label(self, s):
        self.lines.append(s + ":")
    def text(self):
        return "\n".join(self.lines) + "\n"

def vr(a, n=1):
    return f"v{a}" if n == 1 else f"v[{a}:{a+n-1}]"
def ar(a, n=1):
    return f"a{a}" if n == 1 else f"a[{a}:{a+n-1}]"
def rs(r): return f"s[{r}:{r+3}]"

S, D, H, DH = 2048, 448, 16, 28
SZ_SD   = S * D * 2
SZ_SHK  = D * 4 * 2
SZ_WQKV = D * 3 * D * 2
SZ_WO   = D * D * 2
SZ_OUT  = S * 2 * D * 2
WS_KV = 0x000000
WS_XT = 0x400000
WS_YT = 0x600000
WS_OF = 0x800000
WS_FL = 0xA00000
FL_A1, FL_B1, FL_A2, FL_B2 = 0, 0x10000, 0x20000, 0x30000
FL_SH = 6
WS_TS = 0xB00000
WS_SIZE = 0xC00000

L_RING = 0
NSLOT  = 4
SLOT   = 24576
L_WQ   = 98304
L_Q    = 65536
L_WO   = 0
L_RED  = 58368
L_OF   = 58368
LA     = 126976
L_KS   = LA
L_SHK  = LA + 12288
L_KVT  = LA + 16384
L_H    = LA + 25600
H_CH   = 4160
L_X    = LA
X_CH   = 5248
L_CARRY= LA + 10496
L_Y    = L_X
L_A3   = LA + 12288
L_A3R  = LA
L_OUTB = LA
L_MISC = LA + 33920
L_CNTA, L_CNTB, L_CNTRD, L_CNTGO = L_MISC + 16, L_MISC + 20, L_MISC + 24, L_MISC + 28
LDS_SIZE = LA + 33920 + 64

S_W = 3
R_K, R_V, R_Q, R_SHK, R_SSMK, R_X, R_WQKV, R_WO, R_OUT, R_WS, R_DBG = 4, 8, 12, 16, 20, 24, 28, 32, 36, 40, 44
S_H, S_R, S_CB, S_RB = 48, 49, 50, 51
S_NONCE = 52
S_D2 = 54
S_DP = 62
S_T0 = 56
S_MHH = 64
S_MONE = 66
S63 = 68
S_KV = 70
S_J = 76
S_JJ = 77
S_SLI = 78
S_SLC = 79
S_XB = 80
S_WOI = 81
S_T1 = 88
S_SLOW = 96
S_IT = 97
S_TS = 98
S_BT = 55

QSCALE = (DH ** -0.5) * math.log2(math.e)
def f2u(x): return struct.unpack("<I", struct.pack("<f", x))[0]

class Cfg:
    stop_after = 99
    stamps = False
    nosync = False
    realtime = False
    prefetch = True
    span = False
    skipA = False
    bdelay = 0
    await_b = 0
    qlow = False
    aprio1 = False
    a3late = False
    midk = 0
    dynb3 = False
    spf = False
    trim = False
    poll2 = False
    pad = False
    lalign = 3
    shift4 = False
    hearly = False
    ago = False
    apf = False
    fine = False
    noA = False
    bsleep = 3
    b3pipe = False
    alow = False
    tags = False
    outflag = ''
    xmap = 4

ROLE = ["B"]
OUTF = ['']
NTF = ['']
ASLEEP = [1]
NTX = ['']
NTW = ['']
NTO = ['']
def vts(): return 250 if ROLE[0] == "B" else 63
def stamp(e, cfg, idx):
    if not cfg.stamps: return
    e.c(f"stamp {idx}")
    e.i(f"{'s_memrealtime' if cfg.realtime else 's_memtime'} s[{S_TS}:{S_TS+1}]")
    e.i("s_waitcnt lgkmcnt(0)")
    e.i(f"v_writelane_b32 v{vts()}, s{S_TS}, {idx}")

def bar_regs():
    return (247, 248, 249) if ROLE[0] == "B" else (60, 61, 62)
BARN = [0]
def swbar_init(e):
    a, one, tmp = bar_regs()
    e.i(f"v_mov_b32 v{a}, {L_CNTB if ROLE[0] == 'B' else L_CNTA}")
    e.i(f"v_mov_b32 v{one}, 1")
    e.i(f"s_mov_b32 s{S_BT}, 0")
def sw_arrive(e, addr=None):
    a, one, tmp = bar_regs()
    e.i("s_mov_b64 exec, 1")
    e.i(f"ds_add_u32 v{addr if addr is not None else a}, v{one}")
    e.i("s_mov_b64 exec, -1")
def sw_wait(e, addr, target_sgpr=None, target_imm=None, sleep=None):
    a, one, tmp = bar_regs()
    BARN[0] += 1
    n = BARN[0]
    e.i(f"s_mov_b32 s{S_IT}, 0x100000")
    e.label(f"L_sw{n}")
    e.i(f"ds_read_b32 v{tmp}, v{addr}")
    e.i("s_waitcnt lgkmcnt(0)")
    e.i(f"v_readfirstlane_b32 s95, v{tmp}")
    e.i(f"s_cmp_ge_u32 s95, {('s%d' % target_sgpr) if target_sgpr is not None else target_imm}")
    e.i(f"s_cbranch_scc1 L_swd{n}")
    if sleep is None: sleep = ASLEEP[0] if ROLE[0] == "A" else 0
    if sleep: e.i(f"s_sleep {sleep}")
    e.i(f"s_sub_u32 s{S_IT}, s{S_IT}, 1")
    e.i(f"s_cbranch_scc0 L_sw{n}")
    e.label(f"L_swd{n}")
def swbar(e):
    a, one, tmp = bar_regs()
    e.i(f"s_add_u32 s{S_BT}, s{S_BT}, 4")
    sw_arrive(e)
    sw_wait(e, a, target_sgpr=S_BT)

V_LANE, V_L16 = 1, 2
V_TS = 250

def prologue(e, cfg):
    e.c("==== prologue ====")
    ptrs = [(R_K, 8), (R_V, 16), (R_SHK, 24), (R_X, 48), (R_WQKV, 56), (R_SSMK, 32), (R_Q, 0), (R_WO, 64), (R_OUT, 72), (R_DBG, 80), (R_WS, 88), (S_DP, 40)]
    for r, off in ptrs:
        e.i(f"s_load_dwordx2 s[{r}:{r+1}], s[0:1], {off}")
    if cfg.span: e.i("s_memrealtime s[100:101]")
    e.i("s_cmp_ge_u32 s2, 256")
    e.i("s_cbranch_scc1 L_end")
    if cfg.stamps:
        e.i(f"s_memrealtime s[{S_TS}:{S_TS+1}]" if cfg.realtime else f"s_memtime s[{S_TS}:{S_TS+1}]")
    e.i(f"v_lshrrev_b32 v3, 6, v0")
    e.i(f"v_and_b32 v{V_LANE}, 63, v0")
    e.i(f"v_readfirstlane_b32 s{S_W}, v3")
    e.i(f"v_lshlrev_b32 v{V_L16}, 4, v{V_LANE}")
    for i in range(4): e.i(f"v_mov_b32 v{4+i}, 0")
    e.i(f"v_mov_b32 v3, {L_MISC + 16}")
    e.i("s_mov_b64 exec, 1")
    e.i("ds_write_b128 v3, v[4:7]")
    e.i("s_mov_b64 exec, -1")
    sizes = {R_K: SZ_SD, R_V: SZ_SD, R_SHK: SZ_SHK, R_SSMK: SZ_SD, R_X: SZ_SD, R_WQKV: SZ_WQKV, R_Q: SZ_SD, R_WO: SZ_WO, R_OUT: SZ_OUT, R_DBG: 256, R_WS: WS_SIZE}
    for r, sz in sizes.items():
        e.i(f"s_mov_b32 s{r+2}, {sz}")
        e.i(f"s_mov_b32 s{r+3}, 0x20000")
    T = S_T0
    e.i(f"s_lshr_b32 s{S_CB}, s2, 5")
    e.i(f"s_min_u32 s{S_CB}, s{S_CB}, 6")
    e.i(f"s_and_b32 s{S_RB}, s2, 31")
    e.i(f"s_cmp_ge_u32 s{S_W}, 4")
    e.i("s_cbranch_scc1 L_roleA")

def ids_b(e, cfg):
    T = S_T0
    hb = {2: 1, 4: 2, 8: 3}[cfg.xmap]
    ng = 16 >> hb
    gb = 4 - hb
    e.i(f"s_and_b32 s{T}, s2, 7")
    e.i(f"s_lshr_b32 s{T+1}, s2, 3")
    e.i(f"s_and_b32 s{S_H}, s{T}, {ng-1}")
    e.i(f"s_lshl_b32 s{S_H}, s{S_H}, {hb}")
    e.i(f"s_and_b32 s{T+2}, s{T+1}, {(1<<hb)-1}")
    e.i(f"s_add_u32 s{S_H}, s{S_H}, s{T+2}")
    e.i(f"s_lshr_b32 s{S_R}, s{T}, {gb}")
    e.i(f"s_lshl_b32 s{S_R}, s{S_R}, {5-hb}")
    e.i(f"s_lshr_b32 s{T+2}, s{T+1}, {hb}")
    e.i(f"s_add_u32 s{S_R}, s{S_R}, s{T+2}")
    e.i(f"s_and_b32 s{S_J}, s{T+1}, {(1<<hb)-1}")
    e.i(f"s_lshl_b32 s{S_J}, s{S_J}, {1 if hb <= 2 else 0}")
    e.i(f"s_lshr_b32 s{T}, s{T+1}, {hb}")
    if hb == 3: e.i(f"s_lshl_b32 s{T}, s{T}, 1")
    e.i(f"s_add_u32 s{S_J}, s{S_J}, s{T}")
    for _ in range(3):
        e.i(f"s_cmp_ge_u32 s{S_J}, 7")
        e.i(f"s_cselect_b32 s{T}, 7, 0")
        e.i(f"s_sub_u32 s{S_J}, s{S_J}, s{T}")

V_KOFF = 4
VA = 48
V_XE, V_XO = 8, 9
V_DMA = 10
V_HOFF = 7
HREG = 116

def addr_a(e, cfg):
    T = S_T0
    e.c("A1 addresses")
    e.i(f"s_lshl_b32 s{T}, s{S_RB}, 6")
    e.i(f"s_lshl_b32 s{T+1}, s{S_W}, 4")
    e.i(f"s_add_u32 s{T}, s{T}, s{T+1}")
    e.i(f"s_mul_i32 s{T}, s{T}, 896")
    e.i(f"s_lshl_b32 s{T+1}, s{S_CB}, 7")
    e.i(f"s_add_u32 s{T}, s{T}, s{T+1}")
    e.i(f"v_lshrrev_b32 v3, 3, v{V_LANE}")
    e.i(f"v_mul_u32_u24 v13, 896, v3")
    e.i(f"v_and_b32 v14, 7, v{V_LANE}")
    e.i(f"v_lshl_add_u32 v15, v14, 4, v13")
    e.i(f"v_add_u32 v{V_KOFF+1}, s{T}, v15")
    e.i(f"v_add_u32 v{V_KOFF+2}, 7168, v{V_KOFF+1}")
    e.i(f"v_subrev_u32 v{V_KOFF}, 7168, v{V_KOFF+1}")
    e.c("h offset")
    e.i(f"s_lshr_b32 s{T}, s{S_W}, 1")
    e.i(f"s_lshl_b32 s{T+1}, s2, 1")
    e.i(f"s_add_u32 s{T}, s{T}, s{T+1}")
    e.i(f"s_lshl_b32 s{T}, s{T}, 12")
    e.i(f"s_and_b32 s{T+1}, s{S_W}, 1")
    e.i(f"s_lshl_b32 s{T+1}, s{T+1}, 11")
    e.i(f"s_add_u32 s{T}, s{T}, s{T+1}")
    e.i(f"v_add_u32 v{V_HOFF}, s{T}, v{V_L16}")

def addr_b(e, cfg):
    T = S_T0
    e.c("B1 x dma offsets: (128r + 32w + (l>>3))*896 + ((l&7) ^ f)*16, f = (l>>4) ^ (4*(t&1))")
    e.i(f"v_lshrrev_b32 v3, 3, v{V_LANE}")
    e.i(f"v_mul_u32_u24 v13, 896, v3")
    e.i(f"v_and_b32 v14, 7, v{V_LANE}")
    e.i(f"s_lshl_b32 s{T}, s{S_R}, 7")
    e.i(f"s_lshl_b32 s{T+1}, s{S_W}, 5")
    e.i(f"s_add_u32 s{T}, s{T}, s{T+1}")
    e.i(f"s_mul_i32 s{T}, s{T}, 896")
    e.i(f"v_lshrrev_b32 v3, 4, v{V_LANE}")
    e.i(f"v_xor_b32 v3, v3, v14")
    e.i(f"v_lshl_add_u32 v15, v3, 4, v13")
    e.i(f"v_add_u32 v{V_XE}, s{T}, v15")
    e.i(f"v_xor_b32 v{V_XO}, 64, v{V_XE}")
    e.c("Wkv dma offsets: row=(l>>3) (+8t), phys half=(l>>2)&1, piece = half ^ ((l>>4)&1), gran = l&3")
    e.i(f"s_mul_i32 s{T}, s{S_H}, 56")
    e.i(f"v_lshrrev_b32 v3, 3, v{V_LANE}")
    e.i(f"v_mul_u32_u24 v{V_DMA}, 2688, v3")
    e.i(f"v_bfe_u32 v13, v{V_LANE}, 2, 1")
    e.i(f"v_bfe_u32 v14, v{V_LANE}, 4, 1")
    e.i(f"v_xor_b32 v13, v13, v14")
    e.i(f"v_and_b32 v3, 3, v{V_LANE}")
    e.i(f"v_mul_u32_u24 v14, 896, v13")
    e.i(f"v_add3_u32 v{V_DMA}, v{V_DMA}, v14, s{T}")
    e.i(f"v_add_u32 v14, 1, v3")
    e.i(f"v_mul_u32_u24 v13, v13, v14")
    e.i(f"v_lshlrev_b32 v14, 3, v3")
    e.i(f"v_sub_u32 v14, v14, v13")
    e.i(f"v_lshl_add_u32 v{V_DMA}, v14, 1, v{V_DMA}")
    e.i(f"v_add_u32 v{V_DMA}, 896, v{V_DMA}")
    e.c("Wq dma offset: row = l>>2, gran = l&3")
    e.i(f"v_lshrrev_b32 v13, 2, v{V_LANE}")
    e.i(f"v_mul_u32_u24 v13, 2688, v13")
    e.i(f"v_lshlrev_b32 v3, 4, v3")
    e.i(f"v_add3_u32 v{V_DMA+1}, v13, v3, s{T}")

def a1_loads(e, cfg):
    T = S_T0
    e.c("A1 loads: k dma x3, shk dma, v x2")
    e.i(f"s_mul_i32 s{T}, s{S_W}, 3072")
    for t in (1, 2, 0):
        e.i(f"s_add_u32 m0, s{T}, {L_KS + 1024*t}")
        if t == 0 and cfg.trim:
            e.i("s_mov_b32 exec_lo, 0")
            e.i("s_mov_b32 exec_hi, 0xffffff00")
        else:
            e.i("s_nop 0")
        e.i(f"buffer_load_dwordx4 v{V_KOFF+t}, {rs(R_K)}, 0 offen{NTF[0]} lds")
    e.i(f"s_lshl_b32 s{T}, s{S_W}, 10")
    e.i(f"s_add_u32 m0, s{T}, {L_SHK}")
    e.i(f"s_lshl_b32 s{T+1}, s{S_CB}, 9")
    if cfg.trim:
        e.i("s_mov_b32 exec_lo, -1")
        e.i("s_mov_b32 exec_hi, 0")
    e.i(f"buffer_load_dwordx4 v{V_L16}, {rs(R_SHK)}, s{T+1} offen{NTF[0]} lds")
    if cfg.trim: e.i("s_mov_b64 exec, -1")
    for it in range(2):
        e.i(f"buffer_load_dwordx4 {vr(VA+4*it,4)}, v{V_KOFF+1+it}, {rs(R_V)}, 0 offen{NTF[0]}")

def h_loads(e, cfg):
    e.i(f"buffer_load_dwordx4 {vr(HREG,4)}, v{V_HOFF}, {rs(R_SSMK)}, 0 offen{NTF[0]}")
    e.i(f"buffer_load_dwordx4 {vr(HREG+4,4)}, v{V_HOFF}, {rs(R_SSMK)}, 0 offen offset:1024{NTF[0]}")

V_PF = 4
def l2_prefetch_addr(e, cfg):
    assert cfg.xmap == 8
    T = S_T0
    e.i(f"s_and_b32 s{T}, s2, 7")
    e.i(f"s_lshr_b32 s{T}, s{T}, 1")
    e.i(f"s_mul_i32 s{T}, s{T}, {512*896}")
    e.i(f"s_lshr_b32 s{T+1}, s2, 3")
    e.i(f"s_mul_i32 s{T+2}, s{T+1}, 14336")
    e.i(f"s_add_u32 s{T}, s{T}, s{T+2}")
    e.i(f"s_lshl_b32 s{T+2}, s{S_W}, 12")
    e.i(f"s_add_u32 s{T}, s{T}, s{T+2}")
    e.i(f"v_lshlrev_b32 v3, 6, v{V_LANE}")
    e.i(f"v_add_u32 v{V_PF}, s{T}, v3")
    e.i(f"s_mul_i32 s{T+1}, s{T+1}, 14")
    e.i(f"s_and_b32 s{T+2}, s2, 1")
    e.i(f"s_mul_i32 s{T+2}, s{T+2}, 448")
    for k, base in ((1, None), (2, 256)):
        if base is None:
            e.i(f"s_lshl_b32 s{T}, s{S_W}, 6")
            e.i(f"v_add_u32 v3, s{T}, v{V_LANE}")
        else:
            e.i(f"v_add_u32 v3, {base}, v{V_LANE}")
        e.i(f"v_mul_u32_u24 v13, 49933, v3")
        e.i(f"v_lshrrev_b32 v13, 20, v13")
        e.i(f"v_mul_u32_u24 v14, 21, v13")
        e.i(f"v_sub_u32 v3, v3, v14")
        e.i(f"v_mul_u32_u24 v14, 37, v3")
        e.i(f"v_lshrrev_b32 v14, 8, v14")
        e.i(f"v_mul_u32_u24 v15, 7, v14")
        e.i(f"v_sub_u32 v3, v3, v15")
        e.i(f"v_mul_u32_u24 v14, 896, v14")
        e.i(f"v_lshl_add_u32 v14, v3, 6, v14")
        e.i(f"v_add_u32 v13, s{T+1}, v13")
        e.i(f"v_mul_u32_u24 v13, 2688, v13")
        e.i(f"v_add3_u32 v{V_PF+k}, v13, v14, s{T+2}")

def l2_prefetch(e, cfg):
    e.i(f"buffer_load_dword v244, v{V_PF}, {rs(R_X)}, 0 offen")
    e.i(f"buffer_load_dword v245, v{V_PF+1}, {rs(R_WQKV)}, 0 offen")
    e.i(f"s_cmp_lg_u32 s{S_W}, 0")
    e.i("s_cbranch_scc1 L_nopf2")
    e.i("s_mov_b32 exec_lo, -1")
    e.i("s_mov_b32 exec_hi, 0x3f")
    e.i(f"buffer_load_dword v246, v{V_PF+2}, {rs(R_WQKV)}, 0 offen")
    e.i("s_mov_b64 exec, -1")
    e.label("L_nopf2")

S_XL, S_WL, S_WS0 = 82, 83, 84
S_SX, S_SW = 85, 86
S_J0 = 80
def b1_consts(e):
    e.i(f"s_lshl_b32 s{S_XL}, s{S_W}, 12")
    e.i(f"s_lshl_b32 s{S_WL}, s{S_W}, 11")
    e.i(f"s_add_u32 s{S_WL}, s{S_WL}, 16384")
    e.i(f"s_mul_i32 s{S_WS0}, s{S_W}, 43008")
    e.i(f"s_mov_b32 s{S_SLI}, {L_RING}")
    e.i(f"s_mov_b32 s{S_J0}, s{S_J}")

def adv_j():
    return [f"s_add_u32 s{S_J}, s{S_J}, 1", f"s_cmp_eq_u32 s{S_J}, 7", f"s_cselect_b32 s{S_J}, 0, s{S_J}"]

def b1_issue_pieces():
    T = S_T0
    p = []
    p.append([f"s_lshl_b32 s{S_SX}, s{S_J}, 7",
              f"s_mul_i32 s{S_SW}, s{S_J}, 172032",
              f"s_add_u32 s{S_SW}, s{S_SW}, s{S_WS0}",
              f"s_add_u32 s{T}, s{S_SLI}, s{S_XL}",
              f"s_add_u32 s{T+1}, s{S_SLI}, s{S_WL}"])
    for t in range(4):
        l = []
        if t == 0: l.append(f"s_mov_b32 m0, s{T}")
        else:
            l.append(f"s_add_u32 m0, s{T}, {1024*t}")
            l.append(f"s_add_u32 s{S_SX}, s{S_SX}, 7168")
        if t == 0: l.append("s_nop 0")
        l.append(f"buffer_load_dwordx4 v{V_XE if t % 2 == 0 else V_XO}, {rs(R_X)}, s{S_SX} offen{NTX[0]} lds")
        p.append(l)
    for t in range(2):
        l = [f"s_add_u32 m0, s{T+1}, {1024*t}" if t else f"s_mov_b32 m0, s{T+1}"]
        if t: l.append(f"s_add_u32 s{S_SW}, s{S_SW}, {8*2688}")
        else: l.append("s_nop 0")
        l.append(f"buffer_load_dwordx4 v{V_DMA}, {rs(R_WQKV)}, s{S_SW} offen{NTW[0]} lds")
        if t == 1:
            l += adv_j() + [f"s_add_u32 s{S_SLI}, s{S_SLI}, {SLOT}",
                  f"s_cmp_eq_u32 s{S_SLI}, {NSLOT*SLOT + L_RING}",
                  f"s_cselect_b32 s{S_SLI}, {L_RING}, s{S_SLI}"]
        p.append(l)
    return p

def wq_issue_pieces():
    T = S_T0
    p = []
    for pos in range(7):
        l = []
        if pos == 0: l.append(f"s_mov_b32 s{S_J}, s{S_J0}")
        l += [f"s_mul_i32 s{S_SW}, s{S_J}, 172032",
              f"s_add_u32 s{S_SW}, s{S_SW}, s{S_WS0}",
              f"s_lshl_b32 s{T}, s{S_W}, 10",
              f"s_add_u32 m0, s{T}, {L_WQ + 4096*pos}"]
        l += adv_j()
        l.append(f"buffer_load_dwordx4 v{V_DMA+1}, {rs(R_WQKV)}, s{S_SW} offen{NTW[0]} lds")
        p.append(l)
    return p

def b1_issue(e):
    for pc in b1_issue_pieces():
        for ln in pc: e.i(ln)

KA, WSH = 16, 124
def a1_compute(e, cfg, nyounger):
    T = S_T0
    e.c("A1 compute")
    e.i(f"s_mul_i32 s{T}, s{S_W}, 3072")
    e.i(f"s_add_u32 s{T}, s{T}, {L_KS}")
    e.i(f"v_add_u32 v3, s{T}, v{V_L16}")
    e.i(f"s_lshl_b32 s{T}, s{S_W}, 10")
    e.i(f"s_add_u32 s{T}, s{T}, {L_SHK}")
    e.i(f"v_and_b32 v14, 7, v{V_LANE}")
    e.i(f"v_lshlrev_b32 v13, 6, v14")
    e.i(f"v_add_u32 v13, s{T}, v13")
    e.i(f"s_waitcnt vmcnt({nyounger})")
    stamp(e, cfg, 20)
    for m in range(4):
        e.i(f"ds_read_b128 {vr(WSH+4*m,4)}, v13 offset:{16*m}")
    for it in range(2):
        for j in range(4):
            e.i(f"ds_read_b128 {vr(KA+16*it+4*j,4)}, v3 offset:{(8+8*it-j)*128}")
    e.i(f"s_mov_b32 s{T}, 0x05040100")
    e.i(f"s_mov_b32 s{T+1}, 0x07060302")
    e.i(f"s_mov_b32 s{T+2}, 0xffff0000")
    TT = 76; OUTR = 108
    for it in range(2):
        e.i(f"s_waitcnt lgkmcnt({4 if it == 0 else 0})")
        for m in range(4):
            k = lambda j: KA + 16*it + 4*j + m
            b = TT + 4*m
            e.i(f"v_perm_b32 v{b+0}, v{k(1)}, v{k(0)}, s{T}")
            e.i(f"v_perm_b32 v{b+1}, v{k(1)}, v{k(0)}, s{T+1}")
            e.i(f"v_perm_b32 v{b+2}, v{k(3)}, v{k(2)}, s{T}")
            e.i(f"v_perm_b32 v{b+3}, v{k(3)}, v{k(2)}, s{T+1}")
        A = TT + 16
        for m in range(4):
            b = TT + 4*m
            e.i(f"v_dot2_f32_bf16 v{A+2*m}, v{b+0}, v{WSH+4*m+0}, 0")
            e.i(f"v_dot2_f32_bf16 v{A+2*m+1}, v{b+1}, v{WSH+4*m+2}, 0")
        U = TT + 24
        for m in range(4):
            e.i(f"v_lshlrev_b32 v{U+2*m}, 16, v{VA+4*it+m}")
            e.i(f"v_and_b32 v{U+2*m+1}, s{T+2}, v{VA+4*it+m}")
        for m in range(4):
            b = TT + 4*m
            e.i(f"v_dot2_f32_bf16 v{A+2*m}, v{b+2}, v{WSH+4*m+1}, v{A+2*m}")
            e.i(f"v_dot2_f32_bf16 v{A+2*m+1}, v{b+3}, v{WSH+4*m+3}, v{A+2*m+1}")
        e.i("s_nop 2")
        for c in range(8):
            e.i(f"v_mul_f32 v{A+c}, v{A+c}, v{U+c}")
        for m in range(4):
            e.i(f"v_cvt_pk_bf16_f32 v{OUTR+4*it+m}, v{A+2*m}, v{A+2*m+1}")
A1_W, A1_TR, A1_RW, A1_RR, A1_G = 140, 141, 142, 143, 144
def a1_addr2(e, cfg):
    T = S_T0
    e.i(f"v_and_b32 v14, 7, v{V_LANE}")
    e.i(f"s_mul_i32 s{T}, s{S_W}, {16*144}")
    e.i(f"s_add_u32 s{T}, s{T}, {L_KVT}")
    e.i(f"v_lshrrev_b32 v13, 3, v{V_LANE}")
    e.i(f"v_mul_u32_u24 v15, 144, v13")
    e.i(f"v_lshl_add_u32 v15, v14, 4, v15")
    e.i(f"v_add_u32 v{A1_W}, s{T}, v15")
    e.i(f"v_lshrrev_b32 v3, 4, v{V_LANE}")
    e.i(f"v_lshlrev_b32 v3, 3, v3")
    e.i(f"v_bfe_u32 v16, v{V_LANE}, 2, 2")
    e.i(f"v_add_u32 v3, v3, v16")
    e.i(f"v_mul_u32_u24 v3, 144, v3")
    e.i(f"v_and_b32 v16, 3, v{V_LANE}")
    e.i(f"v_lshlrev_b32 v16, 3, v16")
    e.i(f"s_lshl_b32 s{T}, s{S_W}, 5")
    e.i(f"s_add_u32 s{T}, s{T}, {L_KVT}")
    e.i(f"v_add3_u32 v{A1_TR}, v3, v16, s{T}")
    e.i(f"s_mul_i32 s{T}, s{S_W}, 3072")
    e.i(f"s_add_u32 s{T}, s{T}, {L_KS}")
    e.i(f"v_and_b32 v16, 15, v{V_LANE}")
    e.i(f"v_mul_u32_u24 v16, 144, v16")
    e.i(f"v_and_b32 v17, 0x30, v{V_LANE}")
    e.i(f"v_add3_u32 v{A1_RW}, v16, v17, s{T}")
    e.i(f"v_add_u32 v{A1_RR}, s{T}, v15")
    e.i(f"v_lshlrev_b32 v18, 12, v13")
    e.i(f"v_lshl_add_u32 v{A1_G}, v14, 4, v18")
    e.i(f"s_lshl_b32 s{T}, s{S_CB}, 6")
    e.i(f"s_lshl_b32 s{T+1}, s{S_W}, 4")
    e.i(f"s_add_u32 s{T}, s{T}, s{T+1}")
    e.i(f"s_lshl_b32 s{T}, s{T}, 12")
    e.i(f"s_lshl_b32 s{T+1}, s{S_RB}, 7")
    e.i(f"s_add_u32 s{T}, s{T}, s{T+1}")
    e.i(f"s_add_u32 s{S_T1}, s{T}, {WS_XT}")
    e.i(f"s_add_u32 s{S_T1+1}, s{S_T1}, {8*4096}")

def a1_compute_b(e, cfg):
    OUTR = 108
    e.i(f"ds_write_b128 v{A1_W}, {vr(OUTR,4)}")
    e.i(f"ds_write_b128 v{A1_W}, {vr(OUTR+4,4)} offset:{8*144}")
    swbar(e)
    for it2 in range(2):
        for jj in range(2):
            e.i(f"ds_read_b64_tr_b16 {vr(76+4*it2+2*jj,2)}, v{A1_TR} offset:{(32*it2+4*jj)*144}")
    e.i("s_waitcnt lgkmcnt(2)")
    e.i(f"ds_write_b128 v{A1_RW}, {vr(76,4)}")
    e.i("s_waitcnt lgkmcnt(1)")
    e.i(f"ds_write_b128 v{A1_RW}, {vr(80,4)} offset:64")
    e.i("s_waitcnt lgkmcnt(0)")
    e.i(f"ds_read_b128 {vr(84,4)}, v{A1_RR}")
    e.i(f"ds_read_b128 {vr(88,4)}, v{A1_RR} offset:{8*144}")
    e.i("s_waitcnt lgkmcnt(1)")
    e.i(f"buffer_store_dwordx4 {vr(84,4)}, v{A1_G}, {rs(R_WS)}, s{S_T1} offen sc1")
    e.i("s_waitcnt lgkmcnt(0)")
    e.i(f"buffer_store_dwordx4 {vr(88,4)}, v{A1_G}, {rs(R_WS)}, s{S_T1+1} offen sc1")

V_NONCE = 240
def nonce_early(e, cfg):
    e.i(f"v_mov_b32 v{V_NONCE+2}, 0")
    e.i(f"buffer_load_dwordx2 v[{V_NONCE}:{V_NONCE+1}], v{V_NONCE+2}, {rs(R_DBG)}, 0 offen sc1")

def get_nonce(e, cfg):
    e.c("fetch nonce (early load, else poll d_debug)")
    e.i(f"v_readfirstlane_b32 s{S_NONCE}, v{V_NONCE}")
    e.i(f"v_readfirstlane_b32 s{S_NONCE+1}, v{V_NONCE+1}")
    e.i("s_nop 3")
    e.i(f"s_or_b32 s{S_T0}, s{S_NONCE}, s{S_NONCE+1}")
    e.i(f"s_cbranch_scc1 L_nonce_done{ROLE[0]}")
    e.i(f"s_mov_b32 s{S_IT}, 0x40000")
    e.label(f"L_nonce{ROLE[0]}")
    e.i(f"buffer_load_dwordx2 v[{V_NONCE}:{V_NONCE+1}], v{V_NONCE+2}, {rs(R_DBG)}, 0 offen sc1")
    e.i("s_waitcnt vmcnt(0)")
    e.i(f"v_readfirstlane_b32 s{S_NONCE}, v{V_NONCE}")
    e.i(f"v_readfirstlane_b32 s{S_NONCE+1}, v{V_NONCE+1}")
    e.i("s_nop 3")
    e.i(f"s_or_b32 s{S_T0}, s{S_NONCE}, s{S_NONCE+1}")
    e.i(f"s_cbranch_scc1 L_nonce_done{ROLE[0]}")
    e.i(f"s_sub_u32 s{S_IT}, s{S_IT}, 1")
    e.i(f"s_cbranch_scc1 L_nonce_done{ROLE[0]}")
    e.i("s_sleep 2")
    e.i(f"s_branch L_nonce{ROLE[0]}")
    e.label(f"L_nonce_done{ROLE[0]}")

def publish(e, cfg, arr, idx_lines, tmp=4):
    T = S_T0
    for ln in idx_lines: e.i(ln)
    e.i(f"s_lshl_b32 s{T}, s{T}, 2")
    e.i(f"s_add_u32 s{T}, s{T}, s{S_W}")
    e.i(f"s_lshl_b32 s{T}, s{T}, {FL_SH}")
    e.i(f"s_add_u32 s{T}, s{T}, {WS_FL + arr}")
    e.i(f"v_mov_b32 v{tmp}, s{S_NONCE}")
    e.i(f"v_mov_b32 v{tmp+1}, s{S_NONCE+1}")
    e.i(f"v_mov_b32 v{tmp+2}, 0")
    e.i("s_mov_b64 exec, 1")
    e.i(f"buffer_store_dwordx2 v[{tmp}:{tmp+1}], v{tmp+2}, {rs(R_WS)}, s{T} offen sc1")
    e.i("s_mov_b64 exec, -1")

def poll(e, cfg, arr, vidx, tag, tmp=4, sleep=None, tmp2=244):
    e.c(f"poll {tag}")
    e.i(f"v_lshlrev_b32 v{vidx}, {FL_SH}, v{vidx}")
    e.i(f"v_add_u32 v{vidx}, {WS_FL + arr}, v{vidx}")
    if cfg.nosync: return
    e.i(f"s_mov_b32 s{S_IT}, 0x40000")
    if cfg.poll2 and ROLE[0] == "B":
        e.i(f"buffer_load_dwordx2 v[{tmp}:{tmp+1}], v{vidx}, {rs(R_WS)}, 0 offen sc1")
        e.label(f"L_poll_{tag}")
        e.i(f"s_sleep 1")
        e.i(f"buffer_load_dwordx2 v[{tmp2}:{tmp2+1}], v{vidx}, {rs(R_WS)}, 0 offen sc1")
        e.i("s_waitcnt vmcnt(1)")
        e.i(f"v_cmp_ne_u64 vcc, s[{S_NONCE}:{S_NONCE+1}], v[{tmp}:{tmp+1}]")
        e.i(f"s_cbranch_vccz L_poll_done_{tag}")
        e.i(f"s_sleep 1")
        e.i(f"buffer_load_dwordx2 v[{tmp}:{tmp+1}], v{vidx}, {rs(R_WS)}, 0 offen sc1")
        e.i("s_waitcnt vmcnt(1)")
        e.i(f"v_cmp_ne_u64 vcc, s[{S_NONCE}:{S_NONCE+1}], v[{tmp2}:{tmp2+1}]")
        e.i(f"s_cbranch_vccz L_poll_done_{tag}")
        e.i(f"s_sub_u32 s{S_IT}, s{S_IT}, 1")
        e.i(f"s_cbranch_scc0 L_poll_{tag}")
    else:
        e.label(f"L_poll_{tag}")
        e.i(f"buffer_load_dwordx2 v[{tmp}:{tmp+1}], v{vidx}, {rs(R_WS)}, 0 offen sc1")
        e.i("s_waitcnt vmcnt(0)")
        e.i(f"v_cmp_ne_u64 vcc, s[{S_NONCE}:{S_NONCE+1}], v[{tmp}:{tmp+1}]")
        e.i(f"s_cbranch_vccz L_poll_done_{tag}")
        e.i(f"s_sub_u32 s{S_IT}, s{S_IT}, 1")
        e.i(f"s_cbranch_scc1 L_poll_done_{tag}")
        e.i(f"s_sleep {sleep if sleep is not None else (cfg.bsleep if ROLE[0] == 'B' else 3)}")
        e.i(f"s_branch L_poll_{tag}")
    e.label(f"L_poll_done_{tag}")

ACCQ, ACCK, ACCV = 224, 128, 144
XK = 16
WF = 176
V_WTR = 208
V_WQ = 220
V_XR = 212
KVB = 160
def b1_traddr(e, cfg):
    T = S_T0
    e.c("B1 lds read addresses")
    e.i(f"v_lshrrev_b32 v3, 5, v{V_LANE}")
    e.i(f"v_lshlrev_b32 v4, 3, v3")
    e.i(f"v_bfe_u32 v13, v{V_LANE}, 2, 2")
    e.i(f"v_add_u32 v4, v4, v13")
    e.i(f"v_bfe_u32 v5, v{V_LANE}, 4, 1")
    e.i(f"v_and_b32 v6, 3, v{V_LANE}")
    e.i(f"v_lshlrev_b32 v14, 6, v4")
    e.i(f"v_lshl_add_u32 v14, v5, 5, v14")
    e.i(f"v_lshl_add_u32 v14, v6, 3, v14")
    e.i(f"v_add_u32 v{V_WQ}, {L_WQ}, v14")
    e.i(f"v_lshlrev_b32 v14, 7, v4")
    e.i(f"v_lshl_add_u32 v14, v5, 5, v14")
    e.i(f"v_add_u32 v14, 16384, v14")
    e.i(f"v_bfe_u32 v15, v13, 1, 1")
    e.i(f"v_lshlrev_b32 v7, 6, v15")
    e.i(f"v_add_u32 v7, v7, v14")
    e.i(f"v_lshl_add_u32 v{V_WTR}, v6, 3, v7")
    e.i(f"v_xor_b32 v15, 1, v15")
    e.i(f"v_lshlrev_b32 v7, 6, v15")
    e.i(f"v_add_u32 v7, v7, v14")
    e.i(f"v_and_b32 v15, 1, v6")
    e.i(f"v_lshl_add_u32 v7, v15, 4, v7")
    e.i(f"v_lshrrev_b32 v15, 1, v6")
    e.i(f"v_lshl_add_u32 v{V_WTR+1}, v15, 3, v7")
    e.i(f"v_and_b32 v13, 31, v{V_LANE}")
    e.i(f"v_bfe_u32 v14, v{V_LANE}, 1, 3")
    e.i(f"v_xor_b32 v14, v14, v3")
    e.i(f"v_lshlrev_b32 v14, 4, v14")
    e.i(f"v_lshl_add_u32 v14, v13, 7, v14")
    e.i(f"s_lshl_b32 s{T}, s{S_W}, 12")
    e.i(f"v_add_u32 v{V_XR}, s{T}, v14")
    for n in range(1, 4):
        e.i(f"v_xor_b32 v{V_XR+n}, {32*n}, v{V_XR}")

def b1_reads(e, p, n):
    s = WF + 8 * (n & 1)
    e.i(f"ds_read_b128 {vr(XK+4*(4*p+n),4)}, v{V_XR+4+n}")
    for j in range(2):
        e.i(f"ds_read_b64_tr_b16 {vr(s+2*j,2)}, v{V_WTR+2} offset:{n*2048 + j*512}")
    for j in range(2):
        e.i(f"ds_read_b64_tr_b16 {vr(s+4+2*j,2)}, v{V_WTR+3} offset:{n*2048 + j*512}")

def b1_mfma(e, p, n):
    s = WF + 8 * (n & 1)
    x = vr(XK+4*(4*p+n), 4)
    first = (p == 0 and n == 0)
    e.i(f"v_mfma_f32_32x32x16_bf16 {vr(ACCK,16)}, {vr(s,4)}, {x}, {'0' if first else vr(ACCK,16)}")
    e.i(f"v_mfma_f32_32x32x16_bf16 {vr(ACCV,16)}, {x}, {vr(s+4,4)}, {'0' if first else vr(ACCV,16)}")

def b1_addr_slot(e):
    for n in range(4):
        e.i(f"v_add_u32 v{V_XR+4+n}, s{S_SLC}, v{V_XR+n}")
    e.i(f"v_add_u32 v{V_WTR+2}, s{S_SLC}, v{V_WTR}")
    e.i(f"v_add_u32 v{V_WTR+3}, s{S_SLC}, v{V_WTR+1}")
    e.i(f"s_add_u32 s{S_SLC}, s{S_SLC}, {SLOT}")
    e.i(f"s_cmp_eq_u32 s{S_SLC}, {NSLOT*SLOT + L_RING}")
    e.i(f"s_cselect_b32 s{S_SLC}, {L_RING}, s{S_SLC}")

def b1_body(e, cfg, p, pcs, wait_next):
    a, one, tmp = bar_regs()
    sched = {0: pcs[0:4], 1: pcs[4:], 2: []}
    for n in range(3):
        if n == 2 and wait_next is not None:
            if cfg.fine: stamp(e, cfg, 32 + p)
            e.i(f"s_waitcnt vmcnt({wait_next})")
            if cfg.fine: stamp(e, cfg, 25 + p)
            e.i(f"s_add_u32 s{S_BT}, s{S_BT}, 4")
            sw_arrive(e)
        b1_reads(e, p, n + 1)
        e.i("s_waitcnt lgkmcnt(5)")
        b1_mfma(e, p, n)
        for pc in sched.get(n, []):
            for ln in pc: e.i(ln)
    if wait_next is not None:
        sw_wait(e, a, target_sgpr=S_BT)
        if cfg.fine: stamp(e, cfg, 52 + p)
        b1_addr_slot(e)
        b1_reads(e, p + 1, 0)
    else:
        e.i("s_waitcnt lgkmcnt(0)")
    b1_mfma(e, p, 3)

def b1_loop(e, cfg):
    e.i(f"s_mov_b32 s{S_SLC}, {L_RING}")
    e.i(f"s_waitcnt vmcnt({6 + 1})")
    swbar(e)
    b1_addr_slot(e)
    b1_reads(e, 0, 0)
    waits = [7, 6, 6, 6, 6, 7, None]
    for p in range(7):
        if p <= 4: pcs = b1_issue_pieces()
        elif p == 5: pcs = wq_issue_pieces()
        else: pcs = []
        b1_body(e, cfg, p, pcs, waits[p])
        if p == 3: stamp(e, cfg, 24)

def b1_q(e, cfg, mid=None, midk=16):
    NB = 4
    def rd(k):
        p, n = divmod(k, 4)
        b = WF + 4 * (k % NB)
        for j in range(2):
            e.i(f"ds_read_b64_tr_b16 {vr(b+2*j,2)}, v{V_WQ} offset:{p*4096 + n*1024 + j*256}")
    for k in range(NB - 1): rd(k)
    for k in range(28):
        if k + NB - 1 < 28: rd(k + NB - 1)
        e.i(f"s_waitcnt lgkmcnt({2 * min(NB - 1, 27 - k)})")
        b = WF + 4 * (k % NB)
        e.i(f"v_mfma_f32_32x32x16_bf16 {vr(ACCQ,16)}, {vr(b,4)}, {vr(XK+4*k,4)}, {'0' if k == 0 else vr(ACCQ,16)}")
        if mid is not None and k == midk: mid()

def b1_epilogue_kv(e, cfg):
    T = S_T0
    e.c("B1 epilogue (K, V)")
    e.i(f"s_mov_b32 s{S_MHH}, 0")
    e.i(f"s_mov_b32 s{S_MHH+1}, -1")
    m = (1 << 0) | (1 << 4) | (1 << 16) | (1 << 20)
    e.i(f"s_mov_b32 s{S_MONE}, {m}")
    e.i(f"s_mov_b32 s{S_MONE+1}, {m}")
    e.i(f"v_mov_b32 v14, 0x3f803f80")
    e.i(f"s_lshl_b32 s{T}, s{S_H}, 18")
    e.i(f"s_lshl_b32 s{T+1}, s{S_R}, 2")
    e.i(f"s_add_u32 s{T+1}, s{T+1}, s{S_W}")
    e.i(f"s_lshl_b32 s{T+1}, s{T+1}, 12")
    e.i(f"s_add_u32 s{T}, s{T}, s{T+1}")
    if WS_KV: e.i(f"s_add_u32 s{T}, s{T}, {WS_KV}")
    e.i("s_nop 4")
    for m_ in range(8):
        e.i(f"v_cvt_pk_bf16_f32 v{KVB+m_}, v{ACCK+2*m_}, v{ACCK+2*m_+1}")
    for m_ in (6, 7):
        e.i(f"v_cndmask_b32 v{KVB+m_}, v{KVB+m_}, v14, s[{S_MHH}:{S_MHH+1}]")
    for m_ in range(8):
        e.i(f"v_cvt_pk_bf16_f32 v{KVB+8+m_}, v{ACCV+2*m_}, v{ACCV+2*m_+1}")
    for f in range(2):
        e.i(f"buffer_store_dwordx4 {vr(KVB+4*f,4)}, v{V_L16}, {rs(R_WS)}, s{T} offen offset:{1024*f} sc1")
    for m_ in range(8):
        e.i(f"v_cndmask_b32 v{KVB+8+m_}, v{KVB+8+m_}, v14, s[{S_MONE}:{S_MONE+1}]")
    for f in range(2, 4):
        e.i(f"buffer_store_dwordx4 {vr(KVB+4*f,4)}, v{V_L16}, {rs(R_WS)}, s{T} offen offset:{1024*f} sc1")
    if cfg.tags:
        for i in range(4): e.i(f"v_mov_b32 v{4+i}, 0")
        o_addr(e)
        e.i(f"buffer_store_dwordx4 v[4:7], v{V_L16}, {rs(R_WS)}, s{S_OA} offen sc1")
        e.i(f"buffer_store_dwordx4 v[4:7], v{V_L16}, {rs(R_WS)}, s{S_OA} offen offset:1024 sc1")

S_OA = 75
def o_addr(e):
    T = S_T0
    e.i(f"s_lshl_b32 s{T}, s{S_R}, 2")
    e.i(f"s_add_u32 s{T}, s{T}, s{S_W}")
    e.i(f"s_lshl_b32 s{T}, s{T}, 4")
    e.i(f"s_add_u32 s{T}, s{T}, s{S_H}")
    e.i(f"s_lshl_b32 s{T}, s{T}, 11")
    e.i(f"s_add_u32 s{S_OA}, s{T}, {WS_OF}")

def b1_epilogue_q(e, cfg):
    T = S_T0
    e.i(f"s_mov_b32 s{T+2}, {f2u(QSCALE)}")
    e.i(f"s_lshl_b32 s{T+1}, s{S_W}, 11")
    e.i(f"s_add_u32 s{T+1}, s{T+1}, {L_Q}")
    e.i(f"v_add_u32 v3, s{T+1}, v{V_L16}")
    e.i("s_nop 7")
    e.i("s_nop 1")
    QP = 16
    for i in range(16):
        e.i(f"v_mul_f32 v{ACCQ+i}, s{T+2}, v{ACCQ+i}")
    for m_ in range(8):
        e.i(f"v_cvt_pk_bf16_f32 v{QP+m_}, v{ACCQ+2*m_}, v{ACCQ+2*m_+1}")
    for m_ in (6, 7):
        e.i(f"v_cndmask_b32 v{QP+m_}, v{QP+m_}, 0, s[{S_MHH}:{S_MHH+1}]")
    e.i(f"ds_write_b128 v3, {vr(QP,4)}")
    e.i(f"ds_write_b128 v3, {vr(QP+4,4)} offset:1024")

def a2_dload(e, cfg):
    e.i(f"s_min_u32 s{S_T0}, s2, 223")
    e.i(f"s_lshl_b32 s{S_T0}, s{S_T0}, 2")
    e.i(f"s_load_dword s{S_D2}, s[{S_DP}:{S_DP+1}], s{S_T0}")

def a2_hstage(e, cfg):
    T = S_T0
    e.c("A2: stage h into LDS (with h0 += D), zero pads")
    e.i(f"s_lshr_b32 s{T}, s{S_W}, 1")
    e.i(f"s_lshl_b32 s{T+1}, s{S_D2}, 16")
    e.i(f"s_and_b32 s{T+2}, s{S_D2}, 0xffff0000")
    e.i(f"s_cmp_eq_u32 s{T}, 0")
    e.i(f"s_cselect_b32 s{T+1}, s{T+1}, s{T+2}")
    e.i(f"v_lshlrev_b32 v3, 16, v{HREG}")
    e.i(f"v_add_f32 v3, s{T+1}, v3")
    e.i(f"v_cvt_pk_bf16_f32 v3, v3, v3")
    e.i(f"s_mov_b32 s{T+2}, 0xffff")
    e.i(f"v_bfi_b32 v3, s{T+2}, v3, v{HREG}")
    e.i(f"s_and_b32 s{T+2}, s{S_W}, 1")
    e.i(f"s_xor_b32 s{T+4}, s{T+2}, 1")
    e.i(f"s_mov_b32 s{T+5}, 0")
    e.i(f"v_cndmask_b32 v{HREG}, v{HREG}, v3, s[{T+4}:{T+5}]")
    e.i(f"s_mul_i32 s{T+1}, s{T}, {H_CH}")
    e.i(f"s_add_u32 s{T+1}, s{T+1}, {L_H}")
    e.i(f"v_add_u32 v13, s{T+1}, v{V_L16}")
    e.i(f"s_lshl_b32 s{T+2}, s{T+2}, 11")
    e.i(f"s_add_u32 s{T+2}, s{T+2}, 64")
    e.i(f"v_add_u32 v3, s{T+2}, v13")
    e.i(f"ds_write_b128 v3, {vr(HREG,4)}")
    e.i(f"ds_write_b128 v3, {vr(HREG+4,4)} offset:1024")
    for i in range(4): e.i(f"v_mov_b32 v{76+i}, 0")
    e.i(f"s_mul_i32 s{T+1}, s{T}, {X_CH}")
    e.i(f"s_add_u32 s{T+1}, s{T+1}, {L_X}")
    e.i(f"v_add_u32 v14, s{T+1}, v{V_L16}")
    e.i(f"s_mov_b64 exec, 0xf")
    e.i(f"ds_write_b128 v13, {vr(76,4)}")
    e.i(f"s_mov_b32 exec_lo, -1")
    e.i(f"s_mov_b32 exec_hi, 0xf")
    e.i(f"ds_write_b128 v14, {vr(76,4)}")
    e.i(f"s_mov_b64 exec, -1")

CACC = 64
XFR = 128
HR = 16
V_HA = 48
V_XA = 49
QPF = 40
V_A3OFF = 56
def a3_qaddr(e, cfg):
    T = S_T0
    e.c("A3 addresses: row = 64 rb + 16 w + 8 it + (l>>3), piece l&7")
    e.i(f"s_lshl_b32 s{T}, s{S_RB}, 6")
    e.i(f"s_lshl_b32 s{T+1}, s{S_W}, 4")
    e.i(f"s_add_u32 s{T}, s{T}, s{T+1}")
    e.i(f"s_mul_i32 s{T+1}, s{T}, 896")
    e.i(f"s_mul_i32 s{T+2}, s{T}, 1792")
    e.i(f"s_lshl_b32 s{T+3}, s{S_CB}, 7")
    e.i(f"s_add_u32 s{T+1}, s{T+1}, s{T+3}")
    e.i(f"s_add_u32 s{T+2}, s{T+2}, s{T+3}")
    e.i(f"v_lshrrev_b32 v3, 3, v{V_LANE}")
    e.i(f"v_and_b32 v13, 7, v{V_LANE}")
    e.i(f"v_lshlrev_b32 v13, 4, v13")
    e.i(f"v_mul_u32_u24 v14, 896, v3")
    e.i(f"v_add3_u32 v{V_A3OFF}, v14, v13, s{T+1}")
    e.i(f"v_mul_u32_u24 v14, 1792, v3")
    e.i(f"v_add3_u32 v{V_A3OFF+1}, v14, v13, s{T+2}")

V_WO = 58
def wo_addr(e, cfg):
    T = S_T0
    e.i(f"v_lshrrev_b32 v3, 3, v{V_LANE}")
    e.i(f"v_mul_u32_u24 v3, 896, v3")
    e.i(f"v_bfe_u32 v13, v{V_LANE}, 2, 1")
    e.i(f"v_bfe_u32 v14, v{V_LANE}, 4, 1")
    e.i(f"v_xor_b32 v13, v13, v14")
    e.i(f"v_lshlrev_b32 v13, 6, v13")
    e.i(f"v_and_b32 v14, 3, v{V_LANE}")
    e.i(f"v_lshlrev_b32 v14, 4, v14")
    e.i(f"v_add3_u32 v3, v3, v13, v14")
    e.i(f"s_lshl_b32 s{T}, s{S_CB}, 7")
    e.i(f"v_add_u32 v{V_WO}, s{T}, v3")

def wo_first(e, cfg):
    T = S_T0
    e.i(f"s_cmp_eq_u32 s{S_W}, 0")
    e.i(f"s_cselect_b32 s{T+2}, 896, 0")
    e.i(f"v_subrev_u32 v4, s{T+2}, v{V_WO}")
    e.i(f"s_mul_i32 s{T+1}, s{S_W}, 7168")
    e.i(f"s_sub_u32 s{T+1}, s{T+1}, 896")
    e.i(f"s_max_i32 s{T+1}, s{T+1}, 0")
    e.i(f"s_lshl_b32 s{T}, s{S_W}, 10")
    e.i(f"s_add_u32 m0, s{T}, {L_WO}")
    e.i("s_nop 0")
    e.i(f"buffer_load_dwordx4 v4, {rs(R_WO)}, s{T+1} offen{NTO[0]} lds")
    e.i(f"s_mov_b32 m0, {L_WO + 56*1024}")
    e.i(f"s_mov_b32 s{T+1}, {56*7168 - 896}")
    e.i(f"buffer_load_dwordx4 v{V_WO}, {rs(R_WO)}, s{T+1} offen{NTO[0]} lds")
    e.i(f"s_lshl_b32 s81, s{S_W}, 10")
    e.i(f"s_add_u32 s81, s81, {L_WO}")
    e.i(f"s_mul_i32 s87, s{S_W}, 7168")
    e.i(f"s_sub_u32 s87, s87, 896")

S_WOM, S_WOS = 81, 87
def wo_next(e):
    e.i(f"s_add_u32 s{S_WOM}, s{S_WOM}, 4096")
    e.i(f"s_add_u32 s{S_WOS}, s{S_WOS}, {4*7168}")
    e.i(f"s_mov_b32 m0, s{S_WOM}")
    e.i("s_nop 0")
    e.i(f"buffer_load_dwordx4 v{V_WO}, {rs(R_WO)}, s{S_WOS} offen{NTO[0]} lds")

def a2_main(e, cfg):
    T = S_T0
    e.c("==== A2 conv ====")
    e.i(f"s_lshr_b32 s{T}, s{S_W}, 1")
    e.i(f"s_and_b32 s{T+2}, s{S_W}, 1")
    e.i(f"s_mul_i32 s{T+1}, s{T}, {X_CH}")
    e.i(f"s_mul_i32 s{T+3}, s{T+2}, {2048+256}")
    e.i(f"s_add_u32 s{T+1}, s{T+1}, s{T+3}")
    e.i(f"s_add_u32 s{T+1}, s{T+1}, {L_X + 512 + 64}")
    e.i(f"v_lshrrev_b32 v3, 4, v{V_LANE}")
    e.i(f"v_lshlrev_b32 v3, 5, v3")
    e.i(f"v_add3_u32 v53, v3, v{V_L16}, s{T+1}")
    e.i(f"v_bfe_u32 v8, v{V_LANE}, 4, 1")
    e.i(f"v_lshrrev_b32 v9, 5, v{V_LANE}")
    e.i(f"v_bfe_u32 v10, v{V_LANE}, 2, 2")
    e.i(f"v_and_b32 v11, 3, v{V_LANE}")
    e.i(f"v_lshlrev_b32 v12, 2, v8")
    e.i(f"v_add_u32 v12, v12, v11")
    e.i(f"v_lshl_add_u32 v13, v9, 3, v12")
    e.i(f"v_add_u32 v13, v13, v10")
    e.i(f"s_mul_i32 s{T+1}, s{T}, {H_CH}")
    e.i(f"s_add_u32 s{T+1}, s{T+1}, {L_H + 64 - 56}")
    e.i(f"v_lshlrev_b32 v13, 3, v13")
    e.i(f"v_add_u32 v{V_HA}, s{T+1}, v13")
    e.i(f"v_sub_u32 v12, v12, v9")
    e.i(f"v_lshlrev_b32 v12, 5, v12")
    e.i(f"v_lshlrev_b32 v10, 2, v10")
    e.i(f"v_sub_u32 v12, v12, v10")
    e.i(f"v_add_u32 v12, 28, v12")
    e.i(f"s_mul_i32 s{T+1}, s{T}, {X_CH}")
    e.i(f"s_add_u32 s{T+1}, s{T+1}, {L_X}")
    for par in range(2):
        for j in range(2):
            d = V_XA + 2*par + j
            e.i(f"v_add_u32 v13, {64*par - 16*j}, v12")
            e.i(f"v_ashrrev_i32 v14, 7, v13")
            e.i(f"v_lshlrev_b32 v14, 5, v14")
            e.i(f"v_lshl_add_u32 v13, v13, 1, v14")
            e.i(f"v_add_u32 v{d}, s{T+1}, v13")
    e.i(f"s_lshl_b32 s{T}, s2, 1")
    e.i(f"s_bfe_u32 s{T}, s{T}, 0x20004")
    e.i(f"s_lshl_b32 s{T+1}, s{S_CB}, 5")
    e.i(f"s_and_b32 s{T+2}, s{S_W}, 1")
    e.i(f"s_lshl_b32 s{T+2}, s{T+2}, 4")
    e.i(f"s_add_u32 s{T+1}, s{T+1}, s{T+2}")
    e.i(f"s_lshl_b32 s{T+1}, s{T+1}, 2")
    e.i(f"s_add_u32 s{T}, s{T}, s{T+1}")
    e.i(f"v_and_b32 v7, 15, v{V_LANE}")
    e.i(f"v_lshlrev_b32 v7, 2, v7")
    e.i(f"v_add_u32 v7, s{T}, v7")
    poll(e, cfg, FL_A1, 7, "a1")
    stamp(e, cfg, 6)
    e.i(f"s_lshr_b32 s{T}, s{S_W}, 1")
    e.i(f"s_lshl_b32 s{T+1}, s2, 1")
    e.i(f"s_add_u32 s{T+1}, s{T}, s{T+1}")
    e.i(f"s_lshl_b32 s{T+1}, s{T+1}, 12")
    e.i(f"s_and_b32 s{T+2}, s{S_W}, 1")
    e.i(f"s_lshl_b32 s{T+3}, s{T+2}, 11")
    e.i(f"s_add_u32 s{T+1}, s{T+1}, s{T+3}")
    e.i(f"s_add_u32 s{T+1}, s{T+1}, {WS_XT}")
    e.i(f"buffer_load_dwordx4 v[16:19], v{V_L16}, {rs(R_WS)}, s{T+1} offen sc1")
    e.i(f"buffer_load_dwordx4 v[20:23], v{V_L16}, {rs(R_WS)}, s{T+1} offen offset:1024 sc1")
    e.i("s_waitcnt vmcnt(0)")
    e.i(f"ds_write_b128 v53, v[16:19]")
    e.i(f"ds_write_b128 v53, v[20:23] offset:{1024+128}")
    swbar(e)
    stamp(e, cfg, 7)
    e.i(f"s_and_b32 s{T}, s{S_W}, 1")
    e.i(f"s_cmp_eq_u32 s{T}, 0")
    e.i("s_cbranch_scc0 L_conv_setB")
    conv_set(e, [0, 1, 6, 7])
    e.i("s_branch L_conv_post")
    e.label("L_conv_setB")
    conv_set(e, [2, 3, 4, 5])
    e.label("L_conv_post")
    stamp(e, cfg, 8)
    conv_post(e, cfg)

def conv_set(e, tiles):
    nmax = 4 * max(tiles) + 3
    steps = [[(t, T) for t, T in enumerate(tiles) if n <= 4*T + 3] for n in range(nmax + 1)]
    reads = []
    loaded = set()
    need_idx = []
    for n in range(nmax + 1):
        for j in range(2):
            reads.append((("H", n), f"ds_read_b64_tr_b16 {vr(HR+4*(n%8)+2*j,2)}, v{V_HA} offset:{128*n + 32*j}"))
        for t, T in steps[n]:
            v = 4*T - n
            if v in loaded: continue
            loaded.add(v)
            vp = v + 4
            q, par = vp >> 1, vp & 1
            for j in range(2):
                reads.append((("X", v), f"ds_read_b64_tr_b16 {vr(XFR+4*(vp-1)+2*j,2)}, v{V_XA+2*par+j} offset:{288*q}"))
        need_idx.append(len(reads) - 1)
    AHEAD = 14
    issued = 0
    first = {t: True for t in range(4)}
    for n in range(nmax + 1):
        target = min(len(reads), need_idx[n] + 1 + AHEAD)
        while issued < target:
            tag = reads[issued][0]
            if tag[0] == "H" and tag[1] > n + 7: break
            e.i(reads[issued][1]); issued += 1
        assert issued > need_idx[n]
        younger = issued - 1 - need_idx[n]
        e.i(f"s_waitcnt lgkmcnt({min(younger, 15)})")
        for t, T in steps[n]:
            vp = 4*T - n + 4
            acc = vr(CACC + 16*t, 16)
            c = "0" if first[t] else acc
            first[t] = False
            e.i(f"v_mfma_f32_32x32x16_bf16 {acc}, {vr(XFR+4*(vp-1),4)}, {vr(HR+4*(n%8),4)}, {c}")
    for t, T in enumerate(tiles):
        e.i(f"s_mov_b32 s{S_T1+t}, {T}")

def conv_post(e, cfg):
    T = S_T0
    e.i(f"s_mov_b32 s{S63}, 0")
    e.i(f"s_mov_b32 s{S63+1}, 0x80000000")
    e.i(f"s_lshr_b32 s{T}, s{S_W}, 1")
    e.i(f"s_mul_i32 s{T}, s{T}, 144")
    e.i(f"s_add_u32 s{T}, s{T}, {L_CARRY}")
    for t in range(4):
        e.i(f"s_lshl_b32 s{T+1}, s{S_T1+t}, 4")
        e.i(f"s_add_u32 s{T+1}, s{T+1}, s{T}")
        e.i(f"v_mov_b32 v{136+t}, s{T+1}")
    e.i(f"v_mov_b32 v140, s{T}")
    e.i("v_mov_b32 v141, 0")
    e.i("s_nop 1")
    R = lambda t, g, i: CACC + 16*t + 4*g + i
    EX = 128
    for t in range(4):
        e.i(f"v_add_f32_dpp v{EX+t}, v{R(t,3,3)}, v{R(t,3,2)} wave_ror:1 row_mask:0xf bank_mask:0xf")
    e.i("s_nop 0")
    for t in range(4):
        e.i(f"v_add_f32_dpp v{EX+4+t}, v{EX+t}, v{R(t,3,1)} wave_ror:1 row_mask:0xf bank_mask:0xf")
    e.i(f"s_mov_b64 exec, s[{S63}:{S63+1}]")
    for t in range(4):
        e.i(f"ds_write_b32 v{136+t}, v{R(t,3,3)} offset:16")
        e.i(f"ds_write_b32 v{136+t}, v{EX+t} offset:20")
        e.i(f"ds_write_b32 v{136+t}, v{EX+4+t} offset:24")
    e.i("ds_write_b32 v140, v141")
    e.i("ds_write_b32 v140, v141 offset:4")
    e.i("ds_write_b32 v140, v141 offset:8")
    e.i("s_mov_b64 exec, -1")
    swbar(e)
    PU, P1, P2 = 144, 148, 152
    for t in range(4):
        e.i(f"ds_read_b32 v{PU+t}, v{136+t}")
        e.i(f"ds_read_b32 v{P1+t}, v{136+t} offset:4")
        e.i(f"ds_read_b32 v{P2+t}, v{136+t} offset:8")
    e.i(f"s_lshr_b32 s{T}, s{S_W}, 1")
    e.i(f"s_mul_i32 s{T}, s{T}, {X_CH}")
    e.i(f"s_add_u32 s{T}, s{T}, {L_Y}")
    e.i(f"v_lshlrev_b32 v3, 1, v{V_LANE}")
    for t in range(4):
        e.i(f"s_lshl_b32 s{T+1}, s{S_T1+t}, 9")
        e.i(f"s_add_u32 s{T+1}, s{T+1}, s{T}")
        e.i(f"v_add_u32 v{140+t}, s{T+1}, v3")
    e.i("s_waitcnt lgkmcnt(0)")
    SEL = 156
    m63 = f"s[{S63}:{S63+1}]"
    prevU = [PU+t for t in range(4)]
    prev1 = [P1+t for t in range(4)]
    prev2 = [P2+t for t in range(4)]
    for g in range(4):
        cur1 = [160 + 4*(g & 1) + t for t in range(4)]
        cur2 = [168 + 4*(g & 1) + t for t in range(4)]
        for t in range(4):
            e.i(f"v_cndmask_b32 v{SEL+t}, v{R(t,g,3)}, v{prevU[t]}, {m63}")
        for t in range(4):
            e.i(f"v_add_f32_dpp v{cur1[t]}, v{SEL+t}, v{R(t,g,2)} wave_ror:1 row_mask:0xf bank_mask:0xf")
        for t in range(4):
            e.i(f"v_cndmask_b32 v{SEL+t}, v{cur1[t]}, v{prev1[t]}, {m63}")
        for t in range(4):
            e.i(f"v_add_f32_dpp v{cur2[t]}, v{SEL+t}, v{R(t,g,1)} wave_ror:1 row_mask:0xf bank_mask:0xf")
        for t in range(4):
            e.i(f"v_cndmask_b32 v{SEL+t}, v{cur2[t]}, v{prev2[t]}, {m63}")
        for t in range(4):
            e.i(f"v_add_f32_dpp v{R(t,g,0)}, v{SEL+t}, v{R(t,g,0)} wave_ror:1 row_mask:0xf bank_mask:0xf")
        prevU = [R(t,g,3) for t in range(4)]
        prev1 = cur1
        prev2 = cur2
        if g & 1:
            gp = g >> 1
            for t in range(4):
                e.i(f"v_cvt_pk_bf16_f32 v{128+2*t+gp}, v{R(t,g-1,0)}, v{R(t,g,0)}")
            for t in range(4):
                e.i(f"ds_write_b16 v{140+t}, v{128+2*t+gp} offset:{256*gp}")
                e.i(f"ds_write_b16_d16_hi v{140+t}, v{128+2*t+gp} offset:{256*gp+128}")
    e.i(f"s_lshr_b32 s{T+2}, s{S_W}, 1")
    e.i(f"s_lshl_b32 s{T+3}, s2, 1")
    e.i(f"s_add_u32 s{T+3}, s{T+3}, s{T+2}")
    e.i(f"s_lshl_b32 s{T+3}, s{T+3}, 12")
    e.i(f"s_add_u32 s{T+3}, s{T+3}, {WS_YT}")
    for pz in range(2):
        e.i(f"s_lshl_b32 s{T+1}, s{S_T1+2*pz}, 9")
        e.i(f"s_add_u32 s{T+4+pz}, s{T+1}, s{T+3}")
        e.i(f"s_add_u32 s{T+1}, s{T+1}, s{T}")
        e.i(f"v_add_u32 v{144+pz}, s{T+1}, v{V_L16}")
    e.i("s_waitcnt lgkmcnt(0)")
    for pz in range(2):
        e.i(f"ds_read_b128 {vr(160+4*pz,4)}, v{144+pz}")
    e.i("s_waitcnt lgkmcnt(1)")
    e.i(f"buffer_store_dwordx4 {vr(160,4)}, v{V_L16}, {rs(R_WS)}, s{T+4} offen sc1")
    e.i("s_waitcnt lgkmcnt(0)")
    e.i(f"buffer_store_dwordx4 {vr(164,4)}, v{V_L16}, {rs(R_WS)}, s{T+5} offen sc1")

SB = [16, 32]
PB = [48, 56]
OB = 64
QB = 128
def kvbuf(b): return KVB + 16 * (b & 3)

V_KVO = 235
def kv_load(e, b, advance=True):
    if advance:
        e.i(f"s_add_u32 s{S_KV+1}, s{S_KV+1}, 16384")
        e.i(f"s_and_b32 s{S_KV+1}, s{S_KV+1}, 0x3ffff")
    for f in range(4):
        e.i(f"buffer_load_dwordx4 {vr(kvbuf(b)+4*f,4)}, v{V_KVO}, {rs(R_WS)}, s{S_KV+1} offen offset:{1024*f} sc1")

def slot(e, j, s_next, pv, pre=None, loads=None):
    mf = []
    if s_next is not None:
        kb, jn = s_next
        Sx = vr(SB[jn & 1], 16)
        mf.append(f"v_mfma_f32_32x32x16_bf16 {Sx}, {vr(kvbuf(kb),4)}, {vr(QB+8*jn,4)}, 0")
        mf.append(f"v_mfma_f32_32x32x16_bf16 {Sx}, {vr(kvbuf(kb)+4,4)}, {vr(QB+8*jn+4,4)}, {Sx}")
    if pv is not None:
        vb, jp, first = pv
        O = vr(OB + 16*jp, 16)
        P = PB[jp & 1]
        mf.append(f"v_mfma_f32_32x32x16_bf16 {O}, {vr(kvbuf(vb)+8,4)}, {vr(P,4)}, {'0' if first else O}")
        mf.append(f"v_mfma_f32_32x32x16_bf16 {O}, {vr(kvbuf(vb)+12,4)}, {vr(P+4,4)}, {O}")
    groups = []
    if j is not None:
        Sx = SB[j & 1]; P = PB[j & 1]
        for g in range(4):
            gl = [f"v_exp_f32 v{Sx+4*g+i}, v{Sx+4*g+i}" for i in range(4)]
            gl.append(f"v_cvt_pk_bf16_f32 v{P+2*g}, v{Sx+4*g}, v{Sx+4*g+1}")
            gl.append(f"v_cvt_pk_bf16_f32 v{P+2*g+1}, v{Sx+4*g+2}, v{Sx+4*g+3}")
            groups.append(gl)
    if pre:
        for ln in pre: e.i(ln)
    n = max(len(mf), len(groups))
    for k in range(n):
        if k < len(mf): e.i(mf[k])
        if loads is not None and k == 2:
            loads()
        if k < len(groups):
            for ln in groups[k]: e.i(ln)

YL = 24
def b2_main(e, cfg):
    T = S_T0
    e.c("==== B2 attention ====")
    e.i(f"s_lshl_b32 s{T}, s{S_H}, 6")
    e.i(f"s_add_u32 s{T}, s{T}, s{S_W}")
    e.i(f"v_and_b32 v7, 15, v{V_LANE}")
    e.i(f"v_lshlrev_b32 v7, 2, v7")
    e.i(f"v_add_u32 v7, s{T}, v7")
    e.i(f"v_add_u32 v3, {L_Q}, v{V_L16}")
    for j in range(4):
        for f in range(2):
            e.i(f"ds_read_b128 {vr(QB+8*j+4*f,4)}, v3 offset:{2048*j+1024*f}")
    e.i(f"s_lshl_b32 s{S_KV}, s{S_H}, 18")
    e.i(f"s_lshl_b32 s{T}, s{S_W}, 12")
    e.i(f"s_add_u32 s{S_KV}, s{S_KV}, s{T}")
    if WS_KV: e.i(f"s_add_u32 s{S_KV}, s{S_KV}, {WS_KV}")
    e.i(f"v_add_u32 v{V_KVO}, s{S_KV}, v{V_L16}")
    poll(e, cfg, FL_B1, 7, "b1")
    if cfg.nosync: e.i("s_waitcnt vmcnt(0)")
    stamp(e, cfg, 10)
    e.i(f"s_mov_b32 s{S_SLOW}, 0")
    e.label("L_attn_start")
    e.i(f"s_lshl_b32 s{S_KV+1}, s{S_R}, 14")
    kv_load(e, 1); kv_load(e, 2); kv_load(e, 3)
    e.i("s_waitcnt lgkmcnt(0)")
    slot(e, None, (0, 0), None)
    e.i("s_nop 7")
    e.i("s_nop 3")
    slot(e, 0, (0, 1), None)
    slot(e, 1, (0, 2), (0, 0, True))
    slot(e, 2, (0, 3), (0, 1, True))
    slot(e, 3, (1, 0), (0, 2, True), pre=["s_waitcnt vmcnt(8)"])
    slot(e, 0, (1, 1), (0, 3, True))
    e.i(f"s_mov_b32 s{S_IT}, 0")
    e.i(f"s_nop 0") if cfg.shift4 else None
    e.i(f".p2align {cfg.lalign}") if not cfg.shift4 else None
    e.label("L_attn_loop")
    if cfg.stamps:
        e.i(f"{'s_memrealtime' if cfg.realtime else 's_memtime'} s[{S_TS}:{S_TS+1}]")
        e.i(f"s_add_u32 m0, s{S_IT}, 40")
        e.i("s_waitcnt lgkmcnt(0)")
        e.i(f"v_writelane_b32 v250, s{S_TS}, m0")
    for k in range(4):
        i = k + 1
        b, bn = i & 3, (i + 1) & 3
        slot(e, 1, (b, 2), (b, 0, False), loads=lambda: kv_load(e, (i + 3) & 3))
        slot(e, 2, (b, 3), (b, 1, False))
        slot(e, 3, (bn, 0), (b, 2, False), pre=["s_waitcnt vmcnt(8)"] + (["s_nop 0"] if cfg.pad else []))
        slot(e, 0, (bn, 1), (b, 3, False))
        if k == 1:
            e.i(f"s_cmp_eq_u32 s{S_IT}, 3")
            e.i("s_cbranch_scc1 L_attn_tail")
    e.i(f"s_add_u32 s{S_IT}, s{S_IT}, 1")
    e.i("s_branch L_attn_loop")
    e.label("L_attn_tail")
    stamp(e, cfg, 44)
    slot(e, 1, (3, 2), (3, 0, False))
    slot(e, 2, (3, 3), (3, 1, False))
    slot(e, 3, None, (3, 2, False))
    e.i("s_nop 1")
    slot(e, None, None, (3, 3, False))
    stamp(e, cfg, 45)
    e.i("s_waitcnt vmcnt(0)")
    if cfg.a3late:
        e.i(f"v_mov_b32 v4, {L_CNTRD}")
        sw_arrive(e, addr=4)
    stamp(e, cfg, 11)
    e.i(f"s_mov_b32 s{T}, {f2u(2.0**-40)}")
    e.i(f"s_mov_b32 s{T+1}, {f2u(2.0**40)}")
    e.i(f"s_mov_b64 s[{T+2}:{T+3}], -1")
    for j in range(4):
        e.i(f"v_cmp_le_f32 vcc, s{T}, v{OB+16*j}")
        e.i(f"s_and_b64 s[{T+2}:{T+3}], s[{T+2}:{T+3}], vcc")
        e.i(f"v_cmp_ge_f32 vcc, s{T+1}, v{OB+16*j}")
        e.i(f"s_and_b64 s[{T+2}:{T+3}], s[{T+2}:{T+3}], vcc")
    e.i(f"s_cmp_eq_u64 s[{T+2}:{T+3}], -1")
    e.i(f"s_cselect_b32 s{T}, 0, 1")
    e.i(f"v_mov_b32 v3, s{T}")
    e.i(f"s_lshl_b32 s{T+1}, s{S_W}, 2")
    e.i(f"s_add_u32 s{T+1}, s{T+1}, {L_MISC}")
    e.i(f"v_mov_b32 v4, s{T+1}")
    e.i(f"ds_write_b32 v4, v3")
    for w in range(4):
        if w > 0: e.label(f"L_red_w{w}")
        if w < 3:
            e.i(f"s_cmp_lg_u32 s{S_W}, {w}")
            e.i(f"s_cbranch_scc1 L_red_w{w+1}")
        for j in range(4):
            if j == w: continue
            sl = j * 3 + ((w - j - 1) & 3)
            e.i(f"v_add_u32 v3, {L_RED + sl*4096}, v{V_L16}")
            for q4 in range(4):
                e.i(f"ds_write_b128 v3, {vr(OB+16*j+4*q4,4)} offset:{1024*q4}")
        for k in range(16):
            e.i(f"v_mov_b32 v{16+k}, v{OB+16*w+k}")
        if w < 3: e.i("s_branch L_red_done")
    e.label("L_red_done")
    e.i("s_waitcnt lgkmcnt(0)")
    stamp(e, cfg, 50)
    e.i("s_barrier")
    stamp(e, cfg, 51)
    e.i(f"v_mov_b32 v4, {L_MISC}")
    e.i(f"ds_read_b128 v[8:11], v4")
    e.i(f"s_mul_i32 s{T}, s{S_W}, {3*4096}")
    e.i(f"s_add_u32 s{T}, s{T}, {L_RED}")
    e.i(f"v_add_u32 v3, s{T}, v{V_L16}")
    for s_ in range(3):
        for q4 in range(4):
            e.i(f"ds_read_b128 {vr(64+16*s_+4*q4,4)}, v3 offset:{4096*s_+1024*q4}")
    e.i(f"s_lshl_b32 s{T}, s{S_R}, 2")
    e.i(f"s_add_u32 s{T}, s{T}, s{S_W}")
    e.i(f"s_lshl_b32 s{T}, s{T}, 4")
    e.i(f"s_add_u32 s{T}, s{T}, s{S_H}")
    e.i(f"s_lshl_b32 s{T}, s{T}, 11")
    e.i(f"s_add_u32 s{T+4}, s{T}, {WS_OF}")
    e.i("s_waitcnt lgkmcnt(12)")
    e.i("v_or_b32 v8, v8, v9")
    e.i("v_or3_b32 v8, v8, v10, v11")
    e.i("s_nop 0")
    e.i(f"v_readfirstlane_b32 s{T}, v8")
    e.i("s_nop 3")
    e.i(f"s_andn2_b32 s{T}, s{T}, s{S_SLOW}")
    e.i(f"s_cmp_lg_u32 s{T}, 0")
    e.i("s_cbranch_scc1 L_slow")
    for s_ in range(3):
        e.i(f"s_waitcnt lgkmcnt({8-4*s_})")
        for k in range(16):
            e.i(f"v_add_f32 v{16+k}, v{16+k}, v{64+16*s_+k}")
    e.i("v_rcp_f32 v3, v16")
    e.i("s_nop 0")
    for k in range(16):
        if k in (0, 8): continue
        e.i(f"v_mul_f32 v{16+k}, v{16+k}, v3")
    for m in range(8):
        if m in (0, 4):
            e.i(f"v_cvt_pk_bf16_f32 v{32+m}, 0, v{16+2*m+1}")
        else:
            e.i(f"v_cvt_pk_bf16_f32 v{32+m}, v{16+2*m}, v{16+2*m+1}")
    stamp(e, cfg, 52)
    if cfg.tags:
        e.i("v_or_b32 v32, 0xffff, v32")
        e.i("v_or_b32 v36, 0xffff, v36")
    e.i(f"buffer_store_dwordx4 v[32:35], v{V_L16}, {rs(R_WS)}, s{T+4} offen sc1")
    e.i(f"buffer_store_dwordx4 v[36:39], v{V_L16}, {rs(R_WS)}, s{T+4} offen offset:1024 sc1")
    e.i("s_barrier")

def b2_slow(e, cfg):
    T = S_T0
    e.c("==== slow path: true row max ====")
    e.label("L_slow")
    e.i("s_waitcnt vmcnt(0) lgkmcnt(0)")
    M = 48
    for j in range(4): e.i(f"v_mov_b32 v{M+j}, 0xff800000")
    e.i(f"s_mov_b32 s{S_KV+1}, 0")
    e.label("L_slow_loop")
    for f in range(2):
        e.i(f"buffer_load_dwordx4 {vr(KVB+4*f,4)}, v{V_KVO}, {rs(R_WS)}, s{S_KV+1} offen offset:{1024*f} sc1")
    e.i("s_waitcnt vmcnt(0)")
    for j in range(4):
        e.i(f"v_mfma_f32_32x32x16_bf16 v[16:31], {vr(KVB,4)}, {vr(QB+8*j,4)}, 0")
        e.i(f"v_mfma_f32_32x32x16_bf16 v[16:31], {vr(KVB+4,4)}, {vr(QB+8*j+4,4)}, v[16:31]")
        e.i("s_nop 7"); e.i("s_nop 7")
        for k in range(0, 16, 2):
            e.i(f"v_max3_f32 v{M+j}, v{16+k}, v{17+k}, v{M+j}")
        e.i("s_nop 7")
    e.i(f"s_add_u32 s{S_KV+1}, s{S_KV+1}, 16384")
    e.i(f"s_cmp_lt_u32 s{S_KV+1}, {16*16384}")
    e.i("s_cbranch_scc1 L_slow_loop")
    for j in range(4):
        e.i(f"v_mov_b32 v{52+j}, v{M+j}")
    e.i("s_nop 1")
    for j in range(4):
        e.i(f"v_permlane32_swap_b32 v{52+j}, v{M+j}")
    e.i("s_nop 1")
    for j in range(4):
        e.i(f"v_max_f32 v{M+j}, v{52+j}, v{M+j}")
    e.i("s_barrier")
    e.i(f"s_lshl_b32 s{T}, s{S_W}, 10")
    e.i(f"s_add_u32 s{T}, s{T}, {L_RED}")
    e.i(f"v_add_u32 v3, s{T}, v{V_L16}")
    e.i(f"ds_write_b128 v3, {vr(M,4)}")
    e.i("s_waitcnt lgkmcnt(0)")
    e.i("s_barrier")
    e.i(f"v_add_u32 v3, {L_RED}, v{V_L16}")
    for w in range(4):
        e.i(f"ds_read_b128 {vr(16+4*w,4)}, v3 offset:{1024*w}")
    e.i("s_waitcnt lgkmcnt(0)")
    for j in range(4):
        e.i(f"v_max3_f32 v{M+j}, v{16+j}, v{20+j}, v{24+j}")
        e.i(f"v_max_f32 v{M+j}, v{M+j}, v{28+j}")
    e.i(f"s_mov_b32 s{T}, 0xffff")
    for j in range(4):
        e.i(f"v_sub_f32 v16, 0, v{M+j}")
        e.i(f"v_cvt_pk_bf16_f32 v17, v16, v16")
        e.i(f"v_lshlrev_b32 v18, 16, v17")
        e.i(f"v_sub_f32 v16, v16, v18")
        e.i(f"v_cvt_pk_bf16_f32 v19, v16, v16")
        e.i(f"v_lshlrev_b32 v18, 16, v19")
        e.i(f"v_sub_f32 v16, v16, v18")
        e.i(f"v_bfi_b32 v17, s{T}, v17, v19")
        e.i(f"v_cvt_pk_bf16_f32 v18, v16, 0")
        e.i(f"v_cndmask_b32 v{QB+8*j+6}, v{QB+8*j+6}, v17, s[{S_MHH}:{S_MHH+1}]")
        e.i(f"v_cndmask_b32 v{QB+8*j+7}, v{QB+8*j+7}, v18, s[{S_MHH}:{S_MHH+1}]")
    e.i(f"s_mov_b32 s{S_SLOW}, 1")
    e.i(f"s_lshl_b32 s{S_KV+1}, s{S_R}, 14")
    kv_load(e, 0, advance=False)
    e.i("s_waitcnt vmcnt(0)")
    e.i("s_barrier")
    e.i("s_branch L_attn_start")

def a3_main(e, cfg):
    T = S_T0
    e.c("==== A3: out_a = q * y ====")
    a3_qaddr(e, cfg)
    e.i(f"buffer_load_dwordx4 {vr(QPF,4)}, v{V_A3OFF}, {rs(R_Q)}, 0 offen{NTF[0]}")
    e.i(f"s_mov_b32 s{T+1}, 7168")
    e.i(f"buffer_load_dwordx4 {vr(QPF+4,4)}, v{V_A3OFF}, {rs(R_Q)}, s{T+1} offen{NTF[0]}")
    e.i(f"s_lshr_b32 s{T}, s{S_RB}, 2")
    e.i(f"s_add_u32 s{T}, s{T}, 2")
    e.i(f"s_and_b32 s{T}, s{T}, 7")
    e.i(f"s_lshr_b32 s{T}, s{T}, 2")
    e.i(f"s_lshl_b32 s{T+1}, s{S_CB}, 6")
    e.i(f"s_lshl_b32 s{T+2}, s{S_W}, 4")
    e.i(f"s_add_u32 s{T+1}, s{T+1}, s{T+2}")
    e.i(f"v_and_b32 v7, 15, v{V_LANE}")
    e.i(f"v_add_u32 v7, s{T+1}, v7")
    e.i(f"v_lshrrev_b32 v8, 1, v7")
    e.i(f"v_and_b32 v7, 1, v7")
    e.i(f"v_lshlrev_b32 v7, 1, v7")
    e.i(f"v_lshl_add_u32 v7, v8, 2, v7")
    e.i(f"v_add_u32 v7, s{T}, v7")
    poll(e, cfg, FL_A2, 7, "a2", tmp=8)
    stamp(e, cfg, 12)
    e.i(f"s_lshl_b32 s{T}, s{S_CB}, 6")
    e.i(f"s_lshl_b32 s{T+1}, s{S_W}, 4")
    e.i(f"s_add_u32 s{T}, s{T}, s{T+1}")
    e.i(f"s_lshl_b32 s{T}, s{T}, 12")
    e.i(f"s_lshl_b32 s{T+1}, s{S_RB}, 7")
    e.i(f"s_add_u32 s{T}, s{T}, s{T+1}")
    e.i(f"s_add_u32 s{T}, s{T}, {WS_YT}")
    e.i(f"s_add_u32 s{T+1}, s{T}, {8*4096}")
    e.i(f"v_lshrrev_b32 v3, 3, v{V_LANE}")
    e.i(f"v_lshlrev_b32 v13, 12, v3")
    e.i(f"v_and_b32 v14, 7, v{V_LANE}")
    e.i(f"v_lshl_add_u32 v13, v14, 4, v13")
    e.i(f"buffer_load_dwordx4 {vr(YL,4)}, v13, {rs(R_WS)}, s{T} offen sc1")
    e.i(f"buffer_load_dwordx4 {vr(YL+4,4)}, v13, {rs(R_WS)}, s{T+1} offen sc1")
    e.i(f"v_mul_u32_u24 v3, 144, v3")
    e.i(f"v_lshl_add_u32 v15, v14, 4, v3")
    e.i(f"s_mul_i32 s{T}, s{S_W}, {16*144}")
    e.i(f"s_add_u32 s{T+1}, s{T}, {L_A3}")
    e.i(f"v_add_u32 v3, s{T+1}, v15")
    e.i(f"s_add_u32 s{T+1}, s{T}, {L_A3R}")
    e.i(f"v_add_u32 v12, s{T+1}, v15")
    e.i(f"v_and_b32 v8, 15, v{V_LANE}")
    e.i(f"v_mul_u32_u24 v8, 144, v8")
    e.i(f"v_and_b32 v9, 0x30, v{V_LANE}")
    e.i(f"v_add3_u32 v8, v8, v9, s{T+1}")
    e.i(f"v_lshrrev_b32 v13, 4, v{V_LANE}")
    e.i(f"v_lshlrev_b32 v13, 3, v13")
    e.i(f"v_bfe_u32 v14, v{V_LANE}, 2, 2")
    e.i(f"v_add_u32 v13, v13, v14")
    e.i(f"v_mul_u32_u24 v13, 144, v13")
    e.i(f"v_and_b32 v14, 3, v{V_LANE}")
    e.i(f"v_lshlrev_b32 v14, 3, v14")
    e.i(f"s_lshl_b32 s{T}, s{S_W}, 5")
    e.i(f"s_add_u32 s{T}, s{T}, {L_A3}")
    e.i(f"v_add3_u32 v13, v13, v14, s{T}")
    e.i("s_waitcnt vmcnt(0)")
    e.i(f"ds_write_b128 v3, {vr(YL,4)}")
    e.i(f"ds_write_b128 v3, {vr(YL+4,4)} offset:{8*144}")
    swbar(e)
    for it in range(2):
        for jj in range(2):
            e.i(f"ds_read_b64_tr_b16 {vr(16+4*it+2*jj,2)}, v13 offset:{(32*it+4*jj)*144}")
    e.i("s_waitcnt lgkmcnt(2)")
    e.i(f"ds_write_b128 v8, v[16:19]")
    e.i("s_waitcnt lgkmcnt(1)")
    e.i(f"ds_write_b128 v8, v[20:23] offset:64")
    e.i("s_waitcnt lgkmcnt(0)")
    e.i(f"ds_read_b128 v[16:19], v12")
    e.i(f"ds_read_b128 v[20:23], v12 offset:{8*144}")
    if cfg.a3late:
        e.i(f"v_mov_b32 v4, {L_CNTRD}")
        sw_wait(e, 4, target_imm=8, sleep=6)
    e.i(f"s_mov_b32 s{T}, 0xffff0000")
    e.i("s_waitcnt lgkmcnt(0)")
    for it in range(2):
        for m in range(4):
            y = 16 + 4*it + m; q = QPF + 4*it + m
            e.i(f"v_lshlrev_b32 v24, 16, v{y}")
            e.i(f"v_and_b32 v25, s{T}, v{y}")
            e.i(f"v_lshlrev_b32 v26, 16, v{q}")
            e.i(f"v_and_b32 v27, s{T}, v{q}")
            e.i(f"v_mul_f32 v24, v24, v26")
            e.i(f"v_mul_f32 v25, v25, v27")
            e.i(f"v_cvt_pk_bf16_f32 v{32+4*it+m}, v24, v25")
    e.i(f"buffer_store_dwordx4 v[32:35], v{V_A3OFF+1}, {rs(R_OUT)}, 0 offen{OUTF[0]}")
    e.i(f"s_mov_b32 s{T}, {8*1792}")
    e.i(f"buffer_store_dwordx4 v[36:39], v{V_A3OFF+1}, {rs(R_OUT)}, s{T} offen{OUTF[0]}")

def b3_addr(e, cfg):
    T = S_T0
    e.c("==== B3: addresses ====")
    e.i(f"s_and_b32 s{T+3}, s{S_W}, 1")
    e.i(f"v_lshrrev_b32 v8, 5, v{V_LANE}")
    e.i(f"v_mul_u32_u24 v8, 7, v8")
    e.i(f"v_bfe_u32 v9, v{V_LANE}, 2, 2")
    e.i(f"v_add_u32 v8, v8, v9")
    e.i(f"v_bfe_u32 v9, v{V_LANE}, 4, 1")
    e.i(f"v_lshlrev_b32 v9, 5, v9")
    e.i(f"v_and_b32 v10, 3, v{V_LANE}")
    e.i(f"v_lshl_add_u32 v9, v10, 3, v9")
    for f in range(2):
        e.i(f"v_add_u32 v10, {14*f}, v8")
        e.i(f"v_bfe_u32 v11, v10, 1, 1")
        e.i(f"v_xor_b32 v11, s{T+3}, v11")
        e.i(f"v_lshlrev_b32 v11, 6, v11")
        e.i(f"v_lshl_add_u32 v10, v10, 7, v11")
        e.i(f"v_add_u32 v{12+f}, v10, v9")
        if L_WO: e.i(f"v_add_u32 v{12+f}, {L_WO}, v{12+f}")
    e.i(f"s_lshr_b32 s{T}, s{S_W}, 1")
    e.i(f"s_lshl_b32 s{T}, s{T}, 15")
    e.i(f"s_add_u32 s{T}, s{T}, {L_OF}")
    e.i(f"v_add_u32 v15, s{T}, v{V_L16}")
    e.i(f"s_mul_i32 s{T}, s{S_W}, 2560")
    e.i(f"s_add_u32 s{T}, s{T}, {L_OUTB}")
    e.i(f"v_and_b32 v8, 31, v{V_LANE}")
    e.i(f"v_mul_u32_u24 v8, 80, v8")
    e.i(f"v_lshrrev_b32 v9, 5, v{V_LANE}")
    e.i(f"v_lshlrev_b32 v9, 3, v9")
    e.i(f"v_add3_u32 v8, v8, v9, s{T}")
    e.i(f"v_lshrrev_b32 v9, 2, v{V_LANE}")
    e.i(f"v_mul_u32_u24 v10, 80, v9")
    e.i(f"v_and_b32 v11, 3, v{V_LANE}")
    e.i(f"v_lshlrev_b32 v11, 4, v11")
    e.i(f"v_add3_u32 v10, v10, v11, s{T}")
    e.i(f"s_lshl_b32 s{T}, s{S_RB}, 6")
    e.i(f"s_lshr_b32 s{T+2}, s{S_W}, 1")
    e.i(f"s_lshl_b32 s{T+2}, s{T+2}, 5")
    e.i(f"s_add_u32 s{T}, s{T}, s{T+2}")
    e.i(f"s_mul_i32 s{T}, s{T}, 1792")
    e.i(f"s_lshl_b32 s{T+2}, s{S_CB}, 7")
    e.i(f"s_lshl_b32 s{T+3}, s{T+3}, 6")
    e.i(f"s_add_u32 s{T}, s{T}, s{T+2}")
    e.i(f"s_add_u32 s{T}, s{T}, s{T+3}")
    e.i(f"s_add_u32 s{T}, s{T}, 896")
    e.i(f"v_mul_u32_u24 v9, 1792, v9")
    e.i(f"v_add3_u32 v14, v9, v11, s{T}")

def b3_load_static(e, cfg):
    T = S_T0
    if not cfg.tags:
        poll(e, cfg, FL_B2, 7, "b2")
    else:
        e.i(f"s_lshl_b32 s{T+4}, s{T+2}, 15")
        e.i(f"s_lshl_b32 s{T+5}, s{T+3}, 14")
        e.i(f"s_add_u32 s{T+4}, s{T+4}, s{T+5}")
        e.i(f"s_add_u32 s{T+4}, s{T+4}, {WS_OF + 1024 + 63*16}")
        e.i(f"v_and_b32 v7, 7, v{V_LANE}")
        e.i(f"v_lshlrev_b32 v7, 11, v7")
        e.i(f"s_mov_b32 s{S_IT}, 0x40000")
        e.i(f"s_mov_b32 s{T+5}, 0xffff")
        e.label("L_rep")
        e.i(f"buffer_load_dword v8, v7, {rs(R_WS)}, s{T+4} offen sc1")
        e.i("s_waitcnt vmcnt(0)")
        e.i(f"v_and_b32 v8, s{T+5}, v8")
        e.i(f"v_cmp_ne_u32 vcc, s{T+5}, v8")
        e.i("s_cbranch_vccz L_rep_done")
        e.i(f"s_sub_u32 s{S_IT}, s{S_IT}, 1")
        e.i("s_cbranch_scc1 L_rep_done")
        e.i("s_sleep 2")
        e.i("s_branch L_rep")
        e.label("L_rep_done")
    stamp(e, cfg, 14)
    e.i(f"s_mov_b32 s{S_JJ}, 0x4000")
    e.label("L_odma")
    e.i(f"s_lshr_b32 s{T}, s{S_W}, 1")
    e.i(f"s_lshl_b32 s{T+1}, s{S_RB}, 1")
    e.i(f"s_add_u32 s{T+2}, s{T}, s{T+1}")
    e.i(f"s_and_b32 s{T+3}, s{S_W}, 1")
    e.i(f"s_lshl_b32 s{T+2}, s{T+2}, 15")
    e.i(f"s_lshl_b32 s{T+4}, s{T+3}, 14")
    e.i(f"s_add_u32 s{T+2}, s{T+2}, s{T+4}")
    e.i(f"s_add_u32 s{T+2}, s{T+2}, {WS_OF}")
    e.i(f"s_lshl_b32 s{T}, s{T}, 15")
    e.i(f"s_add_u32 s{T}, s{T}, s{T+4}")
    e.i(f"s_add_u32 s{T}, s{T}, {L_OF}")
    for u in range(16):
        e.i(f"s_add_u32 m0, s{T}, {1024*u}")
        if u == 0: e.i("s_nop 0")
        else: e.i(f"s_add_u32 s{T+2}, s{T+2}, 1024")
        e.i(f"buffer_load_dwordx4 v{V_L16}, {rs(R_WS)}, s{T+2} offen sc1 lds")
    if cfg.tags:
        e.i(f"v_add_u32 v7, s{T}, v{V_L16}")
        e.i("s_waitcnt vmcnt(0)")
        for u in range(16):
            e.i(f"ds_read_b32 v{32+u}, v7 offset:{1024*u}")
        e.i("s_waitcnt lgkmcnt(8)")
        for u in range(1, 8): e.i(f"v_and_b32 v32, v32, v{32+u}")
        e.i("s_waitcnt lgkmcnt(0)")
        for u in range(8, 16): e.i(f"v_and_b32 v32, v32, v{32+u}")
        e.i(f"s_mov_b32 s{T+5}, 0xffff")
        e.i(f"v_and_b32 v32, s{T+5}, v32")
        e.i(f"v_cmp_ne_u32 vcc, s{T+5}, v32")
        e.i("s_cbranch_vccz L_odma_ok")
        e.i(f"s_sub_u32 s{S_JJ}, s{S_JJ}, 1")
        e.i("s_cbranch_scc0 L_odma")
        e.label("L_odma_ok")

def b3_main(e, cfg):
    T = S_T0
    e.c("==== B3: out projection ====")
    e.i(f"s_lshr_b32 s{T}, s{S_W}, 1")
    e.i(f"s_lshl_b32 s{T+1}, s{S_RB}, 1")
    e.i(f"s_add_u32 s{T+2}, s{T}, s{T+1}")
    e.i(f"s_and_b32 s{T+3}, s{S_W}, 1")
    e.i(f"s_lshl_b32 s{T+4}, s{T+3}, 9")
    e.i(f"s_add_u32 s{T+4}, s{T+4}, s{T+2}")
    e.i(f"v_and_b32 v7, 7, v{V_LANE}")
    e.i(f"v_lshlrev_b32 v7, 6, v7")
    e.i(f"v_add_u32 v7, s{T+4}, v7")
    if cfg.dynb3:
        e.i(f"v_lshlrev_b32 v7, {FL_SH}, v7")
        e.i(f"v_add_u32 v7, {WS_FL + FL_B2}, v7")
        e.i(f"s_lshl_b32 s{T+2}, s{T+2}, 15")
        e.i(f"s_lshl_b32 s{T+4}, s{T+3}, 14")
        e.i(f"s_add_u32 s{T+2}, s{T+2}, s{T+4}")
        e.i(f"s_add_u32 s{T+2}, s{T+2}, {WS_OF}")
        e.i(f"s_lshr_b32 s{T}, s{S_W}, 1")
        e.i(f"s_lshl_b32 s{T}, s{T}, 15")
        e.i(f"s_add_u32 s{T}, s{T}, s{T+4}")
        e.i(f"s_add_u32 s{T}, s{T}, {L_OF}")
        e.i(f"s_mov_b32 s{S_JJ}, 0xff")
        e.i(f"s_mov_b32 s{S_IT}, 0x40000")
        e.label("L_dyn_poll")
        e.i(f"buffer_load_dwordx2 v[4:5], v7, {rs(R_WS)}, 0 offen sc1")
        e.i("s_waitcnt vmcnt(0)")
        e.i(f"v_cmp_eq_u64 vcc, s[{S_NONCE}:{S_NONCE+1}], v[4:5]")
        e.i(f"s_sub_u32 s{S_IT}, s{S_IT}, 1")
        e.i(f"s_cselect_b32 s{T+1}, -1, vcc_lo")
        e.i(f"s_and_b32 s{T+1}, s{T+1}, s{S_JJ}")
        e.i("s_cbranch_scc0 L_dyn_none")
        e.label("L_dyn_issue")
        e.i(f"s_ff1_i32_b32 s{T+4}, s{T+1}")
        e.i(f"s_bitset0_b32 s{T+1}, s{T+4}")
        e.i(f"s_bitset0_b32 s{S_JJ}, s{T+4}")
        e.i(f"s_lshl_b32 s{T+4}, s{T+4}, 11")
        e.i(f"s_add_u32 m0, s{T}, s{T+4}")
        e.i(f"s_add_u32 s{T+5}, s{T+2}, s{T+4}")
        e.i(f"buffer_load_dwordx4 v{V_L16}, {rs(R_WS)}, s{T+5} offen sc1 lds")
        e.i(f"s_add_u32 m0, m0, 1024")
        e.i(f"s_add_u32 s{T+5}, s{T+5}, 1024")
        e.i(f"buffer_load_dwordx4 v{V_L16}, {rs(R_WS)}, s{T+5} offen sc1 lds")
        e.i(f"s_cmp_lg_u32 s{T+1}, 0")
        e.i("s_cbranch_scc1 L_dyn_issue")
        e.i(f"s_cmp_eq_u32 s{S_JJ}, 0")
        e.i("s_cbranch_scc1 L_dyn_done")
        e.label("L_dyn_none")
        e.i("s_sleep 1")
        e.i("s_branch L_dyn_poll")
        e.label("L_dyn_done")
        stamp(e, cfg, 14)
    else:
        b3_load_static(e, cfg)
    if cfg.b3pipe:
        order = [h for h in (0,1,2,3,8,9,10,11)] + [h for h in (4,5,6,7,12,13,14,15)]
    else:
        order = list(range(16))
    steps = [(h, f) for h in order for f in range(2)]
    NB = 4
    def rd(k):
        h, f = steps[k]
        b = 32 + 8*(k % NB)
        for jj in range(2):
            e.i(f"ds_read_b64_tr_b16 {vr(b+2*jj,2)}, v{12+f} offset:{(28*h+4*jj)*128}")
        e.i(f"ds_read_b128 {vr(b+4,4)}, v15 offset:{1024*(2*h+f)}")
    def run(k0, k1):
        for k in range(k0, min(k0 + NB - 1, k1)): rd(k)
        for k in range(k0, k1):
            if k + NB - 1 < k1: rd(k + NB - 1)
            nyl = 3 * min(NB - 1, k1 - 1 - k)
            e.i(f"s_waitcnt lgkmcnt({nyl})")
            b = 32 + 8*(k % NB)
            if cfg.tags:
                e.i(f"v_and_b32 v{b+4}, 0xffff0000, v{b+4}")
                e.i("s_nop 1")
            e.i(f"v_mfma_f32_32x32x16_bf16 v[16:31], {vr(b,4)}, {vr(b+4,4)}, {'0' if k == 0 else 'v[16:31]'}")
    if cfg.b3pipe:
        e.i("s_waitcnt vmcnt(8)")
        e.i("s_barrier")
        run(0, 16)
        e.i("s_waitcnt vmcnt(0)")
        e.i("s_barrier")
        run(16, 32)
    else:
        stamp(e, cfg, 46)
        e.i("s_waitcnt vmcnt(0)")
        stamp(e, cfg, 47)
        e.i("s_barrier")
        stamp(e, cfg, 48)
        run(0, 32)
        stamp(e, cfg, 49)
    e.i("s_nop 7"); e.i("s_nop 7")
    for m in range(8):
        e.i(f"v_cvt_pk_bf16_f32 v{48+m}, v{16+2*m}, v{17+2*m}")
    for g in range(4):
        e.i(f"ds_write_b64 v8, {vr(48+2*g,2)} offset:{16*g}")
    e.i("s_waitcnt lgkmcnt(0)")
    e.i(f"ds_read_b128 v[56:59], v10")
    e.i(f"ds_read_b128 v[60:63], v10 offset:{16*80}")
    e.i(f"s_mov_b32 s{T}, {16*1792}")
    e.i("s_waitcnt lgkmcnt(1)")
    e.i(f"buffer_store_dwordx4 v[56:59], v14, {rs(R_OUT)}, 0 offen{OUTF[0]}")
    e.i("s_waitcnt lgkmcnt(0)")
    e.i(f"buffer_store_dwordx4 v[60:63], v14, {rs(R_OUT)}, s{T} offen{OUTF[0]}")

def dump_stamps(e, cfg, wave_off):
    T = S_T0
    if cfg.stamps:
        e.i(f"s_lshl_b32 s{T}, s2, 3")
        e.i(f"s_add_u32 s{T}, s{T}, s{S_W}")
        if wave_off: e.i(f"s_add_u32 s{T}, s{T}, {wave_off}")
        e.i(f"s_lshl_b32 s{T}, s{T}, 8")
        e.i(f"s_add_u32 s{T}, s{T}, {WS_TS}")
        e.i(f"v_lshlrev_b32 v3, 2, v{V_LANE}")
        e.i(f"buffer_store_dword v{vts()}, v3, {rs(R_WS)}, s{T} offen")

def scalar_prefetch(e, cfg, wave_off):
    T = S_T0
    e.i(f"s_lshl_b32 s{T}, s{S_RB}, 6")
    e.i(f"s_lshl_b32 s{T+1}, s{S_W}, 3")
    e.i(f"s_add_u32 s{T}, s{T}, s{T+1}")
    if wave_off: e.i(f"s_add_u32 s{T}, s{T}, {8*wave_off}")
    e.i(f"s_mul_i32 s{T}, s{T}, 896")
    e.i(f"s_lshl_b32 s{T+1}, s{S_CB}, 7")
    e.i(f"s_add_u32 s{T}, s{T}, s{T+1}")
    e.i(f"s_add_u32 s88, s{R_K}, s{T}")
    e.i(f"s_addc_u32 s89, s{R_K+1}, 0")
    e.i(f"s_add_u32 s90, s{R_V}, s{T}")
    e.i(f"s_addc_u32 s91, s{R_V+1}, 0")
    for i in range(8):
        e.i(f"s_load_dword s92, s[88:89], {896*i}")
    for i in range(7):
        e.i(f"s_load_dword s93, s[90:91], {896*i}")

def role_b(e, cfg):
    T = S_T0
    ROLE[0] = "B"
    ids_b(e, cfg)
    addr_b(e, cfg)
    if cfg.prefetch: l2_prefetch_addr(e, cfg)
    swbar_init(e)
    if cfg.stamps: e.i(f"v_mov_b32 v{vts()}, 0")
    e.i("s_waitcnt lgkmcnt(0)")
    if cfg.stamps:
        e.i(f"v_writelane_b32 v{vts()}, s{S_TS}, 16")
        e.i(f"s_getreg_b32 s{S_TS}, hwreg(HW_REG_XCC_ID)")
        e.i(f"v_writelane_b32 v{vts()}, s{S_TS}, 60")
        e.i(f"s_getreg_b32 s{S_TS}, hwreg(HW_REG_HW_ID)")
        e.i(f"v_writelane_b32 v{vts()}, s{S_TS}, 61")
    e.i("s_barrier")
    e.i("s_setprio 2")
    if cfg.spf: scalar_prefetch(e, cfg, 0)
    stamp(e, cfg, 17) if not cfg.spf else None
    if cfg.prefetch: l2_prefetch(e, cfg)
    b1_consts(e)
    b1_issue(e); b1_issue(e)
    if cfg.ago:
        e.i(f"v_mov_b32 v4, {L_CNTGO}")
        sw_arrive(e, addr=4)
    nonce_early(e, cfg)
    stamp(e, cfg, 19)
    b1_traddr(e, cfg)
    stamp(e, cfg, 21)
    b1_loop(e, cfg)
    stamp(e, cfg, 3)
    e.i(f"v_mov_b32 v4, {L_CNTRD}")
    sw_arrive(e, addr=4)
    get_nonce(e, cfg)
    b1_epilogue_kv(e, cfg)
    if cfg.qlow: e.i("s_setprio 0")
    stamp(e, cfg, 5)
    e.i(f"s_waitcnt vmcnt({6 if cfg.tags else 4})")
    swbar(e)
    def pub():
        e.i("s_waitcnt vmcnt(0)")
        publish(e, cfg, FL_B1, [f"s_lshl_b32 s{T}, s{S_H}, 4", f"s_add_u32 s{T}, s{T}, s{S_R}"])
    if cfg.midk:
        b1_q(e, cfg, mid=pub, midk=cfg.midk)
    else:
        b1_q(e, cfg)
        pub()
    stamp(e, cfg, 4)
    b1_epilogue_q(e, cfg)
    swbar(e)
    e.i("s_setprio 0")
    stamp(e, cfg, 7)
    if cfg.stop_after >= 3:
        b2_main(e, cfg)
        if cfg.stop_after >= 4: b3_addr(e, cfg)
        if not cfg.tags:
            e.i("s_waitcnt vmcnt(0)")
            publish(e, cfg, FL_B2, [f"s_lshl_b32 s{T}, s{S_H}, 4", f"s_add_u32 s{T}, s{T}, s{S_R}"], tmp=4)
        stamp(e, cfg, 12)
    if cfg.stop_after >= 4:
        e.i("s_cmp_ge_u32 s2, 224")
        e.i("s_cbranch_scc1 L_finB")
        b3_main(e, cfg)
        e.label("L_finB")
    stamp(e, cfg, 15)
    dump_stamps(e, cfg, 0)

def role_a(e, cfg):
    T = S_T0
    ROLE[0] = "A"
    e.label("L_roleA")
    e.i("s_setprio 3")
    e.i(f"s_sub_u32 s{S_W}, s{S_W}, 4")
    addr_a(e, cfg)
    swbar_init(e)
    if cfg.stamps: e.i(f"v_mov_b32 v{vts()}, 0")
    e.i("s_waitcnt lgkmcnt(0)")
    if cfg.stamps: e.i(f"v_writelane_b32 v{vts()}, s{S_TS}, 16")
    e.i("s_barrier")
    if cfg.spf: scalar_prefetch(e, cfg, 4)
    stamp(e, cfg, 17) if not cfg.spf else None
    if cfg.noA:
        e.i(f"s_or_b32 s{T}, s2, s{S_W}")
        e.i("s_cbranch_scc1 L_noA_end")
        e.i(f"s_memrealtime s[{S_NONCE}:{S_NONCE+1}]")
        e.i("s_waitcnt lgkmcnt(0)")
        e.i(f"s_or_b32 s{S_NONCE}, s{S_NONCE}, 1")
        e.i(f"v_mov_b32 v76, s{S_NONCE}")
        e.i(f"v_mov_b32 v77, s{S_NONCE+1}")
        e.i("v_mov_b32 v78, 0")
        e.i("s_mov_b64 exec, 1")
        e.i(f"buffer_store_dwordx2 v[76:77], v78, {rs(R_DBG)}, 0 offen sc1")
        e.i("s_waitcnt vmcnt(0)")
        e.label("L_noA_end")
        e.i("s_endpgm")
    if cfg.ago:
        e.i(f"v_mov_b32 v8, {L_CNTGO}")
        sw_wait(e, 8, target_imm=4, sleep=2)
    if cfg.apf:
        e.i(f"s_lshl_b32 s{T}, s{S_RB}, 6")
        e.i(f"s_lshl_b32 s{T+1}, s{S_W}, 4")
        e.i(f"s_add_u32 s{T}, s{T}, s{T+1}")
        e.i(f"s_mul_i32 s{T}, s{T}, 896")
        e.i(f"s_lshl_b32 s{T+1}, s{S_CB}, 7")
        e.i(f"s_add_u32 s{T}, s{T}, s{T+1}")
        e.i(f"v_mul_u32_u24 v8, 896, v{V_LANE}")
        e.i(f"v_add_u32 v8, s{T}, v8")
        e.i(f"v_subrev_u32 v9, {3*896}, v8")
        e.i("s_mov_b64 exec, 0x7ffff")
        e.i(f"buffer_load_dword v244, v9, {rs(R_K)}, 0 offen")
        e.i("s_mov_b64 exec, 0xffff")
        e.i(f"buffer_load_dword v245, v8, {rs(R_V)}, 0 offen")
        e.i("s_mov_b64 exec, -1")
    if cfg.await_b:
        e.i(f"v_mov_b32 v8, {L_CNTB}")
        sw_wait(e, 8, target_imm=4*cfg.await_b, sleep=4)
    stamp(e, cfg, 19)
    a1_loads(e, cfg)
    if cfg.hearly: h_loads(e, cfg)
    a2_dload(e, cfg)
    if cfg.aprio1: e.i("s_setprio 1")
    e.i(f"s_or_b32 s{T}, s2, s{S_W}")
    e.i("s_cbranch_scc1 L_nononce")
    e.i(f"s_memrealtime s[{S_NONCE}:{S_NONCE+1}]")
    e.i("s_waitcnt lgkmcnt(0)")
    e.i(f"s_or_b32 s{S_NONCE}, s{S_NONCE}, 1")
    e.i(f"v_mov_b32 v76, s{S_NONCE}")
    e.i(f"v_mov_b32 v77, s{S_NONCE+1}")
    e.i("v_mov_b32 v78, 0")
    e.i("s_mov_b64 exec, 1")
    e.i(f"buffer_store_dwordx2 v[76:77], v78, {rs(R_DBG)}, 0 offen sc1")
    e.i("s_mov_b64 exec, -1")
    e.label("L_nononce")
    a1_addr2(e, cfg)
    a1_compute(e, cfg, 2 if cfg.hearly else 0)
    stamp(e, cfg, 18)
    nonce_early(e, cfg)
    a1_compute_b(e, cfg)
    stamp(e, cfg, 1)
    e.i("s_waitcnt vmcnt(0)")
    get_nonce(e, cfg)
    publish(e, cfg, FL_A1, [f"s_mov_b32 s{T}, s2"], tmp=24)
    e.i("s_setprio 1")
    stamp(e, cfg, 2)
    e.i("s_cmp_ge_u32 s2, 224")
    e.i("s_cbranch_scc1 L_finA")
    if not cfg.hearly: h_loads(e, cfg)
    swbar(e)
    e.i("s_waitcnt vmcnt(0)")
    a2_hstage(e, cfg)
    if cfg.stop_after >= 2:
        a2_main(e, cfg)
        stamp(e, cfg, 9)
        e.i("s_waitcnt vmcnt(0)")
        publish(e, cfg, FL_A2, [f"s_mov_b32 s{T}, s2"])
        if cfg.alow: e.i("s_setprio 0")
        stamp(e, cfg, 10)
    if cfg.stop_after >= 4:
        wo_addr(e, cfg)
        e.i(f"v_mov_b32 v4, {L_CNTRD}")
        sw_wait(e, 4, target_imm=4, sleep=8)
        wo_first(e, cfg)
        for t in range(13):
            e.i("s_waitcnt vmcnt(1)")
            wo_next(e)
        stamp(e, cfg, 11)
        a3_main(e, cfg)
        if cfg.tags:
            e.i(f"s_lshl_b32 s{T}, s{S_RB}, 1")
            e.i(f"v_bfe_u32 v8, v{V_LANE}, 4, 1")
            e.i(f"v_add_u32 v8, s{T}, v8")
            e.i(f"v_and_b32 v7, 15, v{V_LANE}")
            e.i(f"v_lshl_add_u32 v7, v7, 6, v8")
            poll(e, cfg, FL_B1, 7, "b1c", tmp=8)
        e.i("s_waitcnt vmcnt(0)")
    e.label("L_finA")
    stamp(e, cfg, 15)
    dump_stamps(e, cfg, 4)

def build(cfg):
    e = E()
    prologue(e, cfg)
    role_b(e, cfg)
    e.label("L_end")
    e.i("s_endpgm")
    role_a(e, cfg)
    e.i("s_endpgm")
    if cfg.stop_after >= 3:
        ROLE[0] = "B"
        b2_slow(e, cfg)
        e.i("s_endpgm")
    return e

HEADER = f"""; concat( q * (longconv(kshift*v) + D*kv) , MHA(x) @ wo )  --  one persistent launch, 256 workgroups (one per CU), 8 waves each.
; @launch grid=(256,1,1) block=(512,1,1) lds={LDS_SIZE}
.amdgcn_target "amdgcn-amd-amdhsa--gfx950"
.text
.globl {KNAME}
.p2align 8
.type {KNAME},@function
{KNAME}:
"""
FOOTER = f"""
.section .rodata,"a"
.p2align 6
.amdhsa_kernel {KNAME}
  .amdhsa_next_free_vgpr 256
  .amdhsa_next_free_sgpr 102
  .amdhsa_accum_offset 256
  .amdhsa_group_segment_fixed_size 0
  .amdhsa_kernarg_size 96
  .amdhsa_user_sgpr_count 2
  .amdhsa_user_sgpr_kernarg_segment_ptr 1
  .amdhsa_system_sgpr_workgroup_id_x 1
  .amdhsa_float_denorm_mode_32 3
.end_amdhsa_kernel
"""

if __name__ == "__main__":
    import argparse
    ap = argparse.ArgumentParser()
    ap.add_argument("-o", default=f"cdna_kernels/{NAME}.s")
    ap.add_argument("--stop", type=int, default=99)
    ap.add_argument("--stamps", action="store_true")
    ap.add_argument("--nosync", action="store_true")
    ap.add_argument("--realtime", action="store_true")
    ap.add_argument("--noprefetch", action="store_true")
    ap.add_argument("--span", action="store_true")
    ap.add_argument("--skipA", action="store_true")
    ap.add_argument("--bdelay", type=int, default=0)
    ap.add_argument("--awaitb", type=int, default=0)
    ap.add_argument("--nt", action="store_true")
    ap.add_argument("--qlow", action="store_true")
    ap.add_argument("--asleep", type=int, default=1)
    ap.add_argument("--ntx", action="store_true")
    ap.add_argument("--ntw", action="store_true")
    ap.add_argument("--nto", action="store_true")
    ap.add_argument("--aprio1", action="store_true")
    ap.add_argument("--a3late", action="store_true")
    ap.add_argument("--midk", type=int, default=0)
    ap.add_argument("--dynb3", action="store_true")
    ap.add_argument("--spf", action="store_true")
    ap.add_argument("--trim", action="store_true")
    ap.add_argument("--poll2", action="store_true")
    ap.add_argument("--pad", action="store_true")
    ap.add_argument("--shift4", action="store_true")
    ap.add_argument("--lalign", type=int, default=3)
    ap.add_argument("--hearly", action="store_true")
    ap.add_argument("--ago", action="store_true")
    ap.add_argument("--apf", action="store_true")
    ap.add_argument("--fine", action="store_true")
    ap.add_argument("--noA", action="store_true")
    ap.add_argument("--bsleep", type=int, default=3)
    ap.add_argument("--b3pipe", action="store_true")
    ap.add_argument("--alow", action="store_true")
    ap.add_argument("--tags", action="store_true")
    ap.add_argument("--outflag", default="")
    ap.add_argument("--xmap", type=int, default=4)
    a = ap.parse_args()
    cfg = Cfg(); cfg.stop_after = a.stop; cfg.stamps = a.stamps; cfg.nosync = a.nosync; cfg.realtime = a.realtime; cfg.prefetch = not a.noprefetch; cfg.span = a.span; cfg.skipA = a.skipA; cfg.bdelay = a.bdelay; cfg.await_b = a.awaitb; cfg.qlow = a.qlow; ASLEEP[0] = a.asleep; NTF[0] = ' nt' if a.nt else ''; NTX[0] = ' nt' if a.ntx else ''; NTW[0] = ' nt' if a.ntw else ''; NTO[0] = ' nt' if a.nto else ''; cfg.aprio1 = a.aprio1; cfg.a3late = a.a3late; cfg.midk = a.midk; cfg.dynb3 = a.dynb3; cfg.spf = a.spf; cfg.trim = a.trim; cfg.poll2 = a.poll2; cfg.pad = a.pad; cfg.lalign = a.lalign; cfg.shift4 = a.shift4; cfg.hearly = a.hearly; cfg.ago = a.ago; cfg.apf = a.apf; cfg.fine = a.fine; cfg.noA = a.noA; cfg.bsleep = a.bsleep; cfg.b3pipe = a.b3pipe; cfg.alow = a.alow; cfg.tags = a.tags; cfg.outflag = a.outflag; OUTF[0] = (' ' + a.outflag) if a.outflag else ''; cfg.xmap = a.xmap
    e = build(cfg)
    open(a.o, "w").write(HEADER + e.text() + FOOTER)
    print("wrote", a.o, len(e.lines), "lines")
```
